```python
import torch

def _softmax(x, axis=-1):
    return torch.softmax(x, dim=axis)
def _gelu(x):
    return torch.nn.functional.gelu(x, approximate="tanh")
def _silu(x):
    return torch.nn.functional.silu(x)
def _sigmoid(x):
    return torch.sigmoid(x)
def _layernorm(x, axis=-1, eps=1e-5):
    m = x.mean(dim=axis, keepdim=True)
    v = x.var(dim=axis, keepdim=True, unbiased=False)
    return (x - m) / torch.sqrt(v + eps)
def _scatter_add(tgt, idx, src, axis=0):
    return tgt.clone().index_add_(axis, idx, src)
def _segment_sum(src, seg, n):
    out = torch.zeros((n,) + src.shape[1:], dtype=src.dtype)
    return out.index_add_(0, seg, src)
def _pad(x, pw):
    flat = tuple(v for pair in reversed(pw) for v in pair)
    return torch.nn.functional.pad(x, flat)

kernel_name = 'standalone__modern_conv_block_replknet__vision'

def setup_inputs():

    _w = (lambda a: (lambda t: t.to(torch.bfloat16) if t.is_floating_point() else t)(torch.as_tensor(a)))
    H = W = 512
    C = 96
    K = 1
    return {
        "x": _w((lambda *s: torch.randn(*s, dtype=torch.bfloat16) * 0.05)(1, H, W, C)),
        "dw_large": _w((lambda *s: torch.randn(*s, dtype=torch.bfloat16) * 0.4)(K, K, C) * (1.0 / K)),
        "dw_small": _w((lambda *s: torch.randn(*s, dtype=torch.bfloat16) * 0.4)(5, 5, C) * 0.2),
        "w1": _w((lambda *s: torch.randn(*s, dtype=torch.bfloat16) * 0.4)(C, 4 * C) * (C ** -0.5)),
        "w2": _w((lambda *s: torch.randn(*s, dtype=torch.bfloat16) * 0.1)(4 * C, C) * ((4 * C) ** -0.5)),
    }

def reference(x, dw_large, dw_small, w1, w2):
    B, H, W, C = x.shape
    Kl = dw_large.shape[0]
    pl = (Kl - 1) // 2
    xpl = _pad(x, ((0,0),(pl,pl),(pl,pl),(0,0)))
    out = torch.zeros_like(x)
    for i in range(Kl):
        for j in range(Kl):
            out = out + xpl[:, i:i+H, j:j+W, :] * dw_large[i, j][None, None, None, :]
    Ks = dw_small.shape[0]
    ps = (Ks - 1) // 2
    xps = _pad(x, ((0,0),(ps,ps),(ps,ps),(0,0)))
    for i in range(Ks):
        for j in range(Ks):
            out = out + xps[:, i:i+H, j:j+W, :] * dw_small[i, j][None, None, None, :]
    h = _layernorm(out, axis=-1)
    h = _gelu(torch.einsum('bhwc,ce->bhwe', h, w1))
    h = torch.einsum('bhwe,ec->bhwc', h, w2)
    return x + h
```

```python
import re

class Ins:
    __slots__ = ("text", "kind", "rd", "wr", "cost", "passes", "srcc", "srcab", "sdwa", "block", "tag")
    def __init__(self, text, kind, rd=(), wr=(), cost=4, passes=0, srcc=(), srcab=(), sdwa=False, block=None, tag=None):
        self.text = text; self.kind = kind; self.rd = frozenset(rd); self.wr = frozenset(wr)
        self.cost = cost; self.passes = passes; self.srcc = frozenset(srcc); self.srcab = frozenset(srcab)
        self.sdwa = sdwa; self.block = block; self.tag = tag
    def __repr__(self): return self.text

def R(base, n=1): return range(base, base + n)
def vr(base, n=1): return f"v{base}" if n == 1 else f"v[{base}:{base+n-1}]"

_vre = re.compile(r"\bv(\d+)\b|\bv\[(\d+):(\d+)\]")
def vregs(tok):
    out = []
    for m in _vre.finditer(tok):
        if m.group(1) is not None: out.append(int(m.group(1)))
        else: out += list(range(int(m.group(2)), int(m.group(3)) + 1))
    return out

TRANS = ("v_exp_", "v_rcp_", "v_rsq_", "v_log_", "v_sqrt_")
RMW = ("v_fmac_", "v_permlane32_swap", "v_permlane16_swap", "v_fma_mixhi", "v_fma_mixlo", "v_pk_fmac", "v_dot2c")

def V(text):
    mn, rest = text.split(None, 1)
    ops = [o.strip() for o in rest.split(",")]
    wr = vregs(ops[0]); rd = []
    for o in ops[1:]: rd += vregs(o.split(" ")[0] if not o.startswith("v[") else o.split("]")[0] + "]")
    kind = "valu"; cost = 4
    if mn.startswith(TRANS): kind = "trans"; cost = 8
    sdwa = "dst_sel:WORD" in text or mn.startswith(("v_fma_mixhi", "v_fma_mixlo"))
    if mn.startswith(RMW) or "UNUSED_PRESERVE" in text: rd += wr
    if mn.startswith("v_permlane"):
        wr = wr + vregs(ops[1]); kind = "permlane"; cost = 8
    if mn.startswith("v_pk_") and mn.endswith("_f32"): kind = "pk32"
    if mn.startswith(("v_readfirstlane", "v_readlane")): kind = "readlane"
    return Ins(text, kind, rd, wr, cost, sdwa=sdwa)

def S(text): return Ins(text, "salu")
def RAW(text, kind="other", rd=(), wr=()): return Ins(text, kind, rd, wr)
def LABEL(name): return Ins(name + ":", "label", cost=0)
def COMMENT(t): return Ins("; " + t, "label", cost=0)

def MFMA(shape, d, a, b, c=None):
    nd, nab, passes = {"32x32x16": (16, 4, 8), "32x32x8": (16, 2, 8), "16x16x32": (4, 4, 4)}[shape]
    ctext = "0" if c is None else vr(c, nd)
    srcc = [] if c is None else list(R(c, nd))
    ab = list(R(a, nab)) + list(R(b, nab))
    return Ins(f"v_mfma_f32_{shape}_bf16 {vr(d,nd)}, {vr(a,nab)}, {vr(b,nab)}, {ctext}", "mfma",
               ab + srcc, R(d, nd), cost=8 if nab == 4 else 4, passes=passes, srcc=srcc, srcab=ab)

def MFMA16(shape, d, a, b, c=None):
    i = MFMA(shape, d, a, b, c); i.text = i.text.replace("_bf16", "_f16"); return i

def SMFMAC(k, d, a, b, idx):
    na, nb = (4, 8) if k == 64 else (2, 4)
    ab = list(R(a, na)) + list(R(b, nb)) + [idx]
    return Ins(f"v_smfmac_f32_16x16x{k}_bf16 {vr(d,4)}, {vr(a,na)}, {vr(b,nb)}, v{idx}", "mfma",
               ab + list(R(d, 4)), R(d, 4), cost=12 if k == 64 else 8, passes=4, srcc=R(d, 4), srcab=ab)

def DSR(op, d, n, addr, off=""):
    return Ins(f"{op} {vr(d,n)}, v{addr}{(' ' + off) if off else ''}", "dsr", [addr], R(d, n))
def DSW(op, addr, s, n, off=""):
    return Ins(f"{op} v{addr}, {vr(s,n)}{(' ' + off) if off else ''}", "dsw", [addr] + list(R(s, n)), [])
def VMEM(text, rd=(), wr=(), store=False):
    return Ins(text, "vstore" if store else "vmem", rd, wr)

def insert_lgkm(seq):
    out = []; pend = []
    for ins in seq:
        if ins.kind == "waitall":
            pend = []; out.append(ins); continue
        touched = ins.rd | ins.wr
        need = -1
        for k, regs in enumerate(pend):
            if regs & touched: need = k
        if need >= 0:
            n = len(pend) - 1 - need
            n = min(n, 15)
            out.append(Ins(f"s_waitcnt lgkmcnt({n})", "wait"))
            pend = pend[len(pend) - n:] if n else []
        out.append(ins)
        if ins.kind == "dsr": pend.append(ins.wr)
        elif ins.kind == "dsw": pend.append(frozenset())
    return out, pend

def states(ins):
    if ins.kind == "label": return 0
    if ins.kind == "opaque": return 0
    m = re.match(r"s_nop (\d+)", ins.text)
    if m: return int(m.group(1)) + 1
    return 1

VALU_KINDS = ("valu", "trans", "permlane", "pk32", "readlane")

def required(p, c):
    need = 0
    pv = p.kind in VALU_KINDS
    cv = c.kind in VALU_KINDS
    if pv and c.kind == "mfma" and (p.wr & c.rd): need = max(need, 2)
    if pv and c.kind == "permlane" and (p.wr & c.rd): need = max(need, 2)
    if pv and c.kind == "readlane" and (p.wr & c.rd): need = max(need, 1)
    if p.kind == "trans" and cv and c.kind != "trans" and (p.wr & c.rd): need = max(need, 1)
    if p.kind == "trans" and c.kind == "trans" and (p.wr & c.rd): need = max(need, 1)
    if p.sdwa and cv and (p.wr & (c.rd | c.wr)): need = max(need, 1)
    if p.kind == "mfma":
        big = {4: 8, 8: 12}[p.passes]
        if c.kind == "mfma":
            if p.wr & c.srcab: need = max(need, big)
            if p.wr & c.srcc:
                if not (p.wr == c.srcc and p.passes == c.passes): need = max(need, {4: 6, 8: 10}[p.passes])
            elif p.wr & c.wr:
                need = max(need, {4: 6, 8: 10}[p.passes])
        elif cv or c.kind in ("dsr", "dsw", "vmem", "vstore"):
            if p.wr & (c.rd | c.wr): need = max(need, big)
        if cv and (p.srcc & c.wr): need = max(need, {4: 3, 8: 7}[p.passes])
    if p.kind == "vstore" and (p.rd & c.wr) and (cv or c.kind in ("dsr", "vmem", "mfma")): need = max(need, 2)
    return need

def fix_hazards(seq, check_only=False):
    out = []; bad = []
    for ins in seq:
        dist = 0; need_extra = 0
        for p in reversed(out):
            if dist >= 20: break
            r = required(p, ins)
            if r > dist: need_extra = max(need_extra, r - dist)
            dist += states(p)
        if need_extra:
            if check_only: bad.append((ins.text, need_extra))
            else:
                n = need_extra
                while n > 0:
                    k = min(n, 16); out.append(Ins(f"s_nop {k-1}", "nop")); n -= k
        out.append(ins)
    return (out, bad)

def interleave(main, attach, start=0.0, end=1.0):
    total = sum(i.cost for i in main); out = []; acc = 0; k = 0; n = len(attach)
    for i in main:
        while k < n and acc >= total * (start + (end - start) * k / n): out += attach[k]; k += 1
        out.append(i); acc += i.cost
    while k < n: out += attach[k]; k += 1
    return out
```

```python
import sys, struct, math
import numpy as np
from asmlib import *

class Cfg:
    NS = 4
    D = 5
    N0 = 13
    GELU = "B"
    PRIO = False
cfg = Cfg()
for a in sys.argv[2:]:
    k, v = a.split("=")
    setattr(cfg, k, type(getattr(cfg, k))(v) if not isinstance(getattr(cfg, k), bool) else v in ("1", "True"))

KNAME = "standalone__modern_conv_block_replknet__vision_kernel"
XS = 7072; NR = 12
TPAD = 0
TBASE = TPAD + 16
IBASE = TBASE + 96 * 160
WBASE = IBASE + 2048
WSET = 12288
XBASE = WBASE + cfg.NS * WSET
LDS_BYTES = XBASE + NR * XS
assert LDS_BYTES <= 163840, LDS_BYTES
assert WBASE % 16 == 0 and IBASE % 16 == 0
vR, vCol, vRes, vTa, vTb, vIdx, vSt, vW1b, vW2b, vW1c, vW2c, vDMA, vOffL, vOffR = range(1, 15)
T0 = 18
G = 24
W2F = 32
W1F = 56
ACC1 = (80, 96)
H = 112
ACC2 = 160
def acc2(X, b): return ACC2 + 48 * X + 16 * b
cA01, cA23, cA4, cB = H, H + 4, H + 8, H + 12
cAddr = H + 32
cTa, cTb, cRes = H + 37, H + 38, H + 39
XF = [80, 84, 88, 92, 96, 100, 104, 108, 32, 36, 40, 44]
sX, sO, sW = 16, 20, 24
sGrp, sJ, sTx, sTy, sSig, sRing, sWsrc, sWstep, sWlim, sWins, sWbase, sP, sCnt = range(36, 49)
sA16, sK16, sStO = 49, 50, 51
sRowB = 52
sRowD = 58
sWin, sXrow, sSkip = 63, 64, 65
sWaitM, sRefM = 66, 68
sAdjL = 70
sT = 71
sEx48 = 80
sInv96, sEps, sKap = 82, 83, 84
sRet = 86
sJ3k = 88

def f32bits(x): return struct.unpack("<I", struct.pack("<f", x))[0]
def f16bits(x): return int(np.float16(x).view(np.uint16))
a_c = -2.0 * math.log2(math.e) * math.sqrt(2.0 / math.pi)
b_c = a_c * 0.044715
kap = -((-b_c) ** (1.0 / 3.0))
if cfg.GELU in ("B",):
    kap_use = float(np.float16(kap))
    A_imm = f16bits(a_c / kap_use) * 0x10001
    K_imm = f16bits(kap_use) * 0x10001
else:
    kap_use = kap
    A_imm = f32bits(a_c / kap)
    K_imm = f32bits(kap)

uid = [0]
def lab(p):
    uid[0] += 1
    return f"L{p}_{uid[0]}"

def opaque(lines):
    return Ins("\n".join("    " + l if not l.endswith(":") else l for l in lines).strip(), "opaque", cost=0)

def wdma_lines(dst_sreg):
    L = [f"s_add_u32 m0, s{dst_sreg}, s{sJ3k}", f"s_add_u32 s{sT}, s{sWsrc}, s{sWbase}"]
    for u in range(3):
        L.append(f"buffer_load_dwordx4 v{vDMA}, s[{sW}:{sW+3}], s{sT} offen lds")
        if u < 2: L += ["s_add_u32 m0, m0, 1024", f"s_add_u32 s{sT}, s{sT}, s{sWins}"]
    L += [f"s_add_u32 s{sWsrc}, s{sWsrc}, s{sWstep}", f"s_cmp_eq_u32 s{sWsrc}, s{sWlim}", f"s_cselect_b32 s{sWsrc}, 0, s{sWsrc}"]
    return L

def ring_adv():
    return [f"s_add_u32 s{sRing}, s{sRing}, {WSET}", f"s_cmp_eq_u32 s{sRing}, {WBASE + cfg.NS * WSET}",
            f"s_cselect_b32 s{sRing}, {WBASE}, s{sRing}", f"s_add_u32 s{sSig}, s{sSig}, 1"]

def boundary(nA, skippable=False, nA_p1=None, clear_skip=False):
    lb, l1, ld, le = lab("B"), lab("w"), lab("d"), lab("e")
    L = []
    if skippable: L += [f"s_cmp_lg_u32 s{sSkip}, 0", f"s_cbranch_scc1 {le}"]
    L += [f"s_cmp_eq_u32 s{sGrp}, 0", f"s_cbranch_scc0 {lb}"]
    if nA_p1 is None: L += [f"s_waitcnt vmcnt({nA})"]
    else:
        l2, l3 = lab("p"), lab("q")
        L += [f"s_cmp_eq_u32 s{sP}, 0", f"s_cbranch_scc0 {l2}", f"s_waitcnt vmcnt({nA})", f"s_branch {l3}", f"{l2}:", f"s_waitcnt vmcnt({nA_p1})", f"{l3}:"]
    L += ["s_barrier"] + wdma_lines(sRing) + [f"s_branch {ld}", f"{lb}:",
          f"s_bitcmp1_b64 s[{sWaitM}:{sWaitM+1}], s{sSig}", f"s_cbranch_scc0 {l1}", "s_waitcnt vmcnt(0)", f"{l1}:", "s_barrier",
          f"s_bitcmp1_b64 s[{sRefM}:{sRefM+1}], s{sSig}", f"s_cbranch_scc0 {ld}", f"s_call_b64 s[{sRet}:{sRet+1}], Lrefill", f"{ld}:"]
    L += ring_adv()
    if clear_skip: L += [f"s_mov_b32 s{sSkip}, 0"]
    if skippable: L += [f"{le}:"]
    return opaque(L)

def row_dma_lines():
    t0, t1, t2 = sT, sT + 1, sT + 2
    L = [f"s_lshl_b32 s{t0}, s{sTy}, 5", f"s_add_u32 s{t0}, s{t0}, s{sXrow}", f"s_sub_u32 s{t0}, s{t0}, 2",
         f"s_mul_i32 s{t1}, s{t0}, 98304", f"s_mul_i32 s{t2}, s{sTx}, 6144", f"s_add_u32 s{t1}, s{t1}, s{t2}",
         f"s_cmp_lt_u32 s{t0}, 512", f"s_cselect_b32 s{t1}, s{t1}, 0x80000000",
         f"s_mov_b32 s{t0}, s{sXrow}", f"s_cmp_ge_u32 s{t0}, 24", f"s_cselect_b32 s{t2}, 24, 0", f"s_sub_u32 s{t0}, s{t0}, s{t2}",
         f"s_cmp_ge_u32 s{t0}, 12", f"s_cselect_b32 s{t2}, 12, 0", f"s_sub_u32 s{t0}, s{t0}, s{t2}",
         f"s_and_b32 s{t2}, s{t0}, 1", f"s_lshl_b32 s{t2}, s{t2}, 3", f"s_mul_i32 s{t0}, s{t0}, {XS}", f"s_add_u32 s{t0}, s{t0}, s{t2}",
         f"s_add_u32 m0, s{t0}, {XBASE}", f"s_sub_u32 s{t2}, s{t1}, s{sAdjL}",
         f"buffer_load_dwordx4 v{vOffL}, s[{sX}:{sX+3}], s{t2} offen lds",
         f"s_add_u32 s{t1}, s{t1}, 384"]
    for a in range(1, 9):
        L += ["s_add_u32 m0, m0, 784"]
        if a > 1: L += [f"s_add_u32 s{t1}, s{t1}, 768"]
        else: L += ["s_nop 0"]
        L += [f"buffer_load_dwordx4 v{vOffR if a == 8 else vDMA + 3}, s[{sX}:{sX+3}], s{t1} offen lds"]
    return L
vL16 = vDMA + 3

def gelu_B(Sr):
    ops = []
    def st(p, k):
        a0 = Sr + 2 * p; a1 = a0 + 1; t = T0 + (p % 2) * 3; u = t + 1; w = t + 2
        return [V(f"v_cvt_pk_f16_f32 v{t}, v{a0}, v{a1}"),
                V(f"v_pk_fma_f16 v{u}, v{t}, v{t}, s{sA16}"),
                V(f"v_pk_mul_f16 v{t}, v{t}, v{u}"),
                V(f"v_exp_f16 v{u}, v{t}"),
                V(f"v_exp_f16_sdwa v{u}, v{t} dst_sel:WORD_1 dst_unused:UNUSED_PRESERVE src0_sel:WORD_1"),
                V(f"v_pk_fma_f16 v{t}, v{u}, s{sK16}, s{sK16}"),
                V(f"v_rcp_f16 v{u}, v{t}"),
                V(f"v_rcp_f16_sdwa v{w}, v{t} dst_sel:DWORD dst_unused:UNUSED_PAD src0_sel:WORD_1"),
                V(f"v_fma_mix_f32 v{u}, v{a0}, v{u}, 0 op_sel_hi:[0,1,0]"),
                V(f"v_fma_mix_f32 v{w}, v{a1}, v{w}, 0 op_sel_hi:[0,1,0]"),
                V(f"v_cvt_pk_bf16_f32 v{G+p}, v{u}, v{w}")][k]
    for q in range(0, 8, 2):
        for k in range(11):
            ops += [st(q, k), st(q + 1, k)]
    return ops

def gelu_A(Sr):
    ops = []
    for q in range(0, 16, 4):
        for k in range(6):
            for e in range(4):
                a = Sr + q + e; r = T0 + e
                ops.append([V(f"v_fma_f32 v{r}, v{a}, v{a}, s{sA16}"), V(f"v_mul_f32 v{r}, v{a}, v{r}"), V(f"v_exp_f32 v{r}, v{r}"),
                            V(f"v_fma_f32 v{r}, v{r}, s{sK16}, s{sK16}"), V(f"v_rcp_f32 v{r}, v{r}"), V(f"v_mul_f32 v{r}, v{a}, v{r}")][k])
        ops += [V(f"v_cvt_pk_bf16_f32 v{G+q//2}, v{T0}, v{T0+1}"), V(f"v_cvt_pk_bf16_f32 v{G+q//2+1}, v{T0+2}, v{T0+3}")]
    return ops
gelu = {"A": gelu_A, "B": gelu_B}[cfg.GELU]

TR = "ds_read_b64_tr_b16"
def rd_w1(j):
    return [DSR(TR, W1F + 4 * j + 2 * r, 2, vW1c, f"offset:{1024 * j + 256 * r}") for r in range(2)]
def rd_w2(sp, b):
    return [DSR(TR, W2F + 12 * sp + 4 * b + 2 * r, 2, vW2c, f"offset:{6144 + (16 * sp + 8 * r) * 192 + 64 * b}") for r in range(2)]
def g1(X, j):
    return MFMA("32x32x16", ACC1[X], W1F + 4 * j, H + 8 * j + 4 * X, None if j == 0 else ACC1[X])
def g2(X, sp, b):
    return MFMA("32x32x16", acc2(X, b), W2F + 12 * sp + 4 * b, G + 4 * sp, acc2(X, b))

def step(X):
    Y = 1 - X
    ld = (X == 0)
    att = [[g2(Y, 1, 0)] + (rd_w2(0, 0) + rd_w2(1, 0) if ld else []),
           [g1(Y, 0)] + (rd_w2(0, 1) + rd_w1(0) if ld else []),
           [g2(Y, 1, 1)] + (rd_w2(0, 2) + rd_w2(1, 1) if ld else []),
           [g1(Y, 1)] + (rd_w1(1) if ld else []),
           [g2(Y, 1, 2)] + (rd_w2(1, 2) if ld else []),
           [g1(Y, 2)] + (rd_w1(2) if ld else []),
           [g1(Y, 3)] + (rd_w1(3) if ld else []),
           [g2(X, 0, 0)],
           [g1(Y, 4)] + (rd_w1(4) if ld else []),
           [g2(X, 0, 1)],
           [g1(Y, 5)] + (rd_w1(5) if ld else []),
           [g2(X, 0, 2)]]
    return interleave(gelu(ACC1[X]), att)

def conv_reads(g, part):
    ta = f"offset0:{160 * (g % 2)}"
    o = 160 * (g % 2)
    def B(row): return [DSR("ds_read_b64", cB + 4 * row + 2 * q, 2, cAddr + row, f"offset:{192 * q + 8 * g}") for q in range(2)]
    if part == 0:
        return [DSR("ds_read2_b32", cA01, 2, cTa, f"offset0:{o} offset1:{o+1}"), DSR("ds_read2_b32", cA01 + 2, 2, cTa, f"offset0:{o+2} offset1:{o+3}")] + B(0) + B(1)
    if part == 1:
        return [DSR("ds_read2_b32", cA23, 2, cTa, f"offset0:{o+16} offset1:{o+17}"), DSR("ds_read2_b32", cA23 + 2, 2, cTa, f"offset0:{o+18} offset1:{o+19}")] + B(2) + B(3)
    return [DSR("ds_read2_b32", cA4, 2, cTb, f"offset0:{o} offset1:{o+1}")] + B(4)

sS, sQ = T0, T0 + 1
def stats(g):
    y = ACC2 + 4 * g; L = []
    for e in range(4):
        if g == 0 and e == 0:
            L += [V(f"v_mul_f32 v{sQ}, v{y}, v{y}")]
        elif g == 0 and e == 1:
            L += [V(f"v_add_f32 v{sS}, v{y}, v{y+1}"), V(f"v_fmac_f32 v{sQ}, v{y+1}, v{y+1}")]
        else:
            L += [V(f"v_add_f32 v{sS}, v{sS}, v{y+e}"), V(f"v_fmac_f32 v{sQ}, v{y+e}, v{y+e}")]
    return L

def conv_group(g):
    y = ACC2 + 4 * g; L = []
    nxt = g + 1 < 24
    bump = nxt and (g + 1) % 2 == 0
    st = stats(g - 2) if g >= 2 else []
    L.append(SMFMAC(64, y, cA01, cB, vIdx))
    if bump: L.append(V(f"v_add_u32 v{cTa}, 1280, v{cTa}"))
    if nxt: L += conv_reads(g + 1, 0)
    L += st[:3]
    L.append(SMFMAC(64, y, cA23, cB + 8, vIdx))
    if nxt: L += conv_reads(g + 1, 1)
    L += st[3:6]
    L.append(SMFMAC(32, y, cA4, cB + 16, vIdx))
    if bump: L.append(V(f"v_add_u32 v{cTb}, 1280, v{cTb}"))
    if nxt: L += conv_reads(g + 1, 2)
    L += st[6:]
    return L

def seg0():
    L = [COMMENT("seg0: row addresses, zero accumulators, first conv groups")]
    t = sT
    for i in range(6):
        L += [S(f"s_lshl_b32 s{t}, s{sJ}, 1"), S(f"s_add_u32 s{t}, s{t}, s{sWin}"), S(f"s_add_u32 s{t}, s{t}, {i}"),
              S(f"s_cmp_ge_u32 s{t}, {NR}"), S(f"s_cselect_b32 s{t+1}, {NR}, 0"), S(f"s_sub_u32 s{t}, s{t}, s{t+1}"),
              S(f"s_mul_i32 s{t}, s{t}, {XS}"), S(f"s_add_u32 s{sRowB+i}, s{t}, {XBASE + 8 * (i & 1)}")]
    for i in range(5): L.append(S(f"s_sub_u32 s{sRowD+i}, s{sRowB+i+1}, s{sRowB+i}"))
    L += [V(f"v_mov_b32 v{T0+2}, 0"), V(f"v_mov_b32 v{T0+3}, 0"), V(f"v_mov_b32 v{cTa}, v{vTa}"), V(f"v_mov_b32 v{cTb}, v{vTb}")]
    for i in range(5):
        L += [V(f"v_mad_i32_i24 v{cAddr+i}, v{vR}, s{sRowD+i}, v{vCol}"), V(f"v_add_u32 v{cAddr+i}, s{sRowB+i}, v{cAddr+i}")]
    L += conv_reads(0, 0) + conv_reads(0, 1) + conv_reads(0, 2)
    for q in range(6): L.append(MFMA("32x32x8", ACC2 + 16 * q, T0 + 2, T0 + 2, None))
    L += [V(f"v_mad_i32_i24 v{cRes}, v{vR}, s{sRowD+2}, v{vRes}"), V(f"v_add_u32 v{cRes}, s{sRowB+2}, v{cRes}")]
    for g in range(cfg.N0): L += conv_group(g)
    return L

def seg1():
    L = [COMMENT("seg1: remaining conv groups, residual fragments")]
    for g in range(cfg.N0, 24): L += conv_group(g)
    for X in range(2):
        for s in range(6):
            for r in range(2):
                L.append(DSR("ds_read_b64", XF[6 * X + s] + 2 * r, 2, cRes, f"offset:{400 * X + 32 * s + 8 * r}"))
    L += [DSR("ds_read_b128", G, 4, vL16, f"offset:{IBASE}"), DSR("ds_read_b128", G + 4, 4, vL16, f"offset:{IBASE + 1024}")]
    L += stats(22) + stats(23)
    L.append(Ins("s_waitcnt lgkmcnt(0)", "waitall"))
    return L

def seg2():
    L = [COMMENT("seg2: LayerNorm, fragments, residual into the accumulators, first GEMM1")]
    L += [V(f"v_add_u32 v{vW1c}, s{sRing}, v{vW1b}")]
    for j in range(6): L += rd_w1(j)
    m, sc, sh = T0 + 2, T0 + 3, T0 + 4
    L += [V(f"v_mul_f32 v{m}, s{sInv96}, v{sS}"), V(f"v_mul_f32 v{sh}, v{m}, v{m}"), V(f"v_fma_f32 v{sc}, v{sQ}, s{sInv96}, -v{sh}"),
          V(f"v_max_f32 v{sc}, 0, v{sc}"), V(f"v_add_f32 v{sc}, s{sEps}, v{sc}"), V(f"v_rsq_f32 v{sc}, v{sc}"),
          V(f"v_mul_f32 v{sc}, s{sKap}, v{sc}"), V(f"v_mul_f32 v{sh}, -v{m}, v{sc}")]
    def norm(s):
        o = []
        for i in range(8):
            y = ACC2 + 16 * s + 2 * i
            o += [V(f"v_fma_f32 v{y}, v{y}, v{sc}, v{sh}"), V(f"v_fma_f32 v{y+1}, v{y+1}, v{sc}, v{sh}"), V(f"v_cvt_pk_bf16_f32 v{H+8*s+i}, v{y}, v{y+1}")]
        return o
    def swaps(s): return [V(f"v_permlane32_swap_b32 v{H+8*s+i}, v{H+8*s+4+i}") for i in range(4)]
    def ident(q):
        X, b = divmod(q, 3)
        return [MFMA("32x32x16", acc2(X, b), G, XF[6 * X + 2 * b], None), MFMA("32x32x16", acc2(X, b), G + 4, XF[6 * X + 2 * b + 1], acc2(X, b))]
    for s in range(6):
        att = []
        if s >= 1:
            i0, i1 = ident(s - 1)
            att = [[i0], swaps(s - 1)[:2], [i1], swaps(s - 1)[2:]]
            if s >= 3: att.append([g1(0, s - 3)])
        L += interleave(norm(s), att, 0.1, 1.0)
    i0, i1 = ident(5)
    L += [g1(0, 3), i0] + swaps(5)[:2] + [g1(0, 4)] + swaps(5)[2:] + [i1]
    L += [V(f"v_mov_b32 v{G+4+i}, 0") for i in range(4)]
    L += [g1(0, 5)]
    return L

def epilogue():
    L = [COMMENT("epilogue: last GEMM2 k-step, convert, store")]
    att = [[g2(1, 1, b)] for b in range(3)]
    def cv(X, t):
        a = acc2(X, t >> 1) + 8 * (t & 1); d = H + 24 * X + 4 * t
        return [V(f"v_cvt_pk_bf16_f32 v{d+i}, v{a+2*i}, v{a+2*i+1}") for i in range(4)]
    def stv(X, t):
        d = H + 24 * X + 4 * t
        return VMEM(f"buffer_store_dwordx4 {vr(d,4)}, v{vSt}, s[{sO}:{sO+3}], s{sStO} offen offset:{384 * X + 32 * t}", rd=[vSt] + list(R(d, 4)), store=True)
    first = []
    for t in range(6): first += cv(0, t) + [stv(0, t)]
    L += interleave(first, att, 0.0, 0.5)
    for t in range(6): L += cv(1, t) + [stv(1, t)]
    L += [S(f"s_add_u32 s{sStO}, s{sStO}, {16 * 98304}")]
    return L

def prologue():
    P = []
    a = P.append
    a(f"s_cmp_ge_u32 s2, 256"); a("s_cbranch_scc1 Lend")
    a("s_load_dwordx8 s[4:11], s[0:1], 0"); a("s_load_dwordx4 s[12:15], s[0:1], 32")
    a("v_lshrrev_b32 v16, 6, v0"); a("v_and_b32 v17, 63, v0")
    a(f"v_readfirstlane_b32 s{sT}, v16")
    a(f"s_and_b32 s{sT+1}, s2, 7"); a(f"s_lshl_b32 s{sT+1}, s{sT+1}, 5"); a(f"s_lshr_b32 s{sT+2}, s2, 3"); a(f"s_add_u32 s{sT+1}, s{sT+1}, s{sT+2}")
    a(f"s_lshr_b32 s{sTy}, s{sT+1}, 4"); a(f"s_and_b32 s{sTx}, s{sT+1}, 15")
    a(f"s_lshr_b32 s{sGrp}, s{sT}, 2"); a(f"s_and_b32 s{sJ}, s{sT}, 3")
    a(f"s_mul_i32 s{sJ3k}, s{sJ}, 3072")
    a(f"s_mov_b32 s{sEx48}, -1"); a(f"s_mov_b32 s{sEx48+1}, 0xffff")
    a(f"v_lshlrev_b32 v{vL16}, 4, v17")
    a(f"s_cmp_eq_u32 s{sTx}, 0"); a(f"s_cselect_b32 s{sAdjL}, 0, 384"); a(f"s_cselect_b32 s{sT+3}, 384, 0"); a(f"s_cselect_b32 s{sT+4}, 24, 0")
    a(f"v_subrev_u32 v{vOffL}, s{sT+3}, v{vL16}"); a(f"v_cmp_le_u32 vcc, s{sT+4}, v17"); a("s_nop 1")
    a(f"v_cndmask_b32 v{vOffL}, 2.0, v{vOffL}, vcc")
    a(f"s_cmp_eq_u32 s{sTx}, 15"); a(f"s_cselect_b32 s{sT+4}, 24, 64"); a(f"v_cmp_gt_u32 vcc, s{sT+4}, v17"); a("s_nop 1")
    a(f"v_cndmask_b32 v{vOffR}, 2.0, v{vL16}, vcc")
    a("v_mul_u32_u24 v18, 683, v0"); a("v_lshrrev_b32 v18, 16, v18")
    a("v_mul_u32_u24 v19, 96, v18"); a("v_sub_u32 v19, v0, v19")
    a("v_mul_u32_u24 v20, 960, v18"); a("v_lshl_add_u32 v20, v19, 1, v20")
    a("v_lshlrev_b32 v21, 1, v19")
    a("s_waitcnt lgkmcnt(0)")
    for (d, p, n) in ((sX, 4, 50331648), (sO, 14, 50331648), (28, 8, 4800), (32, 6, 192)):
        a(f"s_mov_b32 s{d}, s{p}"); a(f"s_and_b32 s{d+1}, s{p+1}, 0xffff"); a(f"s_mov_b32 s{d+2}, {n}"); a(f"s_mov_b32 s{d+3}, 0x20000")
    a(f"s_cmp_lt_u32 s{sJ}, 2"); a(f"s_cselect_b32 s{sW}, s10, s12"); a(f"s_cselect_b32 s{sW+1}, s11, s13")
    a(f"s_cselect_b32 s{sWsrc}, 64, 0"); a(f"s_cselect_b32 s{sWstep}, 64, 6144"); a(f"s_mov_b32 s{sWins}, 1024")
    a(f"s_cselect_b32 s{sWins}, 12288, s{sWins}"); a(f"s_mul_i32 s{sWlim}, s{sWstep}, 12")
    a(f"s_and_b32 s{sW+1}, s{sW+1}, 0xffff"); a(f"s_mov_b32 s{sW+2}, 73728"); a(f"s_mov_b32 s{sW+3}, 0x20000")
    a(f"s_and_b32 s{sT+3}, s{sJ}, 1"); a(f"s_mul_i32 s{sT+3}, s{sT+3}, 3"); a(f"s_mul_i32 s{sWbase}, s{sT+3}, s{sWins}")
    for j in range(5): a(f"buffer_load_ushort v{24+j}, v20, s[28:31], 0 offen offset:{192*j}")
    a("buffer_load_ushort v29, v21, s[32:35], 0 offen")
    a("v_lshrrev_b32 v22, 2, v17"); a("v_mul_u32_u24 v22, 768, v22"); a("v_and_b32 v23, 3, v17"); a("v_lshl_add_u32 v22, v23, 4, v22")
    a(f"s_cmp_lt_u32 s{sJ}, 2"); a("s_cselect_b64 vcc, -1, 0"); a(f"v_cndmask_b32 v{vDMA}, v{vL16}, v22, vcc")
    a(f"s_cmp_eq_u32 s{sGrp}, 0"); a("s_cbranch_scc0 Lpro_B")
    a(f"s_mov_b32 s{sXrow}, s{sJ}"); a(f"s_mov_b64 exec, s[{sEx48}:{sEx48+1}]")
    P += row_dma_lines()
    a("s_mov_b64 exec, -1")
    a(f"s_mov_b32 s{sRing}, {WBASE}")
    for q in range(cfg.NS - 1):
        P += wdma_lines(sRing); a(f"s_add_u32 s{sRing}, s{sRing}, {WSET}")
    a("s_branch Lpro_J")
    a("Lpro_B:")
    a(f"s_lshl_b32 s{sXrow}, s{sJ}, 1"); a(f"s_add_u32 s{sXrow}, s{sXrow}, 4")
    a(f"s_call_b64 s[{sRet}:{sRet+1}], Lrefill")
    a("Lpro_J:")
    a(f"s_mov_b32 s{sRing}, {WBASE + (cfg.NS - 1) * WSET}")
    a(f"s_mov_b32 s{sA16}, {A_imm:#x}"); a(f"s_mov_b32 s{sK16}, {K_imm:#x}")
    a(f"s_mov_b32 s{sInv96}, {f32bits(1/96):#x}"); a(f"s_mov_b32 s{sEps}, {f32bits(1e-5):#x}"); a(f"s_mov_b32 s{sKap}, {f32bits(kap_use):#x}")
    D = cfg.D
    wm = (1 << D) | (1 << 13) | (1 << (D + 15)); rm = 1 | (1 << (D + 2)) | (1 << 15)
    a(f"s_mov_b32 s{sWaitM}, {wm & 0xffffffff:#x}"); a(f"s_mov_b32 s{sWaitM+1}, {wm >> 32:#x}")
    a(f"s_mov_b32 s{sRefM}, {rm & 0xffffffff:#x}"); a(f"s_mov_b32 s{sRefM+1}, {rm >> 32:#x}")
    a(f"s_mov_b32 s{sSig}, 0"); a(f"s_mov_b32 s{sP}, 0"); a(f"s_xor_b32 s{sSkip}, s{sGrp}, 1"); a(f"s_lshl_b32 s{sWin}, s{sGrp}, 3")
    a(f"s_lshl_b32 s{sT}, s{sTy}, 5"); a(f"s_lshl_b32 s{sT+1}, s{sGrp}, 3"); a(f"s_add_u32 s{sT}, s{sT}, s{sT+1}"); a(f"s_lshl_b32 s{sT+1}, s{sJ}, 1")
    a(f"s_add_u32 s{sT}, s{sT}, s{sT+1}"); a(f"s_mul_i32 s{sT}, s{sT}, 98304"); a(f"s_mul_i32 s{sT+1}, s{sTx}, 6144"); a(f"s_add_u32 s{sStO}, s{sT}, s{sT+1}")
    a(f"v_bfe_u32 v{vR}, v17, 3, 1")
    a("v_and_b32 v30, 7, v17"); a("v_lshrrev_b32 v31, 5, v17"); a("v_bfe_u32 v32, v17, 4, 1")
    a("v_add_u32 v33, v30, v31"); a("v_mul_u32_u24 v33, 784, v33"); a("v_mul_u32_u24 v34, 384, v32"); a(f"v_add_u32 v{vCol}, v33, v34")
    a("v_mul_u32_u24 v33, 784, v30"); a("v_mul_u32_u24 v34, 192, v32"); a("v_add_u32 v33, v33, v34"); a("v_lshl_add_u32 v33, v31, 4, v33"); a(f"v_add_u32 v{vRes}, 384, v33")
    a("v_mul_u32_u24 v33, 768, v30"); a("v_add_u32 v33, v33, v34"); a("v_lshl_add_u32 v33, v31, 4, v33")
    a(f"s_mov_b32 s{sT}, 98304"); a(f"v_mad_u32_u24 v{vSt}, v{vR}, s{sT}, v33")
    a("v_and_b32 v33, 3, v17"); a("v_bfe_u32 v34, v17, 2, 2")
    a(f"v_mul_u32_u24 v{vIdx}, 0x5555, v33")
    a("v_mul_u32_u24 v35, 160, v33"); a("v_lshlrev_b32 v36, 2, v34"); a("v_sub_u32 v35, v35, v36")
    a("v_lshl_add_u32 v36, v31, 5, v35"); a("v_lshl_add_u32 v36, v32, 4, v36"); a(f"v_add_u32 v{vTa}, {TBASE}, v36")
    a("v_lshrrev_b32 v36, 4, v17"); a("v_lshl_add_u32 v36, v36, 3, v35"); a(f"v_add_u32 v{vTb}, {TBASE + 128}, v36")
    a("v_lshl_add_u32 v35, v31, 3, v34"); a("v_lshlrev_b32 v35, 6, v35"); a("v_lshl_add_u32 v35, v32, 5, v35"); a(f"v_lshl_add_u32 v{vW1b}, v33, 3, v35")
    a("v_lshl_add_u32 v35, v31, 2, v34"); a("v_mul_u32_u24 v35, 192, v35"); a("v_lshl_add_u32 v35, v32, 5, v35")
    a("v_and_b32 v36, 1, v17"); a("v_lshl_add_u32 v35, v36, 4, v35"); a("v_bfe_u32 v36, v17, 1, 1"); a(f"v_lshl_add_u32 v{vW2b}, v36, 3, v35")
    a(f"v_lshl_add_u32 v35, v{vR}, 2, v33")
    a("v_and_b32 v36, 1, v35"); a("v_lshlrev_b32 v36, 4, v36"); a("v_mov_b32 v37, 0x3f80"); a("v_lshlrev_b32 v36, v36, v37")
    a("v_lshrrev_b32 v35, 1, v35"); a("v_lshl_add_u32 v35, v32, 2, v35")
    a("v_bfe_u32 v37, v17, 2, 1"); a("v_cmp_eq_u32 vcc, v37, v31"); a("s_nop 1"); a("v_cndmask_b32 v35, 8, v35, vcc")
    for d in range(8):
        a(f"v_cmp_eq_u32 vcc, {d}, v35"); a("s_nop 1"); a(f"v_cndmask_b32 v{40+d}, 0, v36, vcc")
    a(f"ds_write_b128 v{vL16}, v[40:43] offset:{IBASE}"); a(f"ds_write_b128 v{vL16}, v[44:47] offset:{IBASE + 1024}")
    nA = 9 + 3 * (cfg.NS - 1)
    a(f"s_cmp_eq_u32 s{sGrp}, 0"); a("s_cbranch_scc0 Lpro_w2"); a(f"s_waitcnt vmcnt({nA})"); a("s_branch Lpro_w3"); a("Lpro_w2:"); a("s_waitcnt vmcnt(18)"); a("Lpro_w3:")
    a("v_cmp_eq_u32 vcc, 2, v18"); a("v_lshlrev_b32 v29, 16, v29"); a("s_nop 0"); a("v_cndmask_b32 v29, 0, v29, vcc"); a("v_or_b32 v26, v26, v29")
    a("v_mov_b32 v29, 0"); a("v_mov_b32 v30, 0"); a("v_mov_b32 v31, 0")
    a("v_mul_u32_u24 v33, 160, v19"); a("v_lshl_add_u32 v33, v18, 5, v33")
    a("v_cmp_gt_u32 vcc, 480, v0"); a(f"s_and_saveexec_b64 s[{sT}:{sT+1}], vcc".replace(f"s[{sT}:{sT+1}]", "s[72:73]"))
    a(f"ds_write_b128 v33, v[24:27] offset:{TBASE}"); a(f"ds_write_b128 v33, v[28:31] offset:{TBASE + 16}")
    a("s_mov_b64 exec, -1")
    a("v_mov_b32 v28, 0"); a("v_mov_b32 v33, 0"); a(f"ds_write_b128 v33, v[28:31] offset:{TPAD}")
    for r in range(W2F + 12, W2F + 24): a(f"v_mov_b32 v{r}, 0")
    a(f"s_cmp_eq_u32 s{sGrp}, 0"); a("s_cbranch_scc0 Lpro_w4"); a(f"s_waitcnt vmcnt({3 * (cfg.NS - 1)}) lgkmcnt(0)"); a("s_barrier"); a("s_branch Louter")
    a("Lpro_w4:"); a("s_waitcnt vmcnt(0) lgkmcnt(0)"); a("s_barrier")
    return P

def build():
    NS, D = cfg.NS, cfg.D
    n0 = 3 * (NS - 2)
    out = []
    hdr = ["; fused depthwise 5x5 + LayerNorm + MLP(GELU) + residual; generated by gen/gen.py",
           f"; @launch grid=(256,1,1) block=(512,1,1) lds={LDS_BYTES}",
           '.amdgcn_target "amdgcn-amd-amdhsa--gfx950"', ".text", f".globl {KNAME}", ".p2align 8", f".type {KNAME},@function", f"{KNAME}:"]
    out += hdr
    out += [l if l.endswith(":") else "    " + l for l in prologue()]
    idle = [f"s_mov_b32 s{sCnt}, {D}", "Lidle:"]
    out += [l if l.endswith(":") else "    " + l for l in idle]
    out.append(boundary(0).text)
    out += [f"    s_sub_u32 s{sCnt}, s{sCnt}, 1", f"    s_cmp_lg_u32 s{sCnt}, 0", "    s_cbranch_scc1 Lidle"]
    Bc0 = boundary(n0, skippable=True)
    Bc1 = boundary(n0 + 12, skippable=True)
    Bc2 = boundary(n0, nA_p1=n0 + 12, clear_skip=True)
    BL = boundary(n0)
    epi = epilogue()
    s0, s1, s2 = seg0(), seg1(), seg2()
    head = [V(f"v_add_u32 v{vW1c}, s{sRing}, v{vW1b}"), V(f"v_add_u32 v{vW2c}, s{sRing}, v{vW2b}")]
    body = head + step(0) + step(1)
    marks = [LABEL(n) for n in ("@epi", "@seg0", "@loop", "@loop2", "@fin", "@end")]
    lin = [marks[0]] + epi + [marks[1]] + s0 + [Bc1] + s1 + [Bc2] + s2 + [marks[2], BL] + body + [marks[3], BL] + body + [marks[4]] + epi + [marks[5]]
    lin, pend = insert_lgkm(lin); assert not pend
    lin, _ = fix_hazards(lin)
    idx = [next(k for k, i in enumerate(lin) if i is m) for m in marks]
    epi_a, cst, b1, b2, epi_b = (lin[idx[k] + 1: idx[k + 1]] for k in range(5))
    t1 = [i.text for i in b1]; t2 = [i.text for i in b2]
    loop = b2
    if t1 != t2:
        n1 = [i for i in b1 if i.kind == "nop"]; n2 = [i for i in b2 if i.kind == "nop"]
        assert [i.text for i in b1 if i.kind != "nop"] == [i.text for i in b2 if i.kind != "nop"]
        cst = cst + [Ins(f"s_nop {sum(states(i) for i in n1) - sum(states(i) for i in n2) - 1}", "nop")]
    for path in ([cst, loop, loop, epi_b, cst, loop], [loop, epi_b]):
        seq = [i for blk in path for i in blk]
        _, bad = fix_hazards(seq, check_only=True); assert not bad, bad
        chk, pend = insert_lgkm([i for i in seq if i.kind not in ("wait", "nop")])
        seq = [i for i in seq if i.kind != "nop"]
        if [i.text for i in chk] != [i.text for i in seq]:
            import difflib
            sys.stderr.write("\n".join(list(difflib.unified_diff([i.text[:70] for i in seq], [i.text[:70] for i in chk], lineterm="", n=3))[:60]) + "\n")
            raise SystemExit("lgkm waits differ between paths")
    def emit(blk):
        for i in blk: out.append(i.text if i.kind in ("label", "opaque") else "    " + i.text)
    out.append("Louter:")
    emit([Bc0])
    out += [f"    s_cmp_eq_u32 s{sP}, 0", "    s_cbranch_scc1 Lseg0"]
    emit(epi_b)
    out.append("Lseg0:")
    emit(cst)
    out += [f"    s_mov_b32 s{sCnt}, 12", ".p2align 6", "Lloop:"]
    emit(loop)
    out += [f"    s_sub_u32 s{sCnt}, s{sCnt}, 1", f"    s_cmp_lg_u32 s{sCnt}, 0", "    s_cbranch_scc1 Lloop"]
    out += [f"    s_add_u32 s{sWin}, s{sWin}, 4", f"    s_cmp_ge_u32 s{sWin}, {NR}", f"    s_cselect_b32 s{sWin}, 0, s{sWin}",
            f"    s_add_u32 s{sP}, s{sP}, 1", f"    s_cmp_eq_u32 s{sP}, 1", "    s_cbranch_scc1 Louter"]
    emit(epi_b)
    out += [f"    s_cmp_eq_u32 s{sGrp}, 0", "    s_cbranch_scc0 Lend"]
    last = D + 29
    ops = [("w", s + NS - 1) for s in range(28 - NS, 28) for _ in range(3)] + [("st", None)] * 12
    for sg in range(28, last + 1):
        k = max(i for i, o in enumerate(ops) if o == ("w", sg))
        out += [f"    s_waitcnt vmcnt({len(ops) - 1 - k})", "    s_barrier"]
        if sg + NS - 1 <= last:
            out += ["    " + l for l in wdma_lines(sRing) + ring_adv()]
            ops += [("w", sg + NS - 1)] * 3
    out += ["Lend:", "    s_endpgm"]
    out += ["Lrefill:", f"    s_mov_b64 exec, s[{sEx48}:{sEx48+1}]"]
    for r in range(2):
        out += ["    " + l for l in row_dma_lines()]
        out += [f"    s_add_u32 s{sXrow}, s{sXrow}, {1 if r == 0 else 7}"]
    out += ["    s_mov_b64 exec, -1", f"    s_setpc_b64 s[{sRet}:{sRet+1}]"]
    out += ['.section .rodata,"a"', ".p2align 6", f".amdhsa_kernel {KNAME}", "  .amdhsa_next_free_vgpr 256", "  .amdhsa_next_free_sgpr 96",
            "  .amdhsa_accum_offset 256", "  .amdhsa_group_segment_fixed_size 0", "  .amdhsa_kernarg_size 64", "  .amdhsa_user_sgpr_count 2",
            "  .amdhsa_user_sgpr_kernarg_segment_ptr 1", "  .amdhsa_system_sgpr_workgroup_id_x 1", ".end_amdhsa_kernel"]
    return "\n".join(out) + "\n"

open(sys.argv[1], "w").write(build())
```

```python
import re

class Ins:
    __slots__ = ("text", "kind", "rd", "wr", "cost", "passes", "srcc", "srcab", "sdwa", "block", "tag")
    def __init__(self, text, kind, rd=(), wr=(), cost=4, passes=0, srcc=(), srcab=(), sdwa=False, block=None, tag=None):
        self.text = text; self.kind = kind; self.rd = frozenset(rd); self.wr = frozenset(wr)
        self.cost = cost; self.passes = passes; self.srcc = frozenset(srcc); self.srcab = frozenset(srcab)
        self.sdwa = sdwa; self.block = block; self.tag = tag
    def __repr__(self): return self.text

def R(base, n=1): return range(base, base + n)
def vr(base, n=1): return f"v{base}" if n == 1 else f"v[{base}:{base+n-1}]"

_vre = re.compile(r"\bv(\d+)\b|\bv\[(\d+):(\d+)\]")
def vregs(tok):
    out = []
    for m in _vre.finditer(tok):
        if m.group(1) is not None: out.append(int(m.group(1)))
        else: out += list(range(int(m.group(2)), int(m.group(3)) + 1))
    return out

TRANS = ("v_exp_", "v_rcp_", "v_rsq_", "v_log_", "v_sqrt_")
RMW = ("v_fmac_", "v_permlane32_swap", "v_permlane16_swap", "v_fma_mixhi", "v_fma_mixlo", "v_pk_fmac", "v_dot2c")

def V(text):
    mn, rest = text.split(None, 1)
    ops = [o.strip() for o in rest.split(",")]
    wr = vregs(ops[0]); rd = []
    for o in ops[1:]: rd += vregs(o.split(" ")[0] if not o.startswith("v[") else o.split("]")[0] + "]")
    kind = "valu"; cost = 4
    if mn.startswith(TRANS): kind = "trans"; cost = 8
    sdwa = "dst_sel:WORD" in text or mn.startswith(("v_fma_mixhi", "v_fma_mixlo"))
    if mn.startswith(RMW) or "UNUSED_PRESERVE" in text: rd += wr
    if mn.startswith("v_permlane"):
        wr = wr + vregs(ops[1]); kind = "permlane"; cost = 8
    if mn.startswith("v_pk_") and mn.endswith("_f32"): kind = "pk32"
    if mn.startswith(("v_readfirstlane", "v_readlane")): kind = "readlane"
    return Ins(text, kind, rd, wr, cost, sdwa=sdwa)

def S(text): return Ins(text, "salu")
def RAW(text, kind="other", rd=(), wr=()): return Ins(text, kind, rd, wr)
def LABEL(name): return Ins(name + ":", "label", cost=0)
def COMMENT(t): return Ins("; " + t, "label", cost=0)

def MFMA(shape, d, a, b, c=None):
    nd, nab, passes = {"32x32x16": (16, 4, 8), "32x32x8": (16, 2, 8), "16x16x32": (4, 4, 4)}[shape]
    ctext = "0" if c is None else vr(c, nd)
    srcc = [] if c is None else list(R(c, nd))
    ab = list(R(a, nab)) + list(R(b, nab))
    return Ins(f"v_mfma_f32_{shape}_bf16 {vr(d,nd)}, {vr(a,nab)}, {vr(b,nab)}, {ctext}", "mfma",
               ab + srcc, R(d, nd), cost=8 if nab == 4 else 4, passes=passes, srcc=srcc, srcab=ab)

def MFMA16(shape, d, a, b, c=None):
    i = MFMA(shape, d, a, b, c); i.text = i.text.replace("_bf16", "_f16"); return i

def SMFMAC(k, d, a, b, idx):
    na, nb = (4, 8) if k == 64 else (2, 4)
    ab = list(R(a, na)) + list(R(b, nb)) + [idx]
    return Ins(f"v_smfmac_f32_16x16x{k}_bf16 {vr(d,4)}, {vr(a,na)}, {vr(b,nb)}, v{idx}", "mfma",
               ab + list(R(d, 4)), R(d, 4), cost=12 if k == 64 else 8, passes=4, srcc=R(d, 4), srcab=ab)

def DSR(op, d, n, addr, off=""):
    return Ins(f"{op} {vr(d,n)}, v{addr}{(' ' + off) if off else ''}", "dsr", [addr], R(d, n))
def DSW(op, addr, s, n, off=""):
    return Ins(f"{op} v{addr}, {vr(s,n)}{(' ' + off) if off else ''}", "dsw", [addr] + list(R(s, n)), [])
def VMEM(text, rd=(), wr=(), store=False):
    return Ins(text, "vstore" if store else "vmem", rd, wr)

def insert_lgkm(seq, old=200):
    out = []; pend = []; now = 0
    for ins in seq:
        if ins.kind == "waitall":
            pend = []; out.append(ins); continue
        touched = ins.rd | ins.wr
        need = -1
        for k, (regs, t) in enumerate(pend):
            if regs & touched: need = k
        if need >= 0:
            while need + 1 < len(pend) and now - pend[need + 1][1] >= old: need += 1
            n = len(pend) - 1 - need
            n = min(n, 15)
            n = min(n, 14)
            out.append(Ins(f"s_waitcnt lgkmcnt({n})", "wait"))
            pend = pend[len(pend) - n:] if n else []
        if ins.kind in ("dsr", "dsw", "dsw_op") and len(pend) >= 15:
            need = 0
            while need + 1 < len(pend) and now - pend[need + 1][1] >= old: need += 1
            n = min(len(pend) - 1 - need, 8)
            out.append(Ins(f"s_waitcnt lgkmcnt({n})", "wait"))
            pend = pend[len(pend) - n:] if n else []
        out.append(ins); now += ins.cost
        if ins.kind == "dsr": pend.append((ins.wr, now))
        elif ins.kind in ("dsw", "dsw_op"): pend.append((frozenset(), now))
    return out, pend

def check_lgkm(seq):
    pend = []
    for ins in seq:
        m = re.search(r"lgkmcnt\((\d+)\)", ins.text) if ins.kind in ("wait", "waitall") else None
        if m:
            n = int(m.group(1)); pend = pend[len(pend) - n:] if n else []
            continue
        touched = ins.rd | ins.wr
        for regs in pend:
            assert not (regs & touched), f"uncovered LDS read before {ins.text}"
        if ins.kind == "dsr": pend.append(ins.wr)
        elif ins.kind in ("dsw", "dsw_op"): pend.append(frozenset())
        assert len(pend) <= 15, ins.text
    return pend

import subprocess, tempfile, os
def insn_sizes(lines):
    with tempfile.TemporaryDirectory() as d:
        p = os.path.join(d, "a.s"); open(p, "w").write("\n".join(lines) + "\n")
        r = subprocess.run(["llvm-mc", "-triple=amdgcn-amd-amdhsa", "-mcpu=gfx950", "-show-encoding", p], capture_output=True, text=True)
        assert r.returncode == 0, r.stderr
        enc = [l for l in r.stdout.split("\n") if "encoding:" in l]
    sizes = []; k = 0
    for l in lines:
        t = l.strip()
        if not t or t.startswith((";", ".")) or t.endswith(":"): sizes.append(0); continue
        sizes.append(enc[k].split("encoding:")[1].count(",") + 1); k += 1
    assert k == len(enc), (k, len(enc))
    return sizes

def align8(lines, start, stop):
    sizes = insn_sizes(lines)
    out = []; off = 0; active = False; run = []
    npad = nwid = 0
    for l, sz in zip(lines, sizes):
        t = l.strip()
        if t == start + ":": active = True
        if t == stop + ":": active = False
        m = re.match(r"\.p2align (\d+)", t)
        if m: a = 1 << int(m.group(1)); off = (off + a - 1) // a * a; run = []
        if sz == 8 and active and off % 8 == 4:
            cand = [k for k in run if re.match(r"\s*v_\w+", out[k]) and "_e64" not in out[k] and not out[k].strip().startswith(("v_readfirstlane", "v_permlane", "v_writelane", "v_cndmask", "v_fmac", "v_fmaak", "v_fmamk"))]
            done = False
            for k in cand:
                if (k - run[0]) % 2 == (len(run) - 1) % 2 * 0 + 0 and False: pass
            pos = off - 4 * len(run)
            for idx, k in enumerate(run):
                if k in cand and (pos + 4 * idx) % 8 == 0:
                    mn, rest = out[k].strip().split(None, 1)
                    out[k] = f"    {mn}_e64 {rest}"; done = True; nwid += 1; break
            if not done:
                out.append("    s_nop 0"); npad += 1
            off += 4; run = []
        out.append(l)
        if sz == 4: run.append(len(out) - 1)
        elif sz > 4: run = []
        elif t.endswith(":"): run = []
        off += sz
    return out, npad, nwid

def states(ins):
    if ins.kind in ("label", "touch"): return 0
    if ins.kind == "opaque": return 0
    m = re.match(r"s_nop (\d+)", ins.text)
    if m: return int(m.group(1)) + 1
    return 1

VALU_KINDS = ("valu", "trans", "permlane", "pk32", "readlane")

def required(p, c):
    need = 0
    pv = p.kind in VALU_KINDS
    cv = c.kind in VALU_KINDS
    if pv and c.kind == "mfma" and (p.wr & c.rd): need = max(need, 2)
    if pv and c.kind == "permlane" and (p.wr & c.rd): need = max(need, 2)
    if pv and c.kind == "readlane" and (p.wr & c.rd): need = max(need, 1)
    if p.kind == "trans" and cv and c.kind != "trans" and (p.wr & c.rd): need = max(need, 1)
    if p.kind == "trans" and c.kind == "trans" and (p.wr & c.rd): need = max(need, 1)
    if p.sdwa and cv and (p.wr & (c.rd | c.wr)): need = max(need, 1)
    if p.kind == "mfma":
        big = {4: 8, 8: 12}[p.passes]
        if c.kind == "mfma":
            if p.wr & c.srcab: need = max(need, big)
            if p.wr & c.srcc:
                if not (p.wr == c.srcc and p.passes == c.passes): need = max(need, {4: 6, 8: 10}[p.passes])
            elif p.wr & c.wr:
                need = max(need, {4: 6, 8: 10}[p.passes])
        elif cv or c.kind in ("dsr", "dsw", "dsw_op", "waitall", "vmem", "vstore"):
            if p.wr & (c.rd | c.wr): need = max(need, big)
        if cv and (p.srcc & c.wr): need = max(need, {4: 3, 8: 7}[p.passes])
    if p.kind == "vstore" and (p.rd & c.wr) and (cv or c.kind in ("dsr", "vmem", "mfma")): need = max(need, 2)
    return need

def fix_hazards(seq, check_only=False):
    out = []; bad = []
    for ins in seq:
        dist = 0; need_extra = 0
        for p in reversed(out):
            if dist >= 20: break
            r = required(p, ins)
            if r > dist: need_extra = max(need_extra, r - dist)
            dist += states(p)
        if need_extra:
            if check_only: bad.append((ins.text, need_extra))
            else:
                n = need_extra
                while n > 0:
                    k = min(n, 16); out.append(Ins(f"s_nop {k-1}", "nop")); n -= k
        out.append(ins)
    return (out, bad)

def interleave(main, attach, start=0.0, end=1.0):
    total = sum(i.cost for i in main); out = []; acc = 0; k = 0; n = len(attach)
    for i in main:
        while k < n and acc >= total * (start + (end - start) * k / n): out += attach[k]; k += 1
        out.append(i); acc += i.cost
    while k < n: out += attach[k]; k += 1
    return out
```

```python
import sys, struct, math
import numpy as np, re
from asmlib import *

class Cfg:
    D = 3
    GELU = "B"
    PRIO = 1
    CPRIO = 3
    XF = 'nt'
    OF = ''
    WF = ''
    ALIGN = True
    STAMP = False
    SMASK = -1
    OLD = 200
    HW64 = True
    PBASE = 3
    ABL = ''
    CST = False
    PKS = 0
    PKN = False
    W1G = True
    R2 = False
    NOSTAT = False
    NOCRD = False
    N0 = 15
    WLATE = True
cfg = Cfg()
for a in sys.argv[2:]:
    k, v = a.split("=")
    setattr(cfg, k, type(getattr(cfg, k))(v) if not isinstance(getattr(cfg, k), bool) else v in ("1", "True"))

KNAME = "standalone__modern_conv_block_replknet__vision_kernel"
XS = 7104; NR = 12
TPAD = 0
TBASE = 48
TGRP = 784
IBASE = TBASE + 24 * TGRP
PBASE = IBASE + 2048
CBASE = PBASE + 8192
WBASE = CBASE + 16
WSET = 12288
XBASE = WBASE + 4 * WSET
LDS_BYTES = XBASE + NR * XS
assert LDS_BYTES <= 163840, LDS_BYTES
assert WBASE % 16 == 0 and IBASE % 16 == 0
vColB, vHwA, vRes, vHr, vTa, vSt, vW1b, vW2b, vW1c, vW2c, vDMA, vOffL, vOffR, vL16 = range(1, 15)
T0 = 18
G = 24
W2F = 32
W1F = 56
ACC1 = (80, 96)
H = 112
ACC2 = 160
def acc2(X, b): return ACC2 + 48 * X + 16 * b
cBuf = (56, 68)
cAddr = 48
cTa, cIdx, cRes, cHw, cHr = 51, 52, 53, 54, 55
XF = [80, 84, 88, 92, 96, 100, 104, 108, 32, 36, 40, 44]
sX, sO, sW = 16, 20, 24
sGrp, sJ, sTx, sTy, sSig, sRing, sWsrc, sWstep, sWlim, sWins, sWbase, sP, sCnt = range(36, 49)
sA16, sK16, sStO = 49, 50, 51
sWin, sXrow, sFirst = 63, 64, 65
sXM, sXinc = 66, 67
sExX = 68
sAdjL = 70
sT = 71
sEx48 = 80
sInv96, sEps, sKap = 82, 83, 84
sStO2, sTgt = 52, 53
sFres, sFh = 54, 55
sXo, sXm = 85, 86
sStInc = 87
s1k = 89
sJ3k = 88
RSUM = 2 * WBASE + 2 * WSET

def f32bits(x): return struct.unpack("<I", struct.pack("<f", x))[0]
def f16bits(x): return int(np.float16(x).view(np.uint16))
a_c = -2.0 * math.log2(math.e) * math.sqrt(2.0 / math.pi)
b_c = a_c * 0.044715
kap = -((-b_c) ** (1.0 / 3.0))
if cfg.GELU in ("B",):
    kap_use = float(np.float16(kap))
    A_imm = f16bits(a_c / kap_use) * 0x10001
    K_imm = f16bits(kap_use) * 0x10001
else:
    kap_use = kap
    A_imm = f32bits(a_c / kap)
    K_imm = f32bits(kap)

def fl(s): return ''.join(' ' + w for w in s.split('+') if w)
uid = [0]
def lab(p):
    uid[0] += 1
    return f"L{p}_{uid[0]}"

def opaque(lines):
    return Ins("\n".join("    " + l if not l.endswith(":") else l for l in lines), "opaque", cost=0)

def stamp(vreg, lane):
    if not cfg.STAMP: return []
    return ["s_memtime s[90:91]", f"s_mov_b32 m0, {lane}", "s_waitcnt lgkmcnt(0)", f"v_writelane_b32 v{vreg}, s90, m0"]
def cstamp(vreg):
    if not cfg.STAMP: return []
    if cfg.SMASK == -1: return stamp(vreg, f"s{sSig}")
    l = lab("s")
    return [f"s_bitcmp1_b64 s[96:97], s{sSig}", f"s_cbranch_scc0 {l}"] + stamp(vreg, f"s{sSig}") + [f"{l}:"]

def wdma_groups(dst):
    out = []
    for u in range(3):
        g = [f"s_add_u32 m0, {dst}, s{sJ3k}", f"s_add_u32 s{sT+8}, s{sWsrc}, s{sWbase}"] if u == 0 else \
            [f"s_add_u32 m0, m0, s{s1k}", f"s_add_u32 s{sT+8}, s{sT+8}, s{sWins}"]
        g.append(f"buffer_load_dwordx4 v{vDMA}, s[{sW}:{sW+3}], s{sT+8} offen{fl(cfg.WF)} lds")
        if u == 2: g += [f"s_add_u32 s{sWsrc}, s{sWsrc}, s{sWstep}", f"s_cmp_eq_u32 s{sWsrc}, s{sWlim}", f"s_cselect_b32 s{sWsrc}, 0, s{sWsrc}"]
        out.append(g)
    return out
def wdma_interval():
    g = wdma_groups(f"s{sT+7}") + wdma_groups(f"s{sT+7}")
    g[0] = [f"s_sub_u32 s{sT+7}, {RSUM}, s{sRing}"] + g[0]
    g[3] = [f"s_add_u32 s{sT+7}, s{sT+7}, {WSET}"] + g[3]
    return g

def row_setup():
    t0, t1, t2 = sT, sXo, sT + 1
    return [f"s_lshl_b32 s{t0}, s{sTy}, 5", f"s_add_u32 s{t0}, s{t0}, s{sXrow}", f"s_sub_u32 s{t0}, s{t0}, 2",
            f"s_mul_i32 s{t1}, s{t0}, 98304", f"s_mul_i32 s{t2}, s{sTx}, 6144", f"s_add_u32 s{t1}, s{t1}, s{t2}",
            f"s_cmp_lt_u32 s{t0}, 512", f"s_cselect_b32 s{t1}, s{t1}, 0x80000000",
            f"s_cmp_ge_u32 s{sXrow}, 24", f"s_cselect_b32 s{t2}, 24, 0", f"s_sub_u32 s{t0}, s{sXrow}, s{t2}",
            f"s_cmp_ge_u32 s{t0}, 12", f"s_cselect_b32 s{t2}, 12, 0", f"s_sub_u32 s{t0}, s{t0}, s{t2}",
            f"s_and_b32 s{t2}, s{sXrow}, 4", f"s_lshl_b32 s{t2}, s{t2}, 1", f"s_mul_i32 s{t0}, s{t0}, {XS}", f"s_add_u32 s{t0}, s{t0}, s{t2}",
            f"s_add_u32 s{sXm}, s{t0}, {XBASE}"]
def row_loads():
    out = [[f"s_mov_b32 m0, s{sXm}", f"s_sub_u32 s{sT}, s{sXo}, s{sAdjL}", f"buffer_load_dwordx4 v{vOffL}, s[{sX}:{sX+3}], s{sT} offen{fl(cfg.XF)} lds"]]
    for a in range(1, 9):
        out.append([f"s_add_u32 m0, s{sXm}, {784 * a}", f"s_add_u32 s{sT}, s{sXo}, {768 * a - 384}",
                    f"buffer_load_dwordx4 v{vOffR if a == 8 else vL16}, s[{sX}:{sX+3}], s{sT} offen{fl(cfg.XF)} lds"])
    return out
def row_dma_lines(): return row_setup() + [l for g in row_loads() for l in g]

def bar_lines(wait="s_waitcnt vmcnt(0)"):
    L = cstamp(16) + ([wait] if wait else []) + ["s_barrier"] + cstamp(17)
    L += [f"s_sub_u32 s{sRing}, {RSUM}, s{sRing}"]
    if cfg.STAMP: L += [f"s_add_u32 s{sSig}, s{sSig}, 1"]
    return L

def gelu_B(Sr):
    ops = []
    def st(p, k):
        a0 = Sr + 2 * p; a1 = a0 + 1; t = T0 + (p % 2) * 3; u = t + 1; w = t + 2
        return [V(f"v_cvt_pk_f16_f32 v{t}, v{a0}, v{a1}"),
                V(f"v_pk_fma_f16 v{u}, v{t}, v{t}, s{sA16}"),
                V(f"v_pk_mul_f16 v{t}, v{t}, v{u}"),
                V(f"v_exp_f16 v{u}, v{t}"),
                V(f"v_exp_f16_sdwa v{u}, v{t} dst_sel:WORD_1 dst_unused:UNUSED_PRESERVE src0_sel:WORD_1"),
                V(f"v_pk_fma_f16 v{t}, v{u}, s{sK16}, s{sK16}"),
                V(f"v_rcp_f16 v{u}, v{t}"),
                V(f"v_rcp_f16_sdwa v{w}, v{t} dst_sel:DWORD dst_unused:UNUSED_PAD src0_sel:WORD_1"),
                V(f"v_fma_mix_f32 v{u}, v{a0}, v{u}, 0 op_sel_hi:[0,1,0]"),
                V(f"v_fma_mix_f32 v{w}, v{a1}, v{w}, 0 op_sel_hi:[0,1,0]"),
                V(f"v_cvt_pk_bf16_f32 v{G+p}, v{u}, v{w}")][k]
    for q in range(0, 8, 2):
        for k in range(11):
            ops += [st(q, k), st(q + 1, k)]
    return ops

def gelu_A(Sr):
    ops = []
    for q in range(0, 16, 4):
        for k in range(6):
            for e in range(4):
                a = Sr + q + e; r = T0 + e
                ops.append([V(f"v_fma_f32 v{r}, v{a}, v{a}, s{sA16}"), V(f"v_mul_f32 v{r}, v{a}, v{r}"), V(f"v_exp_f32 v{r}, v{r}"),
                            V(f"v_fma_f32 v{r}, v{r}, s{sK16}, s{sK16}"), V(f"v_rcp_f32 v{r}, v{r}"), V(f"v_mul_f32 v{r}, v{a}, v{r}")][k])
        ops += [V(f"v_cvt_pk_bf16_f32 v{G+q//2}, v{T0}, v{T0+1}"), V(f"v_cvt_pk_bf16_f32 v{G+q//2+1}, v{T0+2}, v{T0+3}")]
    return ops
gelu = {"A": gelu_A, "B": gelu_B}[cfg.GELU]

TR = "ds_read_b64_tr_b16"
def rd_w1(j, c):
    return [DSR(TR, W1F + 4 * j + 2 * r, 2, vW1c, f"offset:{WSET * c + 1024 * j + 256 * r}") for r in range(2)]
def rd_w2(sp, b, c):
    return [DSR(TR, W2F + 12 * sp + 4 * b + 2 * r, 2, vW2c, f"offset:{WSET * c + 6144 + (16 * sp + 8 * r) * 192 + 64 * b}") for r in range(2)]
def g1(X, j):
    return MFMA("32x32x16", ACC1[X], W1F + 4 * j, H + 8 * j + 4 * X, None if j == 0 else ACC1[X])
def g2(X, sp, b):
    return MFMA("32x32x16", acc2(X, b), W2F + 12 * sp + 4 * b, G + 4 * sp, acc2(X, b))

def step(X, c, extra):
    Y = 1 - X
    ld = (X == 0)
    att = [[g2(Y, 1, 0)] + (rd_w2(1, 0, c) if ld else []),
           [g1(Y, 0)] + (rd_w2(0, 0, c) + rd_w1(0, c) if ld else []),
           [g2(Y, 1, 1)] + (rd_w2(0, 1, c) + rd_w2(1, 1, c) if ld else []),
           [g1(Y, 1)] + (rd_w2(0, 2, c) + rd_w1(1, c) if ld else []),
           [g2(Y, 1, 2)] + (rd_w2(1, 2, c) if ld else []),
           [g1(Y, 2)] + (rd_w1(2, c) if ld else []),
           [g1(Y, 3)] + (rd_w1(3, c) if ld else []),
           [g2(X, 0, 0)],
           [g1(Y, 4)] + (rd_w1(4, c) if ld else []),
           [g2(X, 0, 1)],
           [g1(Y, 5)] + (rd_w1(5, c) if ld else []),
           [g2(X, 0, 2)]]
    for k, v in extra.items(): att[k] = att[k] + v
    ops = gelu(ACC1[X])
    return ops[:2] + interleave(ops[2:], att)

def loop_body(grp):
    L = [opaque(bar_lines())]
    L += [V(f"v_add_u32 v{vW1c}, s{sRing}, v{vW1b}"), V(f"v_add_u32 v{vW2c}, s{sRing}, v{vW2b}")]
    ex = [{}, {}, {}, {}]
    if grp == 0:
        for k, g in enumerate(wdma_interval()):
            ex[k // 3 if k < 3 else 1][(7, 9, 11)[k] if k < 3 else (1, 3, 5)[k - 3]] = [opaque(g)]
    elif grp == 1:
        ex[0][7] = [opaque([f"s_bitcmp1_b32 s{sXM}, 0", f"s_cselect_b64 s[{sExX}:{sExX+1}], s[{sEx48}:{sEx48+1}], 0", f"s_lshr_b32 s{sXM}, s{sXM}, 1"] + row_setup())]
        rl = row_loads()
        for k, (st, sl) in enumerate(((0, 11), (1, 3), (1, 8))):
            blk = [f"s_mov_b64 exec, s[{sExX}:{sExX+1}]"] + rl[3 * k] + rl[3 * k + 1] + rl[3 * k + 2] + ["s_mov_b64 exec, -1"]
            if k == 2:
                blk += [f"s_cmp_lg_u32 s{sExX}, 0", f"s_cselect_b32 s{sT}, s{sXinc}, 0", f"s_add_u32 s{sXrow}, s{sXrow}, s{sT}",
                        f"s_cmp_lg_u32 s{sExX}, 0", f"s_cselect_b32 s{sT}, 6, 0", f"s_xor_b32 s{sXinc}, s{sXinc}, s{sT}"]
            ex[st][sl] = [opaque(blk)]
    for k in range(4):
        if cfg.PRIO: L.append(S(f"s_setprio {max(cfg.PBASE - k, 0)}"))
        L += step(k & 1, k >> 1, ex[k])
    return L

def SM32(d, a, b, idx):
    ab = list(R(a, 4)) + list(R(b, 8)) + [idx]
    return Ins(f"v_smfmac_f32_32x32x32_bf16 {vr(d,16)}, {vr(a,4)}, {vr(b,8)}, v{idx}", "mfma",
               ab + list(R(d, 16)), R(d, 16), cost=12, passes=8, srcc=R(d, 16), srcab=ab)

def unit_reads(u):
    q, rho = divmod(u, 6); buf = cBuf[u % 2]
    o = 196 * (q % 2) + 8 * rho
    L = []
    if rho == 0 and q and q % 2 == 0: L.append(V(f"v_add_u32 v{cTa}, {2 * TGRP}, v{cTa}"))
    L += [DSR("ds_read2_b32", buf + 8, 2, cTa, f"offset0:{o} offset1:{o+1}"), DSR("ds_read2_b32", buf + 10, 2, cTa, f"offset0:{o+2} offset1:{o+3}")]
    for k, c in enumerate((0, 192, 784, 976)):
        L.append(DSR("ds_read_b64", buf + 2 * k, 2, cAddr + rho // 2, f"offset:{XS * (rho & 1) + c + 8 * q}"))
    return L

def store(X, t):
    d = H + 24 * X + 4 * t
    return VMEM(f"buffer_store_dwordx4 {vr(d,4)}, v{vSt}, s[{sO}:{sO+3}], s{sStO2 if X else sStO} offen offset:{32 * t}{fl(cfg.OF)}", rd=[vSt] + list(R(d, 4)), store=True)

def res_reads(k):
    X, s = divmod(k, 6)
    return [DSR("ds_read_b64", XF[k] + 2 * r, 2, cRes, f"offset:{XS * X + 32 * s + 8 * r}") for r in range(2)]

def pk(op, d, *src, mods=""):
    return V(f"v_pk_{op}_f32 v[{d}:{d+1}], " + ", ".join(f"v[{x}:{x+1}]" for x in src) + mods)

def signal():
    t = T0
    return [V(f"v_mov_b32 v{t}, s{sT+2}"), V(f"v_mov_b32 v{t+1}, 1"),
            Ins(f"    s_mov_b64 exec, 1\n    ds_add_u32 v{t}, v{t+1}\n    s_mov_b64 exec, -1\n    s_add_u32 s{sTgt}, s{sTgt}, 4", "dsw_op", [t, t + 1], [])]
def poll():
    t = T0; l = lab("p")
    return [Ins(f"{l}:\n    ds_read_b32 v{t+1}, v{t}\n    s_waitcnt lgkmcnt(0)\n    v_readfirstlane_b32 s{sT+3}, v{t+1}\n"
                f"    s_cmp_ge_u32 s{sT+3}, s{sTgt}\n    s_cbranch_scc0 {l}", "waitall", [t], [t + 1])]

def cstage_setup():
    t = sT
    L = []
    for dst, add in ((sFh, 0), (sFres, 2)):
        L += [f"s_lshl_b32 s{t}, s{sJ}, 1", f"s_add_u32 s{t}, s{t}, s{sWin}", f"s_add_u32 s{t}, s{t}, {add}",
              f"s_cmp_ge_u32 s{t}, {NR}", f"s_cselect_b32 s{t+1}, {NR}, 0", f"s_sub_u32 s{t}, s{t}, s{t+1}", f"s_mul_i32 s{dst}, s{t}, {XS}"]
    L += [f"s_add_u32 s{t}, s{sJ}, 1", f"s_and_b32 s{t}, s{t}, 2", f"s_lshl_b32 s{t}, s{t}, 2", f"s_add_u32 s{sFres}, s{sFres}, s{t}"]
    return L

def cs(k):
    if not (cfg.STAMP and cfg.CST): return []
    return [Ins("\n".join("    " + l for l in [f"s_lshl_b32 s95, s{sP}, 3", f"s_add_u32 s95, s95, {30 + k}"] + stamp(17, "s95")), "waitall")]

def cstage():
    L = [COMMENT("row addresses, zero accumulators, convolution")]
    if cfg.CPRIO: L.append(S(f"s_setprio {cfg.CPRIO}"))
    L += [S(x) for x in cstage_setup()]
    L += [S(f"s_lshl_b32 s{sT+2}, s{sGrp}, 2"), S(f"s_add_u32 s{sT+2}, s{sT+2}, {CBASE}"), S(f"s_mov_b32 s{sT}, {XS}")]
    t0, t1, t2 = T0, T0 + 1, T0 + 4
    L += [V(f"v_bfe_u32 v{t2}, v{vL16}, 7, 2"), V(f"v_lshlrev_b32 v{t2}, 1, v{t2}"), V(f"v_mov_b32 v{T0+2}, 0"), V(f"v_mov_b32 v{T0+3}, 0")]
    for k in range(3):
        if k: L += [V(f"v_add_u32 v{t2}, 2, v{t2}")]
        L += [V(f"v_add_u32 v{t0}, s{sWin}, v{t2}"), V(f"v_subrev_u32 v{t1}, {NR}, v{t0}"), V(f"v_min_u32 v{t0}, v{t0}, v{t1}"),
              V(f"v_mad_u32_u24 v{t0}, v{t0}, s{sT}, v{vColB}"), V(f"v_and_b32 v{t1}, 4, v{t2}"), V(f"v_lshl_add_u32 v{cAddr+k}, v{t1}, 1, v{t0}")]
    L += [V(f"v_mov_b32 v{cTa}, v{vTa}"), V(f"v_bfe_u32 v{cIdx}, v{vL16}, 4, 2"), V(f"v_mul_u32_u24 v{cIdx}, 0x5555, v{cIdx}")]
    L += cs(0) + unit_reads(0) + unit_reads(1)
    for q in range(6): L.append(MFMA("32x32x8", ACC2 + 16 * q, T0 + 2, T0 + 2, None))
    L += [V(f"v_add_u32 v{cRes}, s{sFres}, v{vRes}"), V(f"v_add_u32 v{cHw}, v{cAddr}, v{vHwA}"), V(f"v_add_u32 v{cHr}, s{sFh}, v{vHr}")]
    for u in range(36):
        buf = cBuf[u % 2]
        L.append(SM32(ACC2 + 16 * (u // 6), buf + 8, buf, cIdx))
        if u + 2 < 36: L += unit_reads(u + 2)
        else: L += res_reads(3 * (u - 34)) + res_reads(3 * (u - 34) + 1) + res_reads(3 * (u - 34) + 2)
        if u % 3 == 1: L.append(store(*divmod(u // 3, 6)))
    for k in range(6, 12): L += res_reads(k)
    L += [S(f"s_add_u32 s{sStO}, s{sStO}, s{sStInc}"), S(f"s_add_u32 s{sStO2}, s{sStO}, 98304"), S(f"s_mov_b32 s{sO+2}, 50331648"), S(f"s_mov_b32 s{sStInc}, {16 * 98304}")]
    L += cs(1)
    SA, QA, ST, QT = 56, 64, 72, 76
    for q in range(6):
        for u in range(4):
            y = ACC2 + 16 * q + 4 * u
            if q == 0: L += [pk("add", SA + 2 * u, y, y + 2), pk("mul", QA + 2 * u, y, y), pk("fma", QA + 2 * u, y + 2, y + 2, QA + 2 * u)]
            else:
                for e in (0, 2): L += [pk("add", SA + 2 * u, SA + 2 * u, y + e), pk("fma", QA + 2 * u, y + e, y + e, QA + 2 * u)]
    for u in range(4): L += [V(f"v_add_f32 v{ST+u}, v{SA+2*u}, v{SA+2*u+1}"), V(f"v_add_f32 v{QT+u}, v{QA+2*u}, v{QA+2*u+1}")]
    L += [S(f"s_lshl_b32 s{sT}, s{sJ}, 11"), V(f"v_add_u32 v{T0+4}, s{sT}, v{vL16}")]
    L += [DSW("ds_write_b128", T0 + 4, ST, 4, f"offset:{PBASE}"), DSW("ds_write_b128", T0 + 4, QT, 4, f"offset:{PBASE + 1024}")]
    L.append(Ins("s_waitcnt lgkmcnt(0)", "waitall"))
    L += cs(2) + signal()
    lm = lab("m")
    L.append(opaque([f"s_cmp_lg_u32 s{sFirst}, 0", f"s_cbranch_scc1 {lm}"] + bar_lines() +
                    [f"s_cmp_eq_u32 s{sGrp}, 0", f"s_cbranch_scc0 {lm}"] + [l for gg in wdma_interval() for l in gg] + [f"{lm}:"]))
    L += poll()
    L += cs(3)
    L += [COMMENT("LayerNorm, exchange of the normalised tile, residual into the accumulators, first GEMM1")]
    PR = [56, 60, 64, 68, 48, 72, 76, G]
    dst = {(0, 0): 72, (0, 1): 76, (1, 0): 56, (1, 1): 60, (2, 0): 64, (2, 1): 68, (3, 0): G, (3, 1): G + 4}
    for w in range(4):
        for k in range(2): L.append(DSR("ds_read_b128", dst[(w, k)], 4, vL16, f"offset:{PBASE + 2048 * w + 1024 * k}"))
    for w in range(1, 4):
        for k in range(2):
            for h in (0, 2): L.append(pk("add", dst[(0, k)] + h, dst[(0, k)] + h, dst[(w, k)] + h))
    L += [DSR("ds_read_b128", G, 4, vL16, f"offset:{IBASE}"), DSR("ds_read_b128", G + 4, 4, vL16, f"offset:{IBASE + 1024}")]
    MN, SC, SH = 56, 48, 44 + 0
    SH = 60
    for u in range(4): L += [V(f"v_mul_f32 v{MN+u}, s{sInv96}, v{ST+u}")]
    for u in range(4): L += [V(f"v_mul_f32 v{SH+u}, v{MN+u}, v{MN+u}")]
    for u in range(4): L += [V(f"v_fma_f32 v{QT+u}, v{QT+u}, s{sInv96}, -v{SH+u}")]
    for u in range(4): L += [V(f"v_max_f32 v{QT+u}, 0, v{QT+u}")]
    for u in range(4): L += [V(f"v_add_f32 v{QT+u}, s{sEps}, v{QT+u}")]
    for u in range(4): L += [V(f"v_rsq_f32 v{QT+u}, v{QT+u}")]
    SC, SH2 = T0 + 2, 48
    for u in range(4): L += [V(f"v_mul_f32 v{SC+u}, s{sKap}, v{QT+u}")]
    for u in range(4): L += [V(f"v_mul_f32 v{SH2+u}, -v{MN+u}, v{SC+u}")]
    L += [V(f"v_add_u32 v{vW1c}, s{sRing}, v{vW1b}")]
    for q in range(6):
        for u in range(4):
            for e in (0, 2):
                y = ACC2 + 16 * q + 4 * u + e; o = u & 1
                L.append(pk("fma", y, y, SC + (u & 2), SH2 + (u & 2), mods=f" op_sel:[0,{o},{o}] op_sel_hi:[1,{o},{o}]"))
    L += cs(4)
    first_w1 = opaque([f"s_cmp_lg_u32 s{sFirst}, 0", "s_cbranch_scc1 Lw1wait", "Lw1wait_ret:"])
    def ident(q):
        X, b = divmod(q, 3)
        return [MFMA("32x32x16", acc2(X, b), G, XF[6 * X + 2 * b], None), MFMA("32x32x16", acc2(X, b), G + 4, XF[6 * X + 2 * b + 1], acc2(X, b))]
    def cvt(q): return [V(f"v_cvt_pk_bf16_f32 v{H+12*u+2*q+h}, v{ACC2+16*q+4*u+2*h}, v{ACC2+16*q+4*u+2*h+1}") for u in range(4) for h in range(2)]
    def hw(t): return [DSW("ds_write_b128", cHw, H + 12 * u + 4 * t, 4, f"offset:{192 * u + 16 * t}") for u in range(4)]
    for q in range(6):
        c = cvt(q)
        if q >= 1:
            i0, i1 = ident(q - 1)
            c = c[:1] + [i0] + c[1:5] + [i1] + c[5:]
        L += c
        if cfg.HW64: L += [DSW("ds_write_b64", cHw, H + 12 * u + 2 * q, 2, f"offset:{192 * u + 8 * q}") for u in range(4)]
        elif q % 2 == 1: L += hw(q // 2)
    L += cs(5) + signal()
    L += ident(5)
    L += [V(f"v_mov_b32 v{48+i}, 0") for i in range(6)]
    L += poll()
    L += cs(6)
    hr = [DSR("ds_read_b128", H + 8 * s + 4 * X, 4, cHr, f"offset:{XS * X + 32 * s}") for X in range(2) for s in range(6)]
    L += hr[:6]
    L.append(first_w1)
    for j in range(3): L += rd_w1(j, 1)
    L += [V(f"v_mov_b32 v{G+4+i}, 0") for i in range(4)]
    L += [g1(0, 0)] + rd_w1(3, 1) + rd_w1(4, 1) + [g1(0, 1)] + rd_w1(5, 1) + hr[6:9] + [g1(0, 2)] + hr[9:] + [g1(0, 3), g1(0, 4), g1(0, 5)]
    L += [V(f"v_mov_b32 v54, 0"), V(f"v_mov_b32 v55, 0")]
    L.append(Ins("s_waitcnt lgkmcnt(0)", "waitall"))
    L += cs(7)
    if cfg.CPRIO: L.append(S("s_setprio 0"))
    ab = cfg.ABL.split("+")
    if "hw" in ab: L = [i for i in L if not (i.kind == "dsw" and cHw in i.rd)]
    if "pk" in ab: L = [i for i in L if i.kind != "pk32"]
    if "brd" in ab: L = [i for i in L if not (i.text.startswith("ds_read_b64") and i.rd & set(R(cAddr, 3)))]
    if "sm" in ab: L = [i for i in L if "smfmac" not in i.text]
    if "st" in ab: L = [i for i in L if i.kind != "vstore"]
    if "unpk" in ab:
        out = []
        for i in L:
            if i.kind != "pk32": out.append(i); continue
            m = re.match(r"v_pk_(\w+)_f32 (.*?)( op_sel.*)?$", i.text); regs = [int(x) for x in re.findall(r"v\[(\d+):", m.group(2))]
            o = 1 if m.group(3) and "op_sel:[0,1" in m.group(3) else 0
            for h in range(2):
                r = [regs[0] + h, regs[1] + h] + [(x + o if m.group(3) else x + h) for x in regs[2:]]
                out.append(V(f"v_{m.group(1)}_f32 " + ", ".join(f"v{x}" for x in r)))
        L = out
    return L

def epilogue(with_stores):
    L = [COMMENT("epilogue: last GEMM2 k-step, convert")]
    att = [[g2(1, 1, b)] for b in range(3)]
    def cv(X, t):
        a = acc2(X, t >> 1) + 8 * (t & 1); d = H + 24 * X + 4 * t
        return [V(f"v_cvt_pk_bf16_f32 v{d+i}, v{a+2*i}, v{a+2*i+1}") for i in range(4)] + ([store(X, t)] if with_stores else [])
    first = []
    for t in range(6): first += cv(0, t)
    L += first[:2] + interleave(first[2:], att, 0.0, 0.5)
    for t in range(6): L += cv(1, t)
    return L

def prologue():
    P = []
    a = P.append
    a(f"s_cmp_ge_u32 s2, 256"); a("s_cbranch_scc1 Lend")
    if cfg.STAMP: a("s_memtime s[92:93]"); a("s_load_dwordx2 s[94:95], s[0:1], 56")
    a("s_load_dwordx8 s[4:11], s[0:1], 0"); a("s_load_dwordx4 s[12:15], s[0:1], 32")
    a("v_lshrrev_b32 v16, 6, v0"); a("v_and_b32 v17, 63, v0")
    a(f"v_readfirstlane_b32 s{sT}, v16")
    a(f"s_and_b32 s{sT+1}, s2, 7"); a(f"s_lshl_b32 s{sT+1}, s{sT+1}, 5"); a(f"s_lshr_b32 s{sT+2}, s2, 3"); a(f"s_add_u32 s{sT+1}, s{sT+1}, s{sT+2}")
    a(f"s_lshr_b32 s{sTy}, s{sT+1}, 4"); a(f"s_and_b32 s{sTx}, s{sT+1}, 15")
    a(f"s_lshr_b32 s{sGrp}, s{sT}, 2"); a(f"s_and_b32 s{sJ}, s{sT}, 3"); a(f"s_mov_b32 s{sXrow}, s{sT}")
    a(f"s_mul_i32 s{sJ3k}, s{sJ}, 3072"); a(f"s_movk_i32 s{s1k}, 1024")
    a(f"s_mov_b32 s{sEx48}, -1"); a(f"s_mov_b32 s{sEx48+1}, 0xffff")
    a(f"v_lshlrev_b32 v{vL16}, 4, v17")
    a(f"s_cmp_eq_u32 s{sTx}, 0"); a(f"s_cselect_b32 s{sAdjL}, 0, 384"); a(f"s_cselect_b32 s{sT+3}, 384, 0"); a(f"s_cselect_b32 s{sT+4}, 24, 0")
    a(f"v_subrev_u32 v{vOffL}, s{sT+3}, v{vL16}"); a(f"v_cmp_le_u32 vcc, s{sT+4}, v17"); a("s_nop 1")
    a(f"v_cndmask_b32 v{vOffL}, 2.0, v{vOffL}, vcc")
    a(f"s_cmp_eq_u32 s{sTx}, 15"); a(f"s_cselect_b32 s{sT+4}, 24, 64"); a(f"v_cmp_gt_u32 vcc, s{sT+4}, v17"); a("s_nop 1")
    a(f"v_cndmask_b32 v{vOffR}, 2.0, v{vL16}, vcc")
    a("v_mul_u32_u24 v18, 683, v0"); a("v_lshrrev_b32 v18, 16, v18")
    a("v_mul_u32_u24 v19, 96, v18"); a("v_sub_u32 v19, v0, v19")
    a("v_mul_u32_u24 v20, 960, v18"); a("v_lshl_add_u32 v20, v19, 1, v20")
    a("v_lshlrev_b32 v21, 1, v19")
    P += row_setup()
    a("s_waitcnt lgkmcnt(0)")
    if cfg.STAMP: a("s_memtime s[96:97]"); a("s_memrealtime s[98:99]"); a("s_waitcnt lgkmcnt(0)")
    for (d, p, n) in ((sX, 4, 50331648), (28, 8, 4800), (32, 6, 192), (sO, 14, 0)):
        a(f"s_mov_b32 s{d}, s{p}"); a(f"s_and_b32 s{d+1}, s{p+1}, 0xffff"); a(f"s_mov_b32 s{d+2}, {n}"); a(f"s_mov_b32 s{d+3}, 0x20000")
    for j in range(5): a(f"buffer_load_ushort v{24+j}, v20, s[28:31], 0 offen offset:{192*j}")
    a("buffer_load_ushort v29, v21, s[32:35], 0 offen")
    a(f"s_mov_b64 exec, s[{sEx48}:{sEx48+1}]")
    for g in row_loads(): P += g
    a(f"s_cmp_eq_u32 s{sGrp}, 0"); a("s_cbranch_scc1 Lpro_A")
    a(f"s_add_u32 s{sXrow}, s{sXrow}, 4")
    P += row_dma_lines()
    a("Lpro_A:")
    a("s_mov_b64 exec, -1")
    a(f"s_cmp_lt_u32 s{sJ}, 2"); a(f"s_cselect_b32 s{sW}, s10, s12"); a(f"s_cselect_b32 s{sW+1}, s11, s13")
    a(f"s_cselect_b32 s{sWstep}, 64, 6144"); a(f"s_mov_b32 s{sWins}, 1024")
    a(f"s_cselect_b32 s{sWins}, 12288, s{sWins}"); a(f"s_cselect_b32 s{sWsrc}, 2, 1"); a(f"s_mul_i32 s{sWsrc}, s{sWsrc}, s{sWstep}"); a(f"s_mul_i32 s{sWlim}, s{sWstep}, 12")
    a(f"s_and_b32 s{sW+1}, s{sW+1}, 0xffff"); a(f"s_mov_b32 s{sW+2}, 73728"); a(f"s_mov_b32 s{sW+3}, 0x20000")
    a(f"s_and_b32 s{sT+3}, s{sJ}, 1"); a(f"s_mul_i32 s{sT+3}, s{sT+3}, 3"); a(f"s_mul_i32 s{sWbase}, s{sT+3}, s{sWins}")
    a("v_lshrrev_b32 v22, 2, v17"); a("v_mul_u32_u24 v22, 768, v22"); a("v_and_b32 v23, 3, v17"); a("v_lshl_add_u32 v22, v23, 4, v22")
    a(f"s_cmp_lt_u32 s{sJ}, 2"); a("s_cselect_b64 vcc, -1, 0"); a(f"v_cndmask_b32 v{vDMA}, v{vL16}, v22, vcc")
    assert cfg.WLATE
    if cfg.STAMP: a("s_memtime s[100:101]"); a("s_waitcnt lgkmcnt(0)")
    a(f"s_mov_b32 s{sRing}, {WBASE}")
    a(f"s_mov_b32 s{sA16}, {A_imm:#x}"); a(f"s_mov_b32 s{sK16}, {K_imm:#x}")
    a(f"s_mov_b32 s{sInv96}, {f32bits(1/96):#x}"); a(f"s_mov_b32 s{sEps}, {f32bits(1e-5):#x}"); a(f"s_mov_b32 s{sKap}, {f32bits(kap_use):#x}")
    D = cfg.D
    assert D == 3; a(f"s_mov_b32 s{sXM}, {3 | (3 << (7 - D)):#x}"); a(f"s_mov_b32 s{sXinc}, 1")
    a(f"s_mov_b32 s{sSig}, 1"); a(f"s_mov_b32 s{sP}, 0"); a(f"s_xor_b32 s{sFirst}, s{sGrp}, 1"); a(f"s_lshl_b32 s{sWin}, s{sGrp}, 3")
    a(f"s_mov_b32 s{sStInc}, 0")
    a(f"s_lshl_b32 s{sT}, s{sTy}, 5"); a(f"s_lshl_b32 s{sT+1}, s{sGrp}, 3"); a(f"s_add_u32 s{sT}, s{sT}, s{sT+1}"); a(f"s_lshl_b32 s{sT+1}, s{sJ}, 1")
    a(f"s_add_u32 s{sT}, s{sT}, s{sT+1}"); a(f"s_mul_i32 s{sT}, s{sT}, 98304"); a(f"s_mul_i32 s{sT+1}, s{sTx}, 6144"); a(f"s_add_u32 s{sStO}, s{sT}, s{sT+1}")
    a(f"s_add_u32 s{sStO2}, s{sStO}, 98304"); a(f"s_mov_b32 s{sTgt}, 0")
    a("v_and_b32 v30, 7, v17"); a("v_lshrrev_b32 v31, 5, v17"); a("v_bfe_u32 v32, v17, 4, 1")
    a(f"s_mul_i32 s{sT}, s{sJ}, 48"); a(f"s_add_u32 s{sT}, s{sT}, {XBASE}")
    a("v_mul_u32_u24 v33, 784, v30"); a("v_mul_u32_u24 v34, 384, v31"); a(f"v_add3_u32 v{vColB}, v33, v34, s{sT}")
    a(f"v_mul_u32_u24 v33, {XS - 384}, v31"); a("v_lshlrev_b32 v34, 3, v32"); a(f"v_sub_u32 v{vHwA}, v33, v34")
    a("v_and_b32 v35, 31, v17"); a("v_lshlrev_b32 v36, 4, v31")
    a(f"v_mul_u32_u24 v33, 192, v35"); a(f"v_add_u32 v{vSt}, v33, v36")
    a("v_lshrrev_b32 v33, 2, v35"); a(f"v_lshl_add_u32 v33, v33, 4, v{vSt}"); a(f"v_add_u32 v{vHr}, {XBASE}, v33")
    a("v_add_u32 v33, 2, v35"); a("v_lshrrev_b32 v33, 2, v33"); a(f"v_lshl_add_u32 v33, v33, 4, v{vSt}"); a(f"v_add_u32 v{vRes}, {XBASE + 384}, v33")
    a("v_and_b32 v33, 3, v17"); a("v_bfe_u32 v34, v17, 2, 2")
    a("v_and_b32 v35, 1, v17"); a("v_mul_u32_u24 v35, 400, v35"); a("v_bfe_u32 v36, v17, 1, 1"); a("v_mul_u32_u24 v36, 192, v36"); a("v_add_u32 v35, v35, v36")
    a("v_bfe_u32 v36, v17, 2, 1"); a("v_lshlrev_b32 v36, 5, v36"); a("v_sub_u32 v35, v35, v36")
    a("v_bfe_u32 v36, v17, 3, 2"); a("v_lshlrev_b32 v36, 2, v36"); a("v_sub_u32 v35, v35, v36")
    a(f"s_mul_i32 s{sT}, s{sJ}, {6 * TGRP}"); a(f"s_add_u32 s{sT}, s{sT}, {TBASE}")
    a("v_lshl_add_u32 v35, v31, 4, v35"); a(f"v_add_u32 v{vTa}, s{sT}, v35")
    a("v_lshl_add_u32 v35, v31, 3, v34"); a("v_lshlrev_b32 v35, 6, v35"); a("v_lshl_add_u32 v35, v32, 5, v35"); a(f"v_lshl_add_u32 v{vW1b}, v33, 3, v35")
    a("v_lshl_add_u32 v35, v31, 2, v34"); a("v_mul_u32_u24 v35, 192, v35"); a("v_lshl_add_u32 v35, v32, 5, v35")
    a("v_and_b32 v36, 1, v17"); a("v_lshl_add_u32 v35, v36, 4, v35"); a("v_bfe_u32 v36, v17, 1, 1"); a(f"v_lshl_add_u32 v{vW2b}, v36, 3, v35")
    a("v_bfe_u32 v35, v17, 3, 1"); a("v_lshl_add_u32 v35, v35, 2, v33")
    a("v_and_b32 v36, 1, v35"); a("v_lshlrev_b32 v36, 4, v36"); a("v_mov_b32 v37, 0x3f80"); a("v_lshlrev_b32 v36, v36, v37")
    a("v_lshrrev_b32 v35, 1, v35"); a("v_lshl_add_u32 v35, v32, 2, v35")
    a("v_bfe_u32 v37, v17, 2, 1"); a("v_cmp_eq_u32 vcc, v37, v31"); a("s_nop 1"); a("v_cndmask_b32 v35, 8, v35, vcc")
    for d in range(8):
        a(f"v_cmp_eq_u32 vcc, {d}, v35"); a("s_nop 1"); a(f"v_cndmask_b32 v{40+d}, 0, v36, vcc")
    a(f"ds_write_b128 v{vL16}, v[40:43] offset:{IBASE}"); a(f"ds_write_b128 v{vL16}, v[44:47] offset:{IBASE + 1024}")
    a(f"s_cmp_eq_u32 s{sGrp}, 0"); a("s_cbranch_scc0 Lpro_w2"); a("s_waitcnt vmcnt(9)"); a("Lpro_w2:"); a("s_waitcnt vmcnt(18)")
    a("v_cmp_eq_u32 vcc, 2, v18"); a("v_lshlrev_b32 v29, 16, v29"); a("s_nop 0"); a("v_cndmask_b32 v29, 0, v29, vcc"); a("v_or_b32 v26, v26, v29")
    a("v_mov_b32 v29, 0"); a("v_mov_b32 v30, 0"); a("v_mov_b32 v31, 0")
    a(f"v_lshrrev_b32 v33, 2, v19"); a(f"v_mul_u32_u24 v33, {TGRP}, v33"); a("v_lshl_add_u32 v33, v18, 5, v33")
    a("v_and_b32 v34, 1, v19"); a("v_mul_u32_u24 v34, 400, v34"); a("v_bfe_u32 v35, v19, 1, 1"); a("v_mul_u32_u24 v35, 192, v35"); a("v_add3_u32 v33, v33, v34, v35")
    a("v_cmp_gt_u32 vcc, 480, v0"); a("s_and_saveexec_b64 s[72:73], vcc")
    a(f"ds_write_b128 v33, v[24:27] offset:{TBASE}"); a(f"ds_write_b128 v33, v[28:31] offset:{TBASE + 16}")
    a("s_mov_b64 exec, -1")
    a("v_mov_b32 v28, 0")
    a("v_cmp_eq_u32 vcc, 4, v18"); a("s_and_saveexec_b64 s[72:73], vcc")
    a(f"ds_write_b128 v33, v[28:31] offset:{TBASE + 32}"); a(f"ds_write_b128 v33, v[28:31] offset:{TBASE + 48}")
    a("v_and_b32 v34, 3, v19"); a("v_cmp_eq_u32 vcc, 2, v34"); a("s_and_b64 exec, exec, vcc")
    a(f"ds_write_b128 v33, v[28:31] offset:{TBASE + 64}")
    a("s_mov_b64 exec, -1")
    a("v_mov_b32 v33, 0")
    for o in (0, 16, 32): a(f"ds_write_b128 v33, v[28:31] offset:{TPAD + o}")
    a(f"ds_write_b128 v33, v[28:31] offset:{CBASE}")
    if cfg.STAMP:
        a("v_mov_b32 v16, 0"); a("v_mov_b32 v17, 0"); a("v_writelane_b32 v16, s92, 60"); a("v_writelane_b32 v16, s96, 56")
        a("v_writelane_b32 v16, s98, 54"); a("v_writelane_b32 v16, s100, 57")
        P += stamp(16, 61)
        a(f"s_mov_b32 s96, {cfg.SMASK & 0xffffffff:#x}"); a(f"s_mov_b32 s97, {(cfg.SMASK >> 32) & 0xffffffff:#x}")
    a(f"s_cmp_eq_u32 s{sGrp}, 0"); a("s_cbranch_scc0 Lpro_w4"); a("s_waitcnt vmcnt(0) lgkmcnt(0)"); P += stamp(16, 58)
    a(f"s_mul_i32 s{sT}, s{sWstep}, 7"); a(f"s_add_u32 s{sWsrc}, s{sWsrc}, s{sT}")
    a("s_barrier")
    P += stamp(17, 58); a("s_branch Lconv")
    a("Lpro_w4:"); a("s_waitcnt vmcnt(0) lgkmcnt(0)"); P += stamp(16, 58); a("s_barrier")
    for q in range(1, 4):
        for g in wdma_groups(f"{WBASE + q * WSET}"): P += g
    a("s_waitcnt vmcnt(6)"); a("s_barrier")
    assert D == 3
    P += bar_lines()
    for g in wdma_interval(): P += g
    a(f"s_lshl_b32 s{sXrow}, s{sJ}, 1"); a(f"s_add_u32 s{sXrow}, s{sXrow}, 12"); a(f"s_mov_b64 exec, s[{sEx48}:{sEx48+1}]")
    P += row_dma_lines(); a(f"s_add_u32 s{sXrow}, s{sXrow}, 1")
    P += row_dma_lines(); a(f"s_add_u32 s{sXrow}, s{sXrow}, 7")
    a("s_mov_b64 exec, -1")
    P += bar_lines("s_waitcnt vmcnt(18)")
    for g in wdma_interval(): P += g
    return P

def build():
    D = cfg.D
    out = []
    hdr = ["; fused depthwise 5x5 + LayerNorm + MLP(GELU) + residual; generated by gen/gen.py",
           f"; @launch grid=(256,1,1) block=(512,1,1) lds={LDS_BYTES}",
           '.amdgcn_target "amdgcn-amd-amdhsa--gfx950"', ".text", f".globl {KNAME}", ".p2align 8", f".type {KNAME},@function", f"{KNAME}:"]
    out += hdr
    def raw(lines):
        for l in lines: out.append(l if l.endswith(":") or l.startswith(".") else "    " + l)
    raw(prologue())
    epi0, epi1 = epilogue(False), epilogue(True)
    cs = cstage()
    bodies = [loop_body(0), loop_body(1), loop_body(2)]
    marks = [LABEL(n) for n in ("@c", "@a1", "@a2", "@b2", "@e0", "@x", "@e1", "@end")]
    lin = [marks[0]] + cs + [marks[1]] + bodies[0] + [marks[2]] + bodies[0] + [marks[3]] + bodies[1] + [marks[4]] + epi0 + [marks[5]] + bodies[2] + [marks[6]] + epi1 + [marks[7]]
    lin, pend = insert_lgkm(lin, cfg.OLD); assert not pend
    lin, _ = fix_hazards(lin)
    idx = [next(k for k, i in enumerate(lin) if i is m) for m in marks]
    cst, a1, a2, b2, e0, n2, e1 = (lin[idx[k] + 1: idx[k + 1]] for k in range(7))
    n1 = sum(states(i) for i in a1 if i.kind == "nop") - sum(states(i) for i in a2 if i.kind == "nop")
    assert [i.text for i in a1 if i.kind != "nop"] == [i.text for i in a2 if i.kind != "nop"]
    if n1 > 0: cst = cst + [Ins(f"s_nop {n1 - 1}", "nop")]
    for path in ([cst, n2, a2, a2, e0, cst, a2, e1], [cst, b2, b2, e0, cst, n2, n2, e1]):
        seq = [i for blk in path for i in blk]
        _, bad = fix_hazards(seq, check_only=True); assert not bad, bad
        assert not check_lgkm(seq)
    def emit(blk):
        for i in blk:
            if i.kind == "touch": continue
            for l in i.text.split("\n"): out.append(l if i.kind in ("label", "opaque", "dsw_op") or l.startswith("    ") or l.endswith(":") else "    " + l)
    out.append("Louter:")
    raw(bar_lines())
    raw([f"s_cmp_eq_u32 s{sGrp}, 0", "s_cbranch_scc0 Lno_w"] + [l for g in wdma_interval() for l in g] + ["Lno_w:"])
    raw([f"s_cmp_eq_u32 s{sP}, 0", "s_cbranch_scc1 Lconv"])
    emit(e0)
    out.append("Lconv:")
    emit(cst)
    raw([f"s_mov_b32 s{sCnt}, 6", f"s_cmp_eq_u32 s{sGrp}, 0", "s_cbranch_scc0 LselB",
         f"s_cmp_lg_u32 s{sFirst}, 0", f"s_cselect_b32 s{sCnt}, 2, 6", "s_cbranch_scc1 LloopN"])
    tail = [f"s_add_u32 s{sWin}, s{sWin}, 4", f"s_cmp_ge_u32 s{sWin}, {NR}", f"s_cselect_b32 s{sWin}, 0, s{sWin}",
            f"s_add_u32 s{sP}, s{sP}, 1", f"s_cmp_eq_u32 s{sP}, 1", "s_cbranch_scc1 Louter"]
    raw([".p2align 6", "LloopA:"]); emit(a2)
    raw([f"s_sub_u32 s{sCnt}, s{sCnt}, 1", f"s_cmp_lg_u32 s{sCnt}, 0", "s_cbranch_scc1 LloopA"] + tail)
    raw(bar_lines())
    if D > 1: raw([l for g in wdma_interval() for l in g])
    emit(e1)
    raw(stamp(16, 62))
    for i in range(16, D + 16):
        raw(bar_lines("s_waitcnt vmcnt(12)" if i == 16 else "s_waitcnt vmcnt(0)"))
        if i < D + 15: raw([l for g in wdma_interval() for l in g])
    raw(["s_branch Lfin"])
    raw(["LselB:", f"s_cmp_eq_u32 s{sP}, 0", "s_cbranch_scc0 LloopN"])
    raw([".p2align 6", "LloopB:"]); emit(b2)
    raw([f"s_sub_u32 s{sCnt}, s{sCnt}, 1", f"s_cmp_lg_u32 s{sCnt}, 0", "s_cbranch_scc1 LloopB"] + tail[:4] + ["s_branch Louter"])
    raw([".p2align 6", "LloopN:"]); emit(n2)
    raw([f"s_sub_u32 s{sCnt}, s{sCnt}, 1", f"s_cmp_lg_u32 s{sCnt}, 0", "s_cbranch_scc1 LloopN",
         f"s_cmp_lg_u32 s{sFirst}, 0", f"s_mov_b32 s{sFirst}, 0", f"s_mov_b32 s{sCnt}, 4", "s_cbranch_scc1 LloopA"])
    emit(e1)
    raw(stamp(16, 62))
    out.append("Lfin:")
    if cfg.STAMP:
        raw(["s_waitcnt vmcnt(0)"] + stamp(16, 63) + ["s_memrealtime s[98:99]", "s_waitcnt lgkmcnt(0)", "v_writelane_b32 v16, s98, 55",
             "s_load_dwordx2 s[94:95], s[0:1], 56", "s_waitcnt lgkmcnt(0)", "s_mov_b32 s28, s94", "s_and_b32 s29, s95, 0xffff", "s_mov_b32 s30, 0x1000000", "s_mov_b32 s31, 0x20000",
             f"s_lshl_b32 s89, s{sGrp}, 2", f"s_add_u32 s89, s89, s{sJ}", "s_lshl_b32 s90, s2, 3", "s_add_u32 s89, s89, s90", "s_lshl_b32 s89, s89, 9",
             f"v_lshrrev_b32 v18, 2, v{vL16}", "buffer_store_dword v16, v18, s[28:31], s89 offen", "buffer_store_dword v17, v18, s[28:31], s89 offen offset:256"])
    raw(["Lend:", "s_endpgm"])
    raw(["Lw1wait:", "s_barrier", "s_branch Lw1wait_ret"])
    if cfg.ALIGN:
        out, npad, nwid = align8(out, "Louter", "Lend")
        sys.stderr.write(f"align8: {npad} pads, {nwid} widened\n")
    out += ['.section .rodata,"a"', ".p2align 6", f".amdhsa_kernel {KNAME}", "  .amdhsa_next_free_vgpr 256", f"  .amdhsa_next_free_sgpr {102 if cfg.STAMP else 96}",
            "  .amdhsa_accum_offset 256", "  .amdhsa_group_segment_fixed_size 0", "  .amdhsa_kernarg_size 64", "  .amdhsa_user_sgpr_count 2",
            "  .amdhsa_user_sgpr_kernarg_segment_ptr 1", "  .amdhsa_system_sgpr_workgroup_id_x 1", ".end_amdhsa_kernel"]
    return "\n".join(out) + "\n"

open(sys.argv[1], "w").write(build())
```

```python
import sys, struct, math
import numpy as np, re
from asmlib import *

class Cfg:
    D = 3
    GELU = "B"
    PRIO = 1
    CPRIO = 3
    XF = 'nt'
    OF = ''
    WF = ''
    ALIGN = True
    STAMP = False
    SMASK = -1
    OLD = 200
    WARM = True
    HW64 = True
    PBASE = 3
    ABL = ''
    CST = False
    PKS = 0
    PKN = False
    W1G = True
    R2 = False
    NOSTAT = False
    NOCRD = False
    N0 = 15
    WLATE = True
cfg = Cfg()
for a in sys.argv[2:]:
    k, v = a.split("=")
    setattr(cfg, k, type(getattr(cfg, k))(v) if not isinstance(getattr(cfg, k), bool) else v in ("1", "True"))

KNAME = "standalone__modern_conv_block_replknet__vision_kernel"
XS = 7104; NR = 12
TPAD = 0
TBASE = 48
TGRP = 784
IBASE = TBASE + 24 * TGRP
PBASE = IBASE + 2048
CBASE = PBASE + 8192
WBASE = CBASE + 16
WSET = 12288
XBASE = WBASE + 4 * WSET
LDS_BYTES = XBASE + NR * XS
assert LDS_BYTES <= 163840, LDS_BYTES
assert WBASE % 16 == 0 and IBASE % 16 == 0
vColB, vHwA, vRes, vHr, vTa, vSt, vW1b, vW2b, vW1c, vW2c, vDMA, vOffL, vOffR, vL16 = range(1, 15)
T0 = 18
G = 24
W2F = 32
W1F = 56
ACC1 = (80, 96)
H = 112
ACC2 = 160
def acc2(X, b): return ACC2 + 48 * X + 16 * b
cBuf = (56, 68)
cAddr = 48
cTa, cIdx, cRes, cHw, cHr = 51, 52, 53, 54, 55
XF = [80, 84, 88, 92, 96, 100, 104, 108, 32, 36, 40, 44]
sX, sO, sW = 16, 20, 24
sGrp, sJ, sTx, sTy, sSig, sRing, sWsrc, sWstep, sWlim, sWins, sWbase, sP, sCnt = range(36, 49)
sA16, sK16, sStO = 49, 50, 51
sWin, sXrow, sFirst = 63, 64, 65
sXM, sXinc = 66, 67
sExX = 68
sAdjL = 70
sT = 71
sEx48 = 80
sInv96, sEps, sKap = 82, 83, 84
sDry = 56
sStO2, sTgt = 52, 53
sFres, sFh = 54, 55
sXo, sXm = 85, 86
sStInc = 87
s1k = 89
sJ3k = 88
RSUM = 2 * WBASE + 2 * WSET

def f32bits(x): return struct.unpack("<I", struct.pack("<f", x))[0]
def f16bits(x): return int(np.float16(x).view(np.uint16))
a_c = -2.0 * math.log2(math.e) * math.sqrt(2.0 / math.pi)
b_c = a_c * 0.044715
kap = -((-b_c) ** (1.0 / 3.0))
if cfg.GELU in ("B",):
    kap_use = float(np.float16(kap))
    A_imm = f16bits(a_c / kap_use) * 0x10001
    K_imm = f16bits(kap_use) * 0x10001
else:
    kap_use = kap
    A_imm = f32bits(a_c / kap)
    K_imm = f32bits(kap)

def fl(s): return ''.join(' ' + w for w in s.split('+') if w)
uid = [0]
def lab(p):
    uid[0] += 1
    return f"L{p}_{uid[0]}"

def opaque(lines):
    return Ins("\n".join("    " + l if not l.endswith(":") else l for l in lines), "opaque", cost=0)

def stamp(vreg, lane):
    if not cfg.STAMP: return []
    return ["s_memtime s[90:91]", f"s_mov_b32 m0, {lane}", "s_waitcnt lgkmcnt(0)", f"v_writelane_b32 v{vreg}, s90, m0"]
def cstamp(vreg):
    if not cfg.STAMP: return []
    if cfg.SMASK == -1: return stamp(vreg, f"s{sSig}")
    l = lab("s")
    return [f"s_bitcmp1_b64 s[96:97], s{sSig}", f"s_cbranch_scc0 {l}"] + stamp(vreg, f"s{sSig}") + [f"{l}:"]

def wdma_groups(dst):
    out = []
    for u in range(3):
        g = [f"s_add_u32 m0, {dst}, s{sJ3k}", f"s_add_u32 s{sT+8}, s{sWsrc}, s{sWbase}"] if u == 0 else \
            [f"s_add_u32 m0, m0, s{s1k}", f"s_add_u32 s{sT+8}, s{sT+8}, s{sWins}"]
        g.append(f"buffer_load_dwordx4 v{vDMA}, s[{sW}:{sW+3}], s{sT+8} offen{fl(cfg.WF)} lds")
        if u == 2: g += [f"s_add_u32 s{sWsrc}, s{sWsrc}, s{sWstep}", f"s_cmp_eq_u32 s{sWsrc}, s{sWlim}", f"s_cselect_b32 s{sWsrc}, 0, s{sWsrc}"]
        out.append(g)
    return out
def wdma_interval():
    g = wdma_groups(f"s{sT+7}") + wdma_groups(f"s{sT+7}")
    g[0] = [f"s_sub_u32 s{sT+7}, {RSUM}, s{sRing}"] + g[0]
    g[3] = [f"s_add_u32 s{sT+7}, s{sT+7}, {WSET}"] + g[3]
    return g

def row_setup():
    t0, t1, t2 = sT, sXo, sT + 1
    return [f"s_lshl_b32 s{t0}, s{sTy}, 5", f"s_add_u32 s{t0}, s{t0}, s{sXrow}", f"s_sub_u32 s{t0}, s{t0}, 2",
            f"s_mul_i32 s{t1}, s{t0}, 98304", f"s_mul_i32 s{t2}, s{sTx}, 6144", f"s_add_u32 s{t1}, s{t1}, s{t2}",
            f"s_cmp_lt_u32 s{t0}, 512", f"s_cselect_b32 s{t1}, s{t1}, 0x80000000",
            f"s_cmp_ge_u32 s{sXrow}, 24", f"s_cselect_b32 s{t2}, 24, 0", f"s_sub_u32 s{t0}, s{sXrow}, s{t2}",
            f"s_cmp_ge_u32 s{t0}, 12", f"s_cselect_b32 s{t2}, 12, 0", f"s_sub_u32 s{t0}, s{t0}, s{t2}",
            f"s_and_b32 s{t2}, s{sXrow}, 4", f"s_lshl_b32 s{t2}, s{t2}, 1", f"s_mul_i32 s{t0}, s{t0}, {XS}", f"s_add_u32 s{t0}, s{t0}, s{t2}",
            f"s_add_u32 s{sXm}, s{t0}, {XBASE}"]
def row_loads():
    out = [[f"s_mov_b32 m0, s{sXm}", f"s_sub_u32 s{sT}, s{sXo}, s{sAdjL}", f"buffer_load_dwordx4 v{vOffL}, s[{sX}:{sX+3}], s{sT} offen{fl(cfg.XF)} lds"]]
    for a in range(1, 9):
        out.append([f"s_add_u32 m0, s{sXm}, {784 * a}", f"s_add_u32 s{sT}, s{sXo}, {768 * a - 384}",
                    f"buffer_load_dwordx4 v{vOffR if a == 8 else vL16}, s[{sX}:{sX+3}], s{sT} offen{fl(cfg.XF)} lds"])
    return out
def row_dma_lines(): return row_setup() + [l for g in row_loads() for l in g]

def bar_lines(wait="s_waitcnt vmcnt(0)"):
    L = cstamp(16) + ([wait] if wait else []) + ["s_barrier"] + cstamp(17)
    L += [f"s_sub_u32 s{sRing}, {RSUM}, s{sRing}"]
    if cfg.STAMP: L += [f"s_add_u32 s{sSig}, s{sSig}, 1"]
    return L

def gelu_B(Sr):
    ops = []
    def st(p, k):
        a0 = Sr + 2 * p; a1 = a0 + 1; t = T0 + (p % 2) * 3; u = t + 1; w = t + 2
        return [V(f"v_cvt_pk_f16_f32 v{t}, v{a0}, v{a1}"),
                V(f"v_pk_fma_f16 v{u}, v{t}, v{t}, s{sA16}"),
                V(f"v_pk_mul_f16 v{t}, v{t}, v{u}"),
                V(f"v_exp_f16 v{u}, v{t}"),
                V(f"v_exp_f16_sdwa v{u}, v{t} dst_sel:WORD_1 dst_unused:UNUSED_PRESERVE src0_sel:WORD_1"),
                V(f"v_pk_fma_f16 v{t}, v{u}, s{sK16}, s{sK16}"),
                V(f"v_rcp_f16 v{u}, v{t}"),
                V(f"v_rcp_f16_sdwa v{w}, v{t} dst_sel:DWORD dst_unused:UNUSED_PAD src0_sel:WORD_1"),
                V(f"v_fma_mix_f32 v{u}, v{a0}, v{u}, 0 op_sel_hi:[0,1,0]"),
                V(f"v_fma_mix_f32 v{w}, v{a1}, v{w}, 0 op_sel_hi:[0,1,0]"),
                V(f"v_cvt_pk_bf16_f32 v{G+p}, v{u}, v{w}")][k]
    for q in range(0, 8, 2):
        for k in range(11):
            ops += [st(q, k), st(q + 1, k)]
    return ops

def gelu_A(Sr):
    ops = []
    for q in range(0, 16, 4):
        for k in range(6):
            for e in range(4):
                a = Sr + q + e; r = T0 + e
                ops.append([V(f"v_fma_f32 v{r}, v{a}, v{a}, s{sA16}"), V(f"v_mul_f32 v{r}, v{a}, v{r}"), V(f"v_exp_f32 v{r}, v{r}"),
                            V(f"v_fma_f32 v{r}, v{r}, s{sK16}, s{sK16}"), V(f"v_rcp_f32 v{r}, v{r}"), V(f"v_mul_f32 v{r}, v{a}, v{r}")][k])
        ops += [V(f"v_cvt_pk_bf16_f32 v{G+q//2}, v{T0}, v{T0+1}"), V(f"v_cvt_pk_bf16_f32 v{G+q//2+1}, v{T0+2}, v{T0+3}")]
    return ops
gelu = {"A": gelu_A, "B": gelu_B}[cfg.GELU]

TR = "ds_read_b64_tr_b16"
def rd_w1(j, c):
    return [DSR(TR, W1F + 4 * j + 2 * r, 2, vW1c, f"offset:{WSET * c + 1024 * j + 256 * r}") for r in range(2)]
def rd_w2(sp, b, c):
    return [DSR(TR, W2F + 12 * sp + 4 * b + 2 * r, 2, vW2c, f"offset:{WSET * c + 6144 + (16 * sp + 8 * r) * 192 + 64 * b}") for r in range(2)]
def g1(X, j):
    return MFMA("32x32x16", ACC1[X], W1F + 4 * j, H + 8 * j + 4 * X, None if j == 0 else ACC1[X])
def g2(X, sp, b):
    return MFMA("32x32x16", acc2(X, b), W2F + 12 * sp + 4 * b, G + 4 * sp, acc2(X, b))

def step(X, c, extra):
    Y = 1 - X
    ld = (X == 0)
    att = [[g2(Y, 1, 0)] + (rd_w2(1, 0, c) if ld else []),
           [g1(Y, 0)] + (rd_w2(0, 0, c) + rd_w1(0, c) if ld else []),
           [g2(Y, 1, 1)] + (rd_w2(0, 1, c) + rd_w2(1, 1, c) if ld else []),
           [g1(Y, 1)] + (rd_w2(0, 2, c) + rd_w1(1, c) if ld else []),
           [g2(Y, 1, 2)] + (rd_w2(1, 2, c) if ld else []),
           [g1(Y, 2)] + (rd_w1(2, c) if ld else []),
           [g1(Y, 3)] + (rd_w1(3, c) if ld else []),
           [g2(X, 0, 0)],
           [g1(Y, 4)] + (rd_w1(4, c) if ld else []),
           [g2(X, 0, 1)],
           [g1(Y, 5)] + (rd_w1(5, c) if ld else []),
           [g2(X, 0, 2)]]
    for k, v in extra.items(): att[k] = att[k] + v
    ops = gelu(ACC1[X])
    return ops[:2] + interleave(ops[2:], att)

def loop_body(grp):
    L = [opaque(bar_lines() + [f"Lbody{grp}:"])]
    L += [V(f"v_add_u32 v{vW1c}, s{sRing}, v{vW1b}"), V(f"v_add_u32 v{vW2c}, s{sRing}, v{vW2b}")]
    ex = [{}, {}, {}, {}]
    if grp == 0:
        for k, g in enumerate(wdma_interval()):
            ex[k // 3 if k < 3 else 1][(7, 9, 11)[k] if k < 3 else (1, 3, 5)[k - 3]] = [opaque(g)]
    elif grp == 1:
        ex[0][7] = [opaque([f"s_bitcmp1_b32 s{sXM}, 0", f"s_cselect_b64 s[{sExX}:{sExX+1}], s[{sEx48}:{sEx48+1}], 0", f"s_lshr_b32 s{sXM}, s{sXM}, 1"] + row_setup())]
        rl = row_loads()
        for k, (st, sl) in enumerate(((0, 11), (1, 3), (1, 8))):
            blk = [f"s_mov_b64 exec, s[{sExX}:{sExX+1}]"] + rl[3 * k] + rl[3 * k + 1] + rl[3 * k + 2] + ["s_mov_b64 exec, -1"]
            if k == 2:
                blk += [f"s_cmp_lg_u32 s{sExX}, 0", f"s_cselect_b32 s{sT}, s{sXinc}, 0", f"s_add_u32 s{sXrow}, s{sXrow}, s{sT}",
                        f"s_cmp_lg_u32 s{sExX}, 0", f"s_cselect_b32 s{sT}, 6, 0", f"s_xor_b32 s{sXinc}, s{sXinc}, s{sT}"]
            ex[st][sl] = [opaque(blk)]
    for k in range(4):
        if k == 2: L += dry_point(f"Lhalf{grp}")
        if cfg.PRIO: L.append(S(f"s_setprio {max(cfg.PBASE - k, 0)}"))
        L += step(k & 1, k >> 1, ex[k])
    return L

def SM32(d, a, b, idx):
    ab = list(R(a, 4)) + list(R(b, 8)) + [idx]
    return Ins(f"v_smfmac_f32_32x32x32_bf16 {vr(d,16)}, {vr(a,4)}, {vr(b,8)}, v{idx}", "mfma",
               ab + list(R(d, 16)), R(d, 16), cost=12, passes=8, srcc=R(d, 16), srcab=ab)

def unit_reads(u):
    q, rho = divmod(u, 6); buf = cBuf[u % 2]
    o = 196 * (q % 2) + 8 * rho
    L = []
    if rho == 0 and q and q % 2 == 0: L.append(V(f"v_add_u32 v{cTa}, {2 * TGRP}, v{cTa}"))
    L += [DSR("ds_read2_b32", buf + 8, 2, cTa, f"offset0:{o} offset1:{o+1}"), DSR("ds_read2_b32", buf + 10, 2, cTa, f"offset0:{o+2} offset1:{o+3}")]
    for k, c in enumerate((0, 192, 784, 976)):
        L.append(DSR("ds_read_b64", buf + 2 * k, 2, cAddr + rho // 2, f"offset:{XS * (rho & 1) + c + 8 * q}"))
    return L

def store(X, t):
    d = H + 24 * X + 4 * t
    return VMEM(f"buffer_store_dwordx4 {vr(d,4)}, v{vSt}, s[{sO}:{sO+3}], s{sStO2 if X else sStO} offen offset:{32 * t}{fl(cfg.OF)}", rd=[vSt] + list(R(d, 4)), store=True)

def res_reads(k):
    X, s = divmod(k, 6)
    return [DSR("ds_read_b64", XF[k] + 2 * r, 2, cRes, f"offset:{XS * X + 32 * s + 8 * r}") for r in range(2)]

def pk(op, d, *src, mods=""):
    return V(f"v_pk_{op}_f32 v[{d}:{d+1}], " + ", ".join(f"v[{x}:{x+1}]" for x in src) + mods)

def signal():
    t = T0
    return [V(f"v_mov_b32 v{t}, s{sT+2}"), V(f"v_mov_b32 v{t+1}, 1"),
            Ins(f"    s_mov_b64 exec, 1\n    ds_add_u32 v{t}, v{t+1}\n    s_mov_b64 exec, -1\n    s_add_u32 s{sTgt}, s{sTgt}, 4", "dsw_op", [t, t + 1], [])]
def poll():
    t = T0; l = lab("p")
    return [Ins(f"{l}:\n    ds_read_b32 v{t+1}, v{t}\n    s_waitcnt lgkmcnt(0)\n    v_readfirstlane_b32 s{sT+3}, v{t+1}\n"
                f"    s_cmp_ge_u32 s{sT+3}, s{sTgt}\n    s_cbranch_scc0 {l}", "waitall", [t], [t + 1])]

def cstage_setup():
    t = sT
    L = []
    for dst, add in ((sFh, 0), (sFres, 2)):
        L += [f"s_lshl_b32 s{t}, s{sJ}, 1", f"s_add_u32 s{t}, s{t}, s{sWin}", f"s_add_u32 s{t}, s{t}, {add}",
              f"s_cmp_ge_u32 s{t}, {NR}", f"s_cselect_b32 s{t+1}, {NR}, 0", f"s_sub_u32 s{t}, s{t}, s{t+1}", f"s_mul_i32 s{dst}, s{t}, {XS}"]
    L += [f"s_add_u32 s{t}, s{sJ}, 1", f"s_and_b32 s{t}, s{t}, 2", f"s_lshl_b32 s{t}, s{t}, 2", f"s_add_u32 s{sFres}, s{sFres}, s{t}"]
    return L

def dry_exit(): return [f"s_cmp_lg_u32 s{sDry}, 0", "s_cbranch_scc1 Ldry_ret"] if cfg.WARM else []
def dry_point(name): return [opaque(dry_exit() + [name + ":"])] if cfg.WARM else []

def cs(k):
    if not (cfg.STAMP and cfg.CST): return []
    return [Ins("\n".join("    " + l for l in [f"s_lshl_b32 s95, s{sP}, 3", f"s_add_u32 s95, s95, {30 + k}"] + stamp(17, "s95")), "waitall")]

def cstage():
    L = [COMMENT("row addresses, zero accumulators, convolution")]
    if cfg.CPRIO: L.append(S(f"s_setprio {cfg.CPRIO}"))
    L += [S(x) for x in cstage_setup()]
    L += [S(f"s_lshl_b32 s{sT+2}, s{sGrp}, 2"), S(f"s_add_u32 s{sT+2}, s{sT+2}, {CBASE}"), S(f"s_mov_b32 s{sT}, {XS}")]
    t0, t1, t2 = T0, T0 + 1, T0 + 4
    L += [V(f"v_bfe_u32 v{t2}, v{vL16}, 7, 2"), V(f"v_lshlrev_b32 v{t2}, 1, v{t2}"), V(f"v_mov_b32 v{T0+2}, 0"), V(f"v_mov_b32 v{T0+3}, 0")]
    for k in range(3):
        if k: L += [V(f"v_add_u32 v{t2}, 2, v{t2}")]
        L += [V(f"v_add_u32 v{t0}, s{sWin}, v{t2}"), V(f"v_subrev_u32 v{t1}, {NR}, v{t0}"), V(f"v_min_u32 v{t0}, v{t0}, v{t1}"),
              V(f"v_mad_u32_u24 v{t0}, v{t0}, s{sT}, v{vColB}"), V(f"v_and_b32 v{t1}, 4, v{t2}"), V(f"v_lshl_add_u32 v{cAddr+k}, v{t1}, 1, v{t0}")]
    L += [V(f"v_mov_b32 v{cTa}, v{vTa}"), V(f"v_bfe_u32 v{cIdx}, v{vL16}, 4, 2"), V(f"v_mul_u32_u24 v{cIdx}, 0x5555, v{cIdx}")]
    L += cs(0) + unit_reads(0) + unit_reads(1)
    for q in range(6): L.append(MFMA("32x32x8", ACC2 + 16 * q, T0 + 2, T0 + 2, None))
    L += [V(f"v_add_u32 v{cRes}, s{sFres}, v{vRes}"), V(f"v_add_u32 v{cHw}, v{cAddr}, v{vHwA}"), V(f"v_add_u32 v{cHr}, s{sFh}, v{vHr}")]
    for u in range(36):
        buf = cBuf[u % 2]
        if u == 18: L += dry_point("Ldry1")
        L.append(SM32(ACC2 + 16 * (u // 6), buf + 8, buf, cIdx))
        if u + 2 < 36: L += unit_reads(u + 2)
        else: L += res_reads(3 * (u - 34)) + res_reads(3 * (u - 34) + 1) + res_reads(3 * (u - 34) + 2)
        if u % 3 == 1: L.append(store(*divmod(u // 3, 6)))
    for k in range(6, 12): L += res_reads(k)
    L += [S(f"s_add_u32 s{sStO}, s{sStO}, s{sStInc}"), S(f"s_add_u32 s{sStO2}, s{sStO}, 98304"), S(f"s_mov_b32 s{sO+2}, 50331648"), S(f"s_mov_b32 s{sStInc}, {16 * 98304}")]
    L += cs(1) + dry_point("Ldry2")
    SA, QA, ST, QT = 56, 64, 72, 76
    for q in range(6):
        for u in range(4):
            y = ACC2 + 16 * q + 4 * u
            if q == 0: L += [pk("add", SA + 2 * u, y, y + 2), pk("mul", QA + 2 * u, y, y), pk("fma", QA + 2 * u, y + 2, y + 2, QA + 2 * u)]
            else:
                for e in (0, 2): L += [pk("add", SA + 2 * u, SA + 2 * u, y + e), pk("fma", QA + 2 * u, y + e, y + e, QA + 2 * u)]
    for u in range(4): L += [V(f"v_add_f32 v{ST+u}, v{SA+2*u}, v{SA+2*u+1}"), V(f"v_add_f32 v{QT+u}, v{QA+2*u}, v{QA+2*u+1}")]
    L += [S(f"s_lshl_b32 s{sT}, s{sJ}, 11"), V(f"v_add_u32 v{T0+4}, s{sT}, v{vL16}")]
    L += [DSW("ds_write_b128", T0 + 4, ST, 4, f"offset:{PBASE}"), DSW("ds_write_b128", T0 + 4, QT, 4, f"offset:{PBASE + 1024}")]
    L.append(Ins("s_waitcnt lgkmcnt(0)", "waitall"))
    L += cs(2) + signal()
    lm = lab("m")
    L.append(opaque([f"s_or_b32 s{sT}, s{sFirst}, s{sDry}", f"s_cbranch_scc1 {lm}"] + bar_lines() +
                    [f"s_cmp_eq_u32 s{sGrp}, 0", f"s_cbranch_scc0 {lm}"] + [l for gg in wdma_interval() for l in gg] + [f"{lm}:"]))
    L += poll()
    L += cs(3)
    L += [COMMENT("LayerNorm, exchange of the normalised tile, residual into the accumulators, first GEMM1")]
    PR = [56, 60, 64, 68, 48, 72, 76, G]
    dst = {(0, 0): 72, (0, 1): 76, (1, 0): 56, (1, 1): 60, (2, 0): 64, (2, 1): 68, (3, 0): G, (3, 1): G + 4}
    for w in range(4):
        for k in range(2): L.append(DSR("ds_read_b128", dst[(w, k)], 4, vL16, f"offset:{PBASE + 2048 * w + 1024 * k}"))
    for w in range(1, 4):
        for k in range(2):
            for h in (0, 2): L.append(pk("add", dst[(0, k)] + h, dst[(0, k)] + h, dst[(w, k)] + h))
    L += [DSR("ds_read_b128", G, 4, vL16, f"offset:{IBASE}"), DSR("ds_read_b128", G + 4, 4, vL16, f"offset:{IBASE + 1024}")]
    MN, SC, SH = 56, 48, 44 + 0
    SH = 60
    for u in range(4): L += [V(f"v_mul_f32 v{MN+u}, s{sInv96}, v{ST+u}")]
    for u in range(4): L += [V(f"v_mul_f32 v{SH+u}, v{MN+u}, v{MN+u}")]
    for u in range(4): L += [V(f"v_fma_f32 v{QT+u}, v{QT+u}, s{sInv96}, -v{SH+u}")]
    for u in range(4): L += [V(f"v_max_f32 v{QT+u}, 0, v{QT+u}")]
    for u in range(4): L += [V(f"v_add_f32 v{QT+u}, s{sEps}, v{QT+u}")]
    for u in range(4): L += [V(f"v_rsq_f32 v{QT+u}, v{QT+u}")]
    SC, SH2 = T0 + 2, 48
    for u in range(4): L += [V(f"v_mul_f32 v{SC+u}, s{sKap}, v{QT+u}")]
    for u in range(4): L += [V(f"v_mul_f32 v{SH2+u}, -v{MN+u}, v{SC+u}")]
    L += [V(f"v_add_u32 v{vW1c}, s{sRing}, v{vW1b}")]
    for q in range(6):
        for u in range(4):
            for e in (0, 2):
                y = ACC2 + 16 * q + 4 * u + e; o = u & 1
                L.append(pk("fma", y, y, SC + (u & 2), SH2 + (u & 2), mods=f" op_sel:[0,{o},{o}] op_sel_hi:[1,{o},{o}]"))
    L += cs(4) + dry_point("Ldry3")
    first_w1 = opaque([f"s_cmp_lg_u32 s{sFirst}, 0", "s_cbranch_scc1 Lw1wait", "Lw1wait_ret:"])
    def ident(q):
        X, b = divmod(q, 3)
        return [MFMA("32x32x16", acc2(X, b), G, XF[6 * X + 2 * b], None), MFMA("32x32x16", acc2(X, b), G + 4, XF[6 * X + 2 * b + 1], acc2(X, b))]
    def cvt(q): return [V(f"v_cvt_pk_bf16_f32 v{H+12*u+2*q+h}, v{ACC2+16*q+4*u+2*h}, v{ACC2+16*q+4*u+2*h+1}") for u in range(4) for h in range(2)]
    def hw(t): return [DSW("ds_write_b128", cHw, H + 12 * u + 4 * t, 4, f"offset:{192 * u + 16 * t}") for u in range(4)]
    for q in range(6):
        c = cvt(q)
        if q >= 1:
            i0, i1 = ident(q - 1)
            c = c[:1] + [i0] + c[1:5] + [i1] + c[5:]
        L += c
        if cfg.HW64: L += [DSW("ds_write_b64", cHw, H + 12 * u + 2 * q, 2, f"offset:{192 * u + 8 * q}") for u in range(4)]
        elif q % 2 == 1: L += hw(q // 2)
    L += cs(5) + signal()
    L += ident(5)
    L += [V(f"v_mov_b32 v{48+i}, 0") for i in range(6)]
    L += poll()
    L += cs(6)
    hr = [DSR("ds_read_b128", H + 8 * s + 4 * X, 4, cHr, f"offset:{XS * X + 32 * s}") for X in range(2) for s in range(6)]
    L += hr[:6]
    L.append(first_w1)
    for j in range(3): L += rd_w1(j, 1)
    L += [V(f"v_mov_b32 v{G+4+i}, 0") for i in range(4)]
    L += [g1(0, 0)] + rd_w1(3, 1) + rd_w1(4, 1) + [g1(0, 1)] + rd_w1(5, 1) + hr[6:9] + [g1(0, 2)] + hr[9:] + [g1(0, 3), g1(0, 4), g1(0, 5)]
    L += [V(f"v_mov_b32 v54, 0"), V(f"v_mov_b32 v55, 0")]
    L.append(Ins("s_waitcnt lgkmcnt(0)", "waitall"))
    L += cs(7)
    if cfg.CPRIO: L.append(S("s_setprio 0"))
    ab = cfg.ABL.split("+")
    if "hw" in ab: L = [i for i in L if not (i.kind == "dsw" and cHw in i.rd)]
    if "pk" in ab: L = [i for i in L if i.kind != "pk32"]
    if "brd" in ab: L = [i for i in L if not (i.text.startswith("ds_read_b64") and i.rd & set(R(cAddr, 3)))]
    if "sm" in ab: L = [i for i in L if "smfmac" not in i.text]
    if "st" in ab: L = [i for i in L if i.kind != "vstore"]
    if "unpk" in ab:
        out = []
        for i in L:
            if i.kind != "pk32": out.append(i); continue
            m = re.match(r"v_pk_(\w+)_f32 (.*?)( op_sel.*)?$", i.text); regs = [int(x) for x in re.findall(r"v\[(\d+):", m.group(2))]
            o = 1 if m.group(3) and "op_sel:[0,1" in m.group(3) else 0
            for h in range(2):
                r = [regs[0] + h, regs[1] + h] + [(x + o if m.group(3) else x + h) for x in regs[2:]]
                out.append(V(f"v_{m.group(1)}_f32 " + ", ".join(f"v{x}" for x in r)))
        L = out
    return L

def epilogue(with_stores):
    L = [COMMENT("epilogue: last GEMM2 k-step, convert")]
    att = [[g2(1, 1, b)] for b in range(3)]
    def cv(X, t):
        a = acc2(X, t >> 1) + 8 * (t & 1); d = H + 24 * X + 4 * t
        return [V(f"v_cvt_pk_bf16_f32 v{d+i}, v{a+2*i}, v{a+2*i+1}") for i in range(4)] + ([store(X, t)] if with_stores else [])
    first = []
    for t in range(6): first += cv(0, t)
    L += first[:2] + interleave(first[2:], att, 0.0, 0.5)
    for t in range(6): L += cv(1, t)
    return L

def prologue():
    P = []
    a = P.append
    a(f"s_cmp_ge_u32 s2, 256"); a("s_cbranch_scc1 Lend")
    if cfg.STAMP: a("s_memtime s[92:93]"); a("s_load_dwordx2 s[94:95], s[0:1], 56")
    a("s_load_dwordx8 s[4:11], s[0:1], 0"); a("s_load_dwordx4 s[12:15], s[0:1], 32")
    a("v_lshrrev_b32 v16, 6, v0"); a("v_and_b32 v17, 63, v0")
    a(f"v_readfirstlane_b32 s{sT}, v16")
    if cfg.WARM:
        a("s_getpc_b64 s[60:61]"); a("v_lshlrev_b32 v38, 6, v0"); a("v_min_u32 v38, CODE_LAST, v38")
        a("global_load_dword v39, v38, s[60:61]")
    a(f"s_and_b32 s{sT+1}, s2, 7"); a(f"s_lshl_b32 s{sT+1}, s{sT+1}, 5"); a(f"s_lshr_b32 s{sT+2}, s2, 3"); a(f"s_add_u32 s{sT+1}, s{sT+1}, s{sT+2}")
    a(f"s_lshr_b32 s{sTy}, s{sT+1}, 4"); a(f"s_and_b32 s{sTx}, s{sT+1}, 15")
    a(f"s_lshr_b32 s{sGrp}, s{sT}, 2"); a(f"s_and_b32 s{sJ}, s{sT}, 3"); a(f"s_mov_b32 s{sXrow}, s{sT}")
    a(f"s_mul_i32 s{sJ3k}, s{sJ}, 3072"); a(f"s_movk_i32 s{s1k}, 1024")
    a(f"s_mov_b32 s{sEx48}, -1"); a(f"s_mov_b32 s{sEx48+1}, 0xffff")
    a(f"v_lshlrev_b32 v{vL16}, 4, v17")
    a(f"s_cmp_eq_u32 s{sTx}, 0"); a(f"s_cselect_b32 s{sAdjL}, 0, 384"); a(f"s_cselect_b32 s{sT+3}, 384, 0"); a(f"s_cselect_b32 s{sT+4}, 24, 0")
    a(f"v_subrev_u32 v{vOffL}, s{sT+3}, v{vL16}"); a(f"v_cmp_le_u32 vcc, s{sT+4}, v17"); a("s_nop 1")
    a(f"v_cndmask_b32 v{vOffL}, 2.0, v{vOffL}, vcc")
    a(f"s_cmp_eq_u32 s{sTx}, 15"); a(f"s_cselect_b32 s{sT+4}, 24, 64"); a(f"v_cmp_gt_u32 vcc, s{sT+4}, v17"); a("s_nop 1")
    a(f"v_cndmask_b32 v{vOffR}, 2.0, v{vL16}, vcc")
    a("v_mul_u32_u24 v18, 683, v0"); a("v_lshrrev_b32 v18, 16, v18")
    a("v_mul_u32_u24 v19, 96, v18"); a("v_sub_u32 v19, v0, v19")
    a("v_mul_u32_u24 v20, 960, v18"); a("v_lshl_add_u32 v20, v19, 1, v20")
    a("v_lshlrev_b32 v21, 1, v19")
    P += row_setup()
    a("s_waitcnt lgkmcnt(0)")
    if cfg.STAMP: a("s_memtime s[96:97]"); a("s_memrealtime s[98:99]"); a("s_waitcnt lgkmcnt(0)")
    for (d, p, n) in ((sX, 4, 50331648), (28, 8, 4800), (32, 6, 192), (sO, 14, 0)):
        a(f"s_mov_b32 s{d}, s{p}"); a(f"s_and_b32 s{d+1}, s{p+1}, 0xffff"); a(f"s_mov_b32 s{d+2}, {n}"); a(f"s_mov_b32 s{d+3}, 0x20000")
    for j in range(5): a(f"buffer_load_ushort v{24+j}, v20, s[28:31], 0 offen offset:{192*j}")
    a("buffer_load_ushort v29, v21, s[32:35], 0 offen")
    a(f"s_mov_b64 exec, s[{sEx48}:{sEx48+1}]")
    for g in row_loads(): P += g
    a(f"s_cmp_eq_u32 s{sGrp}, 0"); a("s_cbranch_scc1 Lpro_A")
    a(f"s_add_u32 s{sXrow}, s{sXrow}, 4")
    P += row_dma_lines()
    a("Lpro_A:")
    a("s_mov_b64 exec, -1")
    a(f"s_cmp_lt_u32 s{sJ}, 2"); a(f"s_cselect_b32 s{sW}, s10, s12"); a(f"s_cselect_b32 s{sW+1}, s11, s13")
    a(f"s_cselect_b32 s{sWstep}, 64, 6144"); a(f"s_mov_b32 s{sWins}, 1024")
    a(f"s_cselect_b32 s{sWins}, 12288, s{sWins}"); a(f"s_cselect_b32 s{sWsrc}, 2, 1"); a(f"s_mul_i32 s{sWsrc}, s{sWsrc}, s{sWstep}"); a(f"s_mul_i32 s{sWlim}, s{sWstep}, 12")
    a(f"s_and_b32 s{sW+1}, s{sW+1}, 0xffff"); a(f"s_mov_b32 s{sW+2}, 73728"); a(f"s_mov_b32 s{sW+3}, 0x20000")
    a(f"s_and_b32 s{sT+3}, s{sJ}, 1"); a(f"s_mul_i32 s{sT+3}, s{sT+3}, 3"); a(f"s_mul_i32 s{sWbase}, s{sT+3}, s{sWins}")
    a("v_lshrrev_b32 v22, 2, v17"); a("v_mul_u32_u24 v22, 768, v22"); a("v_and_b32 v23, 3, v17"); a("v_lshl_add_u32 v22, v23, 4, v22")
    a(f"s_cmp_lt_u32 s{sJ}, 2"); a("s_cselect_b64 vcc, -1, 0"); a(f"v_cndmask_b32 v{vDMA}, v{vL16}, v22, vcc")
    assert cfg.WLATE
    if cfg.STAMP: a("s_memtime s[100:101]"); a("s_waitcnt lgkmcnt(0)")
    a(f"s_mov_b32 s{sA16}, {A_imm:#x}"); a(f"s_mov_b32 s{sK16}, {K_imm:#x}")
    a(f"s_mov_b32 s{sInv96}, {f32bits(1/96):#x}"); a(f"s_mov_b32 s{sEps}, {f32bits(1e-5):#x}"); a(f"s_mov_b32 s{sKap}, {f32bits(kap_use):#x}")
    D = cfg.D
    a(f"s_lshl_b32 s{sT}, s{sTy}, 5"); a(f"s_lshl_b32 s{sT+1}, s{sGrp}, 3"); a(f"s_add_u32 s{sT}, s{sT}, s{sT+1}"); a(f"s_lshl_b32 s{sT+1}, s{sJ}, 1")
    a(f"s_add_u32 s{sT}, s{sT}, s{sT+1}"); a(f"s_mul_i32 s{sT}, s{sT}, 98304"); a(f"s_mul_i32 s{sT+1}, s{sTx}, 6144"); a(f"s_add_u32 s{sStO}, s{sT}, s{sT+1}")
    a(f"s_mov_b32 s{sDry+1}, s{sStO}")
    a("v_and_b32 v30, 7, v17"); a("v_lshrrev_b32 v31, 5, v17"); a("v_bfe_u32 v32, v17, 4, 1")
    a(f"s_mul_i32 s{sT}, s{sJ}, 48"); a(f"s_add_u32 s{sT}, s{sT}, {XBASE}")
    a("v_mul_u32_u24 v33, 784, v30"); a("v_mul_u32_u24 v34, 384, v31"); a(f"v_add3_u32 v{vColB}, v33, v34, s{sT}")
    a(f"v_mul_u32_u24 v33, {XS - 384}, v31"); a("v_lshlrev_b32 v34, 3, v32"); a(f"v_sub_u32 v{vHwA}, v33, v34")
    a("v_and_b32 v35, 31, v17"); a("v_lshlrev_b32 v36, 4, v31")
    a(f"v_mul_u32_u24 v33, 192, v35"); a(f"v_add_u32 v{vSt}, v33, v36")
    a("v_lshrrev_b32 v33, 2, v35"); a(f"v_lshl_add_u32 v33, v33, 4, v{vSt}"); a(f"v_add_u32 v{vHr}, {XBASE}, v33")
    a("v_add_u32 v33, 2, v35"); a("v_lshrrev_b32 v33, 2, v33"); a(f"v_lshl_add_u32 v33, v33, 4, v{vSt}"); a(f"v_add_u32 v{vRes}, {XBASE + 384}, v33")
    a("v_and_b32 v33, 3, v17"); a("v_bfe_u32 v34, v17, 2, 2")
    a("v_and_b32 v35, 1, v17"); a("v_mul_u32_u24 v35, 400, v35"); a("v_bfe_u32 v36, v17, 1, 1"); a("v_mul_u32_u24 v36, 192, v36"); a("v_add_u32 v35, v35, v36")
    a("v_bfe_u32 v36, v17, 2, 1"); a("v_lshlrev_b32 v36, 5, v36"); a("v_sub_u32 v35, v35, v36")
    a("v_bfe_u32 v36, v17, 3, 2"); a("v_lshlrev_b32 v36, 2, v36"); a("v_sub_u32 v35, v35, v36")
    a(f"s_mul_i32 s{sT}, s{sJ}, {6 * TGRP}"); a(f"s_add_u32 s{sT}, s{sT}, {TBASE}")
    a("v_lshl_add_u32 v35, v31, 4, v35"); a(f"v_add_u32 v{vTa}, s{sT}, v35")
    a("v_lshl_add_u32 v35, v31, 3, v34"); a("v_lshlrev_b32 v35, 6, v35"); a("v_lshl_add_u32 v35, v32, 5, v35"); a(f"v_lshl_add_u32 v{vW1b}, v33, 3, v35")
    a("v_lshl_add_u32 v35, v31, 2, v34"); a("v_mul_u32_u24 v35, 192, v35"); a("v_lshl_add_u32 v35, v32, 5, v35")
    a("v_and_b32 v36, 1, v17"); a("v_lshl_add_u32 v35, v36, 4, v35"); a("v_bfe_u32 v36, v17, 1, 1"); a(f"v_lshl_add_u32 v{vW2b}, v36, 3, v35")
    def enter(targets, ret=0):
        a(f"s_mov_b32 s{sDry+3}, {ret}")
        a(f"s_mov_b32 s{sDry}, 1"); a(f"s_mov_b32 s{sFirst}, 0"); a(f"s_mov_b32 s{sCnt}, 1"); a(f"s_mov_b32 s{sT+3}, -1"); a(f"s_mov_b32 s{sTgt}, 0")
        a(f"s_mov_b32 s{sDry+2}, s{sWsrc}"); a("s_waitcnt lgkmcnt(0)")
        a("s_setvskip -1, 0")
        for k, t in enumerate(targets[:3]): a(f"s_cmp_eq_u32 s{sJ}, {k}"); a(f"s_cbranch_scc1 {t}")
        a(f"s_branch {targets[3]}")
    def init_state():
        a(f"s_mov_b32 s{sXM}, {3 | (3 << (7 - D)):#x}"); a(f"s_mov_b32 s{sXinc}, 1"); a(f"s_mov_b32 s{sRing}, {WBASE}")
        a(f"s_mov_b32 s{sSig}, 1"); a(f"s_mov_b32 s{sP}, 0"); a(f"s_xor_b32 s{sFirst}, s{sGrp}, 1"); a(f"s_lshl_b32 s{sWin}, s{sGrp}, 3")
        a(f"s_mov_b32 s{sStInc}, 0"); a(f"s_mov_b32 s{sStO}, s{sDry+1}"); a(f"s_add_u32 s{sStO2}, s{sStO}, 98304"); a(f"s_mov_b32 s{sTgt}, 0")
        a(f"s_mov_b32 s{sO+2}, 0"); a(f"s_mov_b32 s{sDry}, 0")
    init_state()
    if cfg.WARM:
        a(f"s_cmp_eq_u32 s{sGrp}, 0"); a("s_cbranch_scc0 Ldry_skip")
        enter(["Lconv", "Ldry1", "Ldry2", "Ldry3"])
        a("Ldry_ret:"); a("s_setvskip 0, 0"); a("s_mov_b64 exec, -1"); a("s_setprio 0"); a(f"s_mov_b32 s{sWsrc}, s{sDry+2}")
        init_state()
        a(f"s_cmp_eq_u32 s{sDry+3}, 1"); a("s_cbranch_scc1 Ldry_B"); a(f"s_cmp_eq_u32 s{sDry+3}, 2"); a("s_cbranch_scc1 Ldry_B2")
        a("Ldry_skip:")
    a("v_bfe_u32 v35, v17, 3, 1"); a("v_lshl_add_u32 v35, v35, 2, v33")
    a("v_and_b32 v36, 1, v35"); a("v_lshlrev_b32 v36, 4, v36"); a("v_mov_b32 v37, 0x3f80"); a("v_lshlrev_b32 v36, v36, v37")
    a("v_lshrrev_b32 v35, 1, v35"); a("v_lshl_add_u32 v35, v32, 2, v35")
    a("v_bfe_u32 v37, v17, 2, 1"); a("v_cmp_eq_u32 vcc, v37, v31"); a("s_nop 1"); a("v_cndmask_b32 v35, 8, v35, vcc")
    for d in range(8):
        a(f"v_cmp_eq_u32 vcc, {d}, v35"); a("s_nop 1"); a(f"v_cndmask_b32 v{40+d}, 0, v36, vcc")
    a(f"ds_write_b128 v{vL16}, v[40:43] offset:{IBASE}"); a(f"ds_write_b128 v{vL16}, v[44:47] offset:{IBASE + 1024}")
    a(f"s_cmp_eq_u32 s{sGrp}, 0"); a("s_cbranch_scc0 Lpro_w2"); a("s_waitcnt vmcnt(9)"); a("Lpro_w2:"); a("s_waitcnt vmcnt(18)")
    a("v_cmp_eq_u32 vcc, 2, v18"); a("v_lshlrev_b32 v29, 16, v29"); a("s_nop 0"); a("v_cndmask_b32 v29, 0, v29, vcc"); a("v_or_b32 v26, v26, v29")
    a("v_mov_b32 v29, 0"); a("v_mov_b32 v30, 0"); a("v_mov_b32 v31, 0")
    a(f"v_lshrrev_b32 v33, 2, v19"); a(f"v_mul_u32_u24 v33, {TGRP}, v33"); a("v_lshl_add_u32 v33, v18, 5, v33")
    a("v_and_b32 v34, 1, v19"); a("v_mul_u32_u24 v34, 400, v34"); a("v_bfe_u32 v35, v19, 1, 1"); a("v_mul_u32_u24 v35, 192, v35"); a("v_add3_u32 v33, v33, v34, v35")
    a("v_cmp_gt_u32 vcc, 480, v0"); a("s_and_saveexec_b64 s[72:73], vcc")
    a(f"ds_write_b128 v33, v[24:27] offset:{TBASE}"); a(f"ds_write_b128 v33, v[28:31] offset:{TBASE + 16}")
    a("s_mov_b64 exec, -1")
    a("v_mov_b32 v28, 0")
    a("v_cmp_eq_u32 vcc, 4, v18"); a("s_and_saveexec_b64 s[72:73], vcc")
    a(f"ds_write_b128 v33, v[28:31] offset:{TBASE + 32}"); a(f"ds_write_b128 v33, v[28:31] offset:{TBASE + 48}")
    a("v_and_b32 v34, 3, v19"); a("v_cmp_eq_u32 vcc, 2, v34"); a("s_and_b64 exec, exec, vcc")
    a(f"ds_write_b128 v33, v[28:31] offset:{TBASE + 64}")
    a("s_mov_b64 exec, -1")
    a("v_mov_b32 v33, 0")
    for o in (0, 16, 32): a(f"ds_write_b128 v33, v[28:31] offset:{TPAD + o}")
    a(f"ds_write_b128 v33, v[28:31] offset:{CBASE}")
    if cfg.STAMP:
        a("v_mov_b32 v16, 0"); a("v_mov_b32 v17, 0"); a("v_writelane_b32 v16, s92, 60"); a("v_writelane_b32 v16, s96, 56")
        a("v_writelane_b32 v16, s98, 54"); a("v_writelane_b32 v16, s100, 57")
        P += stamp(16, 61)
        a(f"s_mov_b32 s96, {cfg.SMASK & 0xffffffff:#x}"); a(f"s_mov_b32 s97, {(cfg.SMASK >> 32) & 0xffffffff:#x}")
    a(f"s_cmp_eq_u32 s{sGrp}, 0"); a("s_cbranch_scc0 Lpro_w4")
    a("s_waitcnt vmcnt(0) lgkmcnt(0)"); P += stamp(16, 58)
    a(f"s_mul_i32 s{sT}, s{sWstep}, 7"); a(f"s_add_u32 s{sWsrc}, s{sWsrc}, s{sT}")
    a("s_barrier")
    P += stamp(17, 58); a("s_branch Lconv")
    a("Lpro_w4:"); a("s_waitcnt vmcnt(0) lgkmcnt(0)"); P += stamp(16, 58); a("s_barrier")
    for q in range(1, 4):
        for g in wdma_groups(f"{WBASE + q * WSET}"): P += g
    if cfg.WARM:
        enter(["Lbody2", "Lhalf2", "Lbody0", "Lhalf0"], 1); a("Ldry_B:")
        enter(["Lbody1", "Lhalf1", "Lepi0", "Lepi1"], 2); a("Ldry_B2:")
    a("s_waitcnt vmcnt(6)"); a("s_barrier")
    assert D == 3
    P += bar_lines()
    for g in wdma_interval(): P += g
    a(f"s_lshl_b32 s{sXrow}, s{sJ}, 1"); a(f"s_add_u32 s{sXrow}, s{sXrow}, 12"); a(f"s_mov_b64 exec, s[{sEx48}:{sEx48+1}]")
    P += row_dma_lines(); a(f"s_add_u32 s{sXrow}, s{sXrow}, 1")
    P += row_dma_lines(); a(f"s_add_u32 s{sXrow}, s{sXrow}, 7")
    a("s_mov_b64 exec, -1")
    P += bar_lines("s_waitcnt vmcnt(18)")
    for g in wdma_interval(): P += g
    return P

def build():
    D = cfg.D
    out = []
    hdr = ["; fused depthwise 5x5 + LayerNorm + MLP(GELU) + residual; generated by gen/gen.py",
           f"; @launch grid=(256,1,1) block=(512,1,1) lds={LDS_BYTES}",
           '.amdgcn_target "amdgcn-amd-amdhsa--gfx950"', ".text", f".globl {KNAME}", ".p2align 8", f".type {KNAME},@function", f"{KNAME}:"]
    out += hdr
    def raw(lines):
        for l in lines: out.append(l if l.endswith(":") or l.startswith(".") else "    " + l)
    raw(prologue())
    epi0, epi1 = epilogue(False), epilogue(True)
    cs = cstage()
    bodies = [loop_body(0), loop_body(1), loop_body(2)]
    marks = [LABEL(n) for n in ("@c", "@a1", "@a2", "@b2", "@e0", "@x", "@e1", "@end")]
    lin = [marks[0]] + cs + [marks[1]] + bodies[0] + [marks[2]] + bodies[0] + [marks[3]] + bodies[1] + [marks[4]] + epi0 + [marks[5]] + bodies[2] + [marks[6]] + epi1 + [marks[7]]
    lin, pend = insert_lgkm(lin, cfg.OLD); assert not pend
    lin, _ = fix_hazards(lin)
    idx = [next(k for k, i in enumerate(lin) if i is m) for m in marks]
    cst, a1, a2, b2, e0, n2, e1 = (lin[idx[k] + 1: idx[k + 1]] for k in range(7))
    n1 = sum(states(i) for i in a1 if i.kind == "nop") - sum(states(i) for i in a2 if i.kind == "nop")
    assert [i.text for i in a1 if i.kind != "nop"] == [i.text for i in a2 if i.kind != "nop"]
    if n1 > 0: cst = cst + [Ins(f"s_nop {n1 - 1}", "nop")]
    for path in ([cst, n2, a2, a2, e0, cst, a2, e1], [cst, b2, b2, e0, cst, n2, n2, e1]):
        seq = [i for blk in path for i in blk]
        _, bad = fix_hazards(seq, check_only=True); assert not bad, bad
        assert not check_lgkm(seq)
    def emit(blk):
        for i in blk:
            if i.kind == "touch": continue
            for l in i.text.split("\n"): out.append(l if i.kind in ("label", "opaque", "dsw_op") or l.startswith("    ") or l.endswith(":") else "    " + l)
    out.append("Louter:")
    raw(bar_lines())
    raw([f"s_cmp_eq_u32 s{sGrp}, 0", "s_cbranch_scc0 Lno_w"] + [l for g in wdma_interval() for l in g] + ["Lno_w:"])
    raw([f"s_cmp_eq_u32 s{sP}, 0", "s_cbranch_scc1 Lconv"])
    out.append("Lepi0:")
    emit(e0)
    raw(dry_exit())
    out.append("Lconv:")
    emit(cst)
    raw(dry_exit())
    raw([f"s_mov_b32 s{sCnt}, 6", f"s_cmp_eq_u32 s{sGrp}, 0", "s_cbranch_scc0 LselB",
         f"s_cmp_lg_u32 s{sFirst}, 0", f"s_cselect_b32 s{sCnt}, 2, 6", "s_cbranch_scc1 LloopN"])
    tail = [f"s_add_u32 s{sWin}, s{sWin}, 4", f"s_cmp_ge_u32 s{sWin}, {NR}", f"s_cselect_b32 s{sWin}, 0, s{sWin}",
            f"s_add_u32 s{sP}, s{sP}, 1", f"s_cmp_eq_u32 s{sP}, 1", "s_cbranch_scc1 Louter"]
    raw([".p2align 6", "LloopA:"]); emit(a2)
    raw([f"s_sub_u32 s{sCnt}, s{sCnt}, 1", f"s_cmp_lg_u32 s{sCnt}, 0", "s_cbranch_scc1 LloopA"] + dry_exit() + tail)
    raw(bar_lines())
    if D > 1: raw([l for g in wdma_interval() for l in g])
    emit(e1)
    raw(stamp(16, 62))
    for i in range(16, D + 16):
        raw(bar_lines("s_waitcnt vmcnt(12)" if i == 16 else "s_waitcnt vmcnt(0)"))
        if i < D + 15: raw([l for g in wdma_interval() for l in g])
    raw(["s_branch Lfin"])
    raw(["LselB:", f"s_cmp_eq_u32 s{sP}, 0", "s_cbranch_scc0 LloopN"])
    raw([".p2align 6", "LloopB:"]); emit(b2)
    raw([f"s_sub_u32 s{sCnt}, s{sCnt}, 1", f"s_cmp_lg_u32 s{sCnt}, 0", "s_cbranch_scc1 LloopB"] + dry_exit() + tail[:4] + ["s_branch Louter"])
    raw([".p2align 6", "LloopN:"]); emit(n2)
    raw([f"s_sub_u32 s{sCnt}, s{sCnt}, 1", f"s_cmp_lg_u32 s{sCnt}, 0", "s_cbranch_scc1 LloopN"] + dry_exit() + [
         f"s_cmp_lg_u32 s{sFirst}, 0", f"s_mov_b32 s{sFirst}, 0", f"s_mov_b32 s{sCnt}, 4", "s_cbranch_scc1 LloopA"])
    out.append("Lepi1:")
    emit(e1)
    raw(dry_exit())
    raw(stamp(16, 62))
    out.append("Lfin:")
    if cfg.STAMP:
        raw(["s_waitcnt vmcnt(0)"] + stamp(16, 63) + ["s_memrealtime s[98:99]", "s_waitcnt lgkmcnt(0)", "v_writelane_b32 v16, s98, 55",
             "s_load_dwordx2 s[94:95], s[0:1], 56", "s_waitcnt lgkmcnt(0)", "s_mov_b32 s28, s94", "s_and_b32 s29, s95, 0xffff", "s_mov_b32 s30, 0x1000000", "s_mov_b32 s31, 0x20000",
             f"s_lshl_b32 s89, s{sGrp}, 2", f"s_add_u32 s89, s89, s{sJ}", "s_lshl_b32 s90, s2, 3", "s_add_u32 s89, s89, s90", "s_lshl_b32 s89, s89, 9",
             f"v_lshrrev_b32 v18, 2, v{vL16}", "buffer_store_dword v16, v18, s[28:31], s89 offen", "buffer_store_dword v17, v18, s[28:31], s89 offen offset:256"])
    raw(["Lend:", "s_endpgm"])
    raw(["Lw1wait:", "s_barrier", "s_branch Lw1wait_ret"])
    if cfg.ALIGN:
        tmp, npad, nwid = align8([l.replace("CODE_LAST", "0x1000") for l in out], "Louter", "Lend")
        out = [l.replace("v38, 0x1000", "v38, CODE_LAST") for l in tmp]
        sys.stderr.write(f"align8: {npad} pads, {nwid} widened\n")
    nbytes = sum(insn_sizes([l.replace("CODE_LAST", "0x1000") for l in out]))
    out = [l.replace("CODE_LAST", str(nbytes // 64 * 64 - 128)) for l in out]
    assert nbytes <= 32768
    out += ['.section .rodata,"a"', ".p2align 6", f".amdhsa_kernel {KNAME}", "  .amdhsa_next_free_vgpr 256", f"  .amdhsa_next_free_sgpr {102 if cfg.STAMP else 96}",
            "  .amdhsa_accum_offset 256", "  .amdhsa_group_segment_fixed_size 0", "  .amdhsa_kernarg_size 64", "  .amdhsa_user_sgpr_count 2",
            "  .amdhsa_user_sgpr_kernarg_segment_ptr 1", "  .amdhsa_system_sgpr_workgroup_id_x 1", ".end_amdhsa_kernel"]
    return "\n".join(out) + "\n"

open(sys.argv[1], "w").write(build())
```

```python
import sys, struct, math
import numpy as np, re
from asmlib import *

class Cfg:
    D = 3
    GELU = "B"
    PRIO = 1
    CPRIO = 3
    XF = 'nt'
    OF = ''
    WF = ''
    ALIGN = True
    STAMP = False
    SMASK = -1
    OLD = 200
    DBG = False
    WARM = True
    HW64 = True
    PBASE = 3
    ABL = ''
    CST = False
    PKS = 0
    PKN = False
    W1G = True
    R2 = False
    NOSTAT = False
    NOCRD = False
    N0 = 15
    WLATE = True
cfg = Cfg()
for a in sys.argv[2:]:
    k, v = a.split("=")
    setattr(cfg, k, type(getattr(cfg, k))(v) if not isinstance(getattr(cfg, k), bool) else v in ("1", "True"))

KNAME = "standalone__modern_conv_block_replknet__vision_kernel"
XS = 7104; NR = 12
TPAD = 0
TBASE = 48
TGRP = 784
IBASE = TBASE + 24 * TGRP
PBASE = IBASE + 2048
CBASE = PBASE + 8192
WBASE = CBASE + 16
WSET = 12288
XBASE = WBASE + 4 * WSET
LDS_BYTES = XBASE + NR * XS
assert LDS_BYTES <= 163840, LDS_BYTES
assert WBASE % 16 == 0 and IBASE % 16 == 0
vColB, vHwA, vRes, vHr, vTa, vSt, vW1b, vW2b, vW1c, vW2c, vDMA, vOffL, vOffR, vL16 = range(1, 15)
T0 = 18
G = 24
W2F = 32
W1F = 56
ACC1 = (80, 96)
H = 112
ACC2 = 160
def acc2(X, b): return ACC2 + 48 * X + 16 * b
cBuf = (56, 68)
cAddr = 48
cTa, cIdx, cRes, cHw, cHr = 51, 52, 53, 54, 55
XF = [80, 84, 88, 92, 96, 100, 104, 108, 32, 36, 40, 44]
sX, sO, sW = 16, 20, 24
sGrp, sJ, sTx, sTy, sSig, sRing, sWsrc, sWstep, sWlim, sWins, sWbase, sP, sCnt = range(36, 49)
sA16, sK16, sStO = 49, 50, 51
sWin, sXrow, sFirst = 63, 64, 65
sXM, sXinc = 66, 67
sExX = 68
sAdjL = 70
sT = 71
sEx48 = 80
sInv96, sEps, sKap = 82, 83, 84
sDry = 56
sStO2, sTgt = 52, 53
sFres, sFh = 54, 55
sXo, sXm = 85, 86
sStInc = 87
s1k = 89
sJ3k = 88
RSUM = 2 * WBASE + 2 * WSET

def f32bits(x): return struct.unpack("<I", struct.pack("<f", x))[0]
def f16bits(x): return int(np.float16(x).view(np.uint16))
a_c = -2.0 * math.log2(math.e) * math.sqrt(2.0 / math.pi)
b_c = a_c * 0.044715
kap = -((-b_c) ** (1.0 / 3.0))
if cfg.GELU in ("B",):
    kap_use = float(np.float16(kap))
    A_imm = f16bits(a_c / kap_use) * 0x10001
    K_imm = f16bits(kap_use) * 0x10001
else:
    kap_use = kap
    A_imm = f32bits(a_c / kap)
    K_imm = f32bits(kap)

def fl(s): return ''.join(' ' + w for w in s.split('+') if w)
uid = [0]
def lab(p):
    uid[0] += 1
    return f"L{p}_{uid[0]}"

def opaque(lines):
    return Ins("\n".join("    " + l if not l.endswith(":") else l for l in lines), "opaque", cost=0)

def stamp(vreg, lane):
    if not cfg.STAMP: return []
    return ["s_memtime s[90:91]", f"s_mov_b32 m0, {lane}", "s_waitcnt lgkmcnt(0)", f"v_writelane_b32 v{vreg}, s90, m0"]
def cstamp(vreg):
    if not cfg.STAMP: return []
    if cfg.SMASK == -1: return stamp(vreg, f"s{sSig}")
    l = lab("s")
    return [f"s_bitcmp1_b64 s[96:97], s{sSig}", f"s_cbranch_scc0 {l}"] + stamp(vreg, f"s{sSig}") + [f"{l}:"]

def wdma_groups(dst):
    out = []
    for u in range(3):
        g = [f"s_add_u32 m0, {dst}, s{sJ3k}", f"s_add_u32 s{sT+8}, s{sWsrc}, s{sWbase}"] if u == 0 else \
            [f"s_add_u32 m0, m0, s{s1k}", f"s_add_u32 s{sT+8}, s{sT+8}, s{sWins}"]
        g.append(f"buffer_load_dwordx4 v{vDMA}, s[{sW}:{sW+3}], s{sT+8} offen{fl(cfg.WF)} lds")
        if u == 2: g += [f"s_add_u32 s{sWsrc}, s{sWsrc}, s{sWstep}", f"s_cmp_eq_u32 s{sWsrc}, s{sWlim}", f"s_cselect_b32 s{sWsrc}, 0, s{sWsrc}"]
        out.append(g)
    return out
def wdma_interval():
    g = wdma_groups(f"s{sT+7}") + wdma_groups(f"s{sT+7}")
    g[0] = [f"s_sub_u32 s{sT+7}, {RSUM}, s{sRing}"] + g[0]
    g[3] = [f"s_add_u32 s{sT+7}, s{sT+7}, {WSET}"] + g[3]
    return g

def row_setup():
    t0, t1, t2 = sT, sXo, sT + 1
    return [f"s_lshl_b32 s{t0}, s{sTy}, 5", f"s_add_u32 s{t0}, s{t0}, s{sXrow}", f"s_sub_u32 s{t0}, s{t0}, 2",
            f"s_mul_i32 s{t1}, s{t0}, 98304", f"s_mul_i32 s{t2}, s{sTx}, 6144", f"s_add_u32 s{t1}, s{t1}, s{t2}",
            f"s_cmp_lt_u32 s{t0}, 512", f"s_cselect_b32 s{t1}, s{t1}, 0x80000000",
            f"s_cmp_ge_u32 s{sXrow}, 24", f"s_cselect_b32 s{t2}, 24, 0", f"s_sub_u32 s{t0}, s{sXrow}, s{t2}",
            f"s_cmp_ge_u32 s{t0}, 12", f"s_cselect_b32 s{t2}, 12, 0", f"s_sub_u32 s{t0}, s{t0}, s{t2}",
            f"s_and_b32 s{t2}, s{sXrow}, 4", f"s_lshl_b32 s{t2}, s{t2}, 1", f"s_mul_i32 s{t0}, s{t0}, {XS}", f"s_add_u32 s{t0}, s{t0}, s{t2}",
            f"s_add_u32 s{sXm}, s{t0}, {XBASE}"]
def row_loads():
    out = [[f"s_mov_b32 m0, s{sXm}", f"s_sub_u32 s{sT}, s{sXo}, s{sAdjL}", f"buffer_load_dwordx4 v{vOffL}, s[{sX}:{sX+3}], s{sT} offen{fl(cfg.XF)} lds"]]
    for a in range(1, 9):
        out.append([f"s_add_u32 m0, s{sXm}, {784 * a}", f"s_add_u32 s{sT}, s{sXo}, {768 * a - 384}",
                    f"buffer_load_dwordx4 v{vOffR if a == 8 else vL16}, s[{sX}:{sX+3}], s{sT} offen{fl(cfg.XF)} lds"])
    return out
def row_dma_lines(): return row_setup() + [l for g in row_loads() for l in g]

def bar_lines(wait="s_waitcnt vmcnt(0)"):
    L = cstamp(16) + ([wait] if wait else []) + ["s_barrier"] + cstamp(17)
    L += [f"s_sub_u32 s{sRing}, {RSUM}, s{sRing}"]
    if cfg.STAMP: L += [f"s_add_u32 s{sSig}, s{sSig}, 1"]
    return L

def gelu_B(Sr):
    ops = []
    def st(p, k):
        a0 = Sr + 2 * p; a1 = a0 + 1; t = T0 + (p % 2) * 3; u = t + 1; w = t + 2
        return [V(f"v_cvt_pk_f16_f32 v{t}, v{a0}, v{a1}"),
                V(f"v_pk_fma_f16 v{u}, v{t}, v{t}, s{sA16}"),
                V(f"v_pk_mul_f16 v{t}, v{t}, v{u}"),
                V(f"v_exp_f16 v{u}, v{t}"),
                V(f"v_exp_f16_sdwa v{u}, v{t} dst_sel:WORD_1 dst_unused:UNUSED_PRESERVE src0_sel:WORD_1"),
                V(f"v_pk_fma_f16 v{t}, v{u}, s{sK16}, s{sK16}"),
                V(f"v_rcp_f16 v{u}, v{t}"),
                V(f"v_rcp_f16_sdwa v{w}, v{t} dst_sel:DWORD dst_unused:UNUSED_PAD src0_sel:WORD_1"),
                V(f"v_fma_mix_f32 v{u}, v{a0}, v{u}, 0 op_sel_hi:[0,1,0]"),
                V(f"v_fma_mix_f32 v{w}, v{a1}, v{w}, 0 op_sel_hi:[0,1,0]"),
                V(f"v_cvt_pk_bf16_f32 v{G+p}, v{u}, v{w}")][k]
    for q in range(0, 8, 2):
        for k in range(11):
            ops += [st(q, k), st(q + 1, k)]
    return ops

def gelu_A(Sr):
    ops = []
    for q in range(0, 16, 4):
        for k in range(6):
            for e in range(4):
                a = Sr + q + e; r = T0 + e
                ops.append([V(f"v_fma_f32 v{r}, v{a}, v{a}, s{sA16}"), V(f"v_mul_f32 v{r}, v{a}, v{r}"), V(f"v_exp_f32 v{r}, v{r}"),
                            V(f"v_fma_f32 v{r}, v{r}, s{sK16}, s{sK16}"), V(f"v_rcp_f32 v{r}, v{r}"), V(f"v_mul_f32 v{r}, v{a}, v{r}")][k])
        ops += [V(f"v_cvt_pk_bf16_f32 v{G+q//2}, v{T0}, v{T0+1}"), V(f"v_cvt_pk_bf16_f32 v{G+q//2+1}, v{T0+2}, v{T0+3}")]
    return ops
gelu = {"A": gelu_A, "B": gelu_B}[cfg.GELU]

TR = "ds_read_b64_tr_b16"
def rd_w1(j, c):
    return [DSR(TR, W1F + 4 * j + 2 * r, 2, vW1c, f"offset:{WSET * c + 1024 * j + 256 * r}") for r in range(2)]
def rd_w2(sp, b, c):
    return [DSR(TR, W2F + 12 * sp + 4 * b + 2 * r, 2, vW2c, f"offset:{WSET * c + 6144 + (16 * sp + 8 * r) * 192 + 64 * b}") for r in range(2)]
def g1(X, j):
    return MFMA("32x32x16", ACC1[X], W1F + 4 * j, H + 8 * j + 4 * X, None if j == 0 else ACC1[X])
def g2(X, sp, b):
    return MFMA("32x32x16", acc2(X, b), W2F + 12 * sp + 4 * b, G + 4 * sp, acc2(X, b))

def step(X, c, extra):
    Y = 1 - X
    ld = (X == 0)
    att = [[g2(Y, 1, 0)] + (rd_w2(1, 0, c) if ld else []),
           [g1(Y, 0)] + (rd_w2(0, 0, c) + rd_w1(0, c) if ld else []),
           [g2(Y, 1, 1)] + (rd_w2(0, 1, c) + rd_w2(1, 1, c) if ld else []),
           [g1(Y, 1)] + (rd_w2(0, 2, c) + rd_w1(1, c) if ld else []),
           [g2(Y, 1, 2)] + (rd_w2(1, 2, c) if ld else []),
           [g1(Y, 2)] + (rd_w1(2, c) if ld else []),
           [g1(Y, 3)] + (rd_w1(3, c) if ld else []),
           [g2(X, 0, 0)],
           [g1(Y, 4)] + (rd_w1(4, c) if ld else []),
           [g2(X, 0, 1)],
           [g1(Y, 5)] + (rd_w1(5, c) if ld else []),
           [g2(X, 0, 2)]]
    for k, v in extra.items(): att[k] = att[k] + v
    ops = gelu(ACC1[X])
    return ops[:2] + interleave(ops[2:], att)

def loop_body(grp):
    L = [opaque(bar_lines() + [f"Lbody{grp}:"])]
    L += [V(f"v_add_u32 v{vW1c}, s{sRing}, v{vW1b}"), V(f"v_add_u32 v{vW2c}, s{sRing}, v{vW2b}")]
    ex = [{}, {}, {}, {}]
    if grp == 0:
        for k, g in enumerate(wdma_interval()):
            ex[k // 3 if k < 3 else 1][(7, 9, 11)[k] if k < 3 else (1, 3, 5)[k - 3]] = [opaque(g)]
    elif grp == 1:
        ex[0][7] = [opaque([f"s_bitcmp1_b32 s{sXM}, 0", f"s_cselect_b64 s[{sExX}:{sExX+1}], s[{sEx48}:{sEx48+1}], 0", f"s_lshr_b32 s{sXM}, s{sXM}, 1"] + row_setup())]
        rl = row_loads()
        for k, (st, sl) in enumerate(((0, 11), (1, 3), (1, 8))):
            blk = [f"s_mov_b64 exec, s[{sExX}:{sExX+1}]"] + rl[3 * k] + rl[3 * k + 1] + rl[3 * k + 2] + ["s_mov_b64 exec, -1"]
            if k == 2:
                blk += [f"s_cmp_lg_u32 s{sExX}, 0", f"s_cselect_b32 s{sT}, s{sXinc}, 0", f"s_add_u32 s{sXrow}, s{sXrow}, s{sT}",
                        f"s_cmp_lg_u32 s{sExX}, 0", f"s_cselect_b32 s{sT}, 6, 0", f"s_xor_b32 s{sXinc}, s{sXinc}, s{sT}"]
            ex[st][sl] = [opaque(blk)]
    for k in range(4):
        if k == 2: L += dry_point(f"Lhalf{grp}")
        if cfg.PRIO: L.append(S(f"s_setprio {max(cfg.PBASE - k, 0)}"))
        L += step(k & 1, k >> 1, ex[k])
    return L

def SM32(d, a, b, idx):
    ab = list(R(a, 4)) + list(R(b, 8)) + [idx]
    return Ins(f"v_smfmac_f32_32x32x32_bf16 {vr(d,16)}, {vr(a,4)}, {vr(b,8)}, v{idx}", "mfma",
               ab + list(R(d, 16)), R(d, 16), cost=12, passes=8, srcc=R(d, 16), srcab=ab)

def unit_reads(u):
    q, rho = divmod(u, 6); buf = cBuf[u % 2]
    o = 196 * (q % 2) + 8 * rho
    L = []
    if rho == 0 and q and q % 2 == 0: L.append(V(f"v_add_u32 v{cTa}, {2 * TGRP}, v{cTa}"))
    L += [DSR("ds_read2_b32", buf + 8, 2, cTa, f"offset0:{o} offset1:{o+1}"), DSR("ds_read2_b32", buf + 10, 2, cTa, f"offset0:{o+2} offset1:{o+3}")]
    for k, c in enumerate((0, 192, 784, 976)):
        L.append(DSR("ds_read_b64", buf + 2 * k, 2, cAddr + rho // 2, f"offset:{XS * (rho & 1) + c + 8 * q}"))
    return L

def store(X, t):
    d = H + 24 * X + 4 * t
    return VMEM(f"buffer_store_dwordx4 {vr(d,4)}, v{vSt}, s[{sO}:{sO+3}], s{sStO2 if X else sStO} offen offset:{32 * t}{fl(cfg.OF)}", rd=[vSt] + list(R(d, 4)), store=True)

def res_reads(k):
    X, s = divmod(k, 6)
    return [DSR("ds_read_b64", XF[k] + 2 * r, 2, cRes, f"offset:{XS * X + 32 * s + 8 * r}") for r in range(2)]

def pk(op, d, *src, mods=""):
    return V(f"v_pk_{op}_f32 v[{d}:{d+1}], " + ", ".join(f"v[{x}:{x+1}]" for x in src) + mods)

def signal():
    t = T0
    return [V(f"v_mov_b32 v{t}, s{sT+2}"), V(f"v_mov_b32 v{t+1}, 1"),
            Ins(f"    s_mov_b64 exec, 1\n    ds_add_u32 v{t}, v{t+1}\n    s_mov_b64 exec, -1\n    s_add_u32 s{sTgt}, s{sTgt}, 4", "dsw_op", [t, t + 1], [])]
def poll():
    t = T0; l = lab("p")
    return [Ins(f"{l}:\n    ds_read_b32 v{t+1}, v{t}\n    s_waitcnt lgkmcnt(0)\n    v_readfirstlane_b32 s{sT+3}, v{t+1}\n"
                f"    s_cmp_ge_u32 s{sT+3}, s{sTgt}\n    s_cbranch_scc0 {l}", "waitall", [t], [t + 1])]

def cstage_setup():
    t = sT
    L = []
    for dst, add in ((sFh, 0), (sFres, 2)):
        L += [f"s_lshl_b32 s{t}, s{sJ}, 1", f"s_add_u32 s{t}, s{t}, s{sWin}", f"s_add_u32 s{t}, s{t}, {add}",
              f"s_cmp_ge_u32 s{t}, {NR}", f"s_cselect_b32 s{t+1}, {NR}, 0", f"s_sub_u32 s{t}, s{t}, s{t+1}", f"s_mul_i32 s{dst}, s{t}, {XS}"]
    L += [f"s_add_u32 s{t}, s{sJ}, 1", f"s_and_b32 s{t}, s{t}, 2", f"s_lshl_b32 s{t}, s{t}, 2", f"s_add_u32 s{sFres}, s{sFres}, s{t}"]
    return L

def dry_exit(): return [f"s_cmp_lg_u32 s{sDry}, 0", "s_cbranch_scc1 Ldry_ret"] if cfg.WARM else []
def dry_point(name): return [opaque(dry_exit() + [name + ":"])] if cfg.WARM else []

def cs(k):
    if not (cfg.STAMP and cfg.CST): return []
    return [Ins("\n".join("    " + l for l in [f"s_lshl_b32 s95, s{sP}, 3", f"s_add_u32 s95, s95, {30 + k}"] + stamp(17, "s95")), "waitall")]

def cstage():
    L = [COMMENT("row addresses, zero accumulators, convolution")]
    if cfg.CPRIO: L.append(S(f"s_setprio {cfg.CPRIO}"))
    L += [S(x) for x in cstage_setup()]
    L += [S(f"s_lshl_b32 s{sT+2}, s{sGrp}, 2"), S(f"s_add_u32 s{sT+2}, s{sT+2}, {CBASE}"), S(f"s_mov_b32 s{sT}, {XS}")]
    t0, t1, t2 = T0, T0 + 1, T0 + 4
    L += [V(f"v_bfe_u32 v{t2}, v{vL16}, 7, 2"), V(f"v_lshlrev_b32 v{t2}, 1, v{t2}"), V(f"v_mov_b32 v{T0+2}, 0"), V(f"v_mov_b32 v{T0+3}, 0")]
    for k in range(3):
        if k: L += [V(f"v_add_u32 v{t2}, 2, v{t2}")]
        L += [V(f"v_add_u32 v{t0}, s{sWin}, v{t2}"), V(f"v_subrev_u32 v{t1}, {NR}, v{t0}"), V(f"v_min_u32 v{t0}, v{t0}, v{t1}"),
              V(f"v_mad_u32_u24 v{t0}, v{t0}, s{sT}, v{vColB}"), V(f"v_and_b32 v{t1}, 4, v{t2}"), V(f"v_lshl_add_u32 v{cAddr+k}, v{t1}, 1, v{t0}")]
    L += [V(f"v_mov_b32 v{cTa}, v{vTa}"), V(f"v_bfe_u32 v{cIdx}, v{vL16}, 4, 2"), V(f"v_mul_u32_u24 v{cIdx}, 0x5555, v{cIdx}")]
    L += cs(0) + unit_reads(0) + unit_reads(1)
    for q in range(6): L.append(MFMA("32x32x8", ACC2 + 16 * q, T0 + 2, T0 + 2, None))
    L += [V(f"v_add_u32 v{cRes}, s{sFres}, v{vRes}"), V(f"v_add_u32 v{cHw}, v{cAddr}, v{vHwA}"), V(f"v_add_u32 v{cHr}, s{sFh}, v{vHr}")]
    for u in range(36):
        buf = cBuf[u % 2]
        if u == 18: L += dry_point("Ldry1")
        L.append(SM32(ACC2 + 16 * (u // 6), buf + 8, buf, cIdx))
        if u + 2 < 36: L += unit_reads(u + 2)
        else: L += res_reads(3 * (u - 34)) + res_reads(3 * (u - 34) + 1) + res_reads(3 * (u - 34) + 2)
        if u % 3 == 1: L.append(store(*divmod(u // 3, 6)))
    for k in range(6, 12): L += res_reads(k)
    L += [S(f"s_add_u32 s{sStO}, s{sStO}, s{sStInc}"), S(f"s_add_u32 s{sStO2}, s{sStO}, 98304"), S(f"s_mov_b32 s{sO+2}, 50331648"), S(f"s_mov_b32 s{sStInc}, {16 * 98304}")]
    L += cs(1) + dry_point("Ldry2")
    SA, QA, ST, QT = 56, 64, 72, 76
    for q in range(6):
        for u in range(4):
            y = ACC2 + 16 * q + 4 * u
            if q == 0: L += [pk("add", SA + 2 * u, y, y + 2), pk("mul", QA + 2 * u, y, y), pk("fma", QA + 2 * u, y + 2, y + 2, QA + 2 * u)]
            else:
                for e in (0, 2): L += [pk("add", SA + 2 * u, SA + 2 * u, y + e), pk("fma", QA + 2 * u, y + e, y + e, QA + 2 * u)]
    for u in range(4): L += [V(f"v_add_f32 v{ST+u}, v{SA+2*u}, v{SA+2*u+1}"), V(f"v_add_f32 v{QT+u}, v{QA+2*u}, v{QA+2*u+1}")]
    L += [S(f"s_lshl_b32 s{sT}, s{sJ}, 11"), V(f"v_add_u32 v{T0+4}, s{sT}, v{vL16}")]
    L += [DSW("ds_write_b128", T0 + 4, ST, 4, f"offset:{PBASE}"), DSW("ds_write_b128", T0 + 4, QT, 4, f"offset:{PBASE + 1024}")]
    L.append(Ins("s_waitcnt lgkmcnt(0)", "waitall"))
    L += cs(2) + signal()
    lm = lab("m")
    L.append(opaque([f"s_or_b32 s{sT}, s{sFirst}, s{sDry}", f"s_cbranch_scc1 {lm}"] + bar_lines() +
                    [f"s_cmp_eq_u32 s{sGrp}, 0", f"s_cbranch_scc0 {lm}"] + [l for gg in wdma_interval() for l in gg] + [f"{lm}:"]))
    L += poll()
    L += cs(3)
    L += [COMMENT("LayerNorm, exchange of the normalised tile, residual into the accumulators, first GEMM1")]
    PR = [56, 60, 64, 68, 48, 72, 76, G]
    dst = {(0, 0): 72, (0, 1): 76, (1, 0): 56, (1, 1): 60, (2, 0): 64, (2, 1): 68, (3, 0): G, (3, 1): G + 4}
    for w in range(4):
        for k in range(2): L.append(DSR("ds_read_b128", dst[(w, k)], 4, vL16, f"offset:{PBASE + 2048 * w + 1024 * k}"))
    for w in range(1, 4):
        for k in range(2):
            for h in (0, 2): L.append(pk("add", dst[(0, k)] + h, dst[(0, k)] + h, dst[(w, k)] + h))
    L += [DSR("ds_read_b128", G, 4, vL16, f"offset:{IBASE}"), DSR("ds_read_b128", G + 4, 4, vL16, f"offset:{IBASE + 1024}")]
    MN, SC, SH = 56, 48, 44 + 0
    SH = 60
    for u in range(4): L += [V(f"v_mul_f32 v{MN+u}, s{sInv96}, v{ST+u}")]
    for u in range(4): L += [V(f"v_mul_f32 v{SH+u}, v{MN+u}, v{MN+u}")]
    for u in range(4): L += [V(f"v_fma_f32 v{QT+u}, v{QT+u}, s{sInv96}, -v{SH+u}")]
    for u in range(4): L += [V(f"v_max_f32 v{QT+u}, 0, v{QT+u}")]
    for u in range(4): L += [V(f"v_add_f32 v{QT+u}, s{sEps}, v{QT+u}")]
    for u in range(4): L += [V(f"v_rsq_f32 v{QT+u}, v{QT+u}")]
    SC, SH2 = T0 + 2, 48
    for u in range(4): L += [V(f"v_mul_f32 v{SC+u}, s{sKap}, v{QT+u}")]
    for u in range(4): L += [V(f"v_mul_f32 v{SH2+u}, -v{MN+u}, v{SC+u}")]
    L += [V(f"v_add_u32 v{vW1c}, s{sRing}, v{vW1b}")]
    for q in range(6):
        for u in range(4):
            for e in (0, 2):
                y = ACC2 + 16 * q + 4 * u + e; o = u & 1
                L.append(pk("fma", y, y, SC + (u & 2), SH2 + (u & 2), mods=f" op_sel:[0,{o},{o}] op_sel_hi:[1,{o},{o}]"))
    L += cs(4) + dry_point("Ldry3")
    first_w1 = opaque([f"s_cmp_lg_u32 s{sFirst}, 0", "s_cbranch_scc1 Lw1wait", "Lw1wait_ret:"])
    def ident(q):
        X, b = divmod(q, 3)
        return [MFMA("32x32x16", acc2(X, b), G, XF[6 * X + 2 * b], None), MFMA("32x32x16", acc2(X, b), G + 4, XF[6 * X + 2 * b + 1], acc2(X, b))]
    def cvt(q): return [V(f"v_cvt_pk_bf16_f32 v{H+12*u+2*q+h}, v{ACC2+16*q+4*u+2*h}, v{ACC2+16*q+4*u+2*h+1}") for u in range(4) for h in range(2)]
    def hw(t): return [DSW("ds_write_b128", cHw, H + 12 * u + 4 * t, 4, f"offset:{192 * u + 16 * t}") for u in range(4)]
    for q in range(6):
        c = cvt(q)
        if q >= 1:
            i0, i1 = ident(q - 1)
            c = c[:1] + [i0] + c[1:5] + [i1] + c[5:]
        L += c
        if cfg.HW64: L += [DSW("ds_write_b64", cHw, H + 12 * u + 2 * q, 2, f"offset:{192 * u + 8 * q}") for u in range(4)]
        elif q % 2 == 1: L += hw(q // 2)
    L += cs(5) + signal()
    L += ident(5)
    L += [V(f"v_mov_b32 v{48+i}, 0") for i in range(6)]
    L += poll()
    L += cs(6)
    hr = [DSR("ds_read_b128", H + 8 * s + 4 * X, 4, cHr, f"offset:{XS * X + 32 * s}") for X in range(2) for s in range(6)]
    L += hr[:6]
    L.append(first_w1)
    for j in range(3): L += rd_w1(j, 1)
    L += [V(f"v_mov_b32 v{G+4+i}, 0") for i in range(4)]
    L += [g1(0, 0)] + rd_w1(3, 1) + rd_w1(4, 1) + [g1(0, 1)] + rd_w1(5, 1) + hr[6:9] + [g1(0, 2)] + hr[9:] + [g1(0, 3), g1(0, 4), g1(0, 5)]
    L += [V(f"v_mov_b32 v54, 0"), V(f"v_mov_b32 v55, 0")]
    L.append(Ins("s_waitcnt lgkmcnt(0)", "waitall"))
    L += cs(7)
    if cfg.CPRIO: L.append(S("s_setprio 0"))
    ab = cfg.ABL.split("+")
    if "hw" in ab: L = [i for i in L if not (i.kind == "dsw" and cHw in i.rd)]
    if "pk" in ab: L = [i for i in L if i.kind != "pk32"]
    if "brd" in ab: L = [i for i in L if not (i.text.startswith("ds_read_b64") and i.rd & set(R(cAddr, 3)))]
    if "sm" in ab: L = [i for i in L if "smfmac" not in i.text]
    if "st" in ab: L = [i for i in L if i.kind != "vstore"]
    if "unpk" in ab:
        out = []
        for i in L:
            if i.kind != "pk32": out.append(i); continue
            m = re.match(r"v_pk_(\w+)_f32 (.*?)( op_sel.*)?$", i.text); regs = [int(x) for x in re.findall(r"v\[(\d+):", m.group(2))]
            o = 1 if m.group(3) and "op_sel:[0,1" in m.group(3) else 0
            for h in range(2):
                r = [regs[0] + h, regs[1] + h] + [(x + o if m.group(3) else x + h) for x in regs[2:]]
                out.append(V(f"v_{m.group(1)}_f32 " + ", ".join(f"v{x}" for x in r)))
        L = out
    return L

def epilogue(with_stores):
    L = [COMMENT("epilogue: last GEMM2 k-step, convert")]
    att = [[g2(1, 1, b)] for b in range(3)]
    def cv(X, t):
        a = acc2(X, t >> 1) + 8 * (t & 1); d = H + 24 * X + 4 * t
        return [V(f"v_cvt_pk_bf16_f32 v{d+i}, v{a+2*i}, v{a+2*i+1}") for i in range(4)] + ([store(X, t)] if with_stores else [])
    first = []
    for t in range(6): first += cv(0, t)
    L += first[:2] + interleave(first[2:], att, 0.0, 0.5)
    for t in range(6): L += cv(1, t)
    return L

def prologue():
    P = []
    a = P.append
    a(f"s_cmp_ge_u32 s2, 256"); a("s_cbranch_scc1 Lend")
    if cfg.STAMP: a("s_memtime s[92:93]"); a("s_load_dwordx2 s[94:95], s[0:1], 56")
    if cfg.DBG: a("s_memtime s[92:93]"); a("s_memrealtime s[94:95]")
    a("s_load_dwordx8 s[4:11], s[0:1], 0"); a("s_load_dwordx4 s[12:15], s[0:1], 32")
    a("v_lshrrev_b32 v16, 6, v0"); a("v_and_b32 v17, 63, v0")
    a(f"v_readfirstlane_b32 s{sT}, v16")
    if cfg.WARM:
        a("s_getpc_b64 s[60:61]"); a("v_lshlrev_b32 v38, 6, v0"); a("v_min_u32 v38, CODE_LAST, v38")
        a("global_load_dword v39, v38, s[60:61]")
    a(f"s_and_b32 s{sT+1}, s2, 7"); a(f"s_lshl_b32 s{sT+1}, s{sT+1}, 5"); a(f"s_lshr_b32 s{sT+2}, s2, 3"); a(f"s_add_u32 s{sT+1}, s{sT+1}, s{sT+2}")
    a(f"s_lshr_b32 s{sTy}, s{sT+1}, 4"); a(f"s_and_b32 s{sTx}, s{sT+1}, 15")
    a(f"s_lshr_b32 s{sGrp}, s{sT}, 2"); a(f"s_and_b32 s{sJ}, s{sT}, 3"); a(f"s_mov_b32 s{sXrow}, s{sT}")
    a(f"s_mul_i32 s{sJ3k}, s{sJ}, 3072"); a(f"s_movk_i32 s{s1k}, 1024")
    a(f"s_mov_b32 s{sEx48}, -1"); a(f"s_mov_b32 s{sEx48+1}, 0xffff")
    a(f"v_lshlrev_b32 v{vL16}, 4, v17")
    a(f"s_cmp_eq_u32 s{sTx}, 0"); a(f"s_cselect_b32 s{sAdjL}, 0, 384"); a(f"s_cselect_b32 s{sT+3}, 384, 0"); a(f"s_cselect_b32 s{sT+4}, 24, 0")
    a(f"v_subrev_u32 v{vOffL}, s{sT+3}, v{vL16}"); a(f"v_cmp_le_u32 vcc, s{sT+4}, v17"); a("s_nop 1")
    a(f"v_cndmask_b32 v{vOffL}, 2.0, v{vOffL}, vcc")
    a(f"s_cmp_eq_u32 s{sTx}, 15"); a(f"s_cselect_b32 s{sT+4}, 24, 64"); a(f"v_cmp_gt_u32 vcc, s{sT+4}, v17"); a("s_nop 1")
    a(f"v_cndmask_b32 v{vOffR}, 2.0, v{vL16}, vcc")
    a("v_mul_u32_u24 v18, 683, v0"); a("v_lshrrev_b32 v18, 16, v18")
    a("v_mul_u32_u24 v19, 96, v18"); a("v_sub_u32 v19, v0, v19")
    a("v_mul_u32_u24 v20, 960, v18"); a("v_lshl_add_u32 v20, v19, 1, v20")
    a("v_lshlrev_b32 v21, 1, v19")
    P += row_setup()
    a("s_waitcnt lgkmcnt(0)")
    if cfg.STAMP: a("s_memtime s[96:97]"); a("s_memrealtime s[98:99]"); a("s_waitcnt lgkmcnt(0)")
    for (d, p, n) in ((sX, 4, 50331648), (28, 8, 4800), (32, 6, 192), (sO, 14, 0)):
        a(f"s_mov_b32 s{d}, s{p}"); a(f"s_and_b32 s{d+1}, s{p+1}, 0xffff"); a(f"s_mov_b32 s{d+2}, {n}"); a(f"s_mov_b32 s{d+3}, 0x20000")
    for j in range(5): a(f"buffer_load_ushort v{24+j}, v20, s[28:31], 0 offen offset:{192*j}")
    a("buffer_load_ushort v29, v21, s[32:35], 0 offen")
    a(f"s_mov_b64 exec, s[{sEx48}:{sEx48+1}]")
    for g in row_loads(): P += g
    a(f"s_cmp_eq_u32 s{sGrp}, 0"); a("s_cbranch_scc1 Lpro_A")
    a(f"s_add_u32 s{sXrow}, s{sXrow}, 4")
    P += row_dma_lines()
    a("Lpro_A:")
    a("s_mov_b64 exec, -1")
    a(f"s_cmp_lt_u32 s{sJ}, 2"); a(f"s_cselect_b32 s{sW}, s10, s12"); a(f"s_cselect_b32 s{sW+1}, s11, s13")
    a(f"s_cselect_b32 s{sWstep}, 64, 6144"); a(f"s_mov_b32 s{sWins}, 1024")
    a(f"s_cselect_b32 s{sWins}, 12288, s{sWins}"); a(f"s_cselect_b32 s{sWsrc}, 2, 1"); a(f"s_mul_i32 s{sWsrc}, s{sWsrc}, s{sWstep}"); a(f"s_mul_i32 s{sWlim}, s{sWstep}, 12")
    a(f"s_and_b32 s{sW+1}, s{sW+1}, 0xffff"); a(f"s_mov_b32 s{sW+2}, 73728"); a(f"s_mov_b32 s{sW+3}, 0x20000")
    a(f"s_and_b32 s{sT+3}, s{sJ}, 1"); a(f"s_mul_i32 s{sT+3}, s{sT+3}, 3"); a(f"s_mul_i32 s{sWbase}, s{sT+3}, s{sWins}")
    a("v_lshrrev_b32 v22, 2, v17"); a("v_mul_u32_u24 v22, 768, v22"); a("v_and_b32 v23, 3, v17"); a("v_lshl_add_u32 v22, v23, 4, v22")
    a(f"s_cmp_lt_u32 s{sJ}, 2"); a("s_cselect_b64 vcc, -1, 0"); a(f"v_cndmask_b32 v{vDMA}, v{vL16}, v22, vcc")
    assert cfg.WLATE
    if cfg.STAMP: a("s_memtime s[100:101]"); a("s_waitcnt lgkmcnt(0)")
    a(f"s_mov_b32 s{sA16}, {A_imm:#x}"); a(f"s_mov_b32 s{sK16}, {K_imm:#x}")
    a(f"s_mov_b32 s{sInv96}, {f32bits(1/96):#x}"); a(f"s_mov_b32 s{sEps}, {f32bits(1e-5):#x}"); a(f"s_mov_b32 s{sKap}, {f32bits(kap_use):#x}")
    D = cfg.D
    a(f"s_lshl_b32 s{sT}, s{sTy}, 5"); a(f"s_lshl_b32 s{sT+1}, s{sGrp}, 3"); a(f"s_add_u32 s{sT}, s{sT}, s{sT+1}"); a(f"s_lshl_b32 s{sT+1}, s{sJ}, 1")
    a(f"s_add_u32 s{sT}, s{sT}, s{sT+1}"); a(f"s_mul_i32 s{sT}, s{sT}, 98304"); a(f"s_mul_i32 s{sT+1}, s{sTx}, 6144"); a(f"s_add_u32 s{sStO}, s{sT}, s{sT+1}")
    a(f"s_mov_b32 s{sDry+1}, s{sStO}")
    a("v_and_b32 v30, 7, v17"); a("v_lshrrev_b32 v31, 5, v17"); a("v_bfe_u32 v32, v17, 4, 1")
    a(f"s_mul_i32 s{sT}, s{sJ}, 48"); a(f"s_add_u32 s{sT}, s{sT}, {XBASE}")
    a("v_mul_u32_u24 v33, 784, v30"); a("v_mul_u32_u24 v34, 384, v31"); a(f"v_add3_u32 v{vColB}, v33, v34, s{sT}")
    a(f"v_mul_u32_u24 v33, {XS - 384}, v31"); a("v_lshlrev_b32 v34, 3, v32"); a(f"v_sub_u32 v{vHwA}, v33, v34")
    a("v_and_b32 v35, 31, v17"); a("v_lshlrev_b32 v36, 4, v31")
    a(f"v_mul_u32_u24 v33, 192, v35"); a(f"v_add_u32 v{vSt}, v33, v36")
    a("v_lshrrev_b32 v33, 2, v35"); a(f"v_lshl_add_u32 v33, v33, 4, v{vSt}"); a(f"v_add_u32 v{vHr}, {XBASE}, v33")
    a("v_add_u32 v33, 2, v35"); a("v_lshrrev_b32 v33, 2, v33"); a(f"v_lshl_add_u32 v33, v33, 4, v{vSt}"); a(f"v_add_u32 v{vRes}, {XBASE + 384}, v33")
    a("v_and_b32 v33, 3, v17"); a("v_bfe_u32 v34, v17, 2, 2")
    a("v_and_b32 v35, 1, v17"); a("v_mul_u32_u24 v35, 400, v35"); a("v_bfe_u32 v36, v17, 1, 1"); a("v_mul_u32_u24 v36, 192, v36"); a("v_add_u32 v35, v35, v36")
    a("v_bfe_u32 v36, v17, 2, 1"); a("v_lshlrev_b32 v36, 5, v36"); a("v_sub_u32 v35, v35, v36")
    a("v_bfe_u32 v36, v17, 3, 2"); a("v_lshlrev_b32 v36, 2, v36"); a("v_sub_u32 v35, v35, v36")
    a(f"s_mul_i32 s{sT}, s{sJ}, {6 * TGRP}"); a(f"s_add_u32 s{sT}, s{sT}, {TBASE}")
    a("v_lshl_add_u32 v35, v31, 4, v35"); a(f"v_add_u32 v{vTa}, s{sT}, v35")
    a("v_lshl_add_u32 v35, v31, 3, v34"); a("v_lshlrev_b32 v35, 6, v35"); a("v_lshl_add_u32 v35, v32, 5, v35"); a(f"v_lshl_add_u32 v{vW1b}, v33, 3, v35")
    a("v_lshl_add_u32 v35, v31, 2, v34"); a("v_mul_u32_u24 v35, 192, v35"); a("v_lshl_add_u32 v35, v32, 5, v35")
    a("v_and_b32 v36, 1, v17"); a("v_lshl_add_u32 v35, v36, 4, v35"); a("v_bfe_u32 v36, v17, 1, 1"); a(f"v_lshl_add_u32 v{vW2b}, v36, 3, v35")
    def enter(targets, ret=0):
        a(f"s_mov_b32 s{sDry+3}, {ret}")
        a(f"s_mov_b32 s{sDry}, 1"); a(f"s_mov_b32 s{sFirst}, 0"); a(f"s_mov_b32 s{sCnt}, 1"); a(f"s_mov_b32 s{sT+3}, -1"); a(f"s_mov_b32 s{sTgt}, 0")
        a(f"s_mov_b32 s{sDry+2}, s{sWsrc}"); a("s_waitcnt lgkmcnt(0)")
        a("s_setvskip -1, 0")
        for k, t in enumerate(targets[:3]): a(f"s_cmp_eq_u32 s{sJ}, {k}"); a(f"s_cbranch_scc1 {t}")
        a(f"s_branch {targets[3]}")
    def init_state():
        a(f"s_mov_b32 s{sXM}, {3 | (3 << (7 - D)):#x}"); a(f"s_mov_b32 s{sXinc}, 1"); a(f"s_mov_b32 s{sRing}, {WBASE}")
        a(f"s_mov_b32 s{sSig}, 1"); a(f"s_mov_b32 s{sP}, 0"); a(f"s_xor_b32 s{sFirst}, s{sGrp}, 1"); a(f"s_lshl_b32 s{sWin}, s{sGrp}, 3")
        a(f"s_mov_b32 s{sStInc}, 0"); a(f"s_mov_b32 s{sStO}, s{sDry+1}"); a(f"s_add_u32 s{sStO2}, s{sStO}, 98304"); a(f"s_mov_b32 s{sTgt}, 0")
        a(f"s_mov_b32 s{sO+2}, 0"); a(f"s_mov_b32 s{sDry}, 0")
    init_state()
    if cfg.WARM:
        a(f"s_cmp_eq_u32 s{sGrp}, 0"); a("s_cbranch_scc0 Ldry_skip")
        enter(["Lconv", "Ldry1", "Ldry2", "Ldry3"])
        a("Ldry_ret:"); a("s_setvskip 0, 0"); a("s_mov_b64 exec, -1"); a("s_setprio 0"); a(f"s_mov_b32 s{sWsrc}, s{sDry+2}")
        init_state()
        a(f"s_cmp_eq_u32 s{sDry+3}, 1"); a("s_cbranch_scc1 Ldry_B"); a(f"s_cmp_eq_u32 s{sDry+3}, 2"); a("s_cbranch_scc1 Ldry_B2")
        a("Ldry_skip:")
    a("v_bfe_u32 v35, v17, 3, 1"); a("v_lshl_add_u32 v35, v35, 2, v33")
    a("v_and_b32 v36, 1, v35"); a("v_lshlrev_b32 v36, 4, v36"); a("v_mov_b32 v37, 0x3f80"); a("v_lshlrev_b32 v36, v36, v37")
    a("v_lshrrev_b32 v35, 1, v35"); a("v_lshl_add_u32 v35, v32, 2, v35")
    a("v_bfe_u32 v37, v17, 2, 1"); a("v_cmp_eq_u32 vcc, v37, v31"); a("s_nop 1"); a("v_cndmask_b32 v35, 8, v35, vcc")
    for d in range(8):
        a(f"v_cmp_eq_u32 vcc, {d}, v35"); a("s_nop 1"); a(f"v_cndmask_b32 v{40+d}, 0, v36, vcc")
    a(f"ds_write_b128 v{vL16}, v[40:43] offset:{IBASE}"); a(f"ds_write_b128 v{vL16}, v[44:47] offset:{IBASE + 1024}")
    a(f"s_cmp_eq_u32 s{sGrp}, 0"); a("s_cbranch_scc0 Lpro_w2"); a("s_waitcnt vmcnt(9)"); a("Lpro_w2:"); a("s_waitcnt vmcnt(18)")
    a("v_cmp_eq_u32 vcc, 2, v18"); a("v_lshlrev_b32 v29, 16, v29"); a("s_nop 0"); a("v_cndmask_b32 v29, 0, v29, vcc"); a("v_or_b32 v26, v26, v29")
    a("v_mov_b32 v29, 0"); a("v_mov_b32 v30, 0"); a("v_mov_b32 v31, 0")
    a(f"v_lshrrev_b32 v33, 2, v19"); a(f"v_mul_u32_u24 v33, {TGRP}, v33"); a("v_lshl_add_u32 v33, v18, 5, v33")
    a("v_and_b32 v34, 1, v19"); a("v_mul_u32_u24 v34, 400, v34"); a("v_bfe_u32 v35, v19, 1, 1"); a("v_mul_u32_u24 v35, 192, v35"); a("v_add3_u32 v33, v33, v34, v35")
    a("v_cmp_gt_u32 vcc, 480, v0"); a("s_and_saveexec_b64 s[72:73], vcc")
    a(f"ds_write_b128 v33, v[24:27] offset:{TBASE}"); a(f"ds_write_b128 v33, v[28:31] offset:{TBASE + 16}")
    a("s_mov_b64 exec, -1")
    a("v_mov_b32 v28, 0")
    a("v_cmp_eq_u32 vcc, 4, v18"); a("s_and_saveexec_b64 s[72:73], vcc")
    a(f"ds_write_b128 v33, v[28:31] offset:{TBASE + 32}"); a(f"ds_write_b128 v33, v[28:31] offset:{TBASE + 48}")
    a("v_and_b32 v34, 3, v19"); a("v_cmp_eq_u32 vcc, 2, v34"); a("s_and_b64 exec, exec, vcc")
    a(f"ds_write_b128 v33, v[28:31] offset:{TBASE + 64}")
    a("s_mov_b64 exec, -1")
    a("v_mov_b32 v33, 0")
    for o in (0, 16, 32): a(f"ds_write_b128 v33, v[28:31] offset:{TPAD + o}")
    a(f"ds_write_b128 v33, v[28:31] offset:{CBASE}")
    if cfg.STAMP:
        a("v_mov_b32 v16, 0"); a("v_mov_b32 v17, 0"); a("v_writelane_b32 v16, s92, 60"); a("v_writelane_b32 v16, s96, 56")
        a("v_writelane_b32 v16, s98, 54"); a("v_writelane_b32 v16, s100, 57")
        P += stamp(16, 61)
        a(f"s_mov_b32 s96, {cfg.SMASK & 0xffffffff:#x}"); a(f"s_mov_b32 s97, {(cfg.SMASK >> 32) & 0xffffffff:#x}")
    a(f"s_cmp_eq_u32 s{sGrp}, 0"); a("s_cbranch_scc0 Lpro_w4")
    a("s_waitcnt vmcnt(0) lgkmcnt(0)"); P += stamp(16, 58)
    a(f"s_mul_i32 s{sT}, s{sWstep}, 7"); a(f"s_add_u32 s{sWsrc}, s{sWsrc}, s{sT}")
    a("s_barrier")
    P += stamp(17, 58); a("s_branch Lconv")
    a("Lpro_w4:"); a("s_waitcnt vmcnt(0) lgkmcnt(0)"); P += stamp(16, 58); a("s_barrier")
    for q in range(1, 4):
        for g in wdma_groups(f"{WBASE + q * WSET}"): P += g
    if cfg.WARM:
        enter(["Lbody2", "Lhalf2", "Lbody0", "Lhalf0"], 1); a("Ldry_B:")
        enter(["Lbody1", "Lhalf1", "Lepi0", "Lepi1"], 2); a("Ldry_B2:")
    a("s_waitcnt vmcnt(6)"); a("s_barrier")
    assert D == 3
    P += bar_lines()
    for g in wdma_interval(): P += g
    a(f"s_lshl_b32 s{sXrow}, s{sJ}, 1"); a(f"s_add_u32 s{sXrow}, s{sXrow}, 12"); a(f"s_mov_b64 exec, s[{sEx48}:{sEx48+1}]")
    P += row_dma_lines(); a(f"s_add_u32 s{sXrow}, s{sXrow}, 1")
    P += row_dma_lines(); a(f"s_add_u32 s{sXrow}, s{sXrow}, 7")
    a("s_mov_b64 exec, -1")
    P += bar_lines("s_waitcnt vmcnt(18)")
    for g in wdma_interval(): P += g
    return P

def build():
    D = cfg.D
    out = []
    hdr = ["; fused depthwise 5x5 + LayerNorm + MLP(GELU) + residual; generated by gen/gen.py",
           f"; @launch grid=(256,1,1) block=(512,1,1) lds={LDS_BYTES}",
           '.amdgcn_target "amdgcn-amd-amdhsa--gfx950"', ".text", f".globl {KNAME}", ".p2align 8", f".type {KNAME},@function", f"{KNAME}:"]
    out += hdr
    def raw(lines):
        for l in lines: out.append(l if l.endswith(":") or l.startswith(".") else "    " + l)
    raw(prologue())
    epi0, epi1 = epilogue(False), epilogue(True)
    cs = cstage()
    bodies = [loop_body(0), loop_body(1), loop_body(2)]
    marks = [LABEL(n) for n in ("@c", "@a1", "@a2", "@b2", "@e0", "@x", "@e1", "@end")]
    lin = [marks[0]] + cs + [marks[1]] + bodies[0] + [marks[2]] + bodies[0] + [marks[3]] + bodies[1] + [marks[4]] + epi0 + [marks[5]] + bodies[2] + [marks[6]] + epi1 + [marks[7]]
    lin, pend = insert_lgkm(lin, cfg.OLD); assert not pend
    lin, _ = fix_hazards(lin)
    idx = [next(k for k, i in enumerate(lin) if i is m) for m in marks]
    cst, a1, a2, b2, e0, n2, e1 = (lin[idx[k] + 1: idx[k + 1]] for k in range(7))
    n1 = sum(states(i) for i in a1 if i.kind == "nop") - sum(states(i) for i in a2 if i.kind == "nop")
    assert [i.text for i in a1 if i.kind != "nop"] == [i.text for i in a2 if i.kind != "nop"]
    if n1 > 0: cst = cst + [Ins(f"s_nop {n1 - 1}", "nop")]
    for path in ([cst, n2, a2, a2, e0, cst, a2, e1], [cst, b2, b2, e0, cst, n2, n2, e1]):
        seq = [i for blk in path for i in blk]
        _, bad = fix_hazards(seq, check_only=True); assert not bad, bad
        assert not check_lgkm(seq)
    def emit(blk):
        for i in blk:
            if i.kind == "touch": continue
            for l in i.text.split("\n"): out.append(l if i.kind in ("label", "opaque", "dsw_op") or l.startswith("    ") or l.endswith(":") else "    " + l)
    out.append("Louter:")
    raw(bar_lines())
    raw([f"s_cmp_eq_u32 s{sGrp}, 0", "s_cbranch_scc0 Lno_w"] + [l for g in wdma_interval() for l in g] + ["Lno_w:"])
    raw([f"s_cmp_eq_u32 s{sP}, 0", "s_cbranch_scc1 Lconv"])
    out.append("Lepi0:")
    emit(e0)
    raw(dry_exit())
    out.append("Lconv:")
    emit(cst)
    raw(dry_exit())
    raw([f"s_mov_b32 s{sCnt}, 6", f"s_cmp_eq_u32 s{sGrp}, 0", "s_cbranch_scc0 LselB",
         f"s_cmp_lg_u32 s{sFirst}, 0", f"s_cselect_b32 s{sCnt}, 2, 6", "s_cbranch_scc1 LloopN"])
    tail = [f"s_add_u32 s{sWin}, s{sWin}, 4", f"s_cmp_ge_u32 s{sWin}, {NR}", f"s_cselect_b32 s{sWin}, 0, s{sWin}",
            f"s_add_u32 s{sP}, s{sP}, 1", f"s_cmp_eq_u32 s{sP}, 1", "s_cbranch_scc1 Louter"]
    raw([".p2align 6", "LloopA:"]); emit(a2)
    raw([f"s_sub_u32 s{sCnt}, s{sCnt}, 1", f"s_cmp_lg_u32 s{sCnt}, 0", "s_cbranch_scc1 LloopA"] + dry_exit() + tail)
    raw(bar_lines())
    if D > 1: raw([l for g in wdma_interval() for l in g])
    emit(e1)
    raw(stamp(16, 62))
    for i in range(16, D + 16):
        raw(bar_lines("s_waitcnt vmcnt(12)" if i == 16 else "s_waitcnt vmcnt(0)"))
        if i < D + 15: raw([l for g in wdma_interval() for l in g])
    raw(["s_branch Lfin"])
    raw(["LselB:", f"s_cmp_eq_u32 s{sP}, 0", "s_cbranch_scc0 LloopN"])
    raw([".p2align 6", "LloopB:"]); emit(b2)
    raw([f"s_sub_u32 s{sCnt}, s{sCnt}, 1", f"s_cmp_lg_u32 s{sCnt}, 0", "s_cbranch_scc1 LloopB"] + dry_exit() + tail[:4] + ["s_branch Louter"])
    raw([".p2align 6", "LloopN:"]); emit(n2)
    raw([f"s_sub_u32 s{sCnt}, s{sCnt}, 1", f"s_cmp_lg_u32 s{sCnt}, 0", "s_cbranch_scc1 LloopN"] + dry_exit() + [
         f"s_cmp_lg_u32 s{sFirst}, 0", f"s_mov_b32 s{sFirst}, 0", f"s_mov_b32 s{sCnt}, 4", "s_cbranch_scc1 LloopA"])
    out.append("Lepi1:")
    emit(e1)
    raw(dry_exit())
    raw(stamp(16, 62))
    out.append("Lfin:")
    if cfg.STAMP:
        raw(["s_waitcnt vmcnt(0)"] + stamp(16, 63) + ["s_memrealtime s[98:99]", "s_waitcnt lgkmcnt(0)", "v_writelane_b32 v16, s98, 55",
             "s_load_dwordx2 s[94:95], s[0:1], 56", "s_waitcnt lgkmcnt(0)", "s_mov_b32 s28, s94", "s_and_b32 s29, s95, 0xffff", "s_mov_b32 s30, 0x1000000", "s_mov_b32 s31, 0x20000",
             f"s_lshl_b32 s89, s{sGrp}, 2", f"s_add_u32 s89, s89, s{sJ}", "s_lshl_b32 s90, s2, 3", "s_add_u32 s89, s89, s90", "s_lshl_b32 s89, s89, 9",
             f"v_lshrrev_b32 v18, 2, v{vL16}", "buffer_store_dword v16, v18, s[28:31], s89 offen", "buffer_store_dword v17, v18, s[28:31], s89 offen offset:256"])
    if cfg.DBG:
        raw(["s_waitcnt vmcnt(0)", "s_memtime s[90:91]", "s_memrealtime s[96:97]", "s_load_dwordx2 s[98:99], s[0:1], 48", "s_waitcnt lgkmcnt(0)",
             "s_sub_u32 s90, s90, s92", "s_sub_u32 s96, s96, s94", "s_mov_b32 s28, s98", "s_and_b32 s29, s99, 0xffff", "s_mov_b32 s30, 64", "s_mov_b32 s31, 0x20000",
             f"s_cmp_eq_u32 s{sGrp}, 1", "s_cbranch_scc0 Lend", f"s_cmp_eq_u32 s{sJ}, 0", "s_cbranch_scc0 Lend",
             "s_lshr_b32 s89, s2, 5", "s_lshl_b32 s89, s89, 3", "s_and_b32 s91, s2, 31", "s_cmp_eq_u32 s91, 0", "s_cbranch_scc0 Lend",
             "v_mov_b32 v16, s90", "v_mov_b32 v17, s96", "v_mov_b32 v18, 0", "s_mov_b64 exec, 1", "buffer_store_dwordx2 v[16:17], v18, s[28:31], s89 offen"])
    raw(["Lend:", "s_endpgm"])
    raw(["Lw1wait:", "s_barrier", "s_branch Lw1wait_ret"])
    if cfg.ALIGN:
        tmp, npad, nwid = align8([l.replace("CODE_LAST", "0x1000") for l in out], "Louter", "Lend")
        out = [l.replace("v38, 0x1000", "v38, CODE_LAST") for l in tmp]
        sys.stderr.write(f"align8: {npad} pads, {nwid} widened\n")
    nbytes = sum(insn_sizes([l.replace("CODE_LAST", "0x1000") for l in out]))
    out = [l.replace("CODE_LAST", str(nbytes // 64 * 64 - 128)) for l in out]
    assert nbytes <= 32768
    out += ['.section .rodata,"a"', ".p2align 6", f".amdhsa_kernel {KNAME}", "  .amdhsa_next_free_vgpr 256", f"  .amdhsa_next_free_sgpr {102 if cfg.STAMP or cfg.DBG else 96}",
            "  .amdhsa_accum_offset 256", "  .amdhsa_group_segment_fixed_size 0", "  .amdhsa_kernarg_size 64", "  .amdhsa_user_sgpr_count 2",
            "  .amdhsa_user_sgpr_kernarg_segment_ptr 1", "  .amdhsa_system_sgpr_workgroup_id_x 1", ".end_amdhsa_kernel"]
    return "\n".join(out) + "\n"

open(sys.argv[1], "w").write(build())
```

```python
import sys, struct, math
import numpy as np, re
from asmlib import *

class Cfg:
    D = 3
    GELU = "B"
    PRIO = 1
    CPRIO = 3
    XF = 'nt'
    OF = ''
    WF = ''
    ALIGN = True
    STAMP = False
    SMASK = -1
    OLD = 200
    S64 = True
    DBG = False
    WARM = True
    HW64 = True
    PBASE = 3
    ABL = ''
    CST = False
    PKS = 0
    PKN = False
    W1G = True
    R2 = False
    NOSTAT = False
    NOCRD = False
    N0 = 15
    WLATE = True
cfg = Cfg()
for a in sys.argv[2:]:
    k, v = a.split("=")
    setattr(cfg, k, type(getattr(cfg, k))(v) if not isinstance(getattr(cfg, k), bool) else v in ("1", "True"))

KNAME = "standalone__modern_conv_block_replknet__vision_kernel"
XS = 7104; NR = 12
TPAD = 0
TBASE = 48
TGRP = 784
IBASE = TBASE + 24 * TGRP
PBASE = IBASE + 2048
CBASE = PBASE + 8192
WBASE = CBASE + 16
WSET = 12288
XBASE = WBASE + 4 * WSET
LDS_BYTES = XBASE + NR * XS
assert LDS_BYTES <= 163840, LDS_BYTES
assert WBASE % 16 == 0 and IBASE % 16 == 0
vColB, vHwA, vRes, vHr, vTa, vSt, vW1b, vW2b, vW1c, vW2c, vDMA, vOffL, vOffR, vL16 = range(1, 15)
T0 = 18
G = 24
W2F = 32
W1F = 56
ACC1 = (80, 96)
H = 112
ACC2 = 160
def acc2(X, b): return ACC2 + 48 * X + 16 * b
cBuf = (56, 68)
cAddr = 48
cTa, cIdx, cRes, cHw, cHr = 51, 52, 53, 54, 55
XF = [80, 84, 88, 92, 96, 100, 104, 108, 32, 36, 40, 44]
sX, sO, sW = 16, 20, 24
sGrp, sJ, sTx, sTy, sSig, sRing, sWsrc, sWstep, sWlim, sWins, sWbase, sP, sCnt = range(36, 49)
sA16, sK16, sStO = 49, 50, 51
sWin, sXrow, sFirst = 63, 64, 65
sXM, sXinc = 66, 67
sExX = 68
sAdjL = 70
sT = 71
sEx48 = 80
sInv96, sEps, sKap = 82, 83, 84
sDry = 56
sStO2, sTgt = 52, 53
sFres, sFh = 54, 55
sXo, sXm = 85, 86
sStInc = 87
s1k = 89
sJ3k = 88
RSUM = 2 * WBASE + 2 * WSET

def f32bits(x): return struct.unpack("<I", struct.pack("<f", x))[0]
def f16bits(x): return int(np.float16(x).view(np.uint16))
a_c = -2.0 * math.log2(math.e) * math.sqrt(2.0 / math.pi)
b_c = a_c * 0.044715
kap = -((-b_c) ** (1.0 / 3.0))
if cfg.GELU in ("B",):
    kap_use = float(np.float16(kap))
    A_imm = f16bits(a_c / kap_use) * 0x10001
    K_imm = f16bits(kap_use) * 0x10001
else:
    kap_use = kap
    A_imm = f32bits(a_c / kap)
    K_imm = f32bits(kap)

def fl(s): return ''.join(' ' + w for w in s.split('+') if w)
uid = [0]
def lab(p):
    uid[0] += 1
    return f"L{p}_{uid[0]}"

def opaque(lines):
    return Ins("\n".join("    " + l if not l.endswith(":") else l for l in lines), "opaque", cost=0)

def stamp(vreg, lane):
    if not cfg.STAMP: return []
    return ["s_memtime s[90:91]", f"s_mov_b32 m0, {lane}", "s_waitcnt lgkmcnt(0)", f"v_writelane_b32 v{vreg}, s90, m0"]
def cstamp(vreg):
    if not cfg.STAMP: return []
    if cfg.SMASK == -1: return stamp(vreg, f"s{sSig}")
    l = lab("s")
    return [f"s_bitcmp1_b64 s[96:97], s{sSig}", f"s_cbranch_scc0 {l}"] + stamp(vreg, f"s{sSig}") + [f"{l}:"]

def wdma_groups(dst):
    out = []
    for u in range(3):
        g = [f"s_add_u32 m0, {dst}, s{sJ3k}", f"s_add_u32 s{sT+8}, s{sWsrc}, s{sWbase}"] if u == 0 else \
            [f"s_add_u32 m0, m0, s{s1k}", f"s_add_u32 s{sT+8}, s{sT+8}, s{sWins}"]
        g.append(f"buffer_load_dwordx4 v{vDMA}, s[{sW}:{sW+3}], s{sT+8} offen{fl(cfg.WF)} lds")
        if u == 2: g += [f"s_add_u32 s{sWsrc}, s{sWsrc}, s{sWstep}", f"s_cmp_eq_u32 s{sWsrc}, s{sWlim}", f"s_cselect_b32 s{sWsrc}, 0, s{sWsrc}"]
        out.append(g)
    return out
def wdma_interval():
    g = wdma_groups(f"s{sT+7}") + wdma_groups(f"s{sT+7}")
    g[0] = [f"s_sub_u32 s{sT+7}, {RSUM}, s{sRing}"] + g[0]
    g[3] = [f"s_add_u32 s{sT+7}, s{sT+7}, {WSET}"] + g[3]
    return g

def row_setup():
    t0, t1, t2 = sT, sXo, sT + 1
    return [f"s_lshl_b32 s{t0}, s{sTy}, 5", f"s_add_u32 s{t0}, s{t0}, s{sXrow}", f"s_sub_u32 s{t0}, s{t0}, 2",
            f"s_mul_i32 s{t1}, s{t0}, 98304", f"s_mul_i32 s{t2}, s{sTx}, 6144", f"s_add_u32 s{t1}, s{t1}, s{t2}",
            f"s_cmp_lt_u32 s{t0}, 512", f"s_cselect_b32 s{t1}, s{t1}, 0x80000000",
            f"s_cmp_ge_u32 s{sXrow}, 24", f"s_cselect_b32 s{t2}, 24, 0", f"s_sub_u32 s{t0}, s{sXrow}, s{t2}",
            f"s_cmp_ge_u32 s{t0}, 12", f"s_cselect_b32 s{t2}, 12, 0", f"s_sub_u32 s{t0}, s{t0}, s{t2}",
            f"s_and_b32 s{t2}, s{sXrow}, 4", f"s_lshl_b32 s{t2}, s{t2}, 1", f"s_mul_i32 s{t0}, s{t0}, {XS}", f"s_add_u32 s{t0}, s{t0}, s{t2}",
            f"s_add_u32 s{sXm}, s{t0}, {XBASE}"]
def row_loads():
    out = [[f"s_mov_b32 m0, s{sXm}", f"s_sub_u32 s{sT}, s{sXo}, s{sAdjL}", f"buffer_load_dwordx4 v{vOffL}, s[{sX}:{sX+3}], s{sT} offen{fl(cfg.XF)} lds"]]
    for a in range(1, 9):
        out.append([f"s_add_u32 m0, s{sXm}, {784 * a}", f"s_add_u32 s{sT}, s{sXo}, {768 * a - 384}",
                    f"buffer_load_dwordx4 v{vOffR if a == 8 else vL16}, s[{sX}:{sX+3}], s{sT} offen{fl(cfg.XF)} lds"])
    return out
def row_dma_lines(): return row_setup() + [l for g in row_loads() for l in g]

def bar_lines(wait="s_waitcnt vmcnt(0)"):
    L = cstamp(16) + ([wait] if wait else []) + ["s_barrier"] + cstamp(17)
    L += [f"s_sub_u32 s{sRing}, {RSUM}, s{sRing}"]
    if cfg.STAMP: L += [f"s_add_u32 s{sSig}, s{sSig}, 1"]
    return L

def gelu_B(Sr):
    ops = []
    def st(p, k):
        a0 = Sr + 2 * p; a1 = a0 + 1; t = T0 + (p % 2) * 3; u = t + 1; w = t + 2
        return [V(f"v_cvt_pk_f16_f32 v{t}, v{a0}, v{a1}"),
                V(f"v_pk_fma_f16 v{u}, v{t}, v{t}, s{sA16}"),
                V(f"v_pk_mul_f16 v{t}, v{t}, v{u}"),
                V(f"v_exp_f16 v{u}, v{t}"),
                V(f"v_exp_f16_sdwa v{u}, v{t} dst_sel:WORD_1 dst_unused:UNUSED_PRESERVE src0_sel:WORD_1"),
                V(f"v_pk_fma_f16 v{t}, v{u}, s{sK16}, s{sK16}"),
                V(f"v_rcp_f16 v{u}, v{t}"),
                V(f"v_rcp_f16_sdwa v{w}, v{t} dst_sel:DWORD dst_unused:UNUSED_PAD src0_sel:WORD_1"),
                V(f"v_fma_mix_f32 v{u}, v{a0}, v{u}, 0 op_sel_hi:[0,1,0]"),
                V(f"v_fma_mix_f32 v{w}, v{a1}, v{w}, 0 op_sel_hi:[0,1,0]"),
                V(f"v_cvt_pk_bf16_f32 v{G+p}, v{u}, v{w}")][k]
    for q in range(0, 8, 2):
        for k in range(11):
            ops += [st(q, k), st(q + 1, k)]
    return ops

def gelu_A(Sr):
    ops = []
    for q in range(0, 16, 4):
        for k in range(6):
            for e in range(4):
                a = Sr + q + e; r = T0 + e
                ops.append([V(f"v_fma_f32 v{r}, v{a}, v{a}, s{sA16}"), V(f"v_mul_f32 v{r}, v{a}, v{r}"), V(f"v_exp_f32 v{r}, v{r}"),
                            V(f"v_fma_f32 v{r}, v{r}, s{sK16}, s{sK16}"), V(f"v_rcp_f32 v{r}, v{r}"), V(f"v_mul_f32 v{r}, v{a}, v{r}")][k])
        ops += [V(f"v_cvt_pk_bf16_f32 v{G+q//2}, v{T0}, v{T0+1}"), V(f"v_cvt_pk_bf16_f32 v{G+q//2+1}, v{T0+2}, v{T0+3}")]
    return ops
gelu = {"A": gelu_A, "B": gelu_B}[cfg.GELU]

TR = "ds_read_b64_tr_b16"
def rd_w1(j, c):
    return [DSR(TR, W1F + 4 * j + 2 * r, 2, vW1c, f"offset:{WSET * c + 1024 * j + 256 * r}") for r in range(2)]
def rd_w2(sp, b, c):
    return [DSR(TR, W2F + 12 * sp + 4 * b + 2 * r, 2, vW2c, f"offset:{WSET * c + 6144 + (16 * sp + 8 * r) * 192 + 64 * b}") for r in range(2)]
def g1(X, j):
    return MFMA("32x32x16", ACC1[X], W1F + 4 * j, H + 8 * j + 4 * X, None if j == 0 else ACC1[X])
def g2(X, sp, b):
    return MFMA("32x32x16", acc2(X, b), W2F + 12 * sp + 4 * b, G + 4 * sp, acc2(X, b))

def step(X, c, extra):
    Y = 1 - X
    ld = (X == 0)
    att = [[g2(Y, 1, 0)] + (rd_w2(1, 0, c) if ld else []),
           [g1(Y, 0)] + (rd_w2(0, 0, c) + rd_w1(0, c) if ld else []),
           [g2(Y, 1, 1)] + (rd_w2(0, 1, c) + rd_w2(1, 1, c) if ld else []),
           [g1(Y, 1)] + (rd_w2(0, 2, c) + rd_w1(1, c) if ld else []),
           [g2(Y, 1, 2)] + (rd_w2(1, 2, c) if ld else []),
           [g1(Y, 2)] + (rd_w1(2, c) if ld else []),
           [g1(Y, 3)] + (rd_w1(3, c) if ld else []),
           [g2(X, 0, 0)],
           [g1(Y, 4)] + (rd_w1(4, c) if ld else []),
           [g2(X, 0, 1)],
           [g1(Y, 5)] + (rd_w1(5, c) if ld else []),
           [g2(X, 0, 2)]]
    for k, v in extra.items(): att[k] = att[k] + v
    ops = gelu(ACC1[X])
    return ops[:2] + interleave(ops[2:], att)

def loop_body(grp):
    L = [opaque(bar_lines() + [f"Lbody{grp}:"])]
    L += [V(f"v_add_u32 v{vW1c}, s{sRing}, v{vW1b}"), V(f"v_add_u32 v{vW2c}, s{sRing}, v{vW2b}")]
    ex = [{}, {}, {}, {}]
    if grp == 0:
        for k, g in enumerate(wdma_interval()):
            ex[k // 3 if k < 3 else 1][(7, 9, 11)[k] if k < 3 else (1, 3, 5)[k - 3]] = [opaque(g)]
    elif grp == 1:
        ex[0][7] = [opaque([f"s_bitcmp1_b32 s{sXM}, 0", f"s_cselect_b64 s[{sExX}:{sExX+1}], s[{sEx48}:{sEx48+1}], 0", f"s_lshr_b32 s{sXM}, s{sXM}, 1"] + row_setup())]
        rl = row_loads()
        for k, (st, sl) in enumerate(((0, 11), (1, 3), (1, 8))):
            blk = [f"s_mov_b64 exec, s[{sExX}:{sExX+1}]"] + rl[3 * k] + rl[3 * k + 1] + rl[3 * k + 2] + ["s_mov_b64 exec, -1"]
            if k == 2:
                blk += [f"s_cmp_lg_u32 s{sExX}, 0", f"s_cselect_b32 s{sT}, s{sXinc}, 0", f"s_add_u32 s{sXrow}, s{sXrow}, s{sT}",
                        f"s_cmp_lg_u32 s{sExX}, 0", f"s_cselect_b32 s{sT}, 6, 0", f"s_xor_b32 s{sXinc}, s{sXinc}, s{sT}"]
            ex[st][sl] = [opaque(blk)]
    for k in range(4):
        if k == 2: L += dry_point(f"Lhalf{grp}")
        if cfg.PRIO: L.append(S(f"s_setprio {max(cfg.PBASE - k, 0)}"))
        L += step(k & 1, k >> 1, ex[k])
    return L

def SM32(d, a, b, idx):
    ab = list(R(a, 4)) + list(R(b, 8)) + [idx]
    return Ins(f"v_smfmac_f32_32x32x32_bf16 {vr(d,16)}, {vr(a,4)}, {vr(b,8)}, v{idx}", "mfma",
               ab + list(R(d, 16)), R(d, 16), cost=12, passes=8, srcc=R(d, 16), srcab=ab)

def unit_reads(u):
    q, rho = divmod(u, 6); buf = cBuf[u % 2]
    o = 196 * (q % 2) + 8 * rho
    L = []
    if rho == 0 and q and q % 2 == 0: L.append(V(f"v_add_u32 v{cTa}, {2 * TGRP}, v{cTa}"))
    L += [DSR("ds_read2_b32", buf + 8, 2, cTa, f"offset0:{o} offset1:{o+1}"), DSR("ds_read2_b32", buf + 10, 2, cTa, f"offset0:{o+2} offset1:{o+3}")]
    for k, c in enumerate((0, 192, 784, 976)):
        L.append(DSR("ds_read_b64", buf + 2 * k, 2, cAddr + rho // 2, f"offset:{XS * (rho & 1) + c + 8 * q}"))
    return L

def store(X, t):
    d = H + 24 * X + 4 * t
    return VMEM(f"buffer_store_dwordx4 {vr(d,4)}, v{vSt}, s[{sO}:{sO+3}], s{sStO2 if X else sStO} offen offset:{64 * (t >> 1) + 3072 * (t & 1) if cfg.S64 else 32 * t}{fl(cfg.OF)}", rd=[vSt] + list(R(d, 4)), store=True)

def res_reads(k):
    X, s = divmod(k, 6)
    return [DSR("ds_read_b64", XF[k] + 2 * r, 2, cRes, f"offset:{XS * X + 32 * s + 8 * r}") for r in range(2)]

def pk(op, d, *src, mods=""):
    return V(f"v_pk_{op}_f32 v[{d}:{d+1}], " + ", ".join(f"v[{x}:{x+1}]" for x in src) + mods)

def signal():
    t = T0
    return [V(f"v_mov_b32 v{t}, s{sT+2}"), V(f"v_mov_b32 v{t+1}, 1"),
            Ins(f"    s_mov_b64 exec, 1\n    ds_add_u32 v{t}, v{t+1}\n    s_mov_b64 exec, -1\n    s_add_u32 s{sTgt}, s{sTgt}, 4", "dsw_op", [t, t + 1], [])]
def poll():
    t = T0; l = lab("p")
    return [Ins(f"{l}:\n    ds_read_b32 v{t+1}, v{t}\n    s_waitcnt lgkmcnt(0)\n    v_readfirstlane_b32 s{sT+3}, v{t+1}\n"
                f"    s_cmp_ge_u32 s{sT+3}, s{sTgt}\n    s_cbranch_scc0 {l}", "waitall", [t], [t + 1])]

def cstage_setup():
    t = sT
    L = []
    for dst, add in ((sFh, 0), (sFres, 2)):
        L += [f"s_lshl_b32 s{t}, s{sJ}, 1", f"s_add_u32 s{t}, s{t}, s{sWin}", f"s_add_u32 s{t}, s{t}, {add}",
              f"s_cmp_ge_u32 s{t}, {NR}", f"s_cselect_b32 s{t+1}, {NR}, 0", f"s_sub_u32 s{t}, s{t}, s{t+1}", f"s_mul_i32 s{dst}, s{t}, {XS}"]
    L += [f"s_add_u32 s{t}, s{sJ}, 1", f"s_and_b32 s{t}, s{t}, 2", f"s_lshl_b32 s{t}, s{t}, 2", f"s_add_u32 s{sFres}, s{sFres}, s{t}"]
    return L

def dry_exit(): return [f"s_cmp_lg_u32 s{sDry}, 0", "s_cbranch_scc1 Ldry_ret"] if cfg.WARM else []
def dry_point(name): return [opaque(dry_exit() + [name + ":"])] if cfg.WARM else []

def cs(k):
    if not (cfg.STAMP and cfg.CST): return []
    return [Ins("\n".join("    " + l for l in [f"s_lshl_b32 s95, s{sP}, 3", f"s_add_u32 s95, s95, {30 + k}"] + stamp(17, "s95")), "waitall")]

def cstage():
    L = [COMMENT("row addresses, zero accumulators, convolution")]
    if cfg.CPRIO: L.append(S(f"s_setprio {cfg.CPRIO}"))
    L += [S(x) for x in cstage_setup()]
    L += [S(f"s_lshl_b32 s{sT+2}, s{sGrp}, 2"), S(f"s_add_u32 s{sT+2}, s{sT+2}, {CBASE}"), S(f"s_mov_b32 s{sT}, {XS}")]
    t0, t1, t2 = T0, T0 + 1, T0 + 4
    L += [V(f"v_bfe_u32 v{t2}, v{vL16}, 7, 2"), V(f"v_lshlrev_b32 v{t2}, 1, v{t2}"), V(f"v_mov_b32 v{T0+2}, 0"), V(f"v_mov_b32 v{T0+3}, 0")]
    for k in range(3):
        if k: L += [V(f"v_add_u32 v{t2}, 2, v{t2}")]
        L += [V(f"v_add_u32 v{t0}, s{sWin}, v{t2}"), V(f"v_subrev_u32 v{t1}, {NR}, v{t0}"), V(f"v_min_u32 v{t0}, v{t0}, v{t1}"),
              V(f"v_mad_u32_u24 v{t0}, v{t0}, s{sT}, v{vColB}"), V(f"v_and_b32 v{t1}, 4, v{t2}"), V(f"v_lshl_add_u32 v{cAddr+k}, v{t1}, 1, v{t0}")]
    L += [V(f"v_mov_b32 v{cTa}, v{vTa}"), V(f"v_bfe_u32 v{cIdx}, v{vL16}, 4, 2"), V(f"v_mul_u32_u24 v{cIdx}, 0x5555, v{cIdx}")]
    L += cs(0) + unit_reads(0) + unit_reads(1)
    for q in range(6): L.append(MFMA("32x32x8", ACC2 + 16 * q, T0 + 2, T0 + 2, None))
    L += [V(f"v_add_u32 v{cRes}, s{sFres}, v{vRes}"), V(f"v_add_u32 v{cHw}, v{cAddr}, v{vHwA}"), V(f"v_add_u32 v{cHr}, s{sFh}, v{vHr}")]
    for u in range(36):
        buf = cBuf[u % 2]
        if u == 18: L += dry_point("Ldry1")
        L.append(SM32(ACC2 + 16 * (u // 6), buf + 8, buf, cIdx))
        if u + 2 < 36: L += unit_reads(u + 2)
        else: L += res_reads(3 * (u - 34)) + res_reads(3 * (u - 34) + 1) + res_reads(3 * (u - 34) + 2)
        if u % 3 == 1: L.append(store(*divmod(u // 3, 6)))
    for k in range(6, 12): L += res_reads(k)
    L += [S(f"s_add_u32 s{sStO}, s{sStO}, s{sStInc}"), S(f"s_add_u32 s{sStO2}, s{sStO}, 98304"), S(f"s_mov_b32 s{sO+2}, 50331648"), S(f"s_mov_b32 s{sStInc}, {16 * 98304}")]
    L += cs(1) + dry_point("Ldry2")
    SA, QA, ST, QT = 56, 64, 72, 76
    for q in range(6):
        for u in range(4):
            y = ACC2 + 16 * q + 4 * u
            if q == 0: L += [pk("add", SA + 2 * u, y, y + 2), pk("mul", QA + 2 * u, y, y), pk("fma", QA + 2 * u, y + 2, y + 2, QA + 2 * u)]
            else:
                for e in (0, 2): L += [pk("add", SA + 2 * u, SA + 2 * u, y + e), pk("fma", QA + 2 * u, y + e, y + e, QA + 2 * u)]
    for u in range(4): L += [V(f"v_add_f32 v{ST+u}, v{SA+2*u}, v{SA+2*u+1}"), V(f"v_add_f32 v{QT+u}, v{QA+2*u}, v{QA+2*u+1}")]
    L += [S(f"s_lshl_b32 s{sT}, s{sJ}, 11"), V(f"v_add_u32 v{T0+4}, s{sT}, v{vL16}")]
    L += [DSW("ds_write_b128", T0 + 4, ST, 4, f"offset:{PBASE}"), DSW("ds_write_b128", T0 + 4, QT, 4, f"offset:{PBASE + 1024}")]
    L.append(Ins("s_waitcnt lgkmcnt(0)", "waitall"))
    L += cs(2) + signal()
    lm = lab("m")
    L.append(opaque([f"s_or_b32 s{sT}, s{sFirst}, s{sDry}", f"s_cbranch_scc1 {lm}"] + bar_lines() +
                    [f"s_cmp_eq_u32 s{sGrp}, 0", f"s_cbranch_scc0 {lm}"] + [l for gg in wdma_interval() for l in gg] + [f"{lm}:"]))
    L += poll()
    L += cs(3)
    L += [COMMENT("LayerNorm, exchange of the normalised tile, residual into the accumulators, first GEMM1")]
    PR = [56, 60, 64, 68, 48, 72, 76, G]
    dst = {(0, 0): 72, (0, 1): 76, (1, 0): 56, (1, 1): 60, (2, 0): 64, (2, 1): 68, (3, 0): G, (3, 1): G + 4}
    for w in range(4):
        for k in range(2): L.append(DSR("ds_read_b128", dst[(w, k)], 4, vL16, f"offset:{PBASE + 2048 * w + 1024 * k}"))
    for w in range(1, 4):
        for k in range(2):
            for h in (0, 2): L.append(pk("add", dst[(0, k)] + h, dst[(0, k)] + h, dst[(w, k)] + h))
    L += [DSR("ds_read_b128", G, 4, vL16, f"offset:{IBASE}"), DSR("ds_read_b128", G + 4, 4, vL16, f"offset:{IBASE + 1024}")]
    MN, SC, SH = 56, 48, 44 + 0
    SH = 60
    for u in range(4): L += [V(f"v_mul_f32 v{MN+u}, s{sInv96}, v{ST+u}")]
    for u in range(4): L += [V(f"v_mul_f32 v{SH+u}, v{MN+u}, v{MN+u}")]
    for u in range(4): L += [V(f"v_fma_f32 v{QT+u}, v{QT+u}, s{sInv96}, -v{SH+u}")]
    for u in range(4): L += [V(f"v_max_f32 v{QT+u}, 0, v{QT+u}")]
    for u in range(4): L += [V(f"v_add_f32 v{QT+u}, s{sEps}, v{QT+u}")]
    for u in range(4): L += [V(f"v_rsq_f32 v{QT+u}, v{QT+u}")]
    SC, SH2 = T0 + 2, 48
    for u in range(4): L += [V(f"v_mul_f32 v{SC+u}, s{sKap}, v{QT+u}")]
    for u in range(4): L += [V(f"v_mul_f32 v{SH2+u}, -v{MN+u}, v{SC+u}")]
    L += [V(f"v_add_u32 v{vW1c}, s{sRing}, v{vW1b}")]
    for q in range(6):
        for u in range(4):
            for e in (0, 2):
                y = ACC2 + 16 * q + 4 * u + e; o = u & 1
                L.append(pk("fma", y, y, SC + (u & 2), SH2 + (u & 2), mods=f" op_sel:[0,{o},{o}] op_sel_hi:[1,{o},{o}]"))
    L += cs(4) + dry_point("Ldry3")
    first_w1 = opaque([f"s_cmp_lg_u32 s{sFirst}, 0", "s_cbranch_scc1 Lw1wait", "Lw1wait_ret:"])
    def ident(q):
        X, b = divmod(q, 3)
        return [MFMA("32x32x16", acc2(X, b), G, XF[6 * X + 2 * b], None), MFMA("32x32x16", acc2(X, b), G + 4, XF[6 * X + 2 * b + 1], acc2(X, b))]
    def cvt(q): return [V(f"v_cvt_pk_bf16_f32 v{H+12*u+2*q+h}, v{ACC2+16*q+4*u+2*h}, v{ACC2+16*q+4*u+2*h+1}") for u in range(4) for h in range(2)]
    def hw(t): return [DSW("ds_write_b128", cHw, H + 12 * u + 4 * t, 4, f"offset:{192 * u + 16 * t}") for u in range(4)]
    for q in range(6):
        c = cvt(q)
        if q >= 1:
            i0, i1 = ident(q - 1)
            c = c[:1] + [i0] + c[1:5] + [i1] + c[5:]
        L += c
        if cfg.HW64: L += [DSW("ds_write_b64", cHw, H + 12 * u + 2 * q, 2, f"offset:{192 * u + 8 * q}") for u in range(4)]
        elif q % 2 == 1: L += hw(q // 2)
    L += cs(5) + signal()
    L += ident(5)
    L += [V(f"v_mov_b32 v{48+i}, 0") for i in range(6)]
    L += poll()
    L += cs(6)
    hr = [DSR("ds_read_b128", H + 8 * s + 4 * X, 4, cHr, f"offset:{XS * X + 32 * s}") for X in range(2) for s in range(6)]
    L += hr[:6]
    L.append(first_w1)
    for j in range(3): L += rd_w1(j, 1)
    L += [V(f"v_mov_b32 v{G+4+i}, 0") for i in range(4)]
    L += [g1(0, 0)] + rd_w1(3, 1) + rd_w1(4, 1) + [g1(0, 1)] + rd_w1(5, 1) + hr[6:9] + [g1(0, 2)] + hr[9:] + [g1(0, 3), g1(0, 4), g1(0, 5)]
    L += [V(f"v_mov_b32 v54, 0"), V(f"v_mov_b32 v55, 0")]
    L.append(Ins("s_waitcnt lgkmcnt(0)", "waitall"))
    L += cs(7)
    if cfg.CPRIO: L.append(S("s_setprio 0"))
    ab = cfg.ABL.split("+")
    if "hw" in ab: L = [i for i in L if not (i.kind == "dsw" and cHw in i.rd)]
    if "pk" in ab: L = [i for i in L if i.kind != "pk32"]
    if "brd" in ab: L = [i for i in L if not (i.text.startswith("ds_read_b64") and i.rd & set(R(cAddr, 3)))]
    if "sm" in ab: L = [i for i in L if "smfmac" not in i.text]
    if "st" in ab: L = [i for i in L if i.kind != "vstore"]
    if "unpk" in ab:
        out = []
        for i in L:
            if i.kind != "pk32": out.append(i); continue
            m = re.match(r"v_pk_(\w+)_f32 (.*?)( op_sel.*)?$", i.text); regs = [int(x) for x in re.findall(r"v\[(\d+):", m.group(2))]
            o = 1 if m.group(3) and "op_sel:[0,1" in m.group(3) else 0
            for h in range(2):
                r = [regs[0] + h, regs[1] + h] + [(x + o if m.group(3) else x + h) for x in regs[2:]]
                out.append(V(f"v_{m.group(1)}_f32 " + ", ".join(f"v{x}" for x in r)))
        L = out
    return L

def epilogue(with_stores):
    L = [COMMENT("epilogue: last GEMM2 k-step, convert")]
    att = [[g2(1, 1, b)] for b in range(3)]
    def cv(X, t):
        a = acc2(X, t >> 1) + 8 * (t & 1); d = H + 24 * X + 4 * t
        return [V(f"v_cvt_pk_bf16_f32 v{d+i}, v{a+2*i}, v{a+2*i+1}") for i in range(4)]
    def fin(X, u):
        d = H + 24 * X + 8 * u
        o = [V(f"v_permlane16_swap_b32 v{d+i}, v{d+4+i}") for i in range(4)] if cfg.S64 else []
        return o + ([store(X, 2 * u), store(X, 2 * u + 1)] if with_stores else [])
    seq = [(X, u) for X in range(2) for u in range(3)]
    body = []
    for k, (X, u) in enumerate(seq):
        body.append(cv(X, 2 * u) + cv(X, 2 * u + 1) + (fin(*seq[k - 1]) if k else []))
    first = body[0] + body[1] + body[2]
    L += first[:2] + interleave(first[2:], att, 0.0, 0.5)
    L += body[3] + body[4] + body[5] + fin(*seq[5])
    return L

def prologue():
    P = []
    a = P.append
    a(f"s_cmp_ge_u32 s2, 256"); a("s_cbranch_scc1 Lend")
    if cfg.STAMP: a("s_memtime s[92:93]"); a("s_load_dwordx2 s[94:95], s[0:1], 56")
    if cfg.DBG: a("s_memtime s[92:93]"); a("s_memrealtime s[94:95]")
    a("s_load_dwordx8 s[4:11], s[0:1], 0"); a("s_load_dwordx4 s[12:15], s[0:1], 32")
    a("v_lshrrev_b32 v16, 6, v0"); a("v_and_b32 v17, 63, v0")
    a(f"v_readfirstlane_b32 s{sT}, v16")
    if cfg.WARM:
        a("s_getpc_b64 s[60:61]"); a("v_lshlrev_b32 v38, 6, v0"); a("v_min_u32 v38, CODE_LAST, v38")
        a("global_load_dword v39, v38, s[60:61]")
    a(f"s_and_b32 s{sT+1}, s2, 7"); a(f"s_lshl_b32 s{sT+1}, s{sT+1}, 5"); a(f"s_lshr_b32 s{sT+2}, s2, 3"); a(f"s_add_u32 s{sT+1}, s{sT+1}, s{sT+2}")
    a(f"s_lshr_b32 s{sTy}, s{sT+1}, 4"); a(f"s_and_b32 s{sTx}, s{sT+1}, 15")
    a(f"s_lshr_b32 s{sGrp}, s{sT}, 2"); a(f"s_and_b32 s{sJ}, s{sT}, 3"); a(f"s_mov_b32 s{sXrow}, s{sT}")
    a(f"s_mul_i32 s{sJ3k}, s{sJ}, 3072"); a(f"s_movk_i32 s{s1k}, 1024")
    a(f"s_mov_b32 s{sEx48}, -1"); a(f"s_mov_b32 s{sEx48+1}, 0xffff")
    a(f"v_lshlrev_b32 v{vL16}, 4, v17")
    a(f"s_cmp_eq_u32 s{sTx}, 0"); a(f"s_cselect_b32 s{sAdjL}, 0, 384"); a(f"s_cselect_b32 s{sT+3}, 384, 0"); a(f"s_cselect_b32 s{sT+4}, 24, 0")
    a(f"v_subrev_u32 v{vOffL}, s{sT+3}, v{vL16}"); a(f"v_cmp_le_u32 vcc, s{sT+4}, v17"); a("s_nop 1")
    a(f"v_cndmask_b32 v{vOffL}, 2.0, v{vOffL}, vcc")
    a(f"s_cmp_eq_u32 s{sTx}, 15"); a(f"s_cselect_b32 s{sT+4}, 24, 64"); a(f"v_cmp_gt_u32 vcc, s{sT+4}, v17"); a("s_nop 1")
    a(f"v_cndmask_b32 v{vOffR}, 2.0, v{vL16}, vcc")
    a("v_mul_u32_u24 v18, 683, v0"); a("v_lshrrev_b32 v18, 16, v18")
    a("v_mul_u32_u24 v19, 96, v18"); a("v_sub_u32 v19, v0, v19")
    a("v_mul_u32_u24 v20, 960, v18"); a("v_lshl_add_u32 v20, v19, 1, v20")
    a("v_lshlrev_b32 v21, 1, v19")
    P += row_setup()
    a("s_waitcnt lgkmcnt(0)")
    if cfg.STAMP: a("s_memtime s[96:97]"); a("s_memrealtime s[98:99]"); a("s_waitcnt lgkmcnt(0)")
    for (d, p, n) in ((sX, 4, 50331648), (28, 8, 4800), (32, 6, 192), (sO, 14, 0)):
        a(f"s_mov_b32 s{d}, s{p}"); a(f"s_and_b32 s{d+1}, s{p+1}, 0xffff"); a(f"s_mov_b32 s{d+2}, {n}"); a(f"s_mov_b32 s{d+3}, 0x20000")
    for j in range(5): a(f"buffer_load_ushort v{24+j}, v20, s[28:31], 0 offen offset:{192*j}")
    a("buffer_load_ushort v29, v21, s[32:35], 0 offen")
    a(f"s_mov_b64 exec, s[{sEx48}:{sEx48+1}]")
    for g in row_loads(): P += g
    a(f"s_cmp_eq_u32 s{sGrp}, 0"); a("s_cbranch_scc1 Lpro_A")
    a(f"s_add_u32 s{sXrow}, s{sXrow}, 4")
    P += row_dma_lines()
    a("Lpro_A:")
    a("s_mov_b64 exec, -1")
    a(f"s_cmp_lt_u32 s{sJ}, 2"); a(f"s_cselect_b32 s{sW}, s10, s12"); a(f"s_cselect_b32 s{sW+1}, s11, s13")
    a(f"s_cselect_b32 s{sWstep}, 64, 6144"); a(f"s_mov_b32 s{sWins}, 1024")
    a(f"s_cselect_b32 s{sWins}, 12288, s{sWins}"); a(f"s_cselect_b32 s{sWsrc}, 2, 1"); a(f"s_mul_i32 s{sWsrc}, s{sWsrc}, s{sWstep}"); a(f"s_mul_i32 s{sWlim}, s{sWstep}, 12")
    a(f"s_and_b32 s{sW+1}, s{sW+1}, 0xffff"); a(f"s_mov_b32 s{sW+2}, 73728"); a(f"s_mov_b32 s{sW+3}, 0x20000")
    a(f"s_and_b32 s{sT+3}, s{sJ}, 1"); a(f"s_mul_i32 s{sT+3}, s{sT+3}, 3"); a(f"s_mul_i32 s{sWbase}, s{sT+3}, s{sWins}")
    a("v_lshrrev_b32 v22, 2, v17"); a("v_mul_u32_u24 v22, 768, v22"); a("v_and_b32 v23, 3, v17"); a("v_lshl_add_u32 v22, v23, 4, v22")
    a(f"s_cmp_lt_u32 s{sJ}, 2"); a("s_cselect_b64 vcc, -1, 0"); a(f"v_cndmask_b32 v{vDMA}, v{vL16}, v22, vcc")
    assert cfg.WLATE
    if cfg.STAMP: a("s_memtime s[100:101]"); a("s_waitcnt lgkmcnt(0)")
    a(f"s_mov_b32 s{sA16}, {A_imm:#x}"); a(f"s_mov_b32 s{sK16}, {K_imm:#x}")
    a(f"s_mov_b32 s{sInv96}, {f32bits(1/96):#x}"); a(f"s_mov_b32 s{sEps}, {f32bits(1e-5):#x}"); a(f"s_mov_b32 s{sKap}, {f32bits(kap_use):#x}")
    D = cfg.D
    a(f"s_lshl_b32 s{sT}, s{sTy}, 5"); a(f"s_lshl_b32 s{sT+1}, s{sGrp}, 3"); a(f"s_add_u32 s{sT}, s{sT}, s{sT+1}"); a(f"s_lshl_b32 s{sT+1}, s{sJ}, 1")
    a(f"s_add_u32 s{sT}, s{sT}, s{sT+1}"); a(f"s_mul_i32 s{sT}, s{sT}, 98304"); a(f"s_mul_i32 s{sT+1}, s{sTx}, 6144"); a(f"s_add_u32 s{sStO}, s{sT}, s{sT+1}")
    a(f"s_mov_b32 s{sDry+1}, s{sStO}")
    a("v_and_b32 v30, 7, v17"); a("v_lshrrev_b32 v31, 5, v17"); a("v_bfe_u32 v32, v17, 4, 1")
    a(f"s_mul_i32 s{sT}, s{sJ}, 48"); a(f"s_add_u32 s{sT}, s{sT}, {XBASE}")
    a("v_mul_u32_u24 v33, 784, v30"); a("v_mul_u32_u24 v34, 384, v31"); a(f"v_add3_u32 v{vColB}, v33, v34, s{sT}")
    a(f"v_mul_u32_u24 v33, {XS - 384}, v31"); a("v_lshlrev_b32 v34, 3, v32"); a(f"v_sub_u32 v{vHwA}, v33, v34")
    a("v_and_b32 v35, 31, v17"); a("v_lshlrev_b32 v36, 4, v31")
    a(f"v_mul_u32_u24 v33, 192, v35"); a(f"v_add_u32 v{vSt}, v33, v36")
    a("v_lshrrev_b32 v33, 2, v35"); a(f"v_lshl_add_u32 v33, v33, 4, v{vSt}"); a(f"v_add_u32 v{vHr}, {XBASE}, v33")
    a("v_add_u32 v33, 2, v35"); a("v_lshrrev_b32 v33, 2, v33"); a(f"v_lshl_add_u32 v33, v33, 4, v{vSt}"); a(f"v_add_u32 v{vRes}, {XBASE + 384}, v33")
    if cfg.S64:
        a("v_and_b32 v33, 15, v17"); a("v_mul_u32_u24 v33, 192, v33"); a("v_lshl_add_u32 v33, v32, 5, v33"); a(f"v_add_u32 v{vSt}, v33, v36")
    a("v_and_b32 v33, 3, v17"); a("v_bfe_u32 v34, v17, 2, 2")
    a("v_and_b32 v35, 1, v17"); a("v_mul_u32_u24 v35, 400, v35"); a("v_bfe_u32 v36, v17, 1, 1"); a("v_mul_u32_u24 v36, 192, v36"); a("v_add_u32 v35, v35, v36")
    a("v_bfe_u32 v36, v17, 2, 1"); a("v_lshlrev_b32 v36, 5, v36"); a("v_sub_u32 v35, v35, v36")
    a("v_bfe_u32 v36, v17, 3, 2"); a("v_lshlrev_b32 v36, 2, v36"); a("v_sub_u32 v35, v35, v36")
    a(f"s_mul_i32 s{sT}, s{sJ}, {6 * TGRP}"); a(f"s_add_u32 s{sT}, s{sT}, {TBASE}")
    a("v_lshl_add_u32 v35, v31, 4, v35"); a(f"v_add_u32 v{vTa}, s{sT}, v35")
    a("v_lshl_add_u32 v35, v31, 3, v34"); a("v_lshlrev_b32 v35, 6, v35"); a("v_lshl_add_u32 v35, v32, 5, v35"); a(f"v_lshl_add_u32 v{vW1b}, v33, 3, v35")
    a("v_lshl_add_u32 v35, v31, 2, v34"); a("v_mul_u32_u24 v35, 192, v35"); a("v_lshl_add_u32 v35, v32, 5, v35")
    a("v_and_b32 v36, 1, v17"); a("v_lshl_add_u32 v35, v36, 4, v35"); a("v_bfe_u32 v36, v17, 1, 1"); a(f"v_lshl_add_u32 v{vW2b}, v36, 3, v35")
    def enter(targets, ret=0):
        a(f"s_mov_b32 s{sDry+3}, {ret}")
        a(f"s_mov_b32 s{sDry}, 1"); a(f"s_mov_b32 s{sFirst}, 0"); a(f"s_mov_b32 s{sCnt}, 1"); a(f"s_mov_b32 s{sT+3}, -1"); a(f"s_mov_b32 s{sTgt}, 0")
        a(f"s_mov_b32 s{sDry+2}, s{sWsrc}"); a("s_waitcnt lgkmcnt(0)")
        a("s_setvskip -1, 0")
        for k, t in enumerate(targets[:3]): a(f"s_cmp_eq_u32 s{sJ}, {k}"); a(f"s_cbranch_scc1 {t}")
        a(f"s_branch {targets[3]}")
    def init_state():
        a(f"s_mov_b32 s{sXM}, {3 | (3 << (7 - D)):#x}"); a(f"s_mov_b32 s{sXinc}, 1"); a(f"s_mov_b32 s{sRing}, {WBASE}")
        a(f"s_mov_b32 s{sSig}, 1"); a(f"s_mov_b32 s{sP}, 0"); a(f"s_xor_b32 s{sFirst}, s{sGrp}, 1"); a(f"s_lshl_b32 s{sWin}, s{sGrp}, 3")
        a(f"s_mov_b32 s{sStInc}, 0"); a(f"s_mov_b32 s{sStO}, s{sDry+1}"); a(f"s_add_u32 s{sStO2}, s{sStO}, 98304"); a(f"s_mov_b32 s{sTgt}, 0")
        a(f"s_mov_b32 s{sO+2}, 0"); a(f"s_mov_b32 s{sDry}, 0")
    init_state()
    if cfg.WARM:
        a(f"s_cmp_eq_u32 s{sGrp}, 0"); a("s_cbranch_scc0 Ldry_skip")
        enter(["Lconv", "Ldry1", "Ldry2", "Ldry3"])
        a("Ldry_ret:"); a("s_setvskip 0, 0"); a("s_mov_b64 exec, -1"); a("s_setprio 0"); a(f"s_mov_b32 s{sWsrc}, s{sDry+2}")
        init_state()
        a(f"s_cmp_eq_u32 s{sDry+3}, 1"); a("s_cbranch_scc1 Ldry_B"); a(f"s_cmp_eq_u32 s{sDry+3}, 2"); a("s_cbranch_scc1 Ldry_B2")
        a("Ldry_skip:")
    a("v_bfe_u32 v35, v17, 3, 1"); a("v_lshl_add_u32 v35, v35, 2, v33")
    a("v_and_b32 v36, 1, v35"); a("v_lshlrev_b32 v36, 4, v36"); a("v_mov_b32 v37, 0x3f80"); a("v_lshlrev_b32 v36, v36, v37")
    a("v_lshrrev_b32 v35, 1, v35"); a("v_lshl_add_u32 v35, v32, 2, v35")
    a("v_bfe_u32 v37, v17, 2, 1"); a("v_cmp_eq_u32 vcc, v37, v31"); a("s_nop 1"); a("v_cndmask_b32 v35, 8, v35, vcc")
    for d in range(8):
        a(f"v_cmp_eq_u32 vcc, {d}, v35"); a("s_nop 1"); a(f"v_cndmask_b32 v{40+d}, 0, v36, vcc")
    a(f"ds_write_b128 v{vL16}, v[40:43] offset:{IBASE}"); a(f"ds_write_b128 v{vL16}, v[44:47] offset:{IBASE + 1024}")
    a(f"s_cmp_eq_u32 s{sGrp}, 0"); a("s_cbranch_scc0 Lpro_w2"); a("s_waitcnt vmcnt(9)"); a("Lpro_w2:"); a("s_waitcnt vmcnt(18)")
    a("v_cmp_eq_u32 vcc, 2, v18"); a("v_lshlrev_b32 v29, 16, v29"); a("s_nop 0"); a("v_cndmask_b32 v29, 0, v29, vcc"); a("v_or_b32 v26, v26, v29")
    a("v_mov_b32 v29, 0"); a("v_mov_b32 v30, 0"); a("v_mov_b32 v31, 0")
    a(f"v_lshrrev_b32 v33, 2, v19"); a(f"v_mul_u32_u24 v33, {TGRP}, v33"); a("v_lshl_add_u32 v33, v18, 5, v33")
    a("v_and_b32 v34, 1, v19"); a("v_mul_u32_u24 v34, 400, v34"); a("v_bfe_u32 v35, v19, 1, 1"); a("v_mul_u32_u24 v35, 192, v35"); a("v_add3_u32 v33, v33, v34, v35")
    a("v_cmp_gt_u32 vcc, 480, v0"); a("s_and_saveexec_b64 s[72:73], vcc")
    a(f"ds_write_b128 v33, v[24:27] offset:{TBASE}"); a(f"ds_write_b128 v33, v[28:31] offset:{TBASE + 16}")
    a("s_mov_b64 exec, -1")
    a("v_mov_b32 v28, 0")
    a("v_cmp_eq_u32 vcc, 4, v18"); a("s_and_saveexec_b64 s[72:73], vcc")
    a(f"ds_write_b128 v33, v[28:31] offset:{TBASE + 32}"); a(f"ds_write_b128 v33, v[28:31] offset:{TBASE + 48}")
    a("v_and_b32 v34, 3, v19"); a("v_cmp_eq_u32 vcc, 2, v34"); a("s_and_b64 exec, exec, vcc")
    a(f"ds_write_b128 v33, v[28:31] offset:{TBASE + 64}")
    a("s_mov_b64 exec, -1")
    a("v_mov_b32 v33, 0")
    for o in (0, 16, 32): a(f"ds_write_b128 v33, v[28:31] offset:{TPAD + o}")
    a(f"ds_write_b128 v33, v[28:31] offset:{CBASE}")
    if cfg.STAMP:
        a("v_mov_b32 v16, 0"); a("v_mov_b32 v17, 0"); a("v_writelane_b32 v16, s92, 60"); a("v_writelane_b32 v16, s96, 56")
        a("v_writelane_b32 v16, s98, 54"); a("v_writelane_b32 v16, s100, 57")
        P += stamp(16, 61)
        a(f"s_mov_b32 s96, {cfg.SMASK & 0xffffffff:#x}"); a(f"s_mov_b32 s97, {(cfg.SMASK >> 32) & 0xffffffff:#x}")
    a(f"s_cmp_eq_u32 s{sGrp}, 0"); a("s_cbranch_scc0 Lpro_w4")
    a("s_waitcnt vmcnt(0) lgkmcnt(0)"); P += stamp(16, 58)
    a(f"s_mul_i32 s{sT}, s{sWstep}, 7"); a(f"s_add_u32 s{sWsrc}, s{sWsrc}, s{sT}")
    a("s_barrier")
    P += stamp(17, 58); a("s_branch Lconv")
    a("Lpro_w4:"); a("s_waitcnt vmcnt(0) lgkmcnt(0)"); P += stamp(16, 58); a("s_barrier")
    for q in range(1, 4):
        for g in wdma_groups(f"{WBASE + q * WSET}"): P += g
    if cfg.WARM:
        enter(["Lbody2", "Lhalf2", "Lbody0", "Lhalf0"], 1); a("Ldry_B:")
        enter(["Lbody1", "Lhalf1", "Lepi0", "Lepi1"], 2); a("Ldry_B2:")
    a("s_waitcnt vmcnt(6)"); a("s_barrier")
    assert D == 3
    P += bar_lines()
    for g in wdma_interval(): P += g
    a(f"s_lshl_b32 s{sXrow}, s{sJ}, 1"); a(f"s_add_u32 s{sXrow}, s{sXrow}, 12"); a(f"s_mov_b64 exec, s[{sEx48}:{sEx48+1}]")
    P += row_dma_lines(); a(f"s_add_u32 s{sXrow}, s{sXrow}, 1")
    P += row_dma_lines(); a(f"s_add_u32 s{sXrow}, s{sXrow}, 7")
    a("s_mov_b64 exec, -1")
    P += bar_lines("s_waitcnt vmcnt(18)")
    for g in wdma_interval(): P += g
    return P

def build():
    D = cfg.D
    out = []
    hdr = ["; fused depthwise 5x5 + LayerNorm + MLP(GELU) + residual; generated by gen/gen.py",
           f"; @launch grid=(256,1,1) block=(512,1,1) lds={LDS_BYTES}",
           '.amdgcn_target "amdgcn-amd-amdhsa--gfx950"', ".text", f".globl {KNAME}", ".p2align 8", f".type {KNAME},@function", f"{KNAME}:"]
    out += hdr
    def raw(lines):
        for l in lines: out.append(l if l.endswith(":") or l.startswith(".") else "    " + l)
    raw(prologue())
    epi0, epi1 = epilogue(False), epilogue(True)
    cs = cstage()
    bodies = [loop_body(0), loop_body(1), loop_body(2)]
    marks = [LABEL(n) for n in ("@c", "@a1", "@a2", "@b2", "@e0", "@x", "@e1", "@end")]
    lin = [marks[0]] + cs + [marks[1]] + bodies[0] + [marks[2]] + bodies[0] + [marks[3]] + bodies[1] + [marks[4]] + epi0 + [marks[5]] + bodies[2] + [marks[6]] + epi1 + [marks[7]]
    lin, pend = insert_lgkm(lin, cfg.OLD); assert not pend
    lin, _ = fix_hazards(lin)
    idx = [next(k for k, i in enumerate(lin) if i is m) for m in marks]
    cst, a1, a2, b2, e0, n2, e1 = (lin[idx[k] + 1: idx[k + 1]] for k in range(7))
    n1 = sum(states(i) for i in a1 if i.kind == "nop") - sum(states(i) for i in a2 if i.kind == "nop")
    assert [i.text for i in a1 if i.kind != "nop"] == [i.text for i in a2 if i.kind != "nop"]
    if n1 > 0: cst = cst + [Ins(f"s_nop {n1 - 1}", "nop")]
    for path in ([cst, n2, a2, a2, e0, cst, a2, e1], [cst, b2, b2, e0, cst, n2, n2, e1]):
        seq = [i for blk in path for i in blk]
        _, bad = fix_hazards(seq, check_only=True); assert not bad, bad
        assert not check_lgkm(seq)
    def emit(blk):
        for i in blk:
            if i.kind == "touch": continue
            for l in i.text.split("\n"): out.append(l if i.kind in ("label", "opaque", "dsw_op") or l.startswith("    ") or l.endswith(":") else "    " + l)
    out.append("Louter:")
    raw(bar_lines())
    raw([f"s_cmp_eq_u32 s{sGrp}, 0", "s_cbranch_scc0 Lno_w"] + [l for g in wdma_interval() for l in g] + ["Lno_w:"])
    raw([f"s_cmp_eq_u32 s{sP}, 0", "s_cbranch_scc1 Lconv"])
    out.append("Lepi0:")
    emit(e0)
    raw(dry_exit())
    out.append("Lconv:")
    emit(cst)
    raw(dry_exit())
    raw([f"s_mov_b32 s{sCnt}, 6", f"s_cmp_eq_u32 s{sGrp}, 0", "s_cbranch_scc0 LselB",
         f"s_cmp_lg_u32 s{sFirst}, 0", f"s_cselect_b32 s{sCnt}, 2, 6", "s_cbranch_scc1 LloopN"])
    tail = [f"s_add_u32 s{sWin}, s{sWin}, 4", f"s_cmp_ge_u32 s{sWin}, {NR}", f"s_cselect_b32 s{sWin}, 0, s{sWin}",
            f"s_add_u32 s{sP}, s{sP}, 1", f"s_cmp_eq_u32 s{sP}, 1", "s_cbranch_scc1 Louter"]
    raw([".p2align 6", "LloopA:"]); emit(a2)
    raw([f"s_sub_u32 s{sCnt}, s{sCnt}, 1", f"s_cmp_lg_u32 s{sCnt}, 0", "s_cbranch_scc1 LloopA"] + dry_exit() + tail)
    raw(bar_lines())
    if D > 1: raw([l for g in wdma_interval() for l in g])
    emit(e1)
    raw(stamp(16, 62))
    for i in range(16, D + 16):
        raw(bar_lines("s_waitcnt vmcnt(12)" if i == 16 else "s_waitcnt vmcnt(0)"))
        if i < D + 15: raw([l for g in wdma_interval() for l in g])
    raw(["s_branch Lfin"])
    raw(["LselB:", f"s_cmp_eq_u32 s{sP}, 0", "s_cbranch_scc0 LloopN"])
    raw([".p2align 6", "LloopB:"]); emit(b2)
    raw([f"s_sub_u32 s{sCnt}, s{sCnt}, 1", f"s_cmp_lg_u32 s{sCnt}, 0", "s_cbranch_scc1 LloopB"] + dry_exit() + tail[:4] + ["s_branch Louter"])
    raw([".p2align 6", "LloopN:"]); emit(n2)
    raw([f"s_sub_u32 s{sCnt}, s{sCnt}, 1", f"s_cmp_lg_u32 s{sCnt}, 0", "s_cbranch_scc1 LloopN"] + dry_exit() + [
         f"s_cmp_lg_u32 s{sFirst}, 0", f"s_mov_b32 s{sFirst}, 0", f"s_mov_b32 s{sCnt}, 4", "s_cbranch_scc1 LloopA"])
    out.append("Lepi1:")
    emit(e1)
    raw(dry_exit())
    raw(stamp(16, 62))
    out.append("Lfin:")
    if cfg.STAMP:
        raw(["s_waitcnt vmcnt(0)"] + stamp(16, 63) + ["s_memrealtime s[98:99]", "s_waitcnt lgkmcnt(0)", "v_writelane_b32 v16, s98, 55",
             "s_load_dwordx2 s[94:95], s[0:1], 56", "s_waitcnt lgkmcnt(0)", "s_mov_b32 s28, s94", "s_and_b32 s29, s95, 0xffff", "s_mov_b32 s30, 0x1000000", "s_mov_b32 s31, 0x20000",
             f"s_lshl_b32 s89, s{sGrp}, 2", f"s_add_u32 s89, s89, s{sJ}", "s_lshl_b32 s90, s2, 3", "s_add_u32 s89, s89, s90", "s_lshl_b32 s89, s89, 9",
             f"v_lshrrev_b32 v18, 2, v{vL16}", "buffer_store_dword v16, v18, s[28:31], s89 offen", "buffer_store_dword v17, v18, s[28:31], s89 offen offset:256"])
    if cfg.DBG:
        raw(["s_waitcnt vmcnt(0)", "s_memtime s[90:91]", "s_memrealtime s[96:97]", "s_load_dwordx2 s[98:99], s[0:1], 48", "s_waitcnt lgkmcnt(0)",
             "s_sub_u32 s90, s90, s92", "s_sub_u32 s96, s96, s94", "s_mov_b32 s28, s98", "s_and_b32 s29, s99, 0xffff", "s_mov_b32 s30, 64", "s_mov_b32 s31, 0x20000",
             f"s_cmp_eq_u32 s{sGrp}, 1", "s_cbranch_scc0 Lend", f"s_cmp_eq_u32 s{sJ}, 0", "s_cbranch_scc0 Lend",
             "s_lshr_b32 s89, s2, 5", "s_lshl_b32 s89, s89, 3", "s_and_b32 s91, s2, 31", "s_cmp_eq_u32 s91, 0", "s_cbranch_scc0 Lend",
             "v_mov_b32 v16, s90", "v_mov_b32 v17, s96", "v_mov_b32 v18, 0", "s_mov_b64 exec, 1", "buffer_store_dwordx2 v[16:17], v18, s[28:31], s89 offen"])
    raw(["Lend:", "s_endpgm"])
    raw(["Lw1wait:", "s_barrier", "s_branch Lw1wait_ret"])
    if cfg.ALIGN:
        tmp, npad, nwid = align8([l.replace("CODE_LAST", "0x1000") for l in out], "Louter", "Lend")
        out = [l.replace("v38, 0x1000", "v38, CODE_LAST") for l in tmp]
        sys.stderr.write(f"align8: {npad} pads, {nwid} widened\n")
    nbytes = sum(insn_sizes([l.replace("CODE_LAST", "0x1000") for l in out]))
    out = [l.replace("CODE_LAST", str(nbytes // 64 * 64 - 128)) for l in out]
    assert nbytes <= 32768
    out += ['.section .rodata,"a"', ".p2align 6", f".amdhsa_kernel {KNAME}", "  .amdhsa_next_free_vgpr 256", f"  .amdhsa_next_free_sgpr {102 if cfg.STAMP or cfg.DBG else 96}",
            "  .amdhsa_accum_offset 256", "  .amdhsa_group_segment_fixed_size 0", "  .amdhsa_kernarg_size 64", "  .amdhsa_user_sgpr_count 2",
            "  .amdhsa_user_sgpr_kernarg_segment_ptr 1", "  .amdhsa_system_sgpr_workgroup_id_x 1", ".end_amdhsa_kernel"]
    return "\n".join(out) + "\n"

open(sys.argv[1], "w").write(build())
```

```python
import sys, struct, math
import numpy as np, re
from asmlib import *

class Cfg:
    D = 3
    GELU = "B"
    PRIO = 1
    CPRIO = 3
    XF = 'nt'
    OF = 'sc0+sc1'
    WF = 'sc1'
    ALIGN = True
    STAMP = False
    SMASK = -1
    OLD = 200
    NOINV = False
    FORCE = 0
    POLLS = 300
    S64 = True
    DBG = False
    WARM = True
    HW64 = True
    PBASE = 3
    ABL = ''
    CST = False
    PKS = 0
    PKN = False
    W1G = True
    R2 = False
    NOSTAT = False
    NOCRD = False
    N0 = 15
    WLATE = True
cfg = Cfg()
for a in sys.argv[2:]:
    k, v = a.split("=")
    setattr(cfg, k, type(getattr(cfg, k))(v) if not isinstance(getattr(cfg, k), bool) else v in ("1", "True"))

KNAME = "standalone__modern_conv_block_replknet__vision_kernel"
XS = 7104; NR = 12
TPAD = 0
TBASE = 48
TGRP = 784
IBASE = TBASE + 24 * TGRP
PBASE = IBASE + 2048
CBASE = PBASE + 8192
WBASE = CBASE + 16
WSET = 12288
XBASE = WBASE + 4 * WSET
LDS_BYTES = XBASE + NR * XS
assert LDS_BYTES <= 163840, LDS_BYTES
assert WBASE % 16 == 0 and IBASE % 16 == 0
vColB, vHwA, vRes, vHr, vTa, vSt, vW1b, vW2b, vW1c, vW2c, vDMA, vOffL, vOffR, vL16 = range(1, 15)
T0 = 18
G = 24
W2F = 32
W1F = 56
ACC1 = (80, 96)
H = 112
ACC2 = 160
def acc2(X, b): return ACC2 + 48 * X + 16 * b
cBuf = (56, 68)
cAddr = 48
cTa, cIdx, cRes, cHw, cHr = 51, 52, 53, 54, 55
XF = [80, 84, 88, 92, 96, 100, 104, 108, 32, 36, 40, 44]
sX, sO, sW = 16, 20, 24
sGrp, sJ, sTx, sTy, sSig, sRing, sWsrc, sWstep, sWlim, sWins, sWbase, sP, sCnt = range(36, 49)
sA16, sK16, sStO = 49, 50, 51
sWin, sXrow, sFirst = 63, 64, 65
sXM, sXinc = 66, 67
sExX = 68
sAdjL = 70
sT = 71
sEx48 = 80
sInv96, sEps, sKap = 82, 83, 84
sDry = 56
sFrag, sMode, sThird = 62, 3, 60
sStO2, sTgt = 52, 53
sFres, sFh = 54, 55
sXo, sXm = 85, 86
sStInc = 87
s1k = 89
sJ3k = 88
RSUM = 2 * WBASE + 2 * WSET

def f32bits(x): return struct.unpack("<I", struct.pack("<f", x))[0]
def f16bits(x): return int(np.float16(x).view(np.uint16))
a_c = -2.0 * math.log2(math.e) * math.sqrt(2.0 / math.pi)
b_c = a_c * 0.044715
kap = -((-b_c) ** (1.0 / 3.0))
if cfg.GELU in ("B",):
    kap_use = float(np.float16(kap))
    A_imm = f16bits(a_c / kap_use) * 0x10001
    K_imm = f16bits(kap_use) * 0x10001
else:
    kap_use = kap
    A_imm = f32bits(a_c / kap)
    K_imm = f32bits(kap)

def fl(s): return ''.join(' ' + w for w in s.split('+') if w)
uid = [0]
MODE = ['P']
NPROD = 36
def lab(p):
    uid[0] += 1
    return f"L{p}_{uid[0]}"

def opaque(lines):
    return Ins("\n".join("    " + l if not l.endswith(":") else l for l in lines), "opaque", cost=0)

def stamp(vreg, lane):
    if not cfg.STAMP: return []
    return ["s_memtime s[90:91]", f"s_mov_b32 m0, {lane}", "s_waitcnt lgkmcnt(0)", f"v_writelane_b32 v{vreg}, s90, m0"]
def cstamp(vreg):
    if not cfg.STAMP: return []
    if cfg.SMASK == -1: return stamp(vreg, f"s{sSig}")
    l = lab("s")
    return [f"s_bitcmp1_b64 s[96:97], s{sSig}", f"s_cbranch_scc0 {l}"] + stamp(vreg, f"s{sSig}") + [f"{l}:"]

def wdma_groups(dst):
    out = []
    for u in range(3):
        g = [f"s_add_u32 m0, {dst}, s{sJ3k}", f"s_add_u32 s{sT+8}, s{sWsrc}, s{sWbase}"] if u == 0 else \
            [f"s_add_u32 m0, m0, s{s1k}", f"s_add_u32 s{sT+8}, s{sT+8}, s{sWins}"]
        g.append(f"buffer_load_dwordx4 v{vDMA}, s[{sW}:{sW+3}], s{sT+8} offen{fl(cfg.WF)} lds")
        if u == 2: g += [f"s_add_u32 s{sWsrc}, s{sWsrc}, s{sWstep}", f"s_cmp_eq_u32 s{sWsrc}, s{sWlim}", f"s_cselect_b32 s{sWsrc}, 0, s{sWsrc}"]
        out.append(g)
    return out
def wdma_interval():
    g = wdma_groups(f"s{sT+7}") + wdma_groups(f"s{sT+7}")
    g[0] = [f"s_sub_u32 s{sT+7}, {RSUM}, s{sRing}"] + g[0]
    g[3] = [f"s_add_u32 s{sT+7}, s{sT+7}, {WSET}"] + g[3]
    return g

def row_setup():
    t0, t1, t2 = sT, sXo, sT + 1
    return [f"s_lshl_b32 s{t0}, s{sTy}, 5", f"s_add_u32 s{t0}, s{t0}, s{sXrow}", f"s_sub_u32 s{t0}, s{t0}, 2",
            f"s_mul_i32 s{t1}, s{t0}, 98304", f"s_mul_i32 s{t2}, s{sTx}, 6144", f"s_add_u32 s{t1}, s{t1}, s{t2}",
            f"s_cmp_lt_u32 s{t0}, 512", f"s_cselect_b32 s{t1}, s{t1}, 0x80000000",
            f"s_cmp_ge_u32 s{sXrow}, 24", f"s_cselect_b32 s{t2}, 24, 0", f"s_sub_u32 s{t0}, s{sXrow}, s{t2}",
            f"s_cmp_ge_u32 s{t0}, 12", f"s_cselect_b32 s{t2}, 12, 0", f"s_sub_u32 s{t0}, s{t0}, s{t2}",
            f"s_and_b32 s{t2}, s{sXrow}, 4", f"s_lshl_b32 s{t2}, s{t2}, 1", f"s_mul_i32 s{t0}, s{t0}, {XS}", f"s_add_u32 s{t0}, s{t0}, s{t2}",
            f"s_add_u32 s{sXm}, s{t0}, {XBASE}"]
def row_loads():
    out = [[f"s_mov_b32 m0, s{sXm}", f"s_sub_u32 s{sT}, s{sXo}, s{sAdjL}", f"buffer_load_dwordx4 v{vOffL}, s[{sX}:{sX+3}], s{sT} offen{fl(cfg.XF)} lds"]]
    for a in range(1, 9):
        out.append([f"s_add_u32 m0, s{sXm}, {784 * a}", f"s_add_u32 s{sT}, s{sXo}, {768 * a - 384}",
                    f"buffer_load_dwordx4 v{vOffR if a == 8 else vL16}, s[{sX}:{sX+3}], s{sT} offen{fl(cfg.XF)} lds"])
    return out
def row_dma_lines(): return row_setup() + [l for g in row_loads() for l in g]

def bar_lines(wait="s_waitcnt vmcnt(0)"):
    L = cstamp(16) + ([wait] if wait else []) + ["s_barrier"] + cstamp(17)
    L += [f"s_sub_u32 s{sRing}, {RSUM}, s{sRing}"]
    if cfg.STAMP: L += [f"s_add_u32 s{sSig}, s{sSig}, 1"]
    return L

def gelu_B(Sr):
    ops = []
    def st(p, k):
        a0 = Sr + 2 * p; a1 = a0 + 1; t = T0 + (p % 2) * 3; u = t + 1; w = t + 2
        return [V(f"v_cvt_pk_f16_f32 v{t}, v{a0}, v{a1}"),
                V(f"v_pk_fma_f16 v{u}, v{t}, v{t}, s{sA16}"),
                V(f"v_pk_mul_f16 v{t}, v{t}, v{u}"),
                V(f"v_exp_f16 v{u}, v{t}"),
                V(f"v_exp_f16_sdwa v{u}, v{t} dst_sel:WORD_1 dst_unused:UNUSED_PRESERVE src0_sel:WORD_1"),
                V(f"v_pk_fma_f16 v{t}, v{u}, s{sK16}, s{sK16}"),
                V(f"v_rcp_f16 v{u}, v{t}"),
                V(f"v_rcp_f16_sdwa v{w}, v{t} dst_sel:DWORD dst_unused:UNUSED_PAD src0_sel:WORD_1"),
                V(f"v_fma_mix_f32 v{u}, v{a0}, v{u}, 0 op_sel_hi:[0,1,0]"),
                V(f"v_fma_mix_f32 v{w}, v{a1}, v{w}, 0 op_sel_hi:[0,1,0]"),
                V(f"v_cvt_pk_bf16_f32 v{G+p}, v{u}, v{w}")][k]
    for q in range(0, 8, 2):
        for k in range(11):
            ops += [st(q, k), st(q + 1, k)]
    return ops

def gelu_A(Sr):
    ops = []
    for q in range(0, 16, 4):
        for k in range(6):
            for e in range(4):
                a = Sr + q + e; r = T0 + e
                ops.append([V(f"v_fma_f32 v{r}, v{a}, v{a}, s{sA16}"), V(f"v_mul_f32 v{r}, v{a}, v{r}"), V(f"v_exp_f32 v{r}, v{r}"),
                            V(f"v_fma_f32 v{r}, v{r}, s{sK16}, s{sK16}"), V(f"v_rcp_f32 v{r}, v{r}"), V(f"v_mul_f32 v{r}, v{a}, v{r}")][k])
        ops += [V(f"v_cvt_pk_bf16_f32 v{G+q//2}, v{T0}, v{T0+1}"), V(f"v_cvt_pk_bf16_f32 v{G+q//2+1}, v{T0+2}, v{T0+3}")]
    return ops
def gelu_C(Sr):
    ops = []
    def st(p, k):
        a0 = Sr + 2 * p; a1 = a0 + 1; t = T0 + (p % 2) * 3; u = t + 1; w = t + 2
        return [V(f"v_cvt_pk_f16_f32 v{w}, v{a0}, v{a1}"),
                V(f"v_pk_fma_f16 v{u}, v{w}, v{w}, s{sA16}"),
                V(f"v_pk_mul_f16 v{t}, v{w}, v{u}"),
                V(f"v_exp_f16 v{u}, v{t}"),
                V(f"v_exp_f16_sdwa v{u}, v{t} dst_sel:WORD_1 dst_unused:UNUSED_PRESERVE src0_sel:WORD_1"),
                V(f"v_pk_fma_f16 v{t}, v{u}, s{sK16}, s{sK16}"),
                V(f"v_rcp_f16 v{u}, v{t}"),
                V(f"v_rcp_f16_sdwa v{u}, v{t} dst_sel:WORD_1 dst_unused:UNUSED_PRESERVE src0_sel:WORD_1"),
                V(f"v_pk_mul_f16 v{G+p}, v{w}, v{u}")][k]
    for q in range(0, 8, 2):
        for k in range(9):
            ops += [st(q, k), st(q + 1, k)]
    return ops
def gelu(Sr): return gelu_C(Sr) if MODE[0] == "P" else gelu_B(Sr)

TR = "ds_read_b64_tr_b16"
def rd_w1(j, c):
    if MODE[0] == "P": return [DSR("ds_read_b128", W1F + 4 * j, 4, vW1c, f"offset:{WSET * c + 1024 * j}")]
    return [DSR(TR, W1F + 4 * j + 2 * r, 2, vW1c, f"offset:{WSET * c + 1024 * j + 256 * r}") for r in range(2)]
def rd_w2(sp, b, c):
    if MODE[0] == "P": return [DSR("ds_read_b128", W2F + 12 * sp + 4 * b, 4, vW1c, f"offset:{WSET * c + 6144 + 1024 * (3 * sp + b)}")]
    return [DSR(TR, W2F + 12 * sp + 4 * b + 2 * r, 2, vW2c, f"offset:{WSET * c + 6144 + (16 * sp + 8 * r) * 192 + 64 * b}") for r in range(2)]
def g1(X, j):
    return MFMA("32x32x16", ACC1[X], W1F + 4 * j, H + 8 * j + 4 * X, None if j == 0 else ACC1[X])
def g2(X, sp, b):
    return (MFMA16 if MODE[0] == "P" else MFMA)("32x32x16", acc2(X, b), W2F + 12 * sp + 4 * b, G + 4 * sp, acc2(X, b))
def w_addr():
    if MODE[0] == "P": return [V(f"v_add_u32 v{vW1c}, s{sRing}, v{vL16}")]
    return [V(f"v_add_u32 v{vW1c}, s{sRing}, v{vW1b}"), V(f"v_add_u32 v{vW2c}, s{sRing}, v{vW2b}")]

def step(X, c, extra):
    Y = 1 - X
    ld = (X == 0)
    att = [[g2(Y, 1, 0)] + (rd_w2(1, 0, c) if ld else []),
           [g1(Y, 0)] + (rd_w2(0, 0, c) + rd_w1(0, c) if ld else []),
           [g2(Y, 1, 1)] + (rd_w2(0, 1, c) + rd_w2(1, 1, c) if ld else []),
           [g1(Y, 1)] + (rd_w2(0, 2, c) + rd_w1(1, c) if ld else []),
           [g2(Y, 1, 2)] + (rd_w2(1, 2, c) if ld else []),
           [g1(Y, 2)] + (rd_w1(2, c) if ld else []),
           [g1(Y, 3)] + (rd_w1(3, c) if ld else []),
           [g2(X, 0, 0)],
           [g1(Y, 4)] + (rd_w1(4, c) if ld else []),
           [g2(X, 0, 1)],
           [g1(Y, 5)] + (rd_w1(5, c) if ld else []),
           [g2(X, 0, 2)]]
    for k, v in extra.items(): att[k] = att[k] + v
    ops = gelu(ACC1[X])
    return ops[:2] + interleave(ops[2:], att)

def loop_body(grp):
    L = [opaque(bar_lines() + [f"Lbody{grp}{MODE[0]}:"])]
    L += w_addr()
    ex = [{}, {}, {}, {}]
    if grp == 0:
        for k, g in enumerate(wdma_interval()):
            ex[k // 3 if k < 3 else 1][(7, 9, 11)[k] if k < 3 else (1, 3, 5)[k - 3]] = [opaque(g)]
    elif grp == 1:
        ex[0][7] = [opaque([f"s_bitcmp1_b32 s{sXM}, 0", f"s_cselect_b64 s[{sExX}:{sExX+1}], s[{sEx48}:{sEx48+1}], 0", f"s_lshr_b32 s{sXM}, s{sXM}, 1"] + row_setup())]
        rl = row_loads()
        for k, (st, sl) in enumerate(((0, 11), (1, 3), (1, 8))):
            blk = [f"s_mov_b64 exec, s[{sExX}:{sExX+1}]"] + rl[3 * k] + rl[3 * k + 1] + rl[3 * k + 2] + ["s_mov_b64 exec, -1"]
            if k == 2:
                blk += [f"s_cmp_lg_u32 s{sExX}, 0", f"s_cselect_b32 s{sT}, s{sXinc}, 0", f"s_add_u32 s{sXrow}, s{sXrow}, s{sT}",
                        f"s_cmp_lg_u32 s{sExX}, 0", f"s_cselect_b32 s{sT}, 6, 0", f"s_xor_b32 s{sXinc}, s{sXinc}, s{sT}"]
            ex[st][sl] = [opaque(blk)]
    for k in range(4):
        if k == 2: L += dry_point(f"Lhalf{grp}")
        if cfg.PRIO: L.append(S(f"s_setprio {max(cfg.PBASE - k, 0)}"))
        L += step(k & 1, k >> 1, ex[k])
    return L

def SM32(d, a, b, idx):
    ab = list(R(a, 4)) + list(R(b, 8)) + [idx]
    return Ins(f"v_smfmac_f32_32x32x32_bf16 {vr(d,16)}, {vr(a,4)}, {vr(b,8)}, v{idx}", "mfma",
               ab + list(R(d, 16)), R(d, 16), cost=12, passes=8, srcc=R(d, 16), srcab=ab)

def unit_reads(u):
    q, rho = divmod(u, 6); buf = cBuf[u % 2]
    o = 196 * (q % 2) + 8 * rho
    L = []
    if rho == 0 and q and q % 2 == 0: L.append(V(f"v_add_u32 v{cTa}, {2 * TGRP}, v{cTa}"))
    L += [DSR("ds_read2_b32", buf + 8, 2, cTa, f"offset0:{o} offset1:{o+1}"), DSR("ds_read2_b32", buf + 10, 2, cTa, f"offset0:{o+2} offset1:{o+3}")]
    for k, c in enumerate((0, 192, 784, 976)):
        L.append(DSR("ds_read_b64", buf + 2 * k, 2, cAddr + rho // 2, f"offset:{XS * (rho & 1) + c + 8 * q}"))
    return L

def store(X, t):
    d = H + 24 * X + 4 * t
    return VMEM(f"buffer_store_dwordx4 {vr(d,4)}, v{vSt}, s[{sO}:{sO+3}], s{sStO2 if X else sStO} offen offset:{64 * (t >> 1) + 3072 * (t & 1) if cfg.S64 else 32 * t}{fl(cfg.OF)}", rd=[vSt] + list(R(d, 4)), store=True)

def res_reads(k):
    X, s = divmod(k, 6)
    return [DSR("ds_read_b64", XF[k] + 2 * r, 2, cRes, f"offset:{XS * X + 32 * s + 8 * r}") for r in range(2)]

def pk(op, d, *src, mods=""):
    return V(f"v_pk_{op}_f32 v[{d}:{d+1}], " + ", ".join(f"v[{x}:{x+1}]" for x in src) + mods)

def signal():
    t = T0
    return [V(f"v_mov_b32 v{t}, s{sT+2}"), V(f"v_mov_b32 v{t+1}, 1"),
            Ins(f"    s_mov_b64 exec, 1\n    ds_add_u32 v{t}, v{t+1}\n    s_mov_b64 exec, -1\n    s_add_u32 s{sTgt}, s{sTgt}, 4", "dsw_op", [t, t + 1], [])]
def poll():
    t = T0; l = lab("p")
    return [Ins(f"{l}:\n    ds_read_b32 v{t+1}, v{t}\n    s_waitcnt lgkmcnt(0)\n    v_readfirstlane_b32 s{sT+3}, v{t+1}\n"
                f"    s_cmp_ge_u32 s{sT+3}, s{sTgt}\n    s_cbranch_scc0 {l}", "waitall", [t], [t + 1])]

def cstage_setup():
    t = sT
    L = []
    for dst, add in ((sFh, 0), (sFres, 2)):
        L += [f"s_lshl_b32 s{t}, s{sJ}, 1", f"s_add_u32 s{t}, s{t}, s{sWin}", f"s_add_u32 s{t}, s{t}, {add}",
              f"s_cmp_ge_u32 s{t}, {NR}", f"s_cselect_b32 s{t+1}, {NR}, 0", f"s_sub_u32 s{t}, s{t}, s{t+1}", f"s_mul_i32 s{dst}, s{t}, {XS}"]
    L += [f"s_add_u32 s{t}, s{sJ}, 1", f"s_and_b32 s{t}, s{t}, 2", f"s_lshl_b32 s{t}, s{t}, 2", f"s_add_u32 s{sFres}, s{sFres}, s{t}"]
    return L

def dry_exit(): return [f"s_cmp_lg_u32 s{sDry}, 0", "s_cbranch_scc1 Ldry_ret"] if cfg.WARM and MODE[0] == "P" else []
def dry_point(name): return [opaque(dry_exit() + [name + ":"])] if cfg.WARM and MODE[0] == "P" else []

def cs(k):
    if not (cfg.STAMP and cfg.CST): return []
    return [Ins("\n".join("    " + l for l in [f"s_lshl_b32 s95, s{sP}, 3", f"s_add_u32 s95, s95, {30 + k}"] + stamp(17, "s95")), "waitall")]

def cstage():
    L = [COMMENT("row addresses, zero accumulators, convolution")]
    if cfg.CPRIO: L.append(S(f"s_setprio {cfg.CPRIO}"))
    L += [S(x) for x in cstage_setup()]
    L += [S(f"s_lshl_b32 s{sT+2}, s{sGrp}, 2"), S(f"s_add_u32 s{sT+2}, s{sT+2}, {CBASE}"), S(f"s_mov_b32 s{sT}, {XS}")]
    t0, t1, t2 = T0, T0 + 1, T0 + 4
    L += [V(f"v_bfe_u32 v{t2}, v{vL16}, 7, 2"), V(f"v_lshlrev_b32 v{t2}, 1, v{t2}"), V(f"v_mov_b32 v{T0+2}, 0"), V(f"v_mov_b32 v{T0+3}, 0")]
    for k in range(3):
        if k: L += [V(f"v_add_u32 v{t2}, 2, v{t2}")]
        L += [V(f"v_add_u32 v{t0}, s{sWin}, v{t2}"), V(f"v_subrev_u32 v{t1}, {NR}, v{t0}"), V(f"v_min_u32 v{t0}, v{t0}, v{t1}"),
              V(f"v_mad_u32_u24 v{t0}, v{t0}, s{sT}, v{vColB}"), V(f"v_and_b32 v{t1}, 4, v{t2}"), V(f"v_lshl_add_u32 v{cAddr+k}, v{t1}, 1, v{t0}")]
    L += [V(f"v_mov_b32 v{cTa}, v{vTa}"), V(f"v_bfe_u32 v{cIdx}, v{vL16}, 4, 2"), V(f"v_mul_u32_u24 v{cIdx}, 0x5555, v{cIdx}")]
    L += cs(0) + unit_reads(0) + unit_reads(1)
    for q in range(6): L.append(MFMA("32x32x8", ACC2 + 16 * q, T0 + 2, T0 + 2, None))
    L += [V(f"v_add_u32 v{cRes}, s{sFres}, v{vRes}"), V(f"v_add_u32 v{cHw}, v{cAddr}, v{vHwA}"), V(f"v_add_u32 v{cHr}, s{sFh}, v{vHr}")]
    for u in range(36):
        buf = cBuf[u % 2]
        if u == 18: L += dry_point("Ldry1")
        L.append(SM32(ACC2 + 16 * (u // 6), buf + 8, buf, cIdx))
        if u + 2 < 36: L += unit_reads(u + 2)
        else: L += res_reads(3 * (u - 34)) + res_reads(3 * (u - 34) + 1) + res_reads(3 * (u - 34) + 2)
        if u % 3 == 1: L.append(store(*divmod(u // 3, 6)))
    for k in range(6, 12): L += res_reads(k)
    L += [S(f"s_add_u32 s{sStO}, s{sStO}, s{sStInc}"), S(f"s_add_u32 s{sStO2}, s{sStO}, 98304"), S(f"s_mov_b32 s{sO+2}, 50331648"), S(f"s_mov_b32 s{sStInc}, {16 * 98304}")]
    L += cs(1) + dry_point("Ldry2")
    SA, QA, ST, QT = 56, 64, 72, 76
    for q in range(6):
        for u in range(4):
            y = ACC2 + 16 * q + 4 * u
            if q == 0: L += [pk("add", SA + 2 * u, y, y + 2), pk("mul", QA + 2 * u, y, y), pk("fma", QA + 2 * u, y + 2, y + 2, QA + 2 * u)]
            else:
                for e in (0, 2): L += [pk("add", SA + 2 * u, SA + 2 * u, y + e), pk("fma", QA + 2 * u, y + e, y + e, QA + 2 * u)]
    for u in range(4): L += [V(f"v_add_f32 v{ST+u}, v{SA+2*u}, v{SA+2*u+1}"), V(f"v_add_f32 v{QT+u}, v{QA+2*u}, v{QA+2*u+1}")]
    L += [S(f"s_lshl_b32 s{sT}, s{sJ}, 11"), V(f"v_add_u32 v{T0+4}, s{sT}, v{vL16}")]
    L += [DSW("ds_write_b128", T0 + 4, ST, 4, f"offset:{PBASE}"), DSW("ds_write_b128", T0 + 4, QT, 4, f"offset:{PBASE + 1024}")]
    L.append(Ins("s_waitcnt lgkmcnt(0)", "waitall"))
    L += cs(2) + signal()
    lm = lab("m")
    L.append(opaque([f"s_or_b32 s{sT}, s{sFirst}, s{sDry}", f"s_cbranch_scc1 {lm}"] + bar_lines("s_waitcnt vmcnt(12)") +
                    [f"s_cmp_eq_u32 s{sGrp}, 0", f"s_cbranch_scc0 {lm}"] + [l for gg in wdma_interval() for l in gg] + [f"{lm}:"]))
    L += poll()
    L += cs(3)
    L += [COMMENT("LayerNorm, exchange of the normalised tile, residual into the accumulators, first GEMM1")]
    PR = [56, 60, 64, 68, 48, 72, 76, G]
    dst = {(0, 0): 72, (0, 1): 76, (1, 0): 56, (1, 1): 60, (2, 0): 64, (2, 1): 68, (3, 0): G, (3, 1): G + 4}
    for w in range(4):
        for k in range(2): L.append(DSR("ds_read_b128", dst[(w, k)], 4, vL16, f"offset:{PBASE + 2048 * w + 1024 * k}"))
    for w in range(1, 4):
        for k in range(2):
            for h in (0, 2): L.append(pk("add", dst[(0, k)] + h, dst[(0, k)] + h, dst[(w, k)] + h))
    L += [DSR("ds_read_b128", G, 4, vL16, f"offset:{IBASE}"), DSR("ds_read_b128", G + 4, 4, vL16, f"offset:{IBASE + 1024}")]
    MN, SC, SH = 56, 48, 44 + 0
    SH = 60
    for u in range(4): L += [V(f"v_mul_f32 v{MN+u}, s{sInv96}, v{ST+u}")]
    for u in range(4): L += [V(f"v_mul_f32 v{SH+u}, v{MN+u}, v{MN+u}")]
    for u in range(4): L += [V(f"v_fma_f32 v{QT+u}, v{QT+u}, s{sInv96}, -v{SH+u}")]
    for u in range(4): L += [V(f"v_max_f32 v{QT+u}, 0, v{QT+u}")]
    for u in range(4): L += [V(f"v_add_f32 v{QT+u}, s{sEps}, v{QT+u}")]
    for u in range(4): L += [V(f"v_rsq_f32 v{QT+u}, v{QT+u}")]
    SC, SH2 = T0 + 2, 48
    for u in range(4): L += [V(f"v_mul_f32 v{SC+u}, s{sKap}, v{QT+u}")]
    for u in range(4): L += [V(f"v_mul_f32 v{SH2+u}, -v{MN+u}, v{SC+u}")]
    L += w_addr()[:1]
    for q in range(6):
        for u in range(4):
            for e in (0, 2):
                y = ACC2 + 16 * q + 4 * u + e; o = u & 1
                L.append(pk("fma", y, y, SC + (u & 2), SH2 + (u & 2), mods=f" op_sel:[0,{o},{o}] op_sel_hi:[1,{o},{o}]"))
    L += cs(4) + dry_point("Ldry3")
    first_w1 = opaque([f"s_cmp_lg_u32 s{sFirst}, 0", "s_cbranch_scc1 Lw1wait", f"Lw1wait_ret{MODE[0]}:"] + [w_addr()[0].text])
    def ident(q):
        X, b = divmod(q, 3)
        return [MFMA("32x32x16", acc2(X, b), G, XF[6 * X + 2 * b], None), MFMA("32x32x16", acc2(X, b), G + 4, XF[6 * X + 2 * b + 1], acc2(X, b))]
    def cvt(q): return [V(f"v_cvt_pk_bf16_f32 v{H+12*u+2*q+h}, v{ACC2+16*q+4*u+2*h}, v{ACC2+16*q+4*u+2*h+1}") for u in range(4) for h in range(2)]
    def hw(t): return [DSW("ds_write_b128", cHw, H + 12 * u + 4 * t, 4, f"offset:{192 * u + 16 * t}") for u in range(4)]
    for q in range(6):
        c = cvt(q)
        if q >= 1:
            i0, i1 = ident(q - 1)
            c = c[:1] + [i0] + c[1:5] + [i1] + c[5:]
        L += c
        if cfg.HW64: L += [DSW("ds_write_b64", cHw, H + 12 * u + 2 * q, 2, f"offset:{192 * u + 8 * q}") for u in range(4)]
        elif q % 2 == 1: L += hw(q // 2)
    L += cs(5) + signal()
    L += ident(5)
    L += [V(f"v_mov_b32 v{48+i}, 0") for i in range(6)]
    L += poll()
    L += cs(6)
    hr = [DSR("ds_read_b128", H + 8 * s + 4 * X, 4, cHr, f"offset:{XS * X + 32 * s}") for X in range(2) for s in range(6)]
    L += hr[:6]
    L.append(first_w1)
    for j in range(3): L += rd_w1(j, 1)
    L += [V(f"v_mov_b32 v{G+4+i}, 0") for i in range(4)]
    L += [g1(0, 0)] + rd_w1(3, 1) + rd_w1(4, 1) + [g1(0, 1)] + rd_w1(5, 1) + hr[6:9] + [g1(0, 2)] + hr[9:] + [g1(0, 3), g1(0, 4), g1(0, 5)]
    L += [V(f"v_mov_b32 v54, 0"), V(f"v_mov_b32 v55, 0")]
    L.append(Ins("s_waitcnt lgkmcnt(0)", "waitall"))
    L += cs(7)
    if cfg.CPRIO: L.append(S("s_setprio 0"))
    ab = cfg.ABL.split("+")
    if "hw" in ab: L = [i for i in L if not (i.kind == "dsw" and cHw in i.rd)]
    if "pk" in ab: L = [i for i in L if i.kind != "pk32"]
    if "brd" in ab: L = [i for i in L if not (i.text.startswith("ds_read_b64") and i.rd & set(R(cAddr, 3)))]
    if "sm" in ab: L = [i for i in L if "smfmac" not in i.text]
    if "st" in ab: L = [i for i in L if i.kind != "vstore"]
    if "unpk" in ab:
        out = []
        for i in L:
            if i.kind != "pk32": out.append(i); continue
            m = re.match(r"v_pk_(\w+)_f32 (.*?)( op_sel.*)?$", i.text); regs = [int(x) for x in re.findall(r"v\[(\d+):", m.group(2))]
            o = 1 if m.group(3) and "op_sel:[0,1" in m.group(3) else 0
            for h in range(2):
                r = [regs[0] + h, regs[1] + h] + [(x + o if m.group(3) else x + h) for x in regs[2:]]
                out.append(V(f"v_{m.group(1)}_f32 " + ", ".join(f"v{x}" for x in r)))
        L = out
    return L

def epilogue(with_stores):
    L = [COMMENT("epilogue: last GEMM2 k-step, convert")]
    att = [[g2(1, 1, b)] for b in range(3)]
    def cv(X, t):
        a = acc2(X, t >> 1) + 8 * (t & 1); d = H + 24 * X + 4 * t
        return [V(f"v_cvt_pk_bf16_f32 v{d+i}, v{a+2*i}, v{a+2*i+1}") for i in range(4)]
    def fin(X, u):
        d = H + 24 * X + 8 * u
        o = [V(f"v_permlane16_swap_b32 v{d+i}, v{d+4+i}") for i in range(4)] if cfg.S64 else []
        return o + ([store(X, 2 * u), store(X, 2 * u + 1)] if with_stores else [])
    seq = [(X, u) for X in range(2) for u in range(3)]
    body = []
    for k, (X, u) in enumerate(seq):
        body.append(cv(X, 2 * u) + cv(X, 2 * u + 1) + (fin(*seq[k - 1]) if k else []))
    first = body[0] + body[1] + body[2]
    L += first[:2] + interleave(first[2:], att, 0.0, 0.5)
    L += body[3] + body[4] + body[5] + fin(*seq[5])
    return L

def wparams(mode, first):
    P = []; a = P.append
    if mode == "P":
        a(f"s_mov_b32 s{sW}, s6"); a(f"s_and_b32 s{sW+1}, s7, 0xffff"); a(f"s_mov_b32 s{sW+2}, {12 * WSET}"); a(f"s_mov_b32 s{sW+3}, 0x20000")
        a(f"s_mov_b32 s{sWstep}, {WSET}"); a(f"s_mov_b32 s{sWlim}, {12 * WSET}"); a(f"s_mov_b32 s{sWins}, 1024"); a(f"s_mov_b32 s{sWbase}, s{sJ3k}")
        a(f"s_mov_b32 s{sWsrc}, {first * WSET}"); a(f"v_mov_b32 v{vDMA}, v{vL16}")
        return P
    a(f"s_cmp_lt_u32 s{sJ}, 2"); a(f"s_cselect_b32 s{sW}, s10, s12"); a(f"s_cselect_b32 s{sW+1}, s11, s13")
    a(f"s_cselect_b32 s{sWstep}, 64, 6144"); a(f"s_mov_b32 s{sWins}, 1024")
    a(f"s_cselect_b32 s{sWins}, 12288, s{sWins}"); a(f"s_cselect_b32 s{sWsrc}, {first + 1}, {first}"); a(f"s_mul_i32 s{sWsrc}, s{sWsrc}, s{sWstep}"); a(f"s_mul_i32 s{sWlim}, s{sWstep}, 12")
    a(f"s_and_b32 s{sW+1}, s{sW+1}, 0xffff"); a(f"s_mov_b32 s{sW+2}, 73728"); a(f"s_mov_b32 s{sW+3}, 0x20000")
    a(f"s_and_b32 s{sT+3}, s{sJ}, 1"); a(f"s_mul_i32 s{sT+3}, s{sT+3}, 3"); a(f"s_mul_i32 s{sWbase}, s{sT+3}, s{sWins}")
    a(f"v_lshrrev_b32 v18, 6, v{vL16}"); a("v_mul_u32_u24 v18, 768, v18"); a(f"v_and_b32 v19, 48, v{vL16}"); a("v_add_u32 v18, v18, v19")
    a(f"s_cmp_lt_u32 s{sJ}, 2"); a("s_cselect_b64 vcc, -1, 0"); a(f"v_cndmask_b32 v{vDMA}, v{vL16}, v18, vcc")
    return P

def prologue():
    P = []
    a = P.append
    a(f"s_cmp_ge_u32 s2, 256"); a("s_cbranch_scc1 Lend")
    if cfg.STAMP: a("s_memtime s[92:93]"); a("s_load_dwordx2 s[94:95], s[0:1], 56")
    if cfg.DBG: a("s_memtime s[92:93]"); a("s_memrealtime s[94:95]")
    a("s_load_dwordx8 s[4:11], s[0:1], 0"); a("s_load_dwordx4 s[12:15], s[0:1], 32"); a("s_load_dwordx4 s[56:59], s[0:1], 48")
    a("v_lshrrev_b32 v16, 6, v0"); a("v_and_b32 v17, 63, v0")
    a(f"v_readfirstlane_b32 s{sT}, v16")
    if cfg.WARM:
        a("s_getpc_b64 s[60:61]"); a("v_lshlrev_b32 v38, 6, v0"); a("v_min_u32 v38, CODE_LAST, v38")
        a("global_load_dword v39, v38, s[60:61]")
    a(f"s_and_b32 s{sT+1}, s2, 7"); a(f"s_lshl_b32 s{sT+1}, s{sT+1}, 5"); a(f"s_lshr_b32 s{sT+2}, s2, 3"); a(f"s_add_u32 s{sT+1}, s{sT+1}, s{sT+2}")
    a(f"s_lshr_b32 s{sTy}, s{sT+1}, 4"); a(f"s_and_b32 s{sTx}, s{sT+1}, 15")
    a(f"s_lshr_b32 s{sGrp}, s{sT}, 2"); a(f"s_and_b32 s{sJ}, s{sT}, 3"); a(f"s_mov_b32 s{sXrow}, s{sT}")
    a(f"s_mul_i32 s{sJ3k}, s{sJ}, 3072"); a(f"s_movk_i32 s{s1k}, 1024")
    a(f"s_mov_b32 s{sEx48}, -1"); a(f"s_mov_b32 s{sEx48+1}, 0xffff")
    a(f"v_lshlrev_b32 v{vL16}, 4, v17")
    a(f"s_cmp_eq_u32 s{sTx}, 0"); a(f"s_cselect_b32 s{sAdjL}, 0, 384"); a(f"s_cselect_b32 s{sT+3}, 384, 0"); a(f"s_cselect_b32 s{sT+4}, 24, 0")
    a(f"v_subrev_u32 v{vOffL}, s{sT+3}, v{vL16}"); a(f"v_cmp_le_u32 vcc, s{sT+4}, v17"); a("s_nop 1")
    a(f"v_cndmask_b32 v{vOffL}, 2.0, v{vOffL}, vcc")
    a(f"s_cmp_eq_u32 s{sTx}, 15"); a(f"s_cselect_b32 s{sT+4}, 24, 64"); a(f"v_cmp_gt_u32 vcc, s{sT+4}, v17"); a("s_nop 1")
    a(f"v_cndmask_b32 v{vOffR}, 2.0, v{vL16}, vcc")
    a("v_mul_u32_u24 v18, 683, v0"); a("v_lshrrev_b32 v18, 16, v18")
    a("v_mul_u32_u24 v19, 96, v18"); a("v_sub_u32 v19, v0, v19")
    a("v_mul_u32_u24 v20, 960, v18"); a("v_lshl_add_u32 v20, v19, 1, v20")
    a("v_lshlrev_b32 v21, 1, v19")
    P += row_setup()
    a("s_waitcnt lgkmcnt(0)")
    if cfg.STAMP: a("s_memtime s[96:97]"); a("s_memrealtime s[98:99]"); a("s_waitcnt lgkmcnt(0)")
    for (d, p, n) in ((sX, 4, 50331648), (28, 8, 4800), (32, 6, 192), (sO, 14, 0)):
        a(f"s_mov_b32 s{d}, s{p}"); a(f"s_and_b32 s{d+1}, s{p+1}, 0xffff"); a(f"s_mov_b32 s{d+2}, {n}"); a(f"s_mov_b32 s{d+3}, 0x20000")
    for j in range(5): a(f"buffer_load_ushort v{24+j}, v20, s[28:31], 0 offen offset:{192*j}")
    a("buffer_load_ushort v29, v21, s[32:35], 0 offen")
    a("s_mov_b64 s[4:5], s[56:57]"); a("s_mov_b64 s[6:7], s[58:59]")
    a(f"s_or_b32 s{sT+2}, s{sGrp}, s{sJ}"); a(f"s_cselect_b32 s{sFrag}, {NPROD}, s2")
    a("v_mov_b32 v48, 0"); a(f"v_lshlrev_b32 v49, 2, v17")
    a(f"s_cmp_lt_u32 s{sFrag}, {NPROD}"); a("s_cbranch_scc0 Lprep_noload")
    a(f"s_mul_i32 s{sT+2}, s{sFrag}, 21846"); a(f"s_lshr_b32 s{sT+2}, s{sT+2}, 16"); a(f"s_mul_i32 s{sT+3}, s{sT+2}, 3"); a(f"s_sub_u32 s{sT+6}, s{sFrag}, s{sT+3}")
    a("s_mov_b32 s28, s10"); a("s_and_b32 s29, s11, 0xffff"); a("s_mov_b32 s30, 73728"); a("s_mov_b32 s31, 0x20000")
    a("s_mov_b32 s32, s12"); a("s_and_b32 s33, s13, 0xffff"); a("s_mov_b32 s34, 73728"); a("s_mov_b32 s35, 0x20000")
    a(f"s_add_u32 s{sT+3}, s{sT+2}, 1"); a(f"s_cmp_eq_u32 s{sT+3}, 12"); a(f"s_cselect_b32 s{sT+3}, 0, s{sT+3}"); a(f"s_lshl_b32 s{sT+3}, s{sT+3}, 6")
    a(f"s_mul_i32 s{sT+4}, s{sT+2}, 6144")
    a("v_lshrrev_b32 v50, 5, v17"); a("v_and_b32 v51, 31, v17")
    a("v_mul_u32_u24 v52, 6144, v50"); a("v_lshl_add_u32 v52, v51, 1, v52"); a("v_add_u32 v53, 3072, v52")
    a("v_mul_u32_u24 v54, 768, v50"); a("v_and_b32 v50, 19, v51"); a("v_lshl_add_u32 v54, v50, 1, v54")
    a("v_and_b32 v50, 4, v51"); a("v_lshl_add_u32 v54, v50, 2, v54"); a("v_and_b32 v50, 8, v51"); a("v_add_u32 v54, v54, v50")
    def ld(q, r):
        if q < 6:
            a(f"s_add_u32 s{sT+5}, s{sT+3}, {q * 12288}")
            for i in range(8): a(f"buffer_load_ushort v{r+i}, v{52 + i // 4}, s[28:31], s{sT+5} offen offset:{768 * (i & 3)}")
        else:
            sp, bb = divmod(q - 6, 3)
            a(f"s_add_u32 s{sT+5}, s{sT+4}, {sp * 3072 + bb * 64}")
            for i in range(8): a(f"buffer_load_ushort v{r+i}, v54, s[32:35], s{sT+5} offen offset:{192 * (i & 3) + 1536 * (i >> 2)}")
    def cv(q, r, mx):
        for i in range(0, 8, 2): a(f"v_and_b32 v50, 0x7fff, v{r+i}"); a(f"v_and_b32 v51, 0x7fff, v{r+i+1}"); a(f"v_max3_u32 v{mx}, v{mx}, v50, v51")
        if q < 6:
            for i in range(4): a(f"v_lshl_or_b32 v{r+i}, v{r+1+2*i}, 16, v{r+2*i}")
        else:
            for i in range(8): a(f"v_lshlrev_b32 v{r+i}, 16, v{r+i}")
            for i in range(4): a(f"v_cvt_pk_f16_f32 v{r+i}, v{r+2*i}, v{r+1+2*i}")
    a(f"s_mov_b32 s{sThird}, s{sT+6}")
    for third in range(3):
        if third < 2: a(f"s_cmp_eq_u32 s{sT+6}, {third}"); a(f"s_cbranch_scc0 Lprep_t{third + 1}")
        for i in range(4): ld(4 * third + i, 64 + 8 * i)
        if third < 2: a("s_branch Lprep_noload"); a(f"Lprep_t{third + 1}:")
    def prep_convert():
        a(f"s_cmp_lt_u32 s{sFrag}, {NPROD}"); a("s_cbranch_scc0 Lprep_nocv")
        a("v_mov_b32 v56, 0"); a("v_mov_b32 v57, 0"); a("s_waitcnt vmcnt(9)")
        for third in range(3):
            if third < 2: a(f"s_cmp_eq_u32 s{sThird}, {third}"); a(f"s_cbranch_scc0 Lprep_c{third + 1}")
            for i in range(4): cv(4 * third + i, 64 + 8 * i, 56 if 4 * third + i < 6 else 57)
            if third < 2: a("s_branch Lprep_st"); a(f"Lprep_c{third + 1}:")
        a("Lprep_st:")
        a("s_mov_b32 s28, s6"); a("s_and_b32 s29, s7, 0xffff"); a(f"s_mov_b32 s30, {12 * WSET}"); a("s_mov_b32 s31, 0x20000"); a(f"s_lshl_b32 s{sT+2}, s{sFrag}, 12")
        for i in range(4): a(f"buffer_store_dwordx4 v[{64+8*i}:{67+8*i}], v{vL16}, s[28:31], s{sT+2} offen offset:{1024 * i} sc0 sc1")
        a("v_max_u32 v50, v56, v57"); a("v_cmp_lt_u32 vcc, 0x4100, v50"); a("s_cmp_lg_u64 vcc, 0"); a(f"s_cselect_b32 s{sT+4}, 3, 1")
        a("v_cmp_le_u32 vcc, 0x3a80, v56"); a("s_cmp_lg_u64 vcc, 0"); a(f"s_cselect_b32 s{sT+5}, 4, 0"); a(f"s_or_b32 s{sT+4}, s{sT+4}, s{sT+5}")
        a("v_cmp_le_u32 vcc, 0x3a80, v57"); a("s_cmp_lg_u64 vcc, 0"); a(f"s_cselect_b32 s{sT+5}, 8, 0"); a(f"s_or_b32 s{sT+4}, s{sT+4}, s{sT+5}")
        a(f"v_mov_b32 v48, s{sT+4}")
        a("Lprep_nocv:")
    a("Lprep_noload:")
    a(f"s_mov_b64 exec, s[{sEx48}:{sEx48+1}]")
    for g in row_loads(): P += g
    a(f"s_cmp_eq_u32 s{sGrp}, 0"); a("s_cbranch_scc1 Lpro_A")
    a(f"s_add_u32 s{sXrow}, s{sXrow}, 4")
    P += row_dma_lines()
    a("Lpro_A:")
    a("s_mov_b64 exec, -1")
    a("s_mov_b32 s32, s4"); a("s_and_b32 s33, s5, 0xffff"); a("s_mov_b32 s34, 256"); a("s_mov_b32 s35, 0x20000")
    P += wparams("P", 1)
    assert cfg.WLATE
    if cfg.STAMP: a("s_memtime s[100:101]"); a("s_waitcnt lgkmcnt(0)")
    a(f"s_mov_b32 s{sA16}, {A_imm:#x}"); a(f"s_mov_b32 s{sK16}, {K_imm:#x}")
    a(f"s_mov_b32 s{sInv96}, {f32bits(1/96):#x}"); a(f"s_mov_b32 s{sEps}, {f32bits(1e-5):#x}"); a(f"s_mov_b32 s{sKap}, {f32bits(kap_use):#x}")
    D = cfg.D
    a(f"s_lshl_b32 s{sT}, s{sTy}, 5"); a(f"s_lshl_b32 s{sT+1}, s{sGrp}, 3"); a(f"s_add_u32 s{sT}, s{sT}, s{sT+1}"); a(f"s_lshl_b32 s{sT+1}, s{sJ}, 1")
    a(f"s_add_u32 s{sT}, s{sT}, s{sT+1}"); a(f"s_mul_i32 s{sT}, s{sT}, 98304"); a(f"s_mul_i32 s{sT+1}, s{sTx}, 6144"); a(f"s_add_u32 s{sStO}, s{sT}, s{sT+1}")
    a(f"s_mov_b32 s{sDry+1}, s{sStO}")
    a("v_and_b32 v30, 7, v17"); a("v_lshrrev_b32 v31, 5, v17"); a("v_bfe_u32 v32, v17, 4, 1")
    a(f"s_mul_i32 s{sT}, s{sJ}, 48"); a(f"s_add_u32 s{sT}, s{sT}, {XBASE}")
    a("v_mul_u32_u24 v33, 784, v30"); a("v_mul_u32_u24 v34, 384, v31"); a(f"v_add3_u32 v{vColB}, v33, v34, s{sT}")
    a(f"v_mul_u32_u24 v33, {XS - 384}, v31"); a("v_lshlrev_b32 v34, 3, v32"); a(f"v_sub_u32 v{vHwA}, v33, v34")
    a("v_and_b32 v35, 31, v17"); a("v_lshlrev_b32 v36, 4, v31")
    a(f"v_mul_u32_u24 v33, 192, v35"); a(f"v_add_u32 v{vSt}, v33, v36")
    a("v_lshrrev_b32 v33, 2, v35"); a(f"v_lshl_add_u32 v33, v33, 4, v{vSt}"); a(f"v_add_u32 v{vHr}, {XBASE}, v33")
    a("v_add_u32 v33, 2, v35"); a("v_lshrrev_b32 v33, 2, v33"); a(f"v_lshl_add_u32 v33, v33, 4, v{vSt}"); a(f"v_add_u32 v{vRes}, {XBASE + 384}, v33")
    if cfg.S64:
        a("v_and_b32 v33, 15, v17"); a("v_mul_u32_u24 v33, 192, v33"); a("v_lshl_add_u32 v33, v32, 5, v33"); a(f"v_add_u32 v{vSt}, v33, v36")
    a("v_and_b32 v33, 3, v17"); a("v_bfe_u32 v34, v17, 2, 2")
    a("v_and_b32 v35, 1, v17"); a("v_mul_u32_u24 v35, 400, v35"); a("v_bfe_u32 v36, v17, 1, 1"); a("v_mul_u32_u24 v36, 192, v36"); a("v_add_u32 v35, v35, v36")
    a("v_bfe_u32 v36, v17, 2, 1"); a("v_lshlrev_b32 v36, 5, v36"); a("v_sub_u32 v35, v35, v36")
    a("v_bfe_u32 v36, v17, 3, 2"); a("v_lshlrev_b32 v36, 2, v36"); a("v_sub_u32 v35, v35, v36")
    a(f"s_mul_i32 s{sT}, s{sJ}, {6 * TGRP}"); a(f"s_add_u32 s{sT}, s{sT}, {TBASE}")
    a("v_lshl_add_u32 v35, v31, 4, v35"); a(f"v_add_u32 v{vTa}, s{sT}, v35")
    a("v_lshl_add_u32 v35, v31, 3, v34"); a("v_lshlrev_b32 v35, 6, v35"); a("v_lshl_add_u32 v35, v32, 5, v35"); a(f"v_lshl_add_u32 v{vW1b}, v33, 3, v35")
    a("v_lshl_add_u32 v35, v31, 2, v34"); a("v_mul_u32_u24 v35, 192, v35"); a("v_lshl_add_u32 v35, v32, 5, v35")
    a("v_and_b32 v36, 1, v17"); a("v_lshl_add_u32 v35, v36, 4, v35"); a("v_bfe_u32 v36, v17, 1, 1"); a(f"v_lshl_add_u32 v{vW2b}, v36, 3, v35")
    def enter(targets, ret=0):
        a(f"s_mov_b32 s{sDry+3}, {ret}")
        a(f"s_mov_b32 s{sDry}, 1"); a(f"s_mov_b32 s{sFirst}, 0"); a(f"s_mov_b32 s{sCnt}, 1"); a(f"s_mov_b32 s{sT+3}, -1"); a(f"s_mov_b32 s{sTgt}, 0")
        a(f"s_mov_b32 s{sDry+2}, s{sWsrc}"); a("s_waitcnt lgkmcnt(0)")
        a("s_setvskip -1, 0")
        for k, t in enumerate(targets[:3]): a(f"s_cmp_eq_u32 s{sJ}, {k}"); a(f"s_cbranch_scc1 {t}")
        a(f"s_branch {targets[3]}")
    def init_state():
        a(f"s_mov_b32 s{sXM}, {3 | (3 << (7 - D)):#x}"); a(f"s_mov_b32 s{sXinc}, 1"); a(f"s_mov_b32 s{sRing}, {WBASE}")
        a(f"s_mov_b32 s{sSig}, 1"); a(f"s_mov_b32 s{sP}, 0"); a(f"s_xor_b32 s{sFirst}, s{sGrp}, 1"); a(f"s_lshl_b32 s{sWin}, s{sGrp}, 3")
        a(f"s_mov_b32 s{sStInc}, 0"); a(f"s_mov_b32 s{sStO}, s{sDry+1}"); a(f"s_add_u32 s{sStO2}, s{sStO}, 98304"); a(f"s_mov_b32 s{sTgt}, 0")
        a(f"s_mov_b32 s{sO+2}, 0"); a(f"s_mov_b32 s{sDry}, 0")
    prep_convert()
    init_state()
    if cfg.WARM:
        a(f"s_cmp_eq_u32 s{sGrp}, 0"); a("s_cbranch_scc0 Ldry_skip")
        enter(["LconvP", "Ldry1", "Ldry2", "Ldry3"])
        a("Ldry_ret:"); a("s_setvskip 0, 0"); a("s_mov_b64 exec, -1"); a("s_setprio 0"); a(f"s_mov_b32 s{sWsrc}, s{sDry+2}")
        init_state()
        a(f"s_cmp_eq_u32 s{sDry+3}, 1"); a("s_cbranch_scc1 Ldry_B"); a(f"s_cmp_eq_u32 s{sDry+3}, 2"); a("s_cbranch_scc1 Ldry_B2")
        a("Ldry_skip:")
    a("v_bfe_u32 v35, v17, 3, 1"); a("v_lshl_add_u32 v35, v35, 2, v33")
    a("v_and_b32 v36, 1, v35"); a("v_lshlrev_b32 v36, 4, v36"); a("v_mov_b32 v37, 0x3f80"); a("v_lshlrev_b32 v36, v36, v37")
    a("v_lshrrev_b32 v35, 1, v35"); a("v_lshl_add_u32 v35, v32, 2, v35")
    a("v_bfe_u32 v37, v17, 2, 1"); a("v_cmp_eq_u32 vcc, v37, v31"); a("s_nop 1"); a("v_cndmask_b32 v35, 8, v35, vcc")
    for d in range(8):
        a(f"v_cmp_eq_u32 vcc, {d}, v35"); a("s_nop 1"); a(f"v_cndmask_b32 v{40+d}, 0, v36, vcc")
    a(f"ds_write_b128 v{vL16}, v[40:43] offset:{IBASE}"); a(f"ds_write_b128 v{vL16}, v[44:47] offset:{IBASE + 1024}")
    a(f"s_cmp_eq_u32 s{sGrp}, 0"); a("s_cbranch_scc0 Lpro_w2"); a("s_waitcnt vmcnt(9)"); a("Lpro_w2:"); a("s_waitcnt vmcnt(18)")
    a("v_cmp_eq_u32 vcc, 2, v18"); a("v_lshlrev_b32 v29, 16, v29"); a("s_nop 0"); a("v_cndmask_b32 v29, 0, v29, vcc"); a("v_or_b32 v26, v26, v29")
    a("v_mov_b32 v29, 0"); a("v_mov_b32 v30, 0"); a("v_mov_b32 v31, 0")
    a(f"v_lshrrev_b32 v33, 2, v19"); a(f"v_mul_u32_u24 v33, {TGRP}, v33"); a("v_lshl_add_u32 v33, v18, 5, v33")
    a("v_and_b32 v34, 1, v19"); a("v_mul_u32_u24 v34, 400, v34"); a("v_bfe_u32 v35, v19, 1, 1"); a("v_mul_u32_u24 v35, 192, v35"); a("v_add3_u32 v33, v33, v34, v35")
    a("v_cmp_gt_u32 vcc, 480, v0"); a("s_and_saveexec_b64 s[72:73], vcc")
    a(f"ds_write_b128 v33, v[24:27] offset:{TBASE}"); a(f"ds_write_b128 v33, v[28:31] offset:{TBASE + 16}")
    a("s_mov_b64 exec, -1")
    a("v_mov_b32 v28, 0")
    a("v_cmp_eq_u32 vcc, 4, v18"); a("s_and_saveexec_b64 s[72:73], vcc")
    a(f"ds_write_b128 v33, v[28:31] offset:{TBASE + 32}"); a(f"ds_write_b128 v33, v[28:31] offset:{TBASE + 48}")
    a("v_and_b32 v34, 3, v19"); a("v_cmp_eq_u32 vcc, 2, v34"); a("s_and_b64 exec, exec, vcc")
    a(f"ds_write_b128 v33, v[28:31] offset:{TBASE + 64}")
    a("s_mov_b64 exec, -1")
    a("v_mov_b32 v33, 0")
    for o in (0, 16, 32): a(f"ds_write_b128 v33, v[28:31] offset:{TPAD + o}")
    a(f"ds_write_b128 v33, v[28:31] offset:{CBASE}")
    if cfg.STAMP:
        a("v_mov_b32 v16, 0"); a("v_mov_b32 v17, 0"); a("v_writelane_b32 v16, s92, 60"); a("v_writelane_b32 v16, s96, 56")
        a("v_writelane_b32 v16, s98, 54"); a("v_writelane_b32 v16, s100, 57")
        P += stamp(16, 61)
        a(f"s_mov_b32 s96, {cfg.SMASK & 0xffffffff:#x}"); a(f"s_mov_b32 s97, {(cfg.SMASK >> 32) & 0xffffffff:#x}")
    a(f"s_cmp_eq_u32 s{sGrp}, 0"); a("s_cbranch_scc0 Lpro_w4")
    a("s_waitcnt vmcnt(0) lgkmcnt(0)"); P += stamp(16, 58)
    a(f"s_cmp_lt_u32 s{sFrag}, {NPROD}"); a("s_cbranch_scc0 Lprep_done")
    a(f"s_lshl_b32 s{sT+2}, s{sFrag}, 2")
    a("s_mov_b64 exec, 1"); a(f"buffer_store_dword v48, v49, s[32:35], s{sT+2} offen sc0 sc1"); a("s_mov_b64 exec, -1")
    P += stamp(16, 57)
    a("Lprep_done:")
    a(f"s_mov_b32 s{sWsrc}, {8 * WSET}")
    a("s_barrier")
    P += stamp(17, 58); a("s_branch LconvP")
    a("Lpro_w4:"); a("s_waitcnt vmcnt(0) lgkmcnt(0)"); P += stamp(16, 58); a("s_barrier")
    if cfg.WARM:
        enter(["Lbody2P", "Lhalf2", "Lbody0P", "Lhalf0"], 1); a("Ldry_B:")
        enter(["Lbody1P", "Lhalf1", "Lepi0P", "Lepi1P"], 2); a("Ldry_B2:")
    a(f"v_mov_b32 v18, {CBASE + 8}"); a(f"s_cmp_eq_u32 s{sJ}, 0"); a("s_cbranch_scc0 Lmode_wait")
    a(f"v_lshrrev_b32 v20, 2, v{vL16}"); a(f"s_mov_b32 s{sT}, {cfg.POLLS}"); a(f"s_mov_b32 s{sMode}, 2")
    P += stamp(17, 51)
    a("Lpoll_g:"); a("buffer_load_dword v19, v20, s[32:35], 0 offen sc1"); a("s_waitcnt vmcnt(0)")
    a("v_cmp_ne_u32 vcc, 0, v19"); a(f"s_bcnt1_i32_b64 s{sT+2}, vcc"); a(f"s_cmp_eq_u32 s{sT+2}, {NPROD}"); a("s_cbranch_scc1 Lpoll_ok")
    a(f"s_sub_u32 s{sT}, s{sT}, 1"); a(f"s_cmp_lg_u32 s{sT}, 0"); a("s_cbranch_scc1 Lpoll_g"); a("s_branch Lmode_set")
    a("Lpoll_ok:")
    P += stamp(17, 52)
    if cfg.STAMP: a(f"v_writelane_b32 v17, s{sT}, 53")
    for bit, want in ((2, 0), (4, 1), (8, 1)):
        a(f"v_and_b32 v21, {bit}, v19"); a("v_cmp_ne_u32 vcc, 0, v21"); a("s_cmp_lg_u64 vcc, 0"); a(f"s_cbranch_scc{1 - want} Lmode_set")
    a(f"s_mov_b32 s{sMode}, {cfg.FORCE or 1}")
    a("Lmode_set:"); a(f"v_mov_b32 v19, s{sMode}"); a("ds_write_b32 v18, v19")
    a("Lmode_wait:"); a("ds_read_b32 v19, v18"); a("s_waitcnt lgkmcnt(0)"); a(f"v_readfirstlane_b32 s{sMode}, v19")
    a(f"s_cmp_eq_u32 s{sMode}, 0"); a("s_cbranch_scc1 Lmode_wait")
    P += stamp(16, 59)
    a(f"s_cmp_eq_u32 s{sMode}, 1"); a("s_cbranch_scc1 Lmode_P")
    P += wparams("R", 1)
    a("Lmode_P:")
    for q in range(1, 4):
        for g in wdma_groups(f"{WBASE + q * WSET}"): P += g
    a("s_waitcnt vmcnt(6)"); a("s_barrier")
    assert D == 3
    P += bar_lines()
    for g in wdma_interval(): P += g
    a(f"s_lshl_b32 s{sXrow}, s{sJ}, 1"); a(f"s_add_u32 s{sXrow}, s{sXrow}, 12"); a(f"s_mov_b64 exec, s[{sEx48}:{sEx48+1}]")
    P += row_dma_lines(); a(f"s_add_u32 s{sXrow}, s{sXrow}, 1")
    P += row_dma_lines(); a(f"s_add_u32 s{sXrow}, s{sXrow}, 7")
    a("s_mov_b64 exec, -1")
    P += bar_lines("s_waitcnt vmcnt(18)")
    for g in wdma_interval(): P += g
    a(f"s_cmp_eq_u32 s{sMode}, 1"); a("s_cbranch_scc0 LouterR")
    return P

def build():
    D = cfg.D
    out = []
    hdr = ["; fused depthwise 5x5 + LayerNorm + MLP(GELU) + residual; generated by gen/gen.py",
           f"; @launch grid=(256,1,1) block=(512,1,1) lds={LDS_BYTES}",
           '.amdgcn_target "amdgcn-amd-amdhsa--gfx950"', ".text", f".globl {KNAME}", ".p2align 8", f".type {KNAME},@function", f"{KNAME}:"]
    out += hdr
    def raw(lines):
        for l in lines: out.append(l if l.endswith(":") or l.startswith(".") else "    " + l)
    raw(prologue())
    for m in "PR":
        MODE[0] = m
        epi0, epi1 = epilogue(False), epilogue(True)
        cs = cstage()
        bodies = [loop_body(0), loop_body(1), loop_body(2)]
        marks = [LABEL(n) for n in ("@c", "@a1", "@a2", "@b2", "@e0", "@x", "@e1", "@end")]
        lin = [marks[0]] + cs + [marks[1]] + bodies[0] + [marks[2]] + bodies[0] + [marks[3]] + bodies[1] + [marks[4]] + epi0 + [marks[5]] + bodies[2] + [marks[6]] + epi1 + [marks[7]]
        lin, pend = insert_lgkm(lin, cfg.OLD); assert not pend
        lin, _ = fix_hazards(lin)
        idx = [next(k for k, i in enumerate(lin) if i is m) for m in marks]
        cst, a1, a2, b2, e0, n2, e1 = (lin[idx[k] + 1: idx[k + 1]] for k in range(7))
        n1 = sum(states(i) for i in a1 if i.kind == "nop") - sum(states(i) for i in a2 if i.kind == "nop")
        assert [i.text for i in a1 if i.kind != "nop"] == [i.text for i in a2 if i.kind != "nop"]
        if n1 > 0: cst = cst + [Ins(f"s_nop {n1 - 1}", "nop")]
        for path in ([cst, n2, a2, a2, e0, cst, a2, e1], [cst, b2, b2, e0, cst, n2, n2, e1]):
            seq = [i for blk in path for i in blk]
            _, bad = fix_hazards(seq, check_only=True); assert not bad, bad
            assert not check_lgkm(seq)
        def emit(blk):
            for i in blk:
                if i.kind == "touch": continue
                for l in i.text.split("\n"): out.append(l if i.kind in ("label", "opaque", "dsw_op") or l.startswith("    ") or l.endswith(":") else "    " + l)
        out.append(f"Louter{m}:")
        raw(bar_lines())
        raw([f"s_cmp_eq_u32 s{sGrp}, 0", f"s_cbranch_scc0 Lno_w{m}"] + [l for g in wdma_interval() for l in g] + [f"Lno_w{m}:"])
        raw([f"s_cmp_eq_u32 s{sP}, 0", f"s_cbranch_scc1 Lconv{m}"])
        out.append(f"Lepi0{m}:")
        emit(e0)
        raw(dry_exit())
        out.append(f"Lconv{m}:")
        emit(cst)
        raw(dry_exit())
        raw([f"s_mov_b32 s{sCnt}, 6", f"s_cmp_eq_u32 s{sGrp}, 0", f"s_cbranch_scc0 LselB{m}",
             f"s_cmp_lg_u32 s{sFirst}, 0", f"s_cselect_b32 s{sCnt}, 2, 6", f"s_cbranch_scc1 LloopN{m}"])
        tail = [f"s_add_u32 s{sWin}, s{sWin}, 4", f"s_cmp_ge_u32 s{sWin}, {NR}", f"s_cselect_b32 s{sWin}, 0, s{sWin}",
                f"s_add_u32 s{sP}, s{sP}, 1", f"s_cmp_eq_u32 s{sP}, 1", f"s_cbranch_scc1 Louter{m}"]
        raw([".p2align 6", f"LloopA{m}:"]); emit(a2)
        raw([f"s_sub_u32 s{sCnt}, s{sCnt}, 1", f"s_cmp_lg_u32 s{sCnt}, 0", f"s_cbranch_scc1 LloopA{m}"] + dry_exit() + tail)
        raw(bar_lines())
        if D > 1: raw([l for g in wdma_interval() for l in g])
        emit(e1)
        raw(stamp(16, 62))
        for i in range(16, D + 16):
            raw(bar_lines("s_waitcnt vmcnt(12)" if i == 16 else "s_waitcnt vmcnt(0)"))
            if i < D + 15: raw([l for g in wdma_interval() for l in g])
        raw(["s_branch Lfin"])
        raw([f"LselB{m}:", f"s_cmp_eq_u32 s{sP}, 0", f"s_cbranch_scc0 LloopN{m}"])
        raw([".p2align 6", f"LloopB{m}:"]); emit(b2)
        raw([f"s_sub_u32 s{sCnt}, s{sCnt}, 1", f"s_cmp_lg_u32 s{sCnt}, 0", f"s_cbranch_scc1 LloopB{m}"] + dry_exit() + tail[:4] + [f"s_branch Louter{m}"])
        raw([".p2align 6", f"LloopN{m}:"]); emit(n2)
        raw([f"s_sub_u32 s{sCnt}, s{sCnt}, 1", f"s_cmp_lg_u32 s{sCnt}, 0", f"s_cbranch_scc1 LloopN{m}"] + dry_exit() + [
             f"s_cmp_lg_u32 s{sFirst}, 0", f"s_mov_b32 s{sFirst}, 0", f"s_mov_b32 s{sCnt}, 4", f"s_cbranch_scc1 LloopA{m}"])
        out.append(f"Lepi1{m}:")
        emit(e1)
        raw(dry_exit())
        raw(stamp(16, 62))
        raw(["s_branch Lfin"] if m == "P" else [])
        if m == "P": out.append("Lraw:")
    out.append("Lfin:")
    if cfg.STAMP:
        raw(["s_waitcnt vmcnt(0)"] + stamp(16, 63) + ["s_memrealtime s[98:99]", "s_waitcnt lgkmcnt(0)", "v_writelane_b32 v16, s98, 55",
             "s_load_dwordx2 s[94:95], s[0:1], 56", "s_waitcnt lgkmcnt(0)", "s_mov_b32 s28, s94", "s_and_b32 s29, s95, 0xffff", "s_mov_b32 s30, 0x1000000", "s_mov_b32 s31, 0x20000",
             f"s_lshl_b32 s89, s{sGrp}, 2", f"s_add_u32 s89, s89, s{sJ}", "s_lshl_b32 s90, s2, 3", "s_add_u32 s89, s89, s90", "s_lshl_b32 s89, s89, 9", "s_add_u32 s89, s89, 0x100000",
             f"v_lshrrev_b32 v18, 2, v{vL16}", "buffer_store_dword v16, v18, s[28:31], s89 offen", "buffer_store_dword v17, v18, s[28:31], s89 offen offset:256"])
    if cfg.DBG:
        raw(["s_waitcnt vmcnt(0)", "s_memtime s[90:91]", "s_memrealtime s[96:97]", "s_load_dwordx2 s[98:99], s[0:1], 48", "s_waitcnt lgkmcnt(0)",
             "s_sub_u32 s90, s90, s92", "s_sub_u32 s96, s96, s94", "s_mov_b32 s28, s98", "s_and_b32 s29, s99, 0xffff", "s_mov_b32 s30, 64", "s_mov_b32 s31, 0x20000",
             f"s_cmp_eq_u32 s{sGrp}, 1", "s_cbranch_scc0 Lend", f"s_cmp_eq_u32 s{sJ}, 0", "s_cbranch_scc0 Lend",
             "s_lshr_b32 s89, s2, 5", "s_lshl_b32 s89, s89, 3", "s_and_b32 s91, s2, 31", "s_cmp_eq_u32 s91, 0", "s_cbranch_scc0 Lend",
             "v_mov_b32 v16, s90", "v_mov_b32 v17, s96", "v_mov_b32 v18, 0", "s_mov_b64 exec, 1", "buffer_store_dwordx2 v[16:17], v18, s[28:31], s89 offen"])
    raw(["Lend:", "s_endpgm"])
    raw(["Lw1wait:", "s_barrier", f"ds_read_b32 v{T0+1}, v{T0} offset:8", "s_waitcnt lgkmcnt(0)", f"v_readfirstlane_b32 s{sMode}, v{T0+1}",
         f"s_cmp_eq_u32 s{sMode}, 1", "s_cbranch_scc1 Lw1wait_retP"] + wparams("R", 8) + ["s_branch Lw1wait_retR"])
    if cfg.ALIGN:
        tmp, npad, nwid = align8([l.replace("CODE_LAST", "0x1000") for l in out], "LouterP", "Lend")
        out = [l.replace("v38, 0x1000", "v38, CODE_LAST") for l in tmp]
        sys.stderr.write(f"align8: {npad} pads, {nwid} widened\n")
    nbytes = sum(insn_sizes([l.replace("CODE_LAST", "0x1000") for l in out])[:out.index("Lraw:")])
    out = [l.replace("CODE_LAST", str(nbytes // 64 * 64 - 128)) for l in out]
    assert nbytes <= 32768
    out += ['.section .rodata,"a"', ".p2align 6", f".amdhsa_kernel {KNAME}", "  .amdhsa_next_free_vgpr 256", f"  .amdhsa_next_free_sgpr {102 if cfg.STAMP or cfg.DBG else 96}",
            "  .amdhsa_accum_offset 256", "  .amdhsa_group_segment_fixed_size 0", "  .amdhsa_kernarg_size 64", "  .amdhsa_user_sgpr_count 2",
            "  .amdhsa_user_sgpr_kernarg_segment_ptr 1", "  .amdhsa_system_sgpr_workgroup_id_x 1", ".end_amdhsa_kernel"]
    return "\n".join(out) + "\n"

open(sys.argv[1], "w").write(build())
```

```python
import sys, struct, math
import numpy as np, re
from asmlib import *

class Cfg:
    D = 3
    GELU = "B"
    PRIO = 1
    CPRIO = 3
    XF = 'nt'
    OF = 'sc0+sc1'
    WF = 'sc1'
    ALIGN = True
    STAMP = False
    SMASK = -1
    OLD = 200
    MIDU = 33
    NBUF = 2
    RT = False
    NOINV = False
    FORCE = 0
    POLLS = 300
    S64 = True
    DBG = False
    WARM = True
    HW64 = True
    PBASE = 3
    ABL = ''
    CST = False
    PKS = 0
    PKN = True
    W1G = True
    R2 = False
    NOSTAT = False
    NOCRD = False
    N0 = 15
    WLATE = True
cfg = Cfg()
for a in sys.argv[2:]:
    k, v = a.split("=")
    setattr(cfg, k, type(getattr(cfg, k))(v) if not isinstance(getattr(cfg, k), bool) else v in ("1", "True"))

KNAME = "standalone__modern_conv_block_replknet__vision_kernel"
XS = 7104; NR = 12
TPAD = 0
TBASE = 48
TGRP = 784
IBASE = TBASE + 24 * TGRP
PBASE = IBASE + 2048
CBASE = PBASE + 8192
WBASE = CBASE + 16
WSET = 12288
XBASE = WBASE + 4 * WSET
LDS_BYTES = XBASE + NR * XS
assert LDS_BYTES <= 163840, LDS_BYTES
assert WBASE % 16 == 0 and IBASE % 16 == 0
vColB, vHwA, vRes, vHr, vTa, vSt, vW1b, vW2b, vW1c, vW2c, vDMA, vOffL, vOffR, vL16 = range(1, 15)
T0 = 18
G = 24
W2F = 32
W1F = 56
ACC1 = (80, 96)
H = 112
ACC2 = 160
def acc2(X, b): return ACC2 + 48 * X + 16 * b
cBuf = (56, 68, 80)
cAddr = 104
cTa, cIdx, cRes, cHw, cHr = 107, 108, 109, 110, 111
XF = [32, 36, 40, 44, 48, 52, 92, 96, 100, 80, 84, 88]
sX, sO, sW = 16, 20, 24
sGrp, sJ, sTx, sTy, sSig, sRing, sWsrc, sWstep, sWlim, sWins, sWbase, sP, sCnt = range(36, 49)
sA16, sK16, sStO = 49, 50, 51
sWin, sXrow, sFirst = 63, 64, 65
sXM, sXinc = 66, 67
sExX = 68
sAdjL = 70
sT = 71
sEx48 = 80
sInv96, sEps, sKap = 82, 83, 84
sDry = 56
sFrag, sMode, sThird = 62, 3, 60
sStO2, sTgt = 52, 53
sFres, sFh = 54, 55
sXo, sXm = 85, 86
sStInc = 87
s1k = 89
sJ3k = 88
RSUM = 2 * WBASE + 2 * WSET

def f32bits(x): return struct.unpack("<I", struct.pack("<f", x))[0]
def f16bits(x): return int(np.float16(x).view(np.uint16))
a_c = -2.0 * math.log2(math.e) * math.sqrt(2.0 / math.pi)
b_c = a_c * 0.044715
kap = -((-b_c) ** (1.0 / 3.0))
if cfg.GELU in ("B",):
    kap_use = float(np.float16(kap))
    A_imm = f16bits(a_c / kap_use) * 0x10001
    K_imm = f16bits(kap_use) * 0x10001
else:
    kap_use = kap
    A_imm = f32bits(a_c / kap)
    K_imm = f32bits(kap)

def fl(s): return ''.join(' ' + w for w in s.split('+') if w)
uid = [0]
MODE = ['P']
NPROD = 36
def lab(p):
    uid[0] += 1
    return f"L{p}_{uid[0]}"

def opaque(lines):
    return Ins("\n".join("    " + l if not l.endswith(":") else l for l in lines), "opaque", cost=0)

def stamp(vreg, lane):
    if not cfg.STAMP: return []
    return ["s_memtime s[90:91]", f"s_mov_b32 m0, {lane}", "s_waitcnt lgkmcnt(0)", f"v_writelane_b32 v{vreg}, s90, m0"]
def cstamp(vreg):
    if not cfg.STAMP: return []
    if cfg.RT:
        if vreg == 16: return []
        return stamp(17, f"s{sSig}") + [x.replace("s_memtime", "s_memrealtime") for x in stamp(16, f"s{sSig}")]
    if cfg.SMASK == -1: return stamp(vreg, f"s{sSig}")
    l = lab("s")
    return [f"s_bitcmp1_b64 s[96:97], s{sSig}", f"s_cbranch_scc0 {l}"] + stamp(vreg, f"s{sSig}") + [f"{l}:"]

def wdma_groups(dst):
    out = []
    for u in range(3):
        g = [f"s_add_u32 m0, {dst}, s{sJ3k}", f"s_add_u32 s{sT+8}, s{sWsrc}, s{sWbase}"] if u == 0 else \
            [f"s_add_u32 m0, m0, s{s1k}", f"s_add_u32 s{sT+8}, s{sT+8}, s{sWins}"]
        g.append(f"buffer_load_dwordx4 v{vDMA}, s[{sW}:{sW+3}], s{sT+8} offen{fl(cfg.WF)} lds")
        if u == 2: g += [f"s_add_u32 s{sWsrc}, s{sWsrc}, s{sWstep}", f"s_cmp_eq_u32 s{sWsrc}, s{sWlim}", f"s_cselect_b32 s{sWsrc}, 0, s{sWsrc}"]
        out.append(g)
    return out
def wdma_interval():
    g = wdma_groups(f"s{sT+7}") + wdma_groups(f"s{sT+7}")
    g[0] = [f"s_sub_u32 s{sT+7}, {RSUM}, s{sRing}"] + g[0]
    g[3] = [f"s_add_u32 s{sT+7}, s{sT+7}, {WSET}"] + g[3]
    return g

def row_setup():
    t0, t1, t2 = sT, sXo, sT + 1
    return [f"s_lshl_b32 s{t0}, s{sTy}, 5", f"s_add_u32 s{t0}, s{t0}, s{sXrow}", f"s_sub_u32 s{t0}, s{t0}, 2",
            f"s_mul_i32 s{t1}, s{t0}, 98304", f"s_mul_i32 s{t2}, s{sTx}, 6144", f"s_add_u32 s{t1}, s{t1}, s{t2}",
            f"s_cmp_lt_u32 s{t0}, 512", f"s_cselect_b32 s{t1}, s{t1}, 0x80000000",
            f"s_cmp_ge_u32 s{sXrow}, 24", f"s_cselect_b32 s{t2}, 24, 0", f"s_sub_u32 s{t0}, s{sXrow}, s{t2}",
            f"s_cmp_ge_u32 s{t0}, 12", f"s_cselect_b32 s{t2}, 12, 0", f"s_sub_u32 s{t0}, s{t0}, s{t2}",
            f"s_and_b32 s{t2}, s{sXrow}, 4", f"s_lshl_b32 s{t2}, s{t2}, 1", f"s_mul_i32 s{t0}, s{t0}, {XS}", f"s_add_u32 s{t0}, s{t0}, s{t2}",
            f"s_add_u32 s{sXm}, s{t0}, {XBASE}"]
def row_loads():
    out = [[f"s_mov_b32 m0, s{sXm}", f"s_sub_u32 s{sT}, s{sXo}, s{sAdjL}", f"buffer_load_dwordx4 v{vOffL}, s[{sX}:{sX+3}], s{sT} offen{fl(cfg.XF)} lds"]]
    for a in range(1, 9):
        out.append([f"s_add_u32 m0, s{sXm}, {784 * a}", f"s_add_u32 s{sT}, s{sXo}, {768 * a - 384}",
                    f"buffer_load_dwordx4 v{vOffR if a == 8 else vL16}, s[{sX}:{sX+3}], s{sT} offen{fl(cfg.XF)} lds"])
    return out
def row_dma_lines(): return row_setup() + [l for g in row_loads() for l in g]

def bar_lines(wait="s_waitcnt vmcnt(0)"):
    L = cstamp(16) + ([wait] if wait else []) + ["s_barrier"] + cstamp(17)
    L += [f"s_sub_u32 s{sRing}, {RSUM}, s{sRing}"]
    if cfg.STAMP: L += [f"s_add_u32 s{sSig}, s{sSig}, 1"]
    return L

def gelu_B(Sr):
    ops = []
    def st(p, k):
        a0 = Sr + 2 * p; a1 = a0 + 1; t = T0 + (p % 2) * 3; u = t + 1; w = t + 2
        return [V(f"v_cvt_pk_f16_f32 v{t}, v{a0}, v{a1}"),
                V(f"v_pk_fma_f16 v{u}, v{t}, v{t}, s{sA16}"),
                V(f"v_pk_mul_f16 v{t}, v{t}, v{u}"),
                V(f"v_exp_f16 v{u}, v{t}"),
                V(f"v_exp_f16_sdwa v{u}, v{t} dst_sel:WORD_1 dst_unused:UNUSED_PRESERVE src0_sel:WORD_1"),
                V(f"v_pk_fma_f16 v{t}, v{u}, s{sK16}, s{sK16}"),
                V(f"v_rcp_f16 v{u}, v{t}"),
                V(f"v_rcp_f16_sdwa v{w}, v{t} dst_sel:DWORD dst_unused:UNUSED_PAD src0_sel:WORD_1"),
                V(f"v_fma_mix_f32 v{u}, v{a0}, v{u}, 0 op_sel_hi:[0,1,0]"),
                V(f"v_fma_mix_f32 v{w}, v{a1}, v{w}, 0 op_sel_hi:[0,1,0]"),
                V(f"v_cvt_pk_bf16_f32 v{G+p}, v{u}, v{w}")][k]
    for q in range(0, 8, 2):
        for k in range(11):
            ops += [st(q, k), st(q + 1, k)]
    return ops

def gelu_A(Sr):
    ops = []
    for q in range(0, 16, 4):
        for k in range(6):
            for e in range(4):
                a = Sr + q + e; r = T0 + e
                ops.append([V(f"v_fma_f32 v{r}, v{a}, v{a}, s{sA16}"), V(f"v_mul_f32 v{r}, v{a}, v{r}"), V(f"v_exp_f32 v{r}, v{r}"),
                            V(f"v_fma_f32 v{r}, v{r}, s{sK16}, s{sK16}"), V(f"v_rcp_f32 v{r}, v{r}"), V(f"v_mul_f32 v{r}, v{a}, v{r}")][k])
        ops += [V(f"v_cvt_pk_bf16_f32 v{G+q//2}, v{T0}, v{T0+1}"), V(f"v_cvt_pk_bf16_f32 v{G+q//2+1}, v{T0+2}, v{T0+3}")]
    return ops
def gelu_C(Sr):
    ops = []
    def st(p, k):
        a0 = Sr + 2 * p; a1 = a0 + 1; t = T0 + (p % 2) * 3; u = t + 1; w = t + 2
        return [V(f"v_cvt_pk_f16_f32 v{w}, v{a0}, v{a1}"),
                V(f"v_pk_fma_f16 v{u}, v{w}, v{w}, s{sA16}"),
                V(f"v_pk_mul_f16 v{t}, v{w}, v{u}"),
                V(f"v_exp_f16 v{u}, v{t}"),
                V(f"v_exp_f16_sdwa v{u}, v{t} dst_sel:WORD_1 dst_unused:UNUSED_PRESERVE src0_sel:WORD_1"),
                V(f"v_pk_fma_f16 v{t}, v{u}, s{sK16}, s{sK16}"),
                V(f"v_rcp_f16 v{u}, v{t}"),
                V(f"v_rcp_f16_sdwa v{u}, v{t} dst_sel:WORD_1 dst_unused:UNUSED_PRESERVE src0_sel:WORD_1"),
                V(f"v_pk_mul_f16 v{G+p}, v{w}, v{u}")][k]
    for q in range(0, 8, 2):
        for k in range(9):
            ops += [st(q, k), st(q + 1, k)]
    return ops
def gelu(Sr): return gelu_C(Sr) if MODE[0] == "P" else gelu_B(Sr)

TR = "ds_read_b64_tr_b16"
def rd_w1(j, c):
    if MODE[0] == "P": return [DSR("ds_read_b128", W1F + 4 * j, 4, vW1c, f"offset:{WSET * c + 1024 * j}")]
    return [DSR(TR, W1F + 4 * j + 2 * r, 2, vW1c, f"offset:{WSET * c + 1024 * j + 256 * r}") for r in range(2)]
def rd_w2(sp, b, c):
    if MODE[0] == "P": return [DSR("ds_read_b128", W2F + 12 * sp + 4 * b, 4, vW1c, f"offset:{WSET * c + 6144 + 1024 * (3 * sp + b)}")]
    return [DSR(TR, W2F + 12 * sp + 4 * b + 2 * r, 2, vW2c, f"offset:{WSET * c + 6144 + (16 * sp + 8 * r) * 192 + 64 * b}") for r in range(2)]
def g1(X, j):
    return MFMA("32x32x16", ACC1[X], W1F + 4 * j, H + 8 * j + 4 * X, None if j == 0 else ACC1[X])
def g2(X, sp, b):
    return (MFMA16 if MODE[0] == "P" else MFMA)("32x32x16", acc2(X, b), W2F + 12 * sp + 4 * b, G + 4 * sp, acc2(X, b))
def w_addr():
    if MODE[0] == "P": return [V(f"v_add_u32 v{vW1c}, s{sRing}, v{vL16}")]
    return [V(f"v_add_u32 v{vW1c}, s{sRing}, v{vW1b}"), V(f"v_add_u32 v{vW2c}, s{sRing}, v{vW2b}")]

def step(X, c, extra):
    Y = 1 - X
    ld = (X == 0)
    att = [[g2(Y, 1, 0)] + (rd_w2(1, 0, c) if ld else []),
           [g1(Y, 0)] + (rd_w2(0, 0, c) + rd_w1(0, c) if ld else []),
           [g2(Y, 1, 1)] + (rd_w2(0, 1, c) + rd_w2(1, 1, c) if ld else []),
           [g1(Y, 1)] + (rd_w2(0, 2, c) + rd_w1(1, c) if ld else []),
           [g2(Y, 1, 2)] + (rd_w2(1, 2, c) if ld else []),
           [g1(Y, 2)] + (rd_w1(2, c) if ld else []),
           [g1(Y, 3)] + (rd_w1(3, c) if ld else []),
           [g2(X, 0, 0)],
           [g1(Y, 4)] + (rd_w1(4, c) if ld else []),
           [g2(X, 0, 1)],
           [g1(Y, 5)] + (rd_w1(5, c) if ld else []),
           [g2(X, 0, 2)]]
    for k, v in extra.items(): att[k] = att[k] + v
    ops = gelu(ACC1[X])
    return ops[:2] + interleave(ops[2:], att)

def loop_body(grp):
    bl = bar_lines()
    k = bl.index("s_waitcnt vmcnt(0)")
    L = [opaque(bl[:k + 1] + [f"Lnowait{grp}{MODE[0]}:"] + bl[k + 1:] + [f"Lbody{grp}{MODE[0]}:"])]
    L += w_addr()
    ex = [{}, {}, {}, {}]
    if grp == 0:
        for k, g in enumerate(wdma_interval()):
            ex[k // 3 if k < 3 else 1][(7, 9, 11)[k] if k < 3 else (1, 3, 5)[k - 3]] = [opaque(g)]
    elif grp == 1:
        rl = row_loads()
        for r in range(2):
            for k in range(3):
                blk = (row_setup() if k == 0 else []) + [f"s_mov_b64 exec, s[{sEx48}:{sEx48+1}]"] + rl[3 * k] + rl[3 * k + 1] + rl[3 * k + 2] + ["s_mov_b64 exec, -1"]
                if k == 2: blk += [f"s_add_u32 s{sXrow}, s{sXrow}, {7 if r else 1}"]
                st, sl = ((0, 3), (0, 9), (1, 3), (1, 9), (2, 3), (2, 9))[3 * r + k]
                ex[st][sl] = [opaque(blk)]
    for k in range(4):
        if k == 2: L += dry_point(f"Lhalf{grp}")
        if cfg.PRIO: L.append(S(f"s_setprio {max(cfg.PBASE - k, 0)}"))
        L += step(k & 1, k >> 1, ex[k])
    return L

def SM32(d, a, b, idx):
    ab = list(R(a, 4)) + list(R(b, 8)) + [idx]
    return Ins(f"v_smfmac_f32_32x32x32_bf16 {vr(d,16)}, {vr(a,4)}, {vr(b,8)}, v{idx}", "mfma",
               ab + list(R(d, 16)), R(d, 16), cost=12, passes=8, srcc=R(d, 16), srcab=ab)

def unit_reads(u):
    q, rho = divmod(u, 6); buf = cBuf[u % cfg.NBUF]
    o = 196 * (q % 2) + 8 * rho
    L = []
    if rho == 0 and q and q % 2 == 0: L.append(V(f"v_add_u32 v{cTa}, {2 * TGRP}, v{cTa}"))
    L += [DSR("ds_read2_b32", buf + 8, 2, cTa, f"offset0:{o} offset1:{o+1}"), DSR("ds_read2_b32", buf + 10, 2, cTa, f"offset0:{o+2} offset1:{o+3}")]
    for k, c in enumerate((0, 192, 784, 976)):
        L.append(DSR("ds_read_b64", buf + 2 * k, 2, cAddr + rho // 2, f"offset:{XS * (rho & 1) + c + 8 * q}"))
    return L

def store(X, t):
    d = H + 24 * X + 4 * t
    return VMEM(f"buffer_store_dwordx4 {vr(d,4)}, v{vSt}, s[{sO}:{sO+3}], s{sStO2 if X else sStO} offen offset:{64 * (t >> 1) + 3072 * (t & 1) if cfg.S64 else 32 * t}{fl(cfg.OF)}", rd=[vSt] + list(R(d, 4)), store=True)

def res_reads(k):
    X, s = divmod(k, 6)
    return [DSR("ds_read_b64", XF[k] + 2 * r, 2, cRes, f"offset:{XS * X + 32 * s + 8 * r}") for r in range(2)]

def pk(op, d, *src, mods=""):
    return V(f"v_pk_{op}_f32 v[{d}:{d+1}], " + ", ".join(f"v[{x}:{x+1}]" for x in src) + mods)

def signal():
    t = T0
    return [Ins(f"    s_mov_b64 exec, 1\n    ds_add_u32 v{t}, v{t+5}\n    s_mov_b64 exec, -1\n    s_add_u32 s{sTgt}, s{sTgt}, 4", "dsw_op", [t, t + 5], [])]
def poll():
    t = T0; l = lab("p")
    return [Ins(f"{l}:\n    ds_read_b32 v{t+1}, v{t}\n    s_waitcnt lgkmcnt(0)\n    v_readfirstlane_b32 s{sT+3}, v{t+1}\n"
                f"    s_cmp_ge_u32 s{sT+3}, s{sTgt}\n    s_cbranch_scc0 {l}", "waitall", [t], [t + 1])]

def cstage_setup():
    t = sT
    L = []
    for dst, add in ((sFh, 0), (sFres, 2)):
        L += [f"s_lshl_b32 s{t}, s{sJ}, 1", f"s_add_u32 s{t}, s{t}, s{sWin}", f"s_add_u32 s{t}, s{t}, {add}",
              f"s_cmp_ge_u32 s{t}, {NR}", f"s_cselect_b32 s{t+1}, {NR}, 0", f"s_sub_u32 s{t}, s{t}, s{t+1}", f"s_mul_i32 s{dst}, s{t}, {XS}"]
    L += [f"s_add_u32 s{t}, s{sJ}, 1", f"s_and_b32 s{t}, s{t}, 2", f"s_lshl_b32 s{t}, s{t}, 2", f"s_add_u32 s{sFres}, s{sFres}, s{t}"]
    return L

def dry_exit(): return [f"s_cmp_lg_u32 s{sDry}, 0", "s_cbranch_scc1 Ldry_ret"] if cfg.WARM and MODE[0] == "P" else []
def dry_point(name): return [opaque(dry_exit() + [name + ":"])] if cfg.WARM and MODE[0] == "P" else []

def cs(k):
    if not (cfg.STAMP and cfg.CST): return []
    return [Ins("\n".join("    " + l for l in [f"s_lshl_b32 s95, s{sP}, 3", f"s_add_u32 s95, s95, {30 + k}"] + stamp(17, "s95")), "waitall")]

def csetup():
    L = [S(x) for x in cstage_setup()]
    L += [S(f"s_mov_b32 s{sT}, {XS}")]
    t0, t1, t2 = T0, T0 + 1, T0 + 4
    L += [V(f"v_bfe_u32 v{t2}, v{vL16}, 7, 2"), V(f"v_lshlrev_b32 v{t2}, 1, v{t2}"), V(f"v_mov_b32 v{T0+2}, 0"), V(f"v_mov_b32 v{T0+3}, 0")]
    for k in range(3):
        if k: L += [V(f"v_add_u32 v{t2}, 2, v{t2}")]
        L += [V(f"v_add_u32 v{t0}, s{sWin}, v{t2}"), V(f"v_subrev_u32 v{t1}, {NR}, v{t0}"), V(f"v_min_u32 v{t0}, v{t0}, v{t1}"),
              V(f"v_mad_u32_u24 v{t0}, v{t0}, s{sT}, v{vColB}"), V(f"v_and_b32 v{t1}, 4, v{t2}"), V(f"v_lshl_add_u32 v{cAddr+k}, v{t1}, 1, v{t0}")]
    L += [V(f"v_mov_b32 v{cTa}, v{vTa}"), V(f"v_bfe_u32 v{cIdx}, v{vL16}, 4, 2"), V(f"v_mul_u32_u24 v{cIdx}, 0x5555, v{cIdx}")]
    L += [V(f"v_add_u32 v{cRes}, s{sFres}, v{vRes}"), V(f"v_add_u32 v{cHw}, v{cAddr}, v{vHwA}"), V(f"v_add_u32 v{cHr}, s{sFh}, v{vHr}")]
    L += [S(f"s_lshl_b32 s{sT}, s{sJ}, 11"), V(f"v_add_u32 v{T0+4}, s{sT}, v{vL16}"),
          S(f"s_lshl_b32 s{sT}, s{sGrp}, 2"), S(f"s_add_u32 s{sT}, s{sT}, {CBASE}"), V(f"v_mov_b32 v{T0}, s{sT}"), V(f"v_mov_b32 v{T0+5}, 1")]
    return L

def out_cvt(q):
    X, b = divmod(q, 3); a = acc2(X, b); d = H + 24 * X + 8 * b
    return [V(f"v_cvt_pk_bf16_f32 v{d+i}, v{a+2*i}, v{a+2*i+1}") for i in range(8)]
def out_fin(q):
    X, b = divmod(q, 3); d = H + 24 * X + 8 * b
    return [V(f"v_permlane16_swap_b32 v{d+i}, v{d+4+i}") for i in range(4)] + [store(X, 2 * b), store(X, 2 * b + 1)]

def cstage():
    NB = cfg.NBUF
    ST, QT = G, G + 4
    L = [COMMENT("previous tile out, convolution")]
    if cfg.CPRIO: L.append(S(f"s_setprio {cfg.CPRIO}"))
    def zero(q): return MFMA("32x32x8", ACC2 + 16 * q, T0 + 2, T0 + 2, None)
    def stat(q):
        o = []
        for e in range(4):
            for u in range(4):
                y = ACC2 + 16 * q + 4 * u + e
                if q == 0 and e == 0: o += [V(f"v_mul_f32 v{QT+u}, v{y}, v{y}")]
                elif q == 0 and e == 1: o += [V(f"v_add_f32 v{ST+u}, v{y-1}, v{y}"), V(f"v_fmac_f32 v{QT+u}, v{y}, v{y}")]
                else: o += [V(f"v_add_f32 v{ST+u}, v{ST+u}, v{y}"), V(f"v_fmac_f32 v{QT+u}, v{y}, v{y}")]
        return o
    L += cs(0) + unit_reads(0) + unit_reads(1)
    c0 = out_cvt(0)
    L += [g2(1, 1, 0)] + c0[:4] + [g2(1, 1, 1)] + c0[4:] + [g2(1, 1, 2), zero(0)]
    nst = 0
    for u in range(36):
        q, rho = divmod(u, 6); buf = cBuf[u % NB]
        if u == 14: L += dry_point("Ldry1")
        if u == 28: L += dry_point("Ldry2")
        if u == cfg.MIDU:
            lm = lab("m")
            L.append(opaque([f"s_or_b32 s{sT}, s{sFirst}, s{sDry}", f"s_cbranch_scc1 {lm}"] + bar_lines(f"s_waitcnt vmcnt({nst})") +
                            [f"s_cmp_eq_u32 s{sGrp}, 0", f"s_cbranch_scc0 {lm}"] + [l for gg in wdma_interval() for l in gg] + [f"{lm}:"]))
        nxt = unit_reads(u + 2) if u + 2 < 36 else res_reads(3 * (u - 34)) + res_reads(3 * (u - 34) + 1) + res_reads(3 * (u - 34) + 2)
        early = 3 if NB == 3 else 0
        if nxt[0].kind == "valu": early += 1
        L += nxt[:early] + [SM32(ACC2 + 16 * q, buf + 8, buf, cIdx)] + nxt[early:]
        st = stat(q - 1) if q else []
        fill = {0: out_fin(q), 1: st[:8], 2: (out_cvt(q + 1) if q < 5 else []), 3: st[8:16] + ([zero(q + 1)] if q < 5 else []), 4: st[16:24], 5: st[24:]}[rho]
        nst += sum(i.kind == "vstore" for i in fill)
        L += fill
    for k in range(6, 12): L += res_reads(k)
    L += [S(f"s_add_u32 s{sStO}, s{sStO}, s{sStInc}"), S(f"s_add_u32 s{sStO2}, s{sStO}, 98304"), S(f"s_mov_b32 s{sO+2}, 50331648"), S(f"s_mov_b32 s{sStInc}, {16 * 98304}")]
    L += cs(1) + stat(5)
    L += [DSW("ds_write_b128", T0 + 4, ST, 4, f"offset:{PBASE}"), DSW("ds_write_b128", T0 + 4, QT, 4, f"offset:{PBASE + 1024}")]
    L.append(Ins("", "touch", [r for x in XF for r in R(x, 4)], [], cost=0))
    L += cs(2) + signal() + poll()
    L += cs(3)
    L += [COMMENT("LayerNorm, exchange of the normalised tile, residual into the accumulators, first GEMM1")]
    dst = {(0, 0): ST, (0, 1): QT, (1, 0): 56, (1, 1): 60, (2, 0): 64, (2, 1): 68, (3, 0): 72, (3, 1): 76}
    for w in range(4):
        for k in range(2): L.append(DSR("ds_read_b128", dst[(w, k)], 4, vL16, f"offset:{PBASE + 2048 * w + 1024 * k}"))
    for k in range(2):
        for u in range(4): L += [V(f"v_add_f32 v{dst[(0,k)]+u}, v{dst[(0,k)]+u}, v{dst[(1,k)]+u}")]
        for u in range(4): L += [V(f"v_add_f32 v{dst[(2,k)]+u}, v{dst[(2,k)]+u}, v{dst[(3,k)]+u}")]
        for u in range(4): L += [V(f"v_add_f32 v{dst[(0,k)]+u}, v{dst[(0,k)]+u}, v{dst[(2,k)]+u}")]
    MN, SQ, SC, SH = 56, 60, 64, 68
    for u in range(4): L += [V(f"v_mul_f32 v{MN+u}, s{sInv96}, v{ST+u}")]
    for u in range(4): L += [V(f"v_mul_f32 v{SQ+u}, v{MN+u}, v{MN+u}")]
    for u in range(4): L += [V(f"v_fma_f32 v{SQ+u}, v{QT+u}, s{sInv96}, -v{SQ+u}")]
    L += [DSR("ds_read_b128", G, 4, vL16, f"offset:{IBASE}"), DSR("ds_read_b128", G + 4, 4, vL16, f"offset:{IBASE + 1024}")]
    for u in range(4): L += [V(f"v_max_f32 v{SQ+u}, 0, v{SQ+u}")]
    for u in range(4): L += [V(f"v_add_f32 v{SQ+u}, s{sEps}, v{SQ+u}")]
    for u in range(4): L += [V(f"v_rsq_f32 v{SQ+u}, v{SQ+u}")]
    for u in range(4): L += [V(f"v_mul_f32 v{SC+u}, s{sKap}, v{SQ+u}")]
    for u in range(4): L += [V(f"v_mul_f32 v{SH+u}, -v{MN+u}, v{SC+u}")]
    L += dry_point("Ldry3")
    if cfg.PKN:
        for q in range(6):
            for u in range(4):
                for e in (0, 2):
                    y = ACC2 + 16 * q + 4 * u + e; o = u & 1
                    L.append(pk("fma", y, y, SC + (u & 2), SH + (u & 2), mods=f" op_sel:[0,{o},{o}] op_sel_hi:[1,{o},{o}]"))
    L += cs(4)
    first_w1 = opaque([f"s_cmp_lg_u32 s{sFirst}, 0", "s_cbranch_scc1 Lw1wait", f"Lw1wait_ret{MODE[0]}:"] + [w_addr()[0].text])
    def ident(q):
        X, b = divmod(q, 3)
        return [MFMA("32x32x16", acc2(X, b), G, XF[6 * X + 2 * b], None), MFMA("32x32x16", acc2(X, b), G + 4, XF[6 * X + 2 * b + 1], acc2(X, b))]
    def cvt(q):
        o = []
        for u in range(4):
            y = ACC2 + 16 * q + 4 * u
            if not cfg.PKN: o += [V(f"v_fma_f32 v{y+e}, v{y+e}, v{SC+u}, v{SH+u}") for e in range(4)]
            o += [V(f"v_cvt_pk_bf16_f32 v{H+12*u+2*q+h}, v{y+2*h}, v{y+2*h+1}") for h in range(2)]
            o += [DSW("ds_write_b64", cHw, H + 12 * u + 2 * q, 2, f"offset:{192 * u + 8 * q}")]
        return o
    for q in range(6):
        c = cvt(q)
        if q >= 1:
            i0, i1 = ident(q - 1); n = len(c)
            c = c[:1] + [i0] + c[1:n // 2] + [i1] + c[n // 2:]
        L += c
    L += cs(5) + signal()
    L += ident(5)
    L.append(first_w1)
    for j in range(6): L += rd_w1(j, 1)
    L += [V(f"v_mov_b32 v{G+4+i}, 0") for i in range(4)]
    L += poll()
    L += cs(6)
    L += [DSR("ds_read_b128", H + 8 * s + 4 * X, 4, cHr, f"offset:{XS * X + 32 * s}") for X in range(2) for s in range(6)]
    L += [g1(0, j) for j in range(6)]
    L.append(Ins("s_waitcnt lgkmcnt(0)", "waitall"))
    L += cs(7)
    if cfg.CPRIO: L.append(S("s_setprio 0"))
    ab = cfg.ABL.split("+")
    if "hw" in ab: L = [i for i in L if not (i.kind == "dsw" and cHw in i.rd)]
    if "pk" in ab: L = [i for i in L if i.kind != "pk32"]
    if "brd" in ab: L = [i for i in L if not (i.text.startswith("ds_read_b64") and i.rd & set(R(cAddr, 3)))]
    if "sm" in ab: L = [i for i in L if "smfmac" not in i.text]
    if "st" in ab: L = [i for i in L if i.kind != "vstore"]
    if "unpk" in ab:
        out = []
        for i in L:
            if i.kind != "pk32": out.append(i); continue
            m = re.match(r"v_pk_(\w+)_f32 (.*?)( op_sel.*)?$", i.text); regs = [int(x) for x in re.findall(r"v\[(\d+):", m.group(2))]
            o = 1 if m.group(3) and "op_sel:[0,1" in m.group(3) else 0
            for h in range(2):
                r = [regs[0] + h, regs[1] + h] + [(x + o if m.group(3) else x + h) for x in regs[2:]]
                out.append(V(f"v_{m.group(1)}_f32 " + ", ".join(f"v{x}" for x in r)))
        L = out
    return L

def epilogue(with_stores):
    L = [COMMENT("epilogue: last GEMM2 k-step, convert")]
    att = [[g2(1, 1, b)] for b in range(3)]
    def cv(X, t):
        a = acc2(X, t >> 1) + 8 * (t & 1); d = H + 24 * X + 4 * t
        return [V(f"v_cvt_pk_bf16_f32 v{d+i}, v{a+2*i}, v{a+2*i+1}") for i in range(4)]
    def fin(X, u):
        d = H + 24 * X + 8 * u
        o = [V(f"v_permlane16_swap_b32 v{d+i}, v{d+4+i}") for i in range(4)] if cfg.S64 else []
        return o + ([store(X, 2 * u), store(X, 2 * u + 1)] if with_stores else [])
    seq = [(X, u) for X in range(2) for u in range(3)]
    body = []
    for k, (X, u) in enumerate(seq):
        body.append(cv(X, 2 * u) + cv(X, 2 * u + 1) + (fin(*seq[k - 1]) if k else []))
    first = body[0] + body[1] + body[2]
    L += first[:2] + interleave(first[2:], att, 0.0, 0.5)
    L += body[3] + body[4] + body[5] + fin(*seq[5])
    return L

def wparams(mode, first):
    P = []; a = P.append
    if mode == "P":
        a(f"s_mov_b32 s{sW}, s6"); a(f"s_and_b32 s{sW+1}, s7, 0xffff"); a(f"s_mov_b32 s{sW+2}, {12 * WSET}"); a(f"s_mov_b32 s{sW+3}, 0x20000")
        a(f"s_mov_b32 s{sWstep}, {WSET}"); a(f"s_mov_b32 s{sWlim}, {12 * WSET}"); a(f"s_mov_b32 s{sWins}, 1024"); a(f"s_mov_b32 s{sWbase}, s{sJ3k}")
        a(f"s_mov_b32 s{sWsrc}, {first * WSET}"); a(f"v_mov_b32 v{vDMA}, v{vL16}")
        return P
    a(f"s_cmp_lt_u32 s{sJ}, 2"); a(f"s_cselect_b32 s{sW}, s10, s12"); a(f"s_cselect_b32 s{sW+1}, s11, s13")
    a(f"s_cselect_b32 s{sWstep}, 64, 6144"); a(f"s_mov_b32 s{sWins}, 1024")
    a(f"s_cselect_b32 s{sWins}, 12288, s{sWins}"); a(f"s_cselect_b32 s{sWsrc}, {first + 1}, {first}"); a(f"s_mul_i32 s{sWsrc}, s{sWsrc}, s{sWstep}"); a(f"s_mul_i32 s{sWlim}, s{sWstep}, 12")
    a(f"s_and_b32 s{sW+1}, s{sW+1}, 0xffff"); a(f"s_mov_b32 s{sW+2}, 73728"); a(f"s_mov_b32 s{sW+3}, 0x20000")
    a(f"s_and_b32 s{sT+3}, s{sJ}, 1"); a(f"s_mul_i32 s{sT+3}, s{sT+3}, 3"); a(f"s_mul_i32 s{sWbase}, s{sT+3}, s{sWins}")
    a(f"v_lshrrev_b32 v20, 6, v{vL16}"); a("v_mul_u32_u24 v20, 768, v20"); a(f"v_and_b32 v21, 48, v{vL16}"); a("v_add_u32 v20, v20, v21")
    a(f"s_cmp_lt_u32 s{sJ}, 2"); a("s_cselect_b64 vcc, -1, 0"); a(f"v_cndmask_b32 v{vDMA}, v{vL16}, v20, vcc")
    return P

def prologue():
    P = []
    a = P.append
    a(f"s_cmp_ge_u32 s2, 256"); a("s_cbranch_scc1 Lend")
    if cfg.STAMP: a("s_memtime s[92:93]"); a("s_load_dwordx2 s[94:95], s[0:1], 56")
    if cfg.DBG: a("s_memtime s[92:93]"); a("s_memrealtime s[94:95]")
    a("s_load_dwordx8 s[4:11], s[0:1], 0"); a("s_load_dwordx4 s[12:15], s[0:1], 32"); a("s_load_dwordx4 s[56:59], s[0:1], 48")
    a("v_lshrrev_b32 v16, 6, v0"); a("v_and_b32 v17, 63, v0")
    a(f"v_readfirstlane_b32 s{sT}, v16")
    if cfg.WARM:
        a("s_getpc_b64 s[60:61]"); a("v_lshlrev_b32 v38, 6, v0"); a("v_min_u32 v38, CODE_LAST, v38")
        a("global_load_dword v39, v38, s[60:61]")
    a(f"s_and_b32 s{sT+1}, s2, 7"); a(f"s_lshl_b32 s{sT+1}, s{sT+1}, 5"); a(f"s_lshr_b32 s{sT+2}, s2, 3"); a(f"s_add_u32 s{sT+1}, s{sT+1}, s{sT+2}")
    a(f"s_lshr_b32 s{sTy}, s{sT+1}, 4"); a(f"s_and_b32 s{sTx}, s{sT+1}, 15")
    a(f"s_lshr_b32 s{sGrp}, s{sT}, 2"); a(f"s_and_b32 s{sJ}, s{sT}, 3"); a(f"s_mov_b32 s{sXrow}, s{sT}")
    a(f"s_mul_i32 s{sJ3k}, s{sJ}, 3072"); a(f"s_movk_i32 s{s1k}, 1024")
    a(f"s_mov_b32 s{sEx48}, -1"); a(f"s_mov_b32 s{sEx48+1}, 0xffff")
    a(f"v_lshlrev_b32 v{vL16}, 4, v17")
    a(f"s_cmp_eq_u32 s{sTx}, 0"); a(f"s_cselect_b32 s{sAdjL}, 0, 384"); a(f"s_cselect_b32 s{sT+3}, 384, 0"); a(f"s_cselect_b32 s{sT+4}, 24, 0")
    a(f"v_subrev_u32 v{vOffL}, s{sT+3}, v{vL16}"); a(f"v_cmp_le_u32 vcc, s{sT+4}, v17"); a("s_nop 1")
    a(f"v_cndmask_b32 v{vOffL}, 2.0, v{vOffL}, vcc")
    a(f"s_cmp_eq_u32 s{sTx}, 15"); a(f"s_cselect_b32 s{sT+4}, 24, 64"); a(f"v_cmp_gt_u32 vcc, s{sT+4}, v17"); a("s_nop 1")
    a(f"v_cndmask_b32 v{vOffR}, 2.0, v{vL16}, vcc")
    a("v_mul_u32_u24 v18, 683, v0"); a("v_lshrrev_b32 v18, 16, v18")
    a("v_mul_u32_u24 v19, 96, v18"); a("v_sub_u32 v19, v0, v19")
    a("v_mul_u32_u24 v20, 960, v18"); a("v_lshl_add_u32 v20, v19, 1, v20")
    a("v_lshlrev_b32 v21, 1, v19")
    P += row_setup()
    a("s_waitcnt lgkmcnt(0)")
    if cfg.STAMP: a("s_memtime s[96:97]"); a("s_memrealtime s[98:99]"); a("s_waitcnt lgkmcnt(0)")
    for (d, p, n) in ((sX, 4, 50331648), (28, 8, 4800), (32, 6, 192), (sO, 14, 0)):
        a(f"s_mov_b32 s{d}, s{p}"); a(f"s_and_b32 s{d+1}, s{p+1}, 0xffff"); a(f"s_mov_b32 s{d+2}, {n}"); a(f"s_mov_b32 s{d+3}, 0x20000")
    for j in range(5): a(f"buffer_load_ushort v{24+j}, v20, s[28:31], 0 offen offset:{192*j}")
    a("buffer_load_ushort v29, v21, s[32:35], 0 offen")
    a("s_mov_b64 s[4:5], s[56:57]"); a("s_mov_b64 s[6:7], s[58:59]")
    a(f"s_or_b32 s{sT+2}, s{sGrp}, s{sJ}"); a(f"s_cselect_b32 s{sFrag}, {NPROD}, s2")
    a("v_mov_b32 v48, 0"); a(f"v_lshlrev_b32 v49, 2, v17")
    a(f"s_cmp_lt_u32 s{sFrag}, {NPROD}"); a("s_cbranch_scc0 Lprep_noload")
    a(f"s_mul_i32 s{sT+2}, s{sFrag}, 21846"); a(f"s_lshr_b32 s{sT+2}, s{sT+2}, 16"); a(f"s_mul_i32 s{sT+3}, s{sT+2}, 3"); a(f"s_sub_u32 s{sT+6}, s{sFrag}, s{sT+3}")
    a("s_mov_b32 s28, s10"); a("s_and_b32 s29, s11, 0xffff"); a("s_mov_b32 s30, 73728"); a("s_mov_b32 s31, 0x20000")
    a("s_mov_b32 s32, s12"); a("s_and_b32 s33, s13, 0xffff"); a("s_mov_b32 s34, 73728"); a("s_mov_b32 s35, 0x20000")
    a(f"s_add_u32 s{sT+3}, s{sT+2}, 1"); a(f"s_cmp_eq_u32 s{sT+3}, 12"); a(f"s_cselect_b32 s{sT+3}, 0, s{sT+3}"); a(f"s_lshl_b32 s{sT+3}, s{sT+3}, 6")
    a(f"s_mul_i32 s{sT+4}, s{sT+2}, 6144")
    a("v_lshrrev_b32 v50, 5, v17"); a("v_and_b32 v51, 31, v17")
    a("v_mul_u32_u24 v52, 6144, v50"); a("v_lshl_add_u32 v52, v51, 1, v52"); a("v_add_u32 v53, 3072, v52")
    a("v_mul_u32_u24 v54, 768, v50"); a("v_and_b32 v50, 19, v51"); a("v_lshl_add_u32 v54, v50, 1, v54")
    a("v_and_b32 v50, 4, v51"); a("v_lshl_add_u32 v54, v50, 2, v54"); a("v_and_b32 v50, 8, v51"); a("v_add_u32 v54, v54, v50")
    def ld(q, r):
        if q < 6:
            a(f"s_add_u32 s{sT+5}, s{sT+3}, {q * 12288}")
            for i in range(8): a(f"buffer_load_ushort v{r+i}, v{52 + i // 4}, s[28:31], s{sT+5} offen offset:{768 * (i & 3)}")
        else:
            sp, bb = divmod(q - 6, 3)
            a(f"s_add_u32 s{sT+5}, s{sT+4}, {sp * 3072 + bb * 64}")
            for i in range(8): a(f"buffer_load_ushort v{r+i}, v54, s[32:35], s{sT+5} offen offset:{192 * (i & 3) + 1536 * (i >> 2)}")
    def cv(q, r, mx):
        for i in range(0, 8, 2): a(f"v_and_b32 v50, 0x7fff, v{r+i}"); a(f"v_and_b32 v51, 0x7fff, v{r+i+1}"); a(f"v_max3_u32 v{mx}, v{mx}, v50, v51")
        if q < 6:
            for i in range(4): a(f"v_lshl_or_b32 v{r+i}, v{r+1+2*i}, 16, v{r+2*i}")
        else:
            for i in range(8): a(f"v_lshlrev_b32 v{r+i}, 16, v{r+i}")
            for i in range(4): a(f"v_cvt_pk_f16_f32 v{r+i}, v{r+2*i}, v{r+1+2*i}")
    a(f"s_mov_b32 s{sThird}, s{sT+6}")
    for third in range(3):
        if third < 2: a(f"s_cmp_eq_u32 s{sT+6}, {third}"); a(f"s_cbranch_scc0 Lprep_t{third + 1}")
        for i in range(4): ld(4 * third + i, 64 + 8 * i)
        if third < 2: a("s_branch Lprep_noload"); a(f"Lprep_t{third + 1}:")
    def prep_convert():
        a(f"s_cmp_lt_u32 s{sFrag}, {NPROD}"); a("s_cbranch_scc0 Lprep_nocv")
        a("v_mov_b32 v56, 0"); a("v_mov_b32 v57, 0"); a("s_waitcnt vmcnt(9)")
        for third in range(3):
            if third < 2: a(f"s_cmp_eq_u32 s{sThird}, {third}"); a(f"s_cbranch_scc0 Lprep_c{third + 1}")
            for i in range(4): cv(4 * third + i, 64 + 8 * i, 56 if 4 * third + i < 6 else 57)
            if third < 2: a("s_branch Lprep_st"); a(f"Lprep_c{third + 1}:")
        a("Lprep_st:")
        a("s_mov_b32 s28, s6"); a("s_and_b32 s29, s7, 0xffff"); a(f"s_mov_b32 s30, {12 * WSET}"); a("s_mov_b32 s31, 0x20000"); a(f"s_lshl_b32 s{sT+2}, s{sFrag}, 12")
        for i in range(4): a(f"buffer_store_dwordx4 v[{64+8*i}:{67+8*i}], v{vL16}, s[28:31], s{sT+2} offen offset:{1024 * i} sc0 sc1")
        a("v_max_u32 v50, v56, v57"); a("v_cmp_lt_u32 vcc, 0x4100, v50"); a("s_cmp_lg_u64 vcc, 0"); a(f"s_cselect_b32 s{sT+4}, 3, 1")
        a("v_cmp_le_u32 vcc, 0x3a80, v56"); a("s_cmp_lg_u64 vcc, 0"); a(f"s_cselect_b32 s{sT+5}, 4, 0"); a(f"s_or_b32 s{sT+4}, s{sT+4}, s{sT+5}")
        a("v_cmp_le_u32 vcc, 0x3a80, v57"); a("s_cmp_lg_u64 vcc, 0"); a(f"s_cselect_b32 s{sT+5}, 8, 0"); a(f"s_or_b32 s{sT+4}, s{sT+4}, s{sT+5}")
        a(f"v_mov_b32 v48, s{sT+4}")
        a("Lprep_nocv:")
    a("Lprep_noload:")
    a(f"s_mov_b64 exec, s[{sEx48}:{sEx48+1}]")
    for g in row_loads(): P += g
    a(f"s_cmp_eq_u32 s{sGrp}, 0"); a("s_cbranch_scc1 Lpro_A")
    a(f"s_add_u32 s{sXrow}, s{sXrow}, 4")
    P += row_dma_lines()
    a("Lpro_A:")
    a("s_mov_b64 exec, -1")
    a("s_mov_b32 s32, s4"); a("s_and_b32 s33, s5, 0xffff"); a("s_mov_b32 s34, 256"); a("s_mov_b32 s35, 0x20000")
    P += wparams("P", 1)
    assert cfg.WLATE
    if cfg.STAMP: a("s_memtime s[100:101]"); a("s_waitcnt lgkmcnt(0)")
    a(f"s_mov_b32 s{sA16}, {A_imm:#x}"); a(f"s_mov_b32 s{sK16}, {K_imm:#x}")
    a(f"s_mov_b32 s{sInv96}, {f32bits(1/96):#x}"); a(f"s_mov_b32 s{sEps}, {f32bits(1e-5):#x}"); a(f"s_mov_b32 s{sKap}, {f32bits(kap_use):#x}")
    D = cfg.D
    a(f"s_lshl_b32 s{sT}, s{sTy}, 5"); a(f"s_lshl_b32 s{sT+1}, s{sGrp}, 3"); a(f"s_add_u32 s{sT}, s{sT}, s{sT+1}"); a(f"s_lshl_b32 s{sT+1}, s{sJ}, 1")
    a(f"s_add_u32 s{sT}, s{sT}, s{sT+1}"); a(f"s_mul_i32 s{sT}, s{sT}, 98304"); a(f"s_mul_i32 s{sT+1}, s{sTx}, 6144"); a(f"s_add_u32 s{sStO}, s{sT}, s{sT+1}")
    a(f"s_mov_b32 s{sDry+1}, s{sStO}")
    a("v_and_b32 v30, 7, v17"); a("v_lshrrev_b32 v31, 5, v17"); a("v_bfe_u32 v32, v17, 4, 1")
    a(f"s_mul_i32 s{sT}, s{sJ}, 48"); a(f"s_add_u32 s{sT}, s{sT}, {XBASE}")
    a("v_mul_u32_u24 v33, 784, v30"); a("v_mul_u32_u24 v34, 384, v31"); a(f"v_add3_u32 v{vColB}, v33, v34, s{sT}")
    a(f"v_mul_u32_u24 v33, {XS - 384}, v31"); a("v_lshlrev_b32 v34, 3, v32"); a(f"v_sub_u32 v{vHwA}, v33, v34")
    a("v_and_b32 v35, 31, v17"); a("v_lshlrev_b32 v36, 4, v31")
    a(f"v_mul_u32_u24 v33, 192, v35"); a(f"v_add_u32 v{vSt}, v33, v36")
    a("v_lshrrev_b32 v33, 2, v35"); a(f"v_lshl_add_u32 v33, v33, 4, v{vSt}"); a(f"v_add_u32 v{vHr}, {XBASE}, v33")
    a("v_add_u32 v33, 2, v35"); a("v_lshrrev_b32 v33, 2, v33"); a(f"v_lshl_add_u32 v33, v33, 4, v{vSt}"); a(f"v_add_u32 v{vRes}, {XBASE + 384}, v33")
    if cfg.S64:
        a("v_and_b32 v33, 15, v17"); a("v_mul_u32_u24 v33, 192, v33"); a("v_lshl_add_u32 v33, v32, 5, v33"); a(f"v_add_u32 v{vSt}, v33, v36")
    a("v_and_b32 v33, 3, v17"); a("v_bfe_u32 v34, v17, 2, 2")
    a("v_and_b32 v35, 1, v17"); a("v_mul_u32_u24 v35, 400, v35"); a("v_bfe_u32 v36, v17, 1, 1"); a("v_mul_u32_u24 v36, 192, v36"); a("v_add_u32 v35, v35, v36")
    a("v_bfe_u32 v36, v17, 2, 1"); a("v_lshlrev_b32 v36, 5, v36"); a("v_sub_u32 v35, v35, v36")
    a("v_bfe_u32 v36, v17, 3, 2"); a("v_lshlrev_b32 v36, 2, v36"); a("v_sub_u32 v35, v35, v36")
    a(f"s_mul_i32 s{sT}, s{sJ}, {6 * TGRP}"); a(f"s_add_u32 s{sT}, s{sT}, {TBASE}")
    a("v_lshl_add_u32 v35, v31, 4, v35"); a(f"v_add_u32 v{vTa}, s{sT}, v35")
    a("v_lshl_add_u32 v35, v31, 3, v34"); a("v_lshlrev_b32 v35, 6, v35"); a("v_lshl_add_u32 v35, v32, 5, v35"); a(f"v_lshl_add_u32 v{vW1b}, v33, 3, v35")
    a("v_lshl_add_u32 v35, v31, 2, v34"); a("v_mul_u32_u24 v35, 192, v35"); a("v_lshl_add_u32 v35, v32, 5, v35")
    a("v_and_b32 v36, 1, v17"); a("v_lshl_add_u32 v35, v36, 4, v35"); a("v_bfe_u32 v36, v17, 1, 1"); a(f"v_lshl_add_u32 v{vW2b}, v36, 3, v35")
    def enter(targets, ret=0):
        a(f"s_mov_b32 s{sDry+3}, {ret}")
        a(f"s_mov_b32 s{sDry}, 1"); a(f"s_mov_b32 s{sFirst}, 0"); a(f"s_mov_b32 s{sCnt}, 1"); a(f"s_mov_b32 s{sT+3}, -1"); a(f"s_mov_b32 s{sTgt}, 0")
        a(f"s_mov_b32 s{sDry+2}, s{sWsrc}"); a("s_waitcnt lgkmcnt(0)")
        a("s_setvskip -1, 0")
        for k, t in enumerate(targets[:3]): a(f"s_cmp_eq_u32 s{sJ}, {k}"); a(f"s_cbranch_scc1 {t}")
        a(f"s_branch {targets[3]}")
    def init_state():
        a(f"s_mov_b32 s{sXM}, {3 | (3 << (7 - D)):#x}"); a(f"s_mov_b32 s{sXinc}, 1"); a(f"s_mov_b32 s{sRing}, {WBASE}")
        a(f"s_mov_b32 s{sSig}, 1"); a(f"s_mov_b32 s{sP}, 0"); a(f"s_xor_b32 s{sFirst}, s{sGrp}, 1"); a(f"s_lshl_b32 s{sWin}, s{sGrp}, 3")
        a(f"s_mov_b32 s{sStInc}, 0"); a(f"s_mov_b32 s{sStO}, s{sDry+1}"); a(f"s_add_u32 s{sStO2}, s{sStO}, 98304"); a(f"s_mov_b32 s{sTgt}, 0")
        a(f"s_mov_b32 s{sO+2}, 0"); a(f"s_mov_b32 s{sDry}, 0")
    prep_convert()
    init_state()
    if cfg.WARM:
        a(f"s_cmp_eq_u32 s{sGrp}, 0"); a("s_cbranch_scc0 Ldry_skip")
        enter(["LconvP", "Ldry1", "Ldry2", "Ldry3"])
        a("Ldry_ret:"); a("s_setvskip 0, 0"); a("s_mov_b64 exec, -1"); a("s_setprio 0"); a(f"s_mov_b32 s{sWsrc}, s{sDry+2}")
        init_state()
        a(f"s_cmp_eq_u32 s{sDry+3}, 1"); a("s_cbranch_scc1 Ldry_B"); a(f"s_cmp_eq_u32 s{sDry+3}, 2"); a("s_cbranch_scc1 Ldry_B2")
        a("Ldry_skip:")
    a("v_bfe_u32 v35, v17, 3, 1"); a("v_lshl_add_u32 v35, v35, 2, v33")
    a("v_and_b32 v36, 1, v35"); a("v_lshlrev_b32 v36, 4, v36"); a("v_mov_b32 v37, 0x3f80"); a("v_lshlrev_b32 v36, v36, v37")
    a("v_lshrrev_b32 v35, 1, v35"); a("v_lshl_add_u32 v35, v32, 2, v35")
    a("v_bfe_u32 v37, v17, 2, 1"); a("v_cmp_eq_u32 vcc, v37, v31"); a("s_nop 1"); a("v_cndmask_b32 v35, 8, v35, vcc")
    for d in range(8):
        a(f"v_cmp_eq_u32 vcc, {d}, v35"); a("s_nop 1"); a(f"v_cndmask_b32 v{40+d}, 0, v36, vcc")
    a(f"ds_write_b128 v{vL16}, v[40:43] offset:{IBASE}"); a(f"ds_write_b128 v{vL16}, v[44:47] offset:{IBASE + 1024}")
    a(f"s_cmp_eq_u32 s{sGrp}, 0"); a("s_cbranch_scc0 Lpro_w2"); a("s_waitcnt vmcnt(9)"); a("Lpro_w2:"); a("s_waitcnt vmcnt(18)")
    a("v_cmp_eq_u32 vcc, 2, v18"); a("v_lshlrev_b32 v29, 16, v29"); a("s_nop 0"); a("v_cndmask_b32 v29, 0, v29, vcc"); a("v_or_b32 v26, v26, v29")
    a("v_mov_b32 v29, 0"); a("v_mov_b32 v30, 0"); a("v_mov_b32 v31, 0")
    a(f"v_lshrrev_b32 v33, 2, v19"); a(f"v_mul_u32_u24 v33, {TGRP}, v33"); a("v_lshl_add_u32 v33, v18, 5, v33")
    a("v_and_b32 v34, 1, v19"); a("v_mul_u32_u24 v34, 400, v34"); a("v_bfe_u32 v35, v19, 1, 1"); a("v_mul_u32_u24 v35, 192, v35"); a("v_add3_u32 v33, v33, v34, v35")
    a("v_cmp_gt_u32 vcc, 480, v0"); a("s_and_saveexec_b64 s[72:73], vcc")
    a(f"ds_write_b128 v33, v[24:27] offset:{TBASE}"); a(f"ds_write_b128 v33, v[28:31] offset:{TBASE + 16}")
    a("s_mov_b64 exec, -1")
    a("v_mov_b32 v28, 0")
    a("v_cmp_eq_u32 vcc, 4, v18"); a("s_and_saveexec_b64 s[72:73], vcc")
    a(f"ds_write_b128 v33, v[28:31] offset:{TBASE + 32}"); a(f"ds_write_b128 v33, v[28:31] offset:{TBASE + 48}")
    a("v_and_b32 v34, 3, v19"); a("v_cmp_eq_u32 vcc, 2, v34"); a("s_and_b64 exec, exec, vcc")
    a(f"ds_write_b128 v33, v[28:31] offset:{TBASE + 64}")
    a("s_mov_b64 exec, -1")
    a("v_mov_b32 v33, 0")
    for o in (0, 16, 32): a(f"ds_write_b128 v33, v[28:31] offset:{TPAD + o}")
    a(f"ds_write_b128 v33, v[28:31] offset:{CBASE}")
    if cfg.STAMP:
        a("v_mov_b32 v16, 0"); a("v_mov_b32 v17, 0"); a("v_writelane_b32 v16, s92, 60"); a("v_writelane_b32 v16, s96, 56")
        a("v_writelane_b32 v16, s98, 54"); a("v_writelane_b32 v16, s100, 57")
        P += stamp(16, 61)
        a(f"s_mov_b32 s96, {cfg.SMASK & 0xffffffff:#x}"); a(f"s_mov_b32 s97, {(cfg.SMASK >> 32) & 0xffffffff:#x}")
    a(f"s_cmp_eq_u32 s{sGrp}, 0"); a("s_cbranch_scc0 Lpro_w4")
    a("s_waitcnt vmcnt(0) lgkmcnt(0)"); P += stamp(16, 58)
    a(f"s_cmp_lt_u32 s{sFrag}, {NPROD}"); a("s_cbranch_scc0 Lprep_done")
    a(f"s_lshl_b32 s{sT+2}, s{sFrag}, 2")
    a("s_mov_b64 exec, 1"); a(f"buffer_store_dword v48, v49, s[32:35], s{sT+2} offen sc0 sc1"); a("s_mov_b64 exec, -1")
    P += stamp(16, 57)
    a("Lprep_done:")
    P += [i.text for i in csetup()]
    a(f"s_mov_b32 s{sWsrc}, {8 * WSET}")
    a("s_barrier")
    P += stamp(17, 58); a("s_branch LconvP")
    a("Lpro_w4:"); a("s_waitcnt vmcnt(0) lgkmcnt(0)"); P += stamp(16, 58); a("s_barrier")
    if cfg.WARM:
        enter(["Lbody2P", "Lhalf2", "Lbody0P", "Lhalf0"], 1); a("Ldry_B:")
        enter(["Lbody1P", "Lhalf1", "Lepi1P", "Lepi1P"], 2); a("Ldry_B2:")
    a(f"v_mov_b32 v18, {CBASE + 8}"); a(f"s_cmp_eq_u32 s{sJ}, 0"); a("s_cbranch_scc0 Lmode_wait")
    a(f"v_lshrrev_b32 v20, 2, v{vL16}"); a(f"s_mov_b32 s{sT}, {cfg.POLLS}"); a(f"s_mov_b32 s{sMode}, 2")
    P += stamp(17, 51)
    a("Lpoll_g:"); a("buffer_load_dword v19, v20, s[32:35], 0 offen sc1"); a("s_waitcnt vmcnt(0)")
    a("v_cmp_ne_u32 vcc, 0, v19"); a(f"s_bcnt1_i32_b64 s{sT+2}, vcc"); a(f"s_cmp_eq_u32 s{sT+2}, {NPROD}"); a("s_cbranch_scc1 Lpoll_ok")
    a(f"s_sub_u32 s{sT}, s{sT}, 1"); a(f"s_cmp_lg_u32 s{sT}, 0"); a("s_cbranch_scc1 Lpoll_g"); a("s_branch Lmode_set")
    a("Lpoll_ok:")
    P += stamp(17, 52)
    if cfg.STAMP: a(f"v_writelane_b32 v17, s{sT}, 53")
    for bit, want in ((2, 0), (4, 1), (8, 1)):
        a(f"v_and_b32 v21, {bit}, v19"); a("v_cmp_ne_u32 vcc, 0, v21"); a("s_cmp_lg_u64 vcc, 0"); a(f"s_cbranch_scc{1 - want} Lmode_set")
    a(f"s_mov_b32 s{sMode}, {cfg.FORCE or 1}")
    a("Lmode_set:"); a(f"v_mov_b32 v19, s{sMode}"); a("ds_write_b32 v18, v19")
    a("Lmode_wait:"); a("ds_read_b32 v19, v18"); a("s_waitcnt lgkmcnt(0)"); a(f"v_readfirstlane_b32 s{sMode}, v19")
    a(f"s_cmp_eq_u32 s{sMode}, 0"); a("s_cbranch_scc1 Lmode_wait")
    P += stamp(16, 59)
    a(f"s_cmp_eq_u32 s{sMode}, 1"); a("s_cbranch_scc1 Lmode_P")
    P += wparams("R", 1)
    a("Lmode_P:")
    for q in range(1, 4):
        for g in wdma_groups(f"{WBASE + q * WSET}"): P += g
    a("s_waitcnt vmcnt(6)"); a("s_barrier")
    assert D == 3
    P += bar_lines()
    for g in wdma_interval(): P += g
    a(f"s_lshl_b32 s{sXrow}, s{sJ}, 1"); a(f"s_add_u32 s{sXrow}, s{sXrow}, 12"); a(f"s_mov_b64 exec, s[{sEx48}:{sEx48+1}]")
    P += row_dma_lines(); a(f"s_add_u32 s{sXrow}, s{sXrow}, 1")
    P += row_dma_lines(); a(f"s_add_u32 s{sXrow}, s{sXrow}, 7")
    a("s_mov_b64 exec, -1")
    P += bar_lines("s_waitcnt vmcnt(18)")
    for g in wdma_interval(): P += g
    a(f"s_cmp_eq_u32 s{sMode}, 1"); a("s_cbranch_scc0 LouterR")
    return P

def build():
    D = cfg.D
    out = []
    hdr = ["; fused depthwise 5x5 + LayerNorm + MLP(GELU) + residual; generated by gen/gen.py",
           f"; @launch grid=(256,1,1) block=(512,1,1) lds={LDS_BYTES}",
           '.amdgcn_target "amdgcn-amd-amdhsa--gfx950"', ".text", f".globl {KNAME}", ".p2align 8", f".type {KNAME},@function", f"{KNAME}:"]
    out += hdr
    def raw(lines):
        for l in lines: out.append(l if l.endswith(":") or l.startswith(".") else "    " + l)
    raw(prologue())
    for m in "PR":
        MODE[0] = m
        epi0, epi1 = csetup(), epilogue(True)
        cs = cstage()
        bodies = [loop_body(0), loop_body(1), loop_body(2)]
        marks = [LABEL(n) for n in ("@c", "@a1", "@a2", "@b2", "@e0", "@x", "@e1", "@end")]
        lin = [marks[0]] + cs + [marks[1]] + bodies[0] + [marks[2]] + bodies[0] + [marks[3]] + bodies[1] + [marks[4]] + epi0 + [marks[5]] + bodies[2] + [marks[6]] + epi1 + [marks[7]]
        lin, pend = insert_lgkm(lin, cfg.OLD); assert not pend
        lin, _ = fix_hazards(lin)
        idx = [next(k for k, i in enumerate(lin) if i is m) for m in marks]
        cst, a1, a2, b2, e0, n2, e1 = (lin[idx[k] + 1: idx[k + 1]] for k in range(7))
        n1 = sum(states(i) for i in a1 if i.kind == "nop") - sum(states(i) for i in a2 if i.kind == "nop")
        assert [i.text for i in a1 if i.kind != "nop"] == [i.text for i in a2 if i.kind != "nop"]
        if n1 > 0: cst = cst + [Ins(f"s_nop {n1 - 1}", "nop")]
        for path in ([cst, n2, a2, a2, e0, cst, a2, e1], [cst, b2, n2, b2, n2, e0, cst, n2, n2, e1]):
            seq = [i for blk in path for i in blk]
            _, bad = fix_hazards(seq, check_only=True); assert not bad, bad
            assert not check_lgkm(seq)
        def emit(blk):
            for i in blk:
                if i.kind == "touch": continue
                for l in i.text.split("\n"): out.append(l if i.kind in ("label", "opaque", "dsw_op") or l.startswith("    ") or l.endswith(":") else "    " + l)
        out.append(f"Louter{m}:")
        emit(e0)
        raw(bar_lines())
        raw([f"s_cmp_eq_u32 s{sGrp}, 0", f"s_cbranch_scc0 Lno_w{m}"] + [l for g in wdma_interval() for l in g] + [f"Lno_w{m}:"])
        out.append(f"Lconv{m}:")
        emit(cst)
        raw(dry_exit())
        raw([f"s_mov_b32 s{sCnt}, 6", f"s_cmp_eq_u32 s{sGrp}, 0", f"s_cbranch_scc0 LselB{m}",
             f"s_cmp_lg_u32 s{sFirst}, 0", f"s_cselect_b32 s{sCnt}, 2, 6", f"s_cbranch_scc1 LloopN{m}"])
        tail = [f"s_add_u32 s{sWin}, s{sWin}, 4", f"s_cmp_ge_u32 s{sWin}, {NR}", f"s_cselect_b32 s{sWin}, 0, s{sWin}",
                f"s_add_u32 s{sP}, s{sP}, 1", f"s_cmp_eq_u32 s{sP}, 1", f"s_cbranch_scc1 Louter{m}"]
        raw([".p2align 6", f"LloopA{m}:"]); emit(a2)
        raw([f"s_sub_u32 s{sCnt}, s{sCnt}, 1", f"s_cmp_lg_u32 s{sCnt}, 0", f"s_cbranch_scc1 LloopA{m}"] + dry_exit() + tail)
        raw(bar_lines())
        if D > 1: raw([l for g in wdma_interval() for l in g])
        emit(e1)
        raw(stamp(16, 62))
        for i in range(16, D + 16):
            raw(bar_lines("s_waitcnt vmcnt(12)" if i == 16 else "s_waitcnt vmcnt(0)"))
            if i < D + 15: raw([l for g in wdma_interval() for l in g])
        raw(["s_branch Lfin"])
        raw([f"LselB{m}:", f"s_cmp_eq_u32 s{sP}, 0", f"s_mov_b32 s{sXM}, 0", f"s_cbranch_scc0 LloopN{m}"])
        raw([".p2align 6", f"LloopB{m}:"]); emit(b2)
        raw(dry_exit() + [f"s_add_u32 s{sXM}, s{sXM}, 1", f"s_cmp_eq_u32 s{sXM}, 1", f"s_cselect_b32 s{sCnt}, 3, 1", f"s_branch Lnowait2{m}"])
        raw([".p2align 6", f"LloopN{m}:"]); emit(n2)
        raw([f"s_sub_u32 s{sCnt}, s{sCnt}, 1", f"s_cmp_lg_u32 s{sCnt}, 0", f"s_cbranch_scc1 LloopN{m}"] + dry_exit() + [
             f"s_cmp_lg_u32 s{sFirst}, 0", f"s_mov_b32 s{sFirst}, 0", f"s_mov_b32 s{sCnt}, 4", f"s_cbranch_scc1 LloopA{m}",
             f"s_cmp_eq_u32 s{sXM}, 1", f"s_cbranch_scc1 LloopB{m}", f"s_cmp_eq_u32 s{sXM}, 0", f"s_cbranch_scc1 Lepi1{m}"] + tail[:4] + [f"s_branch Louter{m}"])
        out.append(f"Lepi1{m}:")
        emit(e1)
        raw(dry_exit())
        raw(stamp(16, 62))
        raw(["s_branch Lfin"] if m == "P" else [])
        if m == "P": out.append("Lraw:")
    out.append("Lfin:")
    if cfg.STAMP:
        raw(["s_waitcnt vmcnt(0)"] + stamp(16, 63) + ["s_memrealtime s[98:99]", "s_waitcnt lgkmcnt(0)", "v_writelane_b32 v16, s98, 55",
             "s_load_dwordx2 s[94:95], s[0:1], 56", "s_waitcnt lgkmcnt(0)", "s_mov_b32 s28, s94", "s_and_b32 s29, s95, 0xffff", "s_mov_b32 s30, 0x1000000", "s_mov_b32 s31, 0x20000",
             f"s_lshl_b32 s89, s{sGrp}, 2", f"s_add_u32 s89, s89, s{sJ}", "s_lshl_b32 s90, s2, 3", "s_add_u32 s89, s89, s90", "s_lshl_b32 s89, s89, 9", "s_add_u32 s89, s89, 0x100000",
             f"v_lshrrev_b32 v18, 2, v{vL16}", "buffer_store_dword v16, v18, s[28:31], s89 offen", "buffer_store_dword v17, v18, s[28:31], s89 offen offset:256"])
    if cfg.DBG:
        raw(["s_waitcnt vmcnt(0)", "s_memtime s[90:91]", "s_memrealtime s[96:97]", "s_load_dwordx2 s[98:99], s[0:1], 48", "s_waitcnt lgkmcnt(0)",
             "s_sub_u32 s90, s90, s92", "s_sub_u32 s96, s96, s94", "s_mov_b32 s28, s98", "s_and_b32 s29, s99, 0xffff", "s_mov_b32 s30, 64", "s_mov_b32 s31, 0x20000",
             f"s_cmp_eq_u32 s{sGrp}, 1", "s_cbranch_scc0 Lend", f"s_cmp_eq_u32 s{sJ}, 0", "s_cbranch_scc0 Lend",
             "s_lshr_b32 s89, s2, 5", "s_lshl_b32 s89, s89, 3", "s_and_b32 s91, s2, 31", "s_cmp_eq_u32 s91, 0", "s_cbranch_scc0 Lend",
             "v_mov_b32 v16, s90", "v_mov_b32 v17, s96", "v_mov_b32 v18, 0", "s_mov_b64 exec, 1", "buffer_store_dwordx2 v[16:17], v18, s[28:31], s89 offen"])
    raw(["Lend:", "s_endpgm"])
    raw(["Lw1wait:", "s_barrier", f"ds_read_b32 v{T0+1}, v{T0} offset:8", "s_waitcnt lgkmcnt(0)", f"v_readfirstlane_b32 s{sMode}, v{T0+1}",
         f"s_cmp_eq_u32 s{sMode}, 1", "s_cbranch_scc1 Lw1wait_retP"] + wparams("R", 8) + ["s_branch Lw1wait_retR"])
    if cfg.ALIGN:
        tmp, npad, nwid = align8([l.replace("CODE_LAST", "0x1000") for l in out], "LouterP", "Lend")
        out = [l.replace("v38, 0x1000", "v38, CODE_LAST") for l in tmp]
        sys.stderr.write(f"align8: {npad} pads, {nwid} widened\n")
    nbytes = sum(insn_sizes([l.replace("CODE_LAST", "0x1000") for l in out])[:out.index("Lraw:")])
    out = [l.replace("CODE_LAST", str(nbytes // 64 * 64 - 128)) for l in out]
    assert nbytes <= 32768
    out += ['.section .rodata,"a"', ".p2align 6", f".amdhsa_kernel {KNAME}", "  .amdhsa_next_free_vgpr 256", f"  .amdhsa_next_free_sgpr {102 if cfg.STAMP or cfg.DBG else 96}",
            "  .amdhsa_accum_offset 256", "  .amdhsa_group_segment_fixed_size 0", "  .amdhsa_kernarg_size 64", "  .amdhsa_user_sgpr_count 2",
            "  .amdhsa_user_sgpr_kernarg_segment_ptr 1", "  .amdhsa_system_sgpr_workgroup_id_x 1", ".end_amdhsa_kernel"]
    return "\n".join(out) + "\n"

open(sys.argv[1], "w").write(build())
```

```python
import sys, struct, math
import numpy as np, re
from asmlib import *

class Cfg:
    D = 3
    GELU = "B"
    PRIO = 1
    CPRIO = 3
    XF = 'nt'
    OF = 'sc0+sc1'
    WF = 'sc1'
    ALIGN = True
    STAMP = False
    SMASK = -1
    OLD = 200
    MIDU = 33
    NBUF = 2
    RT = False
    NOINV = False
    FORCE = 0
    POLLS = 300
    S64 = True
    DBG = False
    WARM = True
    HW64 = True
    PBASE = 3
    ABL = ''
    CST = False
    PKS = 0
    PKN = True
    W1G = True
    R2 = False
    NOSTAT = False
    NOCRD = False
    N0 = 15
    WLATE = True
cfg = Cfg()
for a in sys.argv[2:]:
    k, v = a.split("=")
    setattr(cfg, k, type(getattr(cfg, k))(v) if not isinstance(getattr(cfg, k), bool) else v in ("1", "True"))

KNAME = "standalone__modern_conv_block_replknet__vision_kernel"
XS = 7104; NR = 12
TPAD = 0
TBASE = 48
TGRP = 784
IBASE = TBASE + 24 * TGRP
PBASE = IBASE + 2048
CBASE = PBASE + 8192
WBASE = CBASE + 16
WSET = 12288
XBASE = WBASE + 4 * WSET
LDS_BYTES = XBASE + NR * XS
assert LDS_BYTES <= 163840, LDS_BYTES
assert WBASE % 16 == 0 and IBASE % 16 == 0
vColB, vHwA, vRes, vHr, vTa, vSt, vW1b, vW2b, vW1c, vW2c, vDMA, vOffL, vOffR, vL16 = range(1, 15)
T0 = 18
G = 24
W2F = 32
W1F = 56
ACC1 = (80, 96)
H = 112
ACC2 = 160
def acc2(X, b): return ACC2 + 48 * X + 16 * b
cBuf = (56, 68, 80)
cAddr = 104
cTa, cIdx, cRes, cHw, cHr = 107, 108, 109, 110, 111
XF = [32, 36, 40, 44, 48, 52, 92, 96, 100, 80, 84, 88]
sX, sO, sW = 16, 20, 24
sGrp, sJ, sTx, sTy, sSig, sRing, sWsrc, sWstep, sWlim, sWins, sWbase, sP, sCnt = range(36, 49)
sA16, sK16, sStO = 49, 50, 51
sWin, sXrow, sFirst = 63, 64, 65
sXM, sXinc = 66, 67
sExX = 68
sAdjL = 70
sT = 71
sEx48 = 80
sInv96, sEps, sKap = 82, 83, 84
sDry = 56
sFrag, sMode, sThird = 62, 3, 60
sSave = 68
sStO2, sTgt = 52, 53
sFres, sFh = 54, 55
sXo, sXm = 85, 86
sStInc = 87
s1k = 89
sJ3k = 88
RSUM = 2 * WBASE + 2 * WSET

def f32bits(x): return struct.unpack("<I", struct.pack("<f", x))[0]
def f16bits(x): return int(np.float16(x).view(np.uint16))
a_c = -2.0 * math.log2(math.e) * math.sqrt(2.0 / math.pi)
b_c = a_c * 0.044715
kap = -((-b_c) ** (1.0 / 3.0))
if cfg.GELU in ("B",):
    kap_use = float(np.float16(kap))
    A_imm = f16bits(a_c / kap_use) * 0x10001
    K_imm = f16bits(kap_use) * 0x10001
else:
    kap_use = kap
    A_imm = f32bits(a_c / kap)
    K_imm = f32bits(kap)

def fl(s): return ''.join(' ' + w for w in s.split('+') if w)
uid = [0]
MODE = ['P']
NPROD = 36
def lab(p):
    uid[0] += 1
    return f"L{p}_{uid[0]}"

def opaque(lines):
    return Ins("\n".join("    " + l if not l.endswith(":") else l for l in lines), "opaque", cost=0)

def stamp(vreg, lane):
    if not cfg.STAMP: return []
    return ["s_memtime s[90:91]", f"s_mov_b32 m0, {lane}", "s_waitcnt lgkmcnt(0)", f"v_writelane_b32 v{vreg}, s90, m0"]
def cstamp(vreg):
    if not cfg.STAMP: return []
    if cfg.RT:
        if vreg == 16: return []
        return stamp(17, f"s{sSig}") + [x.replace("s_memtime", "s_memrealtime") for x in stamp(16, f"s{sSig}")]
    if cfg.SMASK == -1: return stamp(vreg, f"s{sSig}")
    l = lab("s")
    return [f"s_bitcmp1_b64 s[96:97], s{sSig}", f"s_cbranch_scc0 {l}"] + stamp(vreg, f"s{sSig}") + [f"{l}:"]

def wdma_groups(dst):
    out = []
    for u in range(3):
        g = [f"s_add_u32 m0, {dst}, s{sJ3k}", f"s_add_u32 s{sT+8}, s{sWsrc}, s{sWbase}"] if u == 0 else \
            [f"s_add_u32 m0, m0, s{s1k}", f"s_add_u32 s{sT+8}, s{sT+8}, s{sWins}"]
        g.append(f"buffer_load_dwordx4 v{vDMA}, s[{sW}:{sW+3}], s{sT+8} offen{fl(cfg.WF)} lds")
        if u == 2: g += [f"s_add_u32 s{sWsrc}, s{sWsrc}, s{sWstep}", f"s_cmp_eq_u32 s{sWsrc}, s{sWlim}", f"s_cselect_b32 s{sWsrc}, 0, s{sWsrc}"]
        out.append(g)
    return out
def wdma_interval():
    g = wdma_groups(f"s{sT+7}") + wdma_groups(f"s{sT+7}")
    g[0] = [f"s_sub_u32 s{sT+7}, {RSUM}, s{sRing}"] + g[0]
    g[3] = [f"s_add_u32 s{sT+7}, s{sT+7}, {WSET}"] + g[3]
    return g

def row_setup():
    t0, t1, t2 = sT, sXo, sT + 1
    return [f"s_lshl_b32 s{t0}, s{sTy}, 5", f"s_add_u32 s{t0}, s{t0}, s{sXrow}", f"s_sub_u32 s{t0}, s{t0}, 2",
            f"s_mul_i32 s{t1}, s{t0}, 98304", f"s_mul_i32 s{t2}, s{sTx}, 6144", f"s_add_u32 s{t1}, s{t1}, s{t2}",
            f"s_cmp_lt_u32 s{t0}, 512", f"s_cselect_b32 s{t1}, s{t1}, 0x80000000",
            f"s_cmp_ge_u32 s{sXrow}, 24", f"s_cselect_b32 s{t2}, 24, 0", f"s_sub_u32 s{t0}, s{sXrow}, s{t2}",
            f"s_cmp_ge_u32 s{t0}, 12", f"s_cselect_b32 s{t2}, 12, 0", f"s_sub_u32 s{t0}, s{t0}, s{t2}",
            f"s_and_b32 s{t2}, s{sXrow}, 4", f"s_lshl_b32 s{t2}, s{t2}, 1", f"s_mul_i32 s{t0}, s{t0}, {XS}", f"s_add_u32 s{t0}, s{t0}, s{t2}",
            f"s_add_u32 s{sXm}, s{t0}, {XBASE}"]
def row_loads():
    out = [[f"s_mov_b32 m0, s{sXm}", f"s_sub_u32 s{sT}, s{sXo}, s{sAdjL}", f"buffer_load_dwordx4 v{vOffL}, s[{sX}:{sX+3}], s{sT} offen{fl(cfg.XF)} lds"]]
    for a in range(1, 9):
        out.append([f"s_add_u32 m0, s{sXm}, {784 * a}", f"s_add_u32 s{sT}, s{sXo}, {768 * a - 384}",
                    f"buffer_load_dwordx4 v{vOffR if a == 8 else vL16}, s[{sX}:{sX+3}], s{sT} offen{fl(cfg.XF)} lds"])
    return out
def row_dma_lines(): return row_setup() + [l for g in row_loads() for l in g]

def bar_lines(wait="s_waitcnt vmcnt(0)"):
    L = cstamp(16) + ([wait] if wait else []) + ["s_barrier"] + cstamp(17)
    L += [f"s_sub_u32 s{sRing}, {RSUM}, s{sRing}"]
    if cfg.STAMP: L += [f"s_add_u32 s{sSig}, s{sSig}, 1"]
    return L

def gelu_B(Sr):
    ops = []
    def st(p, k):
        a0 = Sr + 2 * p; a1 = a0 + 1; t = T0 + (p % 2) * 3; u = t + 1; w = t + 2
        return [V(f"v_cvt_pk_f16_f32 v{t}, v{a0}, v{a1}"),
                V(f"v_pk_fma_f16 v{u}, v{t}, v{t}, s{sA16}"),
                V(f"v_pk_mul_f16 v{t}, v{t}, v{u}"),
                V(f"v_exp_f16 v{u}, v{t}"),
                V(f"v_exp_f16_sdwa v{u}, v{t} dst_sel:WORD_1 dst_unused:UNUSED_PRESERVE src0_sel:WORD_1"),
                V(f"v_pk_fma_f16 v{t}, v{u}, s{sK16}, s{sK16}"),
                V(f"v_rcp_f16 v{u}, v{t}"),
                V(f"v_rcp_f16_sdwa v{w}, v{t} dst_sel:DWORD dst_unused:UNUSED_PAD src0_sel:WORD_1"),
                V(f"v_fma_mix_f32 v{u}, v{a0}, v{u}, 0 op_sel_hi:[0,1,0]"),
                V(f"v_fma_mix_f32 v{w}, v{a1}, v{w}, 0 op_sel_hi:[0,1,0]"),
                V(f"v_cvt_pk_bf16_f32 v{G+p}, v{u}, v{w}")][k]
    for q in range(0, 8, 2):
        for k in range(11):
            ops += [st(q, k), st(q + 1, k)]
    return ops

def gelu_A(Sr):
    ops = []
    for q in range(0, 16, 4):
        for k in range(6):
            for e in range(4):
                a = Sr + q + e; r = T0 + e
                ops.append([V(f"v_fma_f32 v{r}, v{a}, v{a}, s{sA16}"), V(f"v_mul_f32 v{r}, v{a}, v{r}"), V(f"v_exp_f32 v{r}, v{r}"),
                            V(f"v_fma_f32 v{r}, v{r}, s{sK16}, s{sK16}"), V(f"v_rcp_f32 v{r}, v{r}"), V(f"v_mul_f32 v{r}, v{a}, v{r}")][k])
        ops += [V(f"v_cvt_pk_bf16_f32 v{G+q//2}, v{T0}, v{T0+1}"), V(f"v_cvt_pk_bf16_f32 v{G+q//2+1}, v{T0+2}, v{T0+3}")]
    return ops
def gelu_C(Sr):
    ops = []
    def st(p, k):
        a0 = Sr + 2 * p; a1 = a0 + 1; t = T0 + (p % 2) * 3; u = t + 1; w = t + 2
        return [V(f"v_cvt_pk_f16_f32 v{w}, v{a0}, v{a1}"),
                V(f"v_pk_fma_f16 v{u}, v{w}, v{w}, s{sA16}"),
                V(f"v_pk_mul_f16 v{t}, v{w}, v{u}"),
                V(f"v_exp_f16 v{u}, v{t}"),
                V(f"v_exp_f16_sdwa v{u}, v{t} dst_sel:WORD_1 dst_unused:UNUSED_PRESERVE src0_sel:WORD_1"),
                V(f"v_pk_fma_f16 v{t}, v{u}, s{sK16}, s{sK16}"),
                V(f"v_rcp_f16 v{u}, v{t}"),
                V(f"v_rcp_f16_sdwa v{u}, v{t} dst_sel:WORD_1 dst_unused:UNUSED_PRESERVE src0_sel:WORD_1"),
                V(f"v_pk_mul_f16 v{G+p}, v{w}, v{u}")][k]
    for q in range(0, 8, 2):
        for k in range(9):
            ops += [st(q, k), st(q + 1, k)]
    return ops
def gelu(Sr): return gelu_C(Sr) if MODE[0] == "P" else gelu_B(Sr)

TR = "ds_read_b64_tr_b16"
def rd_w1(j, c):
    if MODE[0] == "P": return [DSR("ds_read_b128", W1F + 4 * j, 4, vW1c, f"offset:{WSET * c + 1024 * j}")]
    return [DSR(TR, W1F + 4 * j + 2 * r, 2, vW1c, f"offset:{WSET * c + 1024 * j + 256 * r}") for r in range(2)]
def rd_w2(sp, b, c):
    if MODE[0] == "P": return [DSR("ds_read_b128", W2F + 12 * sp + 4 * b, 4, vW1c, f"offset:{WSET * c + 6144 + 1024 * (3 * sp + b)}")]
    return [DSR(TR, W2F + 12 * sp + 4 * b + 2 * r, 2, vW2c, f"offset:{WSET * c + 6144 + (16 * sp + 8 * r) * 192 + 64 * b}") for r in range(2)]
def g1(X, j):
    return MFMA("32x32x16", ACC1[X], W1F + 4 * j, H + 8 * j + 4 * X, None if j == 0 else ACC1[X])
def g2(X, sp, b):
    return (MFMA16 if MODE[0] == "P" else MFMA)("32x32x16", acc2(X, b), W2F + 12 * sp + 4 * b, G + 4 * sp, acc2(X, b))
def w_addr():
    if MODE[0] == "P": return [V(f"v_add_u32 v{vW1c}, s{sRing}, v{vL16}")]
    return [V(f"v_add_u32 v{vW1c}, s{sRing}, v{vW1b}"), V(f"v_add_u32 v{vW2c}, s{sRing}, v{vW2b}")]

def step(X, c, extra):
    Y = 1 - X
    ld = (X == 0)
    att = [[g2(Y, 1, 0)] + (rd_w2(1, 0, c) if ld else []),
           [g1(Y, 0)] + (rd_w2(0, 0, c) + rd_w1(0, c) if ld else []),
           [g2(Y, 1, 1)] + (rd_w2(0, 1, c) + rd_w2(1, 1, c) if ld else []),
           [g1(Y, 1)] + (rd_w2(0, 2, c) + rd_w1(1, c) if ld else []),
           [g2(Y, 1, 2)] + (rd_w2(1, 2, c) if ld else []),
           [g1(Y, 2)] + (rd_w1(2, c) if ld else []),
           [g1(Y, 3)] + (rd_w1(3, c) if ld else []),
           [g2(X, 0, 0)],
           [g1(Y, 4)] + (rd_w1(4, c) if ld else []),
           [g2(X, 0, 1)],
           [g1(Y, 5)] + (rd_w1(5, c) if ld else []),
           [g2(X, 0, 2)]]
    for k, v in extra.items(): att[k] = att[k] + v
    ops = gelu(ACC1[X])
    return ops[:2] + interleave(ops[2:], att)

def loop_body(grp):
    bl = bar_lines()
    k = bl.index("s_waitcnt vmcnt(0)")
    L = [opaque(bl[:k + 1] + [f"Lnowait{grp}{MODE[0]}:"] + bl[k + 1:] + [f"Lbody{grp}{MODE[0]}:"])]
    L += w_addr()
    ex = [{}, {}, {}, {}]
    if grp in (0, 1):
        for k, g in enumerate(wdma_interval()):
            ex[k // 3 if k < 3 else 1][(7, 9, 11)[k] if k < 3 else (1, 3, 5)[k - 3]] = [opaque(g)]
    if grp == 1:
        rl = row_loads()
        for r in range(2):
            for k in range(3):
                blk = (row_setup() if k == 0 else []) + [f"s_mov_b64 exec, s[{sEx48}:{sEx48+1}]"] + rl[3 * k] + rl[3 * k + 1] + rl[3 * k + 2] + ["s_mov_b64 exec, -1"]
                if k == 2: blk += [f"s_add_u32 s{sXrow}, s{sXrow}, {7 if r else 1}"]
                st, sl = ((1, 8), (1, 11), (2, 7), (2, 11), (3, 3), (3, 7))[3 * r + k]
                ex[st][sl] = [opaque(blk)]
    for k in range(4):
        if k == 2: L += dry_point(f"Lhalf{grp}")
        if k in (1, 3) and grp in (1, 2): L += dry_point(f"Lq{k}{grp}")
        if cfg.PRIO: L.append(S(f"s_setprio {max(cfg.PBASE - k, 0)}"))
        L += step(k & 1, k >> 1, ex[k])
    return L

def SM32(d, a, b, idx):
    ab = list(R(a, 4)) + list(R(b, 8)) + [idx]
    return Ins(f"v_smfmac_f32_32x32x32_bf16 {vr(d,16)}, {vr(a,4)}, {vr(b,8)}, v{idx}", "mfma",
               ab + list(R(d, 16)), R(d, 16), cost=12, passes=8, srcc=R(d, 16), srcab=ab)

def unit_reads(u, first=False):
    q, rho = divmod(u, 6); buf = cBuf[u % cfg.NBUF]; ta = cTa
    if first: rho, q = divmod(u, 6); ta = (cTa, 92, 93)[q // 2]
    o = 196 * (q % 2) + 8 * rho
    L = []
    if rho == 0 and q and q % 2 == 0 and not first: L.append(V(f"v_add_u32 v{cTa}, {2 * TGRP}, v{cTa}"))
    L += [DSR("ds_read2_b32", buf + 8, 2, ta, f"offset0:{o} offset1:{o+1}"), DSR("ds_read2_b32", buf + 10, 2, ta, f"offset0:{o+2} offset1:{o+3}")]
    for k, c in enumerate((0, 192, 784, 976)):
        L.append(DSR("ds_read_b64", buf + 2 * k, 2, cAddr + rho // 2, f"offset:{XS * (rho & 1) + c + 8 * q}"))
    return L

def store(X, t):
    d = H + 24 * X + 4 * t
    return VMEM(f"buffer_store_dwordx4 {vr(d,4)}, v{vSt}, s[{sO}:{sO+3}], s{sStO2 if X else sStO} offen offset:{64 * (t >> 1) + 3072 * (t & 1) if cfg.S64 else 32 * t}{fl(cfg.OF)}", rd=[vSt] + list(R(d, 4)), store=True)

def res_reads(k):
    X, s = divmod(k, 6)
    return [DSR("ds_read_b64", XF[k] + 2 * r, 2, cRes, f"offset:{XS * X + 32 * s + 8 * r}") for r in range(2)]

def pk(op, d, *src, mods=""):
    return V(f"v_pk_{op}_f32 v[{d}:{d+1}], " + ", ".join(f"v[{x}:{x+1}]" for x in src) + mods)

def signal():
    t = T0
    return [Ins(f"    s_mov_b64 exec, 1\n    ds_add_u32 v{t}, v{t+5}\n    s_mov_b64 exec, -1\n    s_add_u32 s{sTgt}, s{sTgt}, 4", "dsw_op", [t, t + 5], [])]
def poll():
    t = T0; l = lab("p")
    return [Ins(f"{l}:\n    ds_read_b32 v{t+1}, v{t}\n    s_waitcnt lgkmcnt(0)\n    v_readfirstlane_b32 s{sT+3}, v{t+1}\n"
                f"    s_cmp_ge_u32 s{sT+3}, s{sTgt}\n    s_cbranch_scc0 {l}", "waitall", [t], [t + 1])]

def cstage_setup():
    t = sT
    L = []
    for dst, add in ((sFh, 0), (sFres, 2)):
        L += [f"s_lshl_b32 s{t}, s{sJ}, 1", f"s_add_u32 s{t}, s{t}, s{sWin}", f"s_add_u32 s{t}, s{t}, {add}",
              f"s_cmp_ge_u32 s{t}, {NR}", f"s_cselect_b32 s{t+1}, {NR}, 0", f"s_sub_u32 s{t}, s{t}, s{t+1}", f"s_mul_i32 s{dst}, s{t}, {XS}"]
    L += [f"s_add_u32 s{t}, s{sJ}, 1", f"s_and_b32 s{t}, s{t}, 2", f"s_lshl_b32 s{t}, s{t}, 2", f"s_add_u32 s{sFres}, s{sFres}, s{t}"]
    return L

def dry_exit(): return [f"s_cmp_lg_u32 s{sDry}, 0", "s_cbranch_scc1 Ldry_ret"] if cfg.WARM and MODE[0] == "P" else []
def dry_point(name): return [opaque(dry_exit() + [name + ":"])] if cfg.WARM and MODE[0] == "P" else []

def cs(k):
    if not (cfg.STAMP and cfg.CST): return []
    return [Ins("\n".join("    " + l for l in [f"s_lshl_b32 s95, s{sP}, 3", f"s_add_u32 s95, s95, {30 + k}"] + stamp(17, "s95")), "waitall")]

def csetup():
    L = [S(x) for x in cstage_setup()]
    L += [S(f"s_mov_b32 s{sT}, {XS}")]
    t0, t1, t2 = T0, T0 + 1, T0 + 4
    L += [V(f"v_bfe_u32 v{t2}, v{vL16}, 7, 2"), V(f"v_lshlrev_b32 v{t2}, 1, v{t2}"), V(f"v_mov_b32 v{T0+2}, 0"), V(f"v_mov_b32 v{T0+3}, 0")]
    for k in range(3):
        if k: L += [V(f"v_add_u32 v{t2}, 2, v{t2}")]
        L += [V(f"v_add_u32 v{t0}, s{sWin}, v{t2}"), V(f"v_subrev_u32 v{t1}, {NR}, v{t0}"), V(f"v_min_u32 v{t0}, v{t0}, v{t1}"),
              V(f"v_mad_u32_u24 v{t0}, v{t0}, s{sT}, v{vColB}"), V(f"v_and_b32 v{t1}, 4, v{t2}"), V(f"v_lshl_add_u32 v{cAddr+k}, v{t1}, 1, v{t0}")]
    L += [V(f"v_mov_b32 v{cTa}, v{vTa}"), V(f"v_bfe_u32 v{cIdx}, v{vL16}, 4, 2"), V(f"v_mul_u32_u24 v{cIdx}, 0x5555, v{cIdx}")]
    L += [V(f"v_add_u32 v{cRes}, s{sFres}, v{vRes}"), V(f"v_add_u32 v{cHw}, v{cAddr}, v{vHwA}"), V(f"v_add_u32 v{cHr}, s{sFh}, v{vHr}")]
    L += [S(f"s_lshl_b32 s{sT}, s{sJ}, 11"), V(f"v_add_u32 v{T0+4}, s{sT}, v{vL16}"),
          S(f"s_lshl_b32 s{sT}, s{sGrp}, 2"), S(f"s_add_u32 s{sT}, s{sT}, {CBASE}"), V(f"v_mov_b32 v{T0}, s{sT}"), V(f"v_mov_b32 v{T0+5}, 1")]
    return L

def out_cvt(q):
    X, b = divmod(q, 3); a = acc2(X, b); d = H + 24 * X + 8 * b
    return [V(f"v_cvt_pk_bf16_f32 v{d+i}, v{a+2*i}, v{a+2*i+1}") for i in range(8)]
def out_fin(q):
    X, b = divmod(q, 3); d = H + 24 * X + 8 * b
    return [V(f"v_permlane16_swap_b32 v{d+i}, v{d+4+i}") for i in range(4)] + [store(X, 2 * b), store(X, 2 * b + 1)]

def conv_first():
    ST, QT = G, G + 4
    L = [S(f"s_setprio {cfg.CPRIO}"), V(f"v_add_u32 v92, {2 * TGRP}, v{cTa}"), V(f"v_add_u32 v93, {4 * TGRP}, v{cTa}")]
    L += unit_reads(0, True) + unit_reads(1, True)
    L += [MFMA("32x32x8", ACC2 + 16 * q, T0 + 2, T0 + 2, None) for q in range(6)]
    for u in range(36):
        buf = cBuf[u % 2]
        if u == 18: L += dry_point("Ldry0")
        L.append(SM32(ACC2 + 16 * (u % 6), buf + 8, buf, cIdx))
        if u + 2 in (12, 24):
            l = lab("r"); L.append(opaque([f"s_cmp_lg_u32 s{sDry}, 0", f"s_cbranch_scc1 {l}", "s_barrier", f"{l}:"]))
        L += unit_reads(u + 2, True) if u + 2 < 36 else res_reads(3 * (u - 34)) + res_reads(3 * (u - 34) + 1) + res_reads(3 * (u - 34) + 2)
    for k in range(6, 12): L += res_reads(k)
    L += [S(f"s_mov_b32 s{sO+2}, 50331648"), S(f"s_mov_b32 s{sStInc}, {16 * 98304}")]
    SA, QA = 56, 64
    for q in range(6):
        for u in range(4):
            y = ACC2 + 16 * q + 4 * u
            if q == 0: L += [pk("add", SA + 2 * u, y, y + 2), pk("mul", QA + 2 * u, y, y), pk("fma", QA + 2 * u, y + 2, y + 2, QA + 2 * u)]
            else:
                for e in (0, 2): L += [pk("add", SA + 2 * u, SA + 2 * u, y + e), pk("fma", QA + 2 * u, y + e, y + e, QA + 2 * u)]
    for u in range(4): L += [V(f"v_add_f32 v{ST+u}, v{SA+2*u}, v{SA+2*u+1}"), V(f"v_add_f32 v{QT+u}, v{QA+2*u}, v{QA+2*u+1}")]
    L.append(Ins("s_waitcnt lgkmcnt(0)", "waitall"))
    return L

def cstage():
    NB = cfg.NBUF
    ST, QT = G, G + 4
    L = [COMMENT("previous tile out, convolution")]
    if cfg.CPRIO: L.append(S(f"s_setprio {cfg.CPRIO}"))
    def zero(q): return MFMA("32x32x8", ACC2 + 16 * q, T0 + 2, T0 + 2, None)
    def stat(q):
        o = []
        for e in range(4):
            for u in range(4):
                y = ACC2 + 16 * q + 4 * u + e
                if q == 0 and e == 0: o += [V(f"v_mul_f32 v{QT+u}, v{y}, v{y}")]
                elif q == 0 and e == 1: o += [V(f"v_add_f32 v{ST+u}, v{y-1}, v{y}"), V(f"v_fmac_f32 v{QT+u}, v{y}, v{y}")]
                else: o += [V(f"v_add_f32 v{ST+u}, v{ST+u}, v{y}"), V(f"v_fmac_f32 v{QT+u}, v{y}, v{y}")]
        return o
    L += cs(0) + unit_reads(0) + unit_reads(1)
    c0 = out_cvt(0)
    L += [g2(1, 1, 0)] + c0[:4] + [g2(1, 1, 1)] + c0[4:] + [g2(1, 1, 2), zero(0)]
    nst = 0
    for u in range(36):
        q, rho = divmod(u, 6); buf = cBuf[u % NB]
        if u == 18: L += dry_point("Ldry1")
        if u == cfg.MIDU:
            lm = lab("m")
            L.append(opaque([f"s_or_b32 s{sT}, s{sFirst}, s{sDry}", f"s_cbranch_scc1 {lm}"] + bar_lines(f"s_waitcnt vmcnt({nst})") +
                            [f"s_cmp_eq_u32 s{sGrp}, 0", f"s_cbranch_scc0 {lm}"] + [l for gg in wdma_interval() for l in gg] + [f"{lm}:"]))
        nxt = unit_reads(u + 2) if u + 2 < 36 else res_reads(3 * (u - 34)) + res_reads(3 * (u - 34) + 1) + res_reads(3 * (u - 34) + 2)
        early = 3 if NB == 3 else 0
        if nxt[0].kind == "valu": early += 1
        L += nxt[:early] + [SM32(ACC2 + 16 * q, buf + 8, buf, cIdx)] + nxt[early:]
        st = stat(q - 1) if q else []
        fill = {0: out_fin(q), 1: st[:8], 2: (out_cvt(q + 1) if q < 5 else []), 3: st[8:16] + ([zero(q + 1)] if q < 5 else []), 4: st[16:24], 5: st[24:]}[rho]
        nst += sum(i.kind == "vstore" for i in fill)
        L += fill
    for k in range(6, 12): L += res_reads(k)
    L += [S(f"s_add_u32 s{sStO}, s{sStO}, s{sStInc}"), S(f"s_add_u32 s{sStO2}, s{sStO}, 98304"), S(f"s_mov_b32 s{sO+2}, 50331648"), S(f"s_mov_b32 s{sStInc}, {16 * 98304}")]
    L += cs(1) + stat(5)
    if MODE[0] == "P": L.append(opaque(dry_exit() + ["Ljoin:"]))
    L += [DSW("ds_write_b64", T0 + 4, ST + 2 * k, 2, f"offset:{PBASE + 1024 * (k >> 1) + 8 * (k & 1)}") for k in range(4)]
    L.append(Ins("", "touch", [r for x in XF for r in R(x, 4)], [], cost=0))
    L += cs(2) + signal() + poll()
    L += cs(3)
    L += [COMMENT("LayerNorm, exchange of the normalised tile, residual into the accumulators, first GEMM1")]
    dst = {(0, 0): ST, (0, 1): QT, (1, 0): 56, (1, 1): 60, (2, 0): 64, (2, 1): 68, (3, 0): 72, (3, 1): 76}
    for w in range(4):
        for k in range(2): L.append(DSR("ds_read_b128", dst[(w, k)], 4, vL16, f"offset:{PBASE + 2048 * w + 1024 * k}"))
    for k in range(2):
        for u in range(4): L += [V(f"v_add_f32 v{dst[(0,k)]+u}, v{dst[(0,k)]+u}, v{dst[(1,k)]+u}")]
        for u in range(4): L += [V(f"v_add_f32 v{dst[(2,k)]+u}, v{dst[(2,k)]+u}, v{dst[(3,k)]+u}")]
        for u in range(4): L += [V(f"v_add_f32 v{dst[(0,k)]+u}, v{dst[(0,k)]+u}, v{dst[(2,k)]+u}")]
    MN, SQ, SC, SH = 56, 60, 64, 68
    for u in range(4): L += [V(f"v_mul_f32 v{MN+u}, s{sInv96}, v{ST+u}")]
    for u in range(4): L += [V(f"v_mul_f32 v{SQ+u}, v{MN+u}, v{MN+u}")]
    for u in range(4): L += [V(f"v_fma_f32 v{SQ+u}, v{QT+u}, s{sInv96}, -v{SQ+u}")]
    L += [DSR("ds_read_b128", G, 4, vL16, f"offset:{IBASE}"), DSR("ds_read_b128", G + 4, 4, vL16, f"offset:{IBASE + 1024}")]
    for u in range(4): L += [V(f"v_max_f32 v{SQ+u}, 0, v{SQ+u}")]
    for u in range(4): L += [V(f"v_add_f32 v{SQ+u}, s{sEps}, v{SQ+u}")]
    for u in range(4): L += [V(f"v_rsq_f32 v{SQ+u}, v{SQ+u}")]
    for u in range(4): L += [V(f"v_mul_f32 v{SC+u}, s{sKap}, v{SQ+u}")]
    for u in range(4): L += [V(f"v_mul_f32 v{SH+u}, -v{MN+u}, v{SC+u}")]
    L += dry_point("Ldry3")
    if cfg.PKN:
        for q in range(6):
            for u in range(4):
                for e in (0, 2):
                    y = ACC2 + 16 * q + 4 * u + e; o = u & 1
                    L.append(pk("fma", y, y, SC + (u & 2), SH + (u & 2), mods=f" op_sel:[0,{o},{o}] op_sel_hi:[1,{o},{o}]"))
    L += cs(4)
    first_w1 = opaque([f"s_cmp_lg_u32 s{sFirst}, 0", "s_cbranch_scc1 Lw1wait", f"Lw1wait_ret{MODE[0]}:"] + [w_addr()[0].text])
    def ident(q):
        X, b = divmod(q, 3)
        return [MFMA("32x32x16", acc2(X, b), G, XF[6 * X + 2 * b], None), MFMA("32x32x16", acc2(X, b), G + 4, XF[6 * X + 2 * b + 1], acc2(X, b))]
    def cvt(q):
        o = []
        for u in range(4):
            y = ACC2 + 16 * q + 4 * u
            if not cfg.PKN: o += [V(f"v_fma_f32 v{y+e}, v{y+e}, v{SC+u}, v{SH+u}") for e in range(4)]
            o += [V(f"v_cvt_pk_bf16_f32 v{H+12*u+2*q+h}, v{y+2*h}, v{y+2*h+1}") for h in range(2)]
            o += [DSW("ds_write_b64", cHw, H + 12 * u + 2 * q, 2, f"offset:{192 * u + 8 * q}")]
        return o
    for q in range(6):
        c = cvt(q)
        if q >= 1:
            i0, i1 = ident(q - 1); n = len(c)
            c = c[:1] + [i0] + c[1:n // 2] + [i1] + c[n // 2:]
        L += c
    L += cs(5) + signal()
    L += ident(5)
    L.append(first_w1)
    for j in range(6): L += rd_w1(j, 1)
    L += [V(f"v_mov_b32 v{G+4+i}, 0") for i in range(4)]
    L += poll()
    L += cs(6)
    L += [DSR("ds_read_b128", H + 8 * s + 4 * X, 4, cHr, f"offset:{XS * X + 32 * s}") for X in range(2) for s in range(6)]
    L += [g1(0, j) for j in range(6)]
    L.append(Ins("s_waitcnt lgkmcnt(0)", "waitall"))
    L += cs(7)
    if cfg.CPRIO: L.append(S("s_setprio 0"))
    ab = cfg.ABL.split("+")
    if "hw" in ab: L = [i for i in L if not (i.kind == "dsw" and cHw in i.rd)]
    if "pk" in ab: L = [i for i in L if i.kind != "pk32"]
    if "brd" in ab: L = [i for i in L if not (i.text.startswith("ds_read_b64") and i.rd & set(R(cAddr, 3)))]
    if "sm" in ab: L = [i for i in L if "smfmac" not in i.text]
    if "st" in ab: L = [i for i in L if i.kind != "vstore"]
    if "unpk" in ab:
        out = []
        for i in L:
            if i.kind != "pk32": out.append(i); continue
            m = re.match(r"v_pk_(\w+)_f32 (.*?)( op_sel.*)?$", i.text); regs = [int(x) for x in re.findall(r"v\[(\d+):", m.group(2))]
            o = 1 if m.group(3) and "op_sel:[0,1" in m.group(3) else 0
            for h in range(2):
                r = [regs[0] + h, regs[1] + h] + [(x + o if m.group(3) else x + h) for x in regs[2:]]
                out.append(V(f"v_{m.group(1)}_f32 " + ", ".join(f"v{x}" for x in r)))
        L = out
    return L

def epilogue(with_stores):
    L = [COMMENT("epilogue: last GEMM2 k-step, convert")]
    att = [[g2(1, 1, b)] for b in range(3)]
    def cv(X, t):
        a = acc2(X, t >> 1) + 8 * (t & 1); d = H + 24 * X + 4 * t
        return [V(f"v_cvt_pk_bf16_f32 v{d+i}, v{a+2*i}, v{a+2*i+1}") for i in range(4)]
    def fin(X, u):
        d = H + 24 * X + 8 * u
        o = [V(f"v_permlane16_swap_b32 v{d+i}, v{d+4+i}") for i in range(4)] if cfg.S64 else []
        return o + ([store(X, 2 * u), store(X, 2 * u + 1)] if with_stores else [])
    seq = [(X, u) for X in range(2) for u in range(3)]
    body = []
    for k, (X, u) in enumerate(seq):
        body.append(cv(X, 2 * u) + cv(X, 2 * u + 1) + (fin(*seq[k - 1]) if k else []))
    first = body[0] + body[1] + body[2]
    L += first[:2] + interleave(first[2:], att, 0.0, 0.5)
    L += body[3] + body[4] + body[5] + fin(*seq[5])
    return L

def wparams(mode, first):
    P = []; a = P.append
    if mode == "P":
        a(f"s_mov_b32 s{sW}, s6"); a(f"s_and_b32 s{sW+1}, s7, 0xffff"); a(f"s_mov_b32 s{sW+2}, {12 * WSET}"); a(f"s_mov_b32 s{sW+3}, 0x20000")
        a(f"s_mov_b32 s{sWstep}, {WSET}"); a(f"s_mov_b32 s{sWlim}, {12 * WSET}"); a(f"s_mov_b32 s{sWins}, 1024"); a(f"s_mov_b32 s{sWbase}, s{sJ3k}")
        a(f"s_mov_b32 s{sWsrc}, {first * WSET}"); a(f"v_mov_b32 v{vDMA}, v{vL16}")
        return P
    a(f"s_cmp_lt_u32 s{sJ}, 2"); a(f"s_cselect_b32 s{sW}, s10, s12"); a(f"s_cselect_b32 s{sW+1}, s11, s13")
    a(f"s_cselect_b32 s{sWstep}, 64, 6144"); a(f"s_mov_b32 s{sWins}, 1024")
    a(f"s_cselect_b32 s{sWins}, 12288, s{sWins}"); a(f"s_cselect_b32 s{sWsrc}, {first + 1}, {first}"); a(f"s_mul_i32 s{sWsrc}, s{sWsrc}, s{sWstep}"); a(f"s_mul_i32 s{sWlim}, s{sWstep}, 12")
    a(f"s_and_b32 s{sW+1}, s{sW+1}, 0xffff"); a(f"s_mov_b32 s{sW+2}, 73728"); a(f"s_mov_b32 s{sW+3}, 0x20000")
    a(f"s_and_b32 s{sT+3}, s{sJ}, 1"); a(f"s_mul_i32 s{sT+3}, s{sT+3}, 3"); a(f"s_mul_i32 s{sWbase}, s{sT+3}, s{sWins}")
    a(f"v_lshrrev_b32 v20, 6, v{vL16}"); a("v_mul_u32_u24 v20, 768, v20"); a(f"v_and_b32 v21, 48, v{vL16}"); a("v_add_u32 v20, v20, v21")
    a(f"s_cmp_lt_u32 s{sJ}, 2"); a("s_cselect_b64 vcc, -1, 0"); a(f"v_cndmask_b32 v{vDMA}, v{vL16}, v20, vcc")
    return P

def prologue():
    P = []
    a = P.append
    a(f"s_cmp_ge_u32 s2, 256"); a("s_cbranch_scc1 Lend")
    if cfg.STAMP: a("s_memtime s[92:93]"); a("s_load_dwordx2 s[94:95], s[0:1], 56")
    if cfg.DBG: a("s_memtime s[92:93]"); a("s_memrealtime s[94:95]")
    a("s_load_dwordx8 s[4:11], s[0:1], 0"); a("s_load_dwordx4 s[12:15], s[0:1], 32"); a("s_load_dwordx4 s[56:59], s[0:1], 48")
    a("v_lshrrev_b32 v16, 6, v0"); a("v_and_b32 v17, 63, v0")
    a(f"v_readfirstlane_b32 s{sT}, v16")
    if cfg.WARM:
        a("s_getpc_b64 s[60:61]"); a("v_lshlrev_b32 v38, 6, v0"); a("v_min_u32 v38, CODE_LAST, v38")
        a("global_load_dword v39, v38, s[60:61]")
    a(f"s_and_b32 s{sT+1}, s2, 7"); a(f"s_lshl_b32 s{sT+1}, s{sT+1}, 5"); a(f"s_lshr_b32 s{sT+2}, s2, 3"); a(f"s_add_u32 s{sT+1}, s{sT+1}, s{sT+2}")
    a(f"s_lshr_b32 s{sTy}, s{sT+1}, 4"); a(f"s_and_b32 s{sTx}, s{sT+1}, 15")
    a(f"s_lshr_b32 s{sGrp}, s{sT}, 2"); a(f"s_and_b32 s{sJ}, s{sT}, 3"); a(f"s_mov_b32 s{sXrow}, s{sT}")
    a(f"s_mul_i32 s{sJ3k}, s{sJ}, 3072"); a(f"s_movk_i32 s{s1k}, 1024")
    a(f"s_mov_b32 s{sEx48}, -1"); a(f"s_mov_b32 s{sEx48+1}, 0xffff")
    a(f"v_lshlrev_b32 v{vL16}, 4, v17")
    a(f"s_cmp_eq_u32 s{sTx}, 0"); a(f"s_cselect_b32 s{sAdjL}, 0, 384"); a(f"s_cselect_b32 s{sT+3}, 384, 0"); a(f"s_cselect_b32 s{sT+4}, 24, 0")
    a(f"v_subrev_u32 v{vOffL}, s{sT+3}, v{vL16}"); a(f"v_cmp_le_u32 vcc, s{sT+4}, v17"); a("s_nop 1")
    a(f"v_cndmask_b32 v{vOffL}, 2.0, v{vOffL}, vcc")
    a(f"s_cmp_eq_u32 s{sTx}, 15"); a(f"s_cselect_b32 s{sT+4}, 24, 64"); a(f"v_cmp_gt_u32 vcc, s{sT+4}, v17"); a("s_nop 1")
    a(f"v_cndmask_b32 v{vOffR}, 2.0, v{vL16}, vcc")
    a("v_mul_u32_u24 v18, 683, v0"); a("v_lshrrev_b32 v18, 16, v18")
    a("v_mul_u32_u24 v19, 96, v18"); a("v_sub_u32 v19, v0, v19")
    a("v_mul_u32_u24 v20, 960, v18"); a("v_lshl_add_u32 v20, v19, 1, v20")
    a("v_lshlrev_b32 v21, 1, v19")
    P += row_setup()
    a("s_waitcnt lgkmcnt(0)")
    if cfg.STAMP: a("s_memtime s[96:97]"); a("s_memrealtime s[98:99]"); a("s_waitcnt lgkmcnt(0)")
    for (d, p, n) in ((sX, 4, 50331648), (28, 8, 4800), (32, 6, 192), (sO, 14, 0)):
        a(f"s_mov_b32 s{d}, s{p}"); a(f"s_and_b32 s{d+1}, s{p+1}, 0xffff"); a(f"s_mov_b32 s{d+2}, {n}"); a(f"s_mov_b32 s{d+3}, 0x20000")
    for j in range(5): a(f"buffer_load_ushort v{24+j}, v20, s[28:31], 0 offen offset:{192*j}")
    a("buffer_load_ushort v29, v21, s[32:35], 0 offen")
    a("s_mov_b64 s[4:5], s[56:57]"); a("s_mov_b64 s[6:7], s[58:59]")
    a(f"s_cmp_eq_u32 s{sXrow}, 3"); a(f"s_cselect_b32 s{sFrag}, s2, {NPROD}")
    a("v_mov_b32 v48, 0"); a(f"v_lshlrev_b32 v49, 2, v17")
    a(f"s_cmp_lt_u32 s{sFrag}, {NPROD}"); a("s_cbranch_scc0 Lprep_noload")
    a(f"s_mul_i32 s{sT+2}, s{sFrag}, 21846"); a(f"s_lshr_b32 s{sT+2}, s{sT+2}, 16"); a(f"s_mul_i32 s{sT+3}, s{sT+2}, 3"); a(f"s_sub_u32 s{sT+6}, s{sFrag}, s{sT+3}")
    a("s_mov_b32 s28, s10"); a("s_and_b32 s29, s11, 0xffff"); a("s_mov_b32 s30, 73728"); a("s_mov_b32 s31, 0x20000")
    a("s_mov_b32 s32, s12"); a("s_and_b32 s33, s13, 0xffff"); a("s_mov_b32 s34, 73728"); a("s_mov_b32 s35, 0x20000")
    a(f"s_add_u32 s{sT+3}, s{sT+2}, 1"); a(f"s_cmp_eq_u32 s{sT+3}, 12"); a(f"s_cselect_b32 s{sT+3}, 0, s{sT+3}"); a(f"s_lshl_b32 s{sT+3}, s{sT+3}, 6")
    a(f"s_mul_i32 s{sT+4}, s{sT+2}, 6144")
    a("v_lshrrev_b32 v50, 5, v17"); a("v_and_b32 v51, 31, v17")
    a("v_mul_u32_u24 v52, 6144, v50"); a("v_lshl_add_u32 v52, v51, 1, v52"); a("v_add_u32 v53, 3072, v52")
    a("v_mul_u32_u24 v54, 768, v50"); a("v_and_b32 v50, 19, v51"); a("v_lshl_add_u32 v54, v50, 1, v54")
    a("v_and_b32 v50, 4, v51"); a("v_lshl_add_u32 v54, v50, 2, v54"); a("v_and_b32 v50, 8, v51"); a("v_add_u32 v54, v54, v50")
    def ld(q, r):
        if q < 6:
            a(f"s_add_u32 s{sT+5}, s{sT+3}, {q * 12288}")
            for i in range(8): a(f"buffer_load_ushort v{r+i}, v{52 + i // 4}, s[28:31], s{sT+5} offen offset:{768 * (i & 3)}")
        else:
            sp, bb = divmod(q - 6, 3)
            a(f"s_add_u32 s{sT+5}, s{sT+4}, {sp * 3072 + bb * 64}")
            for i in range(8): a(f"buffer_load_ushort v{r+i}, v54, s[32:35], s{sT+5} offen offset:{192 * (i & 3) + 1536 * (i >> 2)}")
    def cv(q, r, mx):
        for i in range(0, 8, 2): a(f"v_and_b32 v50, 0x7fff, v{r+i}"); a(f"v_and_b32 v51, 0x7fff, v{r+i+1}"); a(f"v_max3_u32 v{mx}, v{mx}, v50, v51")
        if q < 6:
            for i in range(4): a(f"v_lshl_or_b32 v{r+i}, v{r+1+2*i}, 16, v{r+2*i}")
        else:
            for i in range(8): a(f"v_lshlrev_b32 v{r+i}, 16, v{r+i}")
            for i in range(4): a(f"v_cvt_pk_f16_f32 v{r+i}, v{r+2*i}, v{r+1+2*i}")
    a(f"s_mov_b32 s{sThird}, s{sT+6}")
    for third in range(3):
        if third < 2: a(f"s_cmp_eq_u32 s{sT+6}, {third}"); a(f"s_cbranch_scc0 Lprep_t{third + 1}")
        for i in range(4): ld(4 * third + i, 64 + 8 * i)
        if third < 2: a("s_branch Lprep_noload"); a(f"Lprep_t{third + 1}:")
    def prep_convert():
        a(f"s_cmp_lt_u32 s{sFrag}, {NPROD}"); a("s_cbranch_scc0 Lprep_nocv")
        a("v_mov_b32 v56, 0"); a("v_mov_b32 v57, 0"); a("s_waitcnt vmcnt(9)")
        for third in range(3):
            if third < 2: a(f"s_cmp_eq_u32 s{sThird}, {third}"); a(f"s_cbranch_scc0 Lprep_c{third + 1}")
            for i in range(4): cv(4 * third + i, 64 + 8 * i, 56 if 4 * third + i < 6 else 57)
            if third < 2: a("s_branch Lprep_st"); a(f"Lprep_c{third + 1}:")
        a("Lprep_st:")
        a("s_mov_b32 s28, s6"); a("s_and_b32 s29, s7, 0xffff"); a(f"s_mov_b32 s30, {12 * WSET}"); a("s_mov_b32 s31, 0x20000"); a(f"s_lshl_b32 s{sT+2}, s{sFrag}, 12")
        for i in range(4): a(f"buffer_store_dwordx4 v[{64+8*i}:{67+8*i}], v{vL16}, s[28:31], s{sT+2} offen offset:{1024 * i} sc0 sc1")
        a("v_max_u32 v50, v56, v57"); a("v_cmp_lt_u32 vcc, 0x4100, v50"); a("s_cmp_lg_u64 vcc, 0"); a(f"s_cselect_b32 s{sT+4}, 3, 1")
        a("v_cmp_le_u32 vcc, 0x3a80, v56"); a("s_cmp_lg_u64 vcc, 0"); a(f"s_cselect_b32 s{sT+5}, 4, 0"); a(f"s_or_b32 s{sT+4}, s{sT+4}, s{sT+5}")
        a("v_cmp_le_u32 vcc, 0x3a80, v57"); a("s_cmp_lg_u64 vcc, 0"); a(f"s_cselect_b32 s{sT+5}, 8, 0"); a(f"s_or_b32 s{sT+4}, s{sT+4}, s{sT+5}")
        a(f"v_mov_b32 v48, s{sT+4}"); a("s_branch Ldry_skip")
        a("Lprep_nocv:")
    a("Lprep_noload:")
    a(f"s_mov_b64 exec, s[{sEx48}:{sEx48+1}]")
    for g in row_loads(): P += g
    a("s_mov_b64 exec, -1")
    a("s_mov_b32 s32, s4"); a("s_and_b32 s33, s5, 0xffff"); a("s_mov_b32 s34, 256"); a("s_mov_b32 s35, 0x20000")
    P += wparams("P", 1)
    assert cfg.WLATE
    if cfg.STAMP: a("s_memtime s[100:101]"); a("s_waitcnt lgkmcnt(0)")
    a(f"s_mov_b32 s{sA16}, {A_imm:#x}"); a(f"s_mov_b32 s{sK16}, {K_imm:#x}")
    a(f"s_mov_b32 s{sInv96}, {f32bits(1/96):#x}"); a(f"s_mov_b32 s{sEps}, {f32bits(1e-5):#x}"); a(f"s_mov_b32 s{sKap}, {f32bits(kap_use):#x}")
    D = cfg.D
    a(f"s_lshl_b32 s{sT}, s{sTy}, 5"); a(f"s_lshl_b32 s{sT+1}, s{sGrp}, 3"); a(f"s_add_u32 s{sT}, s{sT}, s{sT+1}"); a(f"s_lshl_b32 s{sT+1}, s{sJ}, 1")
    a(f"s_add_u32 s{sT}, s{sT}, s{sT+1}"); a(f"s_mul_i32 s{sT}, s{sT}, 98304"); a(f"s_mul_i32 s{sT+1}, s{sTx}, 6144"); a(f"s_add_u32 s{sStO}, s{sT}, s{sT+1}")
    a(f"s_mov_b32 s{sDry+1}, s{sStO}")
    def addresses():
        a(f"v_lshrrev_b32 v37, 4, v{vL16}")
        a("v_and_b32 v30, 7, v37"); a("v_lshrrev_b32 v31, 5, v37"); a("v_bfe_u32 v32, v37, 4, 1")
        a(f"s_mul_i32 s{sT}, s{sJ}, 48"); a(f"s_add_u32 s{sT}, s{sT}, {XBASE}")
        a("v_mul_u32_u24 v33, 784, v30"); a("v_mul_u32_u24 v34, 384, v31"); a(f"v_add3_u32 v{vColB}, v33, v34, s{sT}")
        a(f"v_mul_u32_u24 v33, {XS - 384}, v31"); a("v_lshlrev_b32 v34, 3, v32"); a(f"v_sub_u32 v{vHwA}, v33, v34")
        a("v_and_b32 v35, 31, v37"); a("v_lshlrev_b32 v36, 4, v31")
        a(f"v_mul_u32_u24 v33, 192, v35"); a(f"v_add_u32 v{vSt}, v33, v36")
        a("v_lshrrev_b32 v33, 2, v35"); a(f"v_lshl_add_u32 v33, v33, 4, v{vSt}"); a(f"v_add_u32 v{vHr}, {XBASE}, v33")
        a("v_add_u32 v33, 2, v35"); a("v_lshrrev_b32 v33, 2, v33"); a(f"v_lshl_add_u32 v33, v33, 4, v{vSt}"); a(f"v_add_u32 v{vRes}, {XBASE + 384}, v33")
        if cfg.S64:
            a("v_and_b32 v33, 15, v37"); a("v_mul_u32_u24 v33, 192, v33"); a("v_lshl_add_u32 v33, v32, 5, v33"); a(f"v_add_u32 v{vSt}, v33, v36")
        a("v_and_b32 v33, 3, v37"); a("v_bfe_u32 v34, v37, 2, 2")
        a("v_and_b32 v35, 1, v37"); a("v_mul_u32_u24 v35, 400, v35"); a("v_bfe_u32 v36, v37, 1, 1"); a("v_mul_u32_u24 v36, 192, v36"); a("v_add_u32 v35, v35, v36")
        a("v_bfe_u32 v36, v37, 2, 1"); a("v_lshlrev_b32 v36, 5, v36"); a("v_sub_u32 v35, v35, v36")
        a("v_bfe_u32 v36, v37, 3, 2"); a("v_lshlrev_b32 v36, 2, v36"); a("v_sub_u32 v35, v35, v36")
        a(f"s_mul_i32 s{sT}, s{sJ}, {6 * TGRP}"); a(f"s_add_u32 s{sT}, s{sT}, {TBASE}")
        a("v_lshl_add_u32 v35, v31, 4, v35"); a(f"v_add_u32 v{vTa}, s{sT}, v35")
        a("v_lshl_add_u32 v35, v31, 3, v34"); a("v_lshlrev_b32 v35, 6, v35"); a("v_lshl_add_u32 v35, v32, 5, v35"); a(f"v_lshl_add_u32 v{vW1b}, v33, 3, v35")
        a("v_lshl_add_u32 v35, v31, 2, v34"); a("v_mul_u32_u24 v35, 192, v35"); a("v_lshl_add_u32 v35, v32, 5, v35")
        a("v_and_b32 v36, 1, v37"); a("v_lshl_add_u32 v35, v36, 4, v35"); a("v_bfe_u32 v36, v37, 1, 1"); a(f"v_lshl_add_u32 v{vW2b}, v36, 3, v35")
    def enter(targets, ret=0, keep=False):
        a(f"s_mov_b32 s{sDry+3}, {ret}"); a(f"s_mov_b32 s{sSave}, s{sRing}"); a(f"s_mov_b32 s{sSave+1}, s{sSig}")
        a(f"s_mov_b32 s{sDry}, 1"); a(f"s_mov_b32 s{sFirst}, 0"); a(f"s_mov_b32 s{sCnt}, 1"); a(f"s_mov_b32 s{sT+3}, -1"); a(f"s_mov_b32 s{sTgt}, 0")
        a(f"s_mov_b32 s{sDry+2}, s{sWsrc}"); a("s_waitcnt lgkmcnt(0)")
        a("s_setvskip -1, 0")
        for k, t in enumerate(targets[:3]): a(f"s_cmp_eq_u32 s{sJ}, {k}"); a(f"s_cbranch_scc1 {t}")
        a(f"s_branch {targets[3]}")
    def init_state():
        a(f"s_mov_b32 s{sXM}, 0"); a(f"s_mov_b32 s{sRing}, {WBASE}")
        a(f"s_mov_b32 s{sSig}, 1"); a(f"s_mov_b32 s{sP}, 0"); a(f"s_xor_b32 s{sFirst}, s{sGrp}, 1"); a(f"s_lshl_b32 s{sWin}, s{sGrp}, 3")
        a(f"s_mov_b32 s{sStInc}, 0"); a(f"s_mov_b32 s{sStO}, s{sDry+1}"); a(f"s_add_u32 s{sStO2}, s{sStO}, 98304"); a(f"s_mov_b32 s{sTgt}, 0")
        a(f"s_mov_b32 s{sO+2}, 0"); a(f"s_mov_b32 s{sDry}, 0")
    init_state()
    a(f"v_mov_b32 v{vSt}, 0")
    a(f"s_cmp_eq_u32 s{sGrp}, 0"); a("s_cbranch_scc0 Ldry_skip")
    addresses()
    a("v_bfe_u32 v35, v37, 3, 1"); a("v_lshl_add_u32 v35, v35, 2, v33")
    a("v_and_b32 v36, 1, v35"); a("v_lshlrev_b32 v36, 4, v36"); a("v_mov_b32 v38, 0x3f80"); a("v_lshlrev_b32 v36, v36, v38")
    a("v_lshrrev_b32 v35, 1, v35"); a("v_lshl_add_u32 v35, v32, 2, v35")
    a("v_bfe_u32 v38, v37, 2, 1"); a("v_cmp_eq_u32 vcc, v38, v31"); a("s_nop 1"); a("v_cndmask_b32 v35, 8, v35, vcc")
    for d in range(8):
        a(f"v_cmp_eq_u32 vcc, {d}, v35"); a("s_nop 1"); a(f"v_cndmask_b32 v{40+d}, 0, v36, vcc")
    a(f"ds_write_b128 v{vL16}, v[40:43] offset:{IBASE}"); a(f"ds_write_b128 v{vL16}, v[44:47] offset:{IBASE + 1024}")
    prep_convert()
    if cfg.WARM:
        enter(["Lc1", "Ldry0", "Ljoin", "Ldry3"])
        a("Ldry_ret:"); a("s_setvskip 0, 0"); a("s_mov_b64 exec, -1"); a("s_setprio 0"); a(f"s_mov_b32 s{sWsrc}, s{sDry+2}")
        init_state()
        a(f"s_mov_b32 s{sRing}, s{sSave}"); a(f"s_mov_b32 s{sSig}, s{sSave+1}")
        for k, n in ((1, "Ldry_B"), (2, "Ldry_B2"), (3, "Ldry_B3")): a(f"s_cmp_eq_u32 s{sDry+3}, {k}"); a(f"s_cbranch_scc1 {n}")
    a("Ldry_skip:")
    a("s_waitcnt vmcnt(9)")
    a("v_cmp_eq_u32 vcc, 2, v18"); a("v_lshlrev_b32 v29, 16, v29"); a("s_nop 0"); a("v_cndmask_b32 v29, 0, v29, vcc"); a("v_or_b32 v26, v26, v29")
    a("v_mov_b32 v29, 0"); a("v_mov_b32 v30, 0"); a("v_mov_b32 v31, 0")
    a(f"v_lshrrev_b32 v33, 2, v19"); a(f"v_mul_u32_u24 v33, {TGRP}, v33"); a("v_lshl_add_u32 v33, v18, 5, v33")
    a("v_and_b32 v34, 1, v19"); a("v_mul_u32_u24 v34, 400, v34"); a("v_bfe_u32 v35, v19, 1, 1"); a("v_mul_u32_u24 v35, 192, v35"); a("v_add3_u32 v33, v33, v34, v35")
    a("v_cmp_gt_u32 vcc, 480, v0"); a("s_and_saveexec_b64 s[72:73], vcc")
    a(f"ds_write_b128 v33, v[24:27] offset:{TBASE}"); a(f"ds_write_b128 v33, v[28:31] offset:{TBASE + 16}")
    a("s_mov_b64 exec, -1")
    a("v_mov_b32 v28, 0")
    a("v_cmp_eq_u32 vcc, 4, v18"); a("s_and_saveexec_b64 s[72:73], vcc")
    a(f"ds_write_b128 v33, v[28:31] offset:{TBASE + 32}"); a(f"ds_write_b128 v33, v[28:31] offset:{TBASE + 48}")
    a("v_and_b32 v34, 3, v19"); a("v_cmp_eq_u32 vcc, 2, v34"); a("s_and_b64 exec, exec, vcc")
    a(f"ds_write_b128 v33, v[28:31] offset:{TBASE + 64}")
    a("s_mov_b64 exec, -1")
    a("v_mov_b32 v33, 0")
    for o in (0, 16, 32): a(f"ds_write_b128 v33, v[28:31] offset:{TPAD + o}")
    a(f"ds_write_b128 v33, v[28:31] offset:{CBASE}")
    if cfg.STAMP:
        a("v_mov_b32 v16, 0"); a("v_mov_b32 v17, 0"); a("v_writelane_b32 v16, s92, 60"); a("v_writelane_b32 v16, s96, 56")
        a("v_writelane_b32 v16, s98, 54"); a("v_writelane_b32 v16, s100, 57")
        P += stamp(16, 61)
        a(f"s_mov_b32 s96, {cfg.SMASK & 0xffffffff:#x}"); a(f"s_mov_b32 s97, {(cfg.SMASK >> 32) & 0xffffffff:#x}")
    a(f"s_cmp_eq_u32 s{sGrp}, 0"); a("s_cbranch_scc0 Lpro_w4")
    P += [i.text for i in csetup()]
    a("s_waitcnt vmcnt(0) lgkmcnt(0)"); P += stamp(16, 58)
    a(f"s_cmp_lt_u32 s{sFrag}, {NPROD}"); a("s_cbranch_scc0 Lflag_done"); a(f"s_lshl_b32 s{sT+2}, s{sFrag}, 2")
    a("s_mov_b64 exec, 1"); a(f"buffer_store_dword v48, v49, s[32:35], s{sT+2} offen sc0 sc1"); a("s_mov_b64 exec, -1")
    P += stamp(16, 57); a("Lflag_done:")
    a(f"s_mov_b32 s{sWsrc}, {8 * WSET}"); a(f"s_lshl_b32 s{sXrow}, s{sJ}, 1"); a(f"s_add_u32 s{sXrow}, s{sXrow}, 20")
    a("s_barrier")
    P += stamp(17, 58); a("s_branch Lc1")
    a("Lpro_w4:")
    a(f"s_mov_b64 exec, s[{sEx48}:{sEx48+1}]")
    a(f"s_and_b32 s{sXrow}, s{sJ}, 1"); a(f"s_add_u32 s{sXrow}, s{sXrow}, 8")
    for r in range(2):
        P += row_setup()
        a(f"s_cmp_lt_u32 s{sJ}, 2"); a(f"s_cbranch_scc0 Lpro_h{r}")
        for g in row_loads()[:5]: P += g
        a(f"s_branch Lpro_g{r}"); a(f"Lpro_h{r}:")
        for g in row_loads()[5:] + row_loads()[8:]: P += g
        a(f"Lpro_g{r}:"); a(f"s_add_u32 s{sXrow}, s{sXrow}, 2")
        if r == 0: a("s_waitcnt vmcnt(5) lgkmcnt(0)"); P += stamp(16, 58); a("s_barrier")
    a("s_mov_b64 exec, -1")
    a("s_waitcnt vmcnt(5)"); a("s_barrier"); a("s_waitcnt vmcnt(0)"); a("s_barrier")
    P += stamp(17, 50)
    addresses()
    if cfg.WARM:
        enter(["Lbody2P", "Lq12", "Lhalf2", "Lq32"], 1); a("Ldry_B:")
    a(f"v_mov_b32 v18, {CBASE + 8}"); a(f"s_cmp_eq_u32 s{sJ}, 0"); a("s_cbranch_scc0 Lmode_wait")
    a(f"v_lshrrev_b32 v20, 2, v{vL16}"); a(f"s_mov_b32 s{sT}, {cfg.POLLS}"); a(f"s_mov_b32 s{sMode}, 2")
    P += stamp(17, 51)
    a("Lpoll_g:"); a("buffer_load_dword v19, v20, s[32:35], 0 offen sc1"); a("s_waitcnt vmcnt(0)")
    a("v_cmp_ne_u32 vcc, 0, v19"); a(f"s_bcnt1_i32_b64 s{sT+2}, vcc"); a(f"s_cmp_eq_u32 s{sT+2}, {NPROD}"); a("s_cbranch_scc1 Lpoll_ok")
    a("s_sleep 12"); a(f"s_sub_u32 s{sT}, s{sT}, 1"); a(f"s_cmp_lg_u32 s{sT}, 0"); a("s_cbranch_scc1 Lpoll_g"); a("s_branch Lmode_set")
    a("Lpoll_ok:")
    P += stamp(17, 52)
    if cfg.STAMP: a(f"v_writelane_b32 v17, s{sT}, 53")
    for bit, want in ((2, 0), (4, 1), (8, 1)):
        a(f"v_and_b32 v21, {bit}, v19"); a("v_cmp_ne_u32 vcc, 0, v21"); a("s_cmp_lg_u64 vcc, 0"); a(f"s_cbranch_scc{1 - want} Lmode_set")
    a(f"s_mov_b32 s{sMode}, {cfg.FORCE or 1}")
    a("Lmode_set:"); a(f"v_mov_b32 v19, s{sMode}"); a("ds_write_b32 v18, v19")
    a("Lmode_wait:"); a("ds_read_b32 v19, v18"); a("s_waitcnt lgkmcnt(0)"); a(f"v_readfirstlane_b32 s{sMode}, v19")
    a(f"s_cmp_eq_u32 s{sMode}, 0"); a("s_cbranch_scc1 Lmode_wait")
    P += stamp(16, 59)
    a(f"s_cmp_eq_u32 s{sMode}, 1"); a("s_cbranch_scc1 Lmode_P")
    P += wparams("R", 1)
    a("Lmode_P:")
    for q in range(1, 4):
        for g in wdma_groups(f"{WBASE + q * WSET}"): P += g
    if cfg.WARM:
        enter(["Lbody1P", "Lq11", "Lhalf1", "Lq31"], 2); a("Ldry_B2:")
    a("s_waitcnt vmcnt(6)"); a("s_barrier")
    assert D == 3
    P += bar_lines()
    for g in wdma_interval(): P += g
    a(f"s_lshl_b32 s{sXrow}, s{sJ}, 1"); a(f"s_add_u32 s{sXrow}, s{sXrow}, 12"); a(f"s_mov_b64 exec, s[{sEx48}:{sEx48+1}]")
    P += row_dma_lines(); a(f"s_add_u32 s{sXrow}, s{sXrow}, 1")
    P += row_dma_lines(); a(f"s_add_u32 s{sXrow}, s{sXrow}, 7")
    a("s_mov_b64 exec, -1")
    P += bar_lines("s_waitcnt vmcnt(18)")
    for g in wdma_interval(): P += g
    if cfg.WARM:
        enter(["LconvP", "Ldry1", "Lbody0P", "Lhalf0"], 3); a("Ldry_B3:")
    a(f"s_cmp_eq_u32 s{sMode}, 1"); a("s_cbranch_scc0 LouterR")
    return P

def build():
    D = cfg.D
    out = []
    hdr = ["; fused depthwise 5x5 + LayerNorm + MLP(GELU) + residual; generated by gen/gen.py",
           f"; @launch grid=(256,1,1) block=(512,1,1) lds={LDS_BYTES}",
           '.amdgcn_target "amdgcn-amd-amdhsa--gfx950"', ".text", f".globl {KNAME}", ".p2align 8", f".type {KNAME},@function", f"{KNAME}:"]
    out += hdr
    def raw(lines):
        for l in lines: out.append(l if l.endswith(":") or l.startswith(".") else "    " + l)
    raw(prologue())
    for m in "PR":
        MODE[0] = m
        epi0, epi1 = csetup(), epilogue(True)
        cs = cstage()
        bodies = [loop_body(0), loop_body(1), loop_body(2)]
        marks = [LABEL(n) for n in ("@c", "@a1", "@a2", "@b2", "@e0", "@x", "@e1", "@end")]
        lin = [marks[0]] + cs + [marks[1]] + bodies[0] + [marks[2]] + bodies[0] + [marks[3]] + bodies[1] + [marks[4]] + epi0 + [marks[5]] + bodies[2] + [marks[6]] + epi1 + [marks[7]]
        lin, pend = insert_lgkm(lin, cfg.OLD); assert not pend
        lin, _ = fix_hazards(lin)
        idx = [next(k for k, i in enumerate(lin) if i is m) for m in marks]
        cst, a1, a2, b2, e0, n2, e1 = (lin[idx[k] + 1: idx[k + 1]] for k in range(7))
        n1 = sum(states(i) for i in a1 if i.kind == "nop") - sum(states(i) for i in a2 if i.kind == "nop")
        assert [i.text for i in a1 if i.kind != "nop"] == [i.text for i in a2 if i.kind != "nop"]
        if n1 > 0: cst = cst + [Ins(f"s_nop {n1 - 1}", "nop")]
        for path in ([cst, n2, a2, a2, b2, a2, e0, cst, b2, a2, e1], [cst, n2, n2, e0, cst, n2, n2, e1]):
            seq = [i for blk in path for i in blk]
            _, bad = fix_hazards(seq, check_only=True); assert not bad, bad
            assert not check_lgkm(seq)
        def emit(blk):
            for i in blk:
                if i.kind == "touch": continue
                for l in i.text.split("\n"): out.append(l if i.kind in ("label", "opaque", "dsw_op") or l.startswith("    ") or l.endswith(":") else "    " + l)
        if m == "P":
            c1, pend = insert_lgkm(e0 + [LABEL("@")] + conv_first(), cfg.OLD); c1, _ = fix_hazards(c1)
            c1 = c1[[i.text for i in c1].index("@:") + 1:]
            kj = [k for k, i in enumerate(cst) if "Ljoin:" in i.text][0]
            _, bad = fix_hazards(c1 + cst[kj:], check_only=True); assert not bad, bad
            check_lgkm(c1 + cst[kj:])
            raw(["s_branch LouterP", "Lc1:"]); emit(c1); raw(dry_exit() + ["s_branch Ljoin"])
        out.append(f"Louter{m}:")
        emit(e0)
        raw(bar_lines())
        raw([f"s_cmp_eq_u32 s{sGrp}, 0", f"s_cbranch_scc0 Lno_w{m}"] + [l for g in wdma_interval() for l in g] + [f"Lno_w{m}:"])
        out.append(f"Lconv{m}:")
        emit(cst)
        raw(dry_exit())
        raw([f"s_or_b32 s{sT}, s{sGrp}, s{sFirst}", f"s_cbranch_scc0 LloopX{m}",
             f"s_cmp_lg_u32 s{sFirst}, 0", f"s_cselect_b32 s{sCnt}, 2, 6", f"s_branch LloopN{m}"])
        tail = [f"s_add_u32 s{sWin}, s{sWin}, 4", f"s_cmp_ge_u32 s{sWin}, {NR}", f"s_cselect_b32 s{sWin}, 0, s{sWin}",
                f"s_add_u32 s{sP}, s{sP}, 1", f"s_cmp_eq_u32 s{sP}, 1", f"s_cbranch_scc1 Louter{m}"]
        raw([".p2align 6", f"LloopX{m}:"]); emit(b2)
        raw(dry_exit() + [f"s_mov_b32 s{sXM}, 1", f"s_cmp_eq_u32 s{sP}, 0", f"s_cselect_b32 s{sCnt}, 1, 5", "s_waitcnt vmcnt(18)", f"s_branch Lnowait0{m}"])
        raw([".p2align 6", f"LloopA{m}:"]); emit(a2)
        raw([f"s_sub_u32 s{sCnt}, s{sCnt}, 1", f"s_cmp_lg_u32 s{sCnt}, 0", f"s_cbranch_scc1 LloopA{m}"] + dry_exit() +
            [f"s_cmp_eq_u32 s{sXM}, 0", f"s_cbranch_scc1 LloopX{m}"] + tail)
        k6 = [k for k, i in enumerate(e1) if i.kind == "vstore"][5] + 1
        raw(bar_lines()); raw([l for g in wdma_interval() for l in g]); emit(e1[:k6])
        raw(bar_lines("s_waitcnt vmcnt(6)")); raw([l for g in wdma_interval() for l in g]); emit(e1[k6:])
        raw(stamp(16, 62))
        raw(bar_lines("s_waitcnt vmcnt(6)")); raw([l for g in wdma_interval() for l in g])
        raw(bar_lines())
        raw(["s_branch Lfin"])
        raw([".p2align 6", f"LloopN{m}:"]); emit(n2)
        raw([f"s_sub_u32 s{sCnt}, s{sCnt}, 1", f"s_cmp_lg_u32 s{sCnt}, 0", f"s_cbranch_scc1 LloopN{m}"] + dry_exit() + [
             f"s_cmp_lg_u32 s{sFirst}, 0", f"s_mov_b32 s{sFirst}, 0", f"s_mov_b32 s{sCnt}, 2", f"s_cbranch_scc1 LloopA{m}"] + tail)
        out.append(f"Lepi1{m}:")
        emit(e1)
        raw(dry_exit())
        raw(stamp(16, 62))
        raw(["s_branch Lfin"] if m == "P" else [])
        if m == "P": out.append("Lraw:")
    out.append("Lfin:")
    if cfg.STAMP:
        raw(["s_waitcnt vmcnt(0)"] + stamp(16, 63) + ["s_memrealtime s[98:99]", "s_waitcnt lgkmcnt(0)", "v_writelane_b32 v16, s98, 55",
             "s_load_dwordx2 s[94:95], s[0:1], 56", "s_waitcnt lgkmcnt(0)", "s_mov_b32 s28, s94", "s_and_b32 s29, s95, 0xffff", "s_mov_b32 s30, 0x1000000", "s_mov_b32 s31, 0x20000",
             f"s_lshl_b32 s89, s{sGrp}, 2", f"s_add_u32 s89, s89, s{sJ}", "s_lshl_b32 s90, s2, 3", "s_add_u32 s89, s89, s90", "s_lshl_b32 s89, s89, 9", "s_add_u32 s89, s89, 0x100000",
             f"v_lshrrev_b32 v18, 2, v{vL16}", "buffer_store_dword v16, v18, s[28:31], s89 offen", "buffer_store_dword v17, v18, s[28:31], s89 offen offset:256"])
    if cfg.DBG:
        raw(["s_waitcnt vmcnt(0)", "s_memtime s[90:91]", "s_memrealtime s[96:97]", "s_load_dwordx2 s[98:99], s[0:1], 48", "s_waitcnt lgkmcnt(0)",
             "s_sub_u32 s90, s90, s92", "s_sub_u32 s96, s96, s94", "s_mov_b32 s28, s98", "s_and_b32 s29, s99, 0xffff", "s_mov_b32 s30, 64", "s_mov_b32 s31, 0x20000",
             f"s_cmp_eq_u32 s{sGrp}, 1", "s_cbranch_scc0 Lend", f"s_cmp_eq_u32 s{sJ}, 0", "s_cbranch_scc0 Lend",
             "s_lshr_b32 s89, s2, 5", "s_lshl_b32 s89, s89, 3", "s_and_b32 s91, s2, 31", "s_cmp_eq_u32 s91, 0", "s_cbranch_scc0 Lend",
             "v_mov_b32 v16, s90", "v_mov_b32 v17, s96", "v_mov_b32 v18, 0", "s_mov_b64 exec, 1", "buffer_store_dwordx2 v[16:17], v18, s[28:31], s89 offen"])
    raw(["Lend:", "s_endpgm"])
    raw(["Lw1wait:", "s_barrier", f"ds_read_b32 v{T0+1}, v{T0} offset:8", "s_waitcnt lgkmcnt(0)", f"v_readfirstlane_b32 s{sMode}, v{T0+1}",
         f"s_cmp_eq_u32 s{sMode}, 1", "s_cbranch_scc1 Lw1wait_retP"] + wparams("R", 8) + ["s_branch Lw1wait_retR"])
    if cfg.ALIGN:
        tmp, npad, nwid = align8([l.replace("CODE_LAST", "0x1000") for l in out], "Lc1", "Lend")
        out = [l.replace("v38, 0x1000", "v38, CODE_LAST") for l in tmp]
        sys.stderr.write(f"align8: {npad} pads, {nwid} widened\n")
    nbytes = sum(insn_sizes([l.replace("CODE_LAST", "0x1000") for l in out])[:out.index("Lraw:")])
    out = [l.replace("CODE_LAST", str(nbytes // 64 * 64 - 128)) for l in out]
    assert nbytes <= 32768
    out += ['.section .rodata,"a"', ".p2align 6", f".amdhsa_kernel {KNAME}", "  .amdhsa_next_free_vgpr 256", f"  .amdhsa_next_free_sgpr {102 if cfg.STAMP or cfg.DBG else 96}",
            "  .amdhsa_accum_offset 256", "  .amdhsa_group_segment_fixed_size 0", "  .amdhsa_kernarg_size 64", "  .amdhsa_user_sgpr_count 2",
            "  .amdhsa_user_sgpr_kernarg_segment_ptr 1", "  .amdhsa_system_sgpr_workgroup_id_x 1", ".end_amdhsa_kernel"]
    return "\n".join(out) + "\n"

open(sys.argv[1], "w").write(build())
```

```python
import sys, struct, math
import numpy as np, re
from asmlib import *

class Cfg:
    D = 3
    GELU = "B"
    PRIO = 1
    CPRIO = 3
    XF = 'nt'
    OF = 'sc0+sc1'
    WF = 'sc1'
    ALIGN = True
    STAMP = False
    SMASK = -1
    OLD = 200
    LAST = True
    PKST = 0
    MIDU = 33
    NBUF = 2
    RT = False
    NOINV = False
    FORCE = 0
    POLLS = 300
    S64 = True
    DBG = False
    WARM = True
    HW64 = True
    PBASE = 3
    ABL = ''
    CST = False
    PKS = 0
    PKN = True
    W1G = True
    R2 = False
    NOSTAT = False
    NOCRD = False
    N0 = 15
    WLATE = True
cfg = Cfg()
for a in sys.argv[2:]:
    k, v = a.split("=")
    setattr(cfg, k, type(getattr(cfg, k))(v) if not isinstance(getattr(cfg, k), bool) else v in ("1", "True"))

KNAME = "standalone__modern_conv_block_replknet__vision_kernel"
XS = 7104; NR = 12
TPAD = 0
TBASE = 48
TGRP = 784
IBASE = TBASE + 24 * TGRP
PBASE = IBASE + 2048
CBASE = PBASE + 8192
WBASE = CBASE + 16
WSET = 12288
XBASE = WBASE + 4 * WSET
LDS_BYTES = XBASE + NR * XS
assert LDS_BYTES <= 163840, LDS_BYTES
assert WBASE % 16 == 0 and IBASE % 16 == 0
vColB, vHwA, vRes, vHr, vTa, vSt, vW1b, vW2b, vW1c, vW2c, vDMA, vOffL, vOffR, vL16 = range(1, 15)
T0 = 18
G = 24
W2F = 32
W1F = 56
ACC1 = (80, 96)
H = 112
ACC2 = 160
def acc2(X, b): return ACC2 + 48 * X + 16 * b
cBuf = (56, 68, 80)
cAddr = 104
cTa, cIdx, cRes, cHw, cHr = 107, 108, 109, 110, 111
XF = [32, 36, 40, 44, 48, 52, 92, 96, 100, 80, 84, 88]
sX, sO, sW = 16, 20, 24
sGrp, sJ, sTx, sTy, sSig, sRing, sWsrc, sWstep, sWlim, sWins, sWbase, sP, sCnt = range(36, 49)
sA16, sK16, sStO = 49, 50, 51
sWin, sXrow, sFirst = 63, 64, 65
sXM, sXinc = 66, 67
sExX = 68
sAdjL = 70
sT = 71
sEx48 = 80
sInv96, sEps, sKap = 82, 83, 84
sDry = 56
sFrag, sMode, sThird = 62, 3, 60
sSave = 68
sStO2, sTgt = 52, 53
sFres, sFh = 54, 55
sXo, sXm = 85, 86
sStInc = 87
s1k = 89
sJ3k = 88
RSUM = 2 * WBASE + 2 * WSET

def f32bits(x): return struct.unpack("<I", struct.pack("<f", x))[0]
def f16bits(x): return int(np.float16(x).view(np.uint16))
a_c = -2.0 * math.log2(math.e) * math.sqrt(2.0 / math.pi)
b_c = a_c * 0.044715
kap = -((-b_c) ** (1.0 / 3.0))
if cfg.GELU in ("B",):
    kap_use = float(np.float16(kap))
    A_imm = f16bits(a_c / kap_use) * 0x10001
    K_imm = f16bits(kap_use) * 0x10001
else:
    kap_use = kap
    A_imm = f32bits(a_c / kap)
    K_imm = f32bits(kap)

def fl(s): return ''.join(' ' + w for w in s.split('+') if w)
uid = [0]
MODE = ['P']
NPROD = 36
def lab(p):
    uid[0] += 1
    return f"L{p}_{uid[0]}"

def opaque(lines):
    return Ins("\n".join("    " + l if not l.endswith(":") else l for l in lines), "opaque", cost=0)

def stamp(vreg, lane):
    if not cfg.STAMP: return []
    return ["s_memtime s[90:91]", f"s_mov_b32 m0, {lane}", "s_waitcnt lgkmcnt(0)", f"v_writelane_b32 v{vreg}, s90, m0"]
def cstamp(vreg):
    if not cfg.STAMP: return []
    if cfg.RT:
        if vreg == 16: return []
        return stamp(17, f"s{sSig}") + [x.replace("s_memtime", "s_memrealtime") for x in stamp(16, f"s{sSig}")]
    if cfg.SMASK == -1: return stamp(vreg, f"s{sSig}")
    l = lab("s")
    return [f"s_bitcmp1_b64 s[96:97], s{sSig}", f"s_cbranch_scc0 {l}"] + stamp(vreg, f"s{sSig}") + [f"{l}:"]

def wdma_groups(dst):
    out = []
    for u in range(3):
        g = [f"s_add_u32 m0, {dst}, s{sJ3k}", f"s_add_u32 s{sT+8}, s{sWsrc}, s{sWbase}"] if u == 0 else \
            [f"s_add_u32 m0, m0, s{s1k}", f"s_add_u32 s{sT+8}, s{sT+8}, s{sWins}"]
        g.append(f"buffer_load_dwordx4 v{vDMA}, s[{sW}:{sW+3}], s{sT+8} offen{fl(cfg.WF)} lds")
        if u == 2: g += [f"s_add_u32 s{sWsrc}, s{sWsrc}, s{sWstep}", f"s_cmp_eq_u32 s{sWsrc}, s{sWlim}", f"s_cselect_b32 s{sWsrc}, 0, s{sWsrc}"]
        out.append(g)
    return out
def wdma_interval():
    g = wdma_groups(f"s{sT+7}") + wdma_groups(f"s{sT+7}")
    g[0] = [f"s_sub_u32 s{sT+7}, {RSUM}, s{sRing}"] + g[0]
    g[3] = [f"s_add_u32 s{sT+7}, s{sT+7}, {WSET}"] + g[3]
    return g

def row_setup():
    t0, t1, t2 = sT, sXo, sT + 1
    return [f"s_lshl_b32 s{t0}, s{sTy}, 5", f"s_add_u32 s{t0}, s{t0}, s{sXrow}", f"s_sub_u32 s{t0}, s{t0}, 2",
            f"s_mul_i32 s{t1}, s{t0}, 98304", f"s_mul_i32 s{t2}, s{sTx}, 6144", f"s_add_u32 s{t1}, s{t1}, s{t2}",
            f"s_cmp_lt_u32 s{t0}, 512", f"s_cselect_b32 s{t1}, s{t1}, 0x80000000",
            f"s_cmp_ge_u32 s{sXrow}, 24", f"s_cselect_b32 s{t2}, 24, 0", f"s_sub_u32 s{t0}, s{sXrow}, s{t2}",
            f"s_cmp_ge_u32 s{t0}, 12", f"s_cselect_b32 s{t2}, 12, 0", f"s_sub_u32 s{t0}, s{t0}, s{t2}",
            f"s_and_b32 s{t2}, s{sXrow}, 4", f"s_lshl_b32 s{t2}, s{t2}, 1", f"s_mul_i32 s{t0}, s{t0}, {XS}", f"s_add_u32 s{t0}, s{t0}, s{t2}",
            f"s_add_u32 s{sXm}, s{t0}, {XBASE}"]
def row_loads():
    out = [[f"s_mov_b32 m0, s{sXm}", f"s_sub_u32 s{sT}, s{sXo}, s{sAdjL}", f"buffer_load_dwordx4 v{vOffL}, s[{sX}:{sX+3}], s{sT} offen{fl(cfg.XF)} lds"]]
    for a in range(1, 9):
        out.append([f"s_add_u32 m0, s{sXm}, {784 * a}", f"s_add_u32 s{sT}, s{sXo}, {768 * a - 384}",
                    f"buffer_load_dwordx4 v{vOffR if a == 8 else vL16}, s[{sX}:{sX+3}], s{sT} offen{fl(cfg.XF)} lds"])
    return out
def row_dma_lines(): return row_setup() + [l for g in row_loads() for l in g]

def bar_lines(wait="s_waitcnt vmcnt(0)"):
    L = cstamp(16) + ([wait] if wait else []) + ["s_barrier"] + cstamp(17)
    L += [f"s_sub_u32 s{sRing}, {RSUM}, s{sRing}"]
    if cfg.STAMP: L += [f"s_add_u32 s{sSig}, s{sSig}, 1"]
    return L

def gelu_B(Sr):
    ops = []
    def st(p, k):
        a0 = Sr + 2 * p; a1 = a0 + 1; t = T0 + (p % 2) * 3; u = t + 1; w = t + 2
        return [V(f"v_cvt_pk_f16_f32 v{t}, v{a0}, v{a1}"),
                V(f"v_pk_fma_f16 v{u}, v{t}, v{t}, s{sA16}"),
                V(f"v_pk_mul_f16 v{t}, v{t}, v{u}"),
                V(f"v_exp_f16 v{u}, v{t}"),
                V(f"v_exp_f16_sdwa v{u}, v{t} dst_sel:WORD_1 dst_unused:UNUSED_PRESERVE src0_sel:WORD_1"),
                V(f"v_pk_fma_f16 v{t}, v{u}, s{sK16}, s{sK16}"),
                V(f"v_rcp_f16 v{u}, v{t}"),
                V(f"v_rcp_f16_sdwa v{w}, v{t} dst_sel:DWORD dst_unused:UNUSED_PAD src0_sel:WORD_1"),
                V(f"v_fma_mix_f32 v{u}, v{a0}, v{u}, 0 op_sel_hi:[0,1,0]"),
                V(f"v_fma_mix_f32 v{w}, v{a1}, v{w}, 0 op_sel_hi:[0,1,0]"),
                V(f"v_cvt_pk_bf16_f32 v{G+p}, v{u}, v{w}")][k]
    for q in range(0, 8, 2):
        for k in range(11):
            ops += [st(q, k), st(q + 1, k)]
    return ops

def gelu_A(Sr):
    ops = []
    for q in range(0, 16, 4):
        for k in range(6):
            for e in range(4):
                a = Sr + q + e; r = T0 + e
                ops.append([V(f"v_fma_f32 v{r}, v{a}, v{a}, s{sA16}"), V(f"v_mul_f32 v{r}, v{a}, v{r}"), V(f"v_exp_f32 v{r}, v{r}"),
                            V(f"v_fma_f32 v{r}, v{r}, s{sK16}, s{sK16}"), V(f"v_rcp_f32 v{r}, v{r}"), V(f"v_mul_f32 v{r}, v{a}, v{r}")][k])
        ops += [V(f"v_cvt_pk_bf16_f32 v{G+q//2}, v{T0}, v{T0+1}"), V(f"v_cvt_pk_bf16_f32 v{G+q//2+1}, v{T0+2}, v{T0+3}")]
    return ops
def gelu_C(Sr):
    ops = []
    def st(p, k):
        a0 = Sr + 2 * p; a1 = a0 + 1; t = T0 + (p % 2) * 3; u = t + 1; w = t + 2
        return [V(f"v_cvt_pk_f16_f32 v{w}, v{a0}, v{a1}"),
                V(f"v_pk_fma_f16 v{u}, v{w}, v{w}, s{sA16}"),
                V(f"v_pk_mul_f16 v{t}, v{w}, v{u}"),
                V(f"v_exp_f16 v{u}, v{t}"),
                V(f"v_exp_f16_sdwa v{u}, v{t} dst_sel:WORD_1 dst_unused:UNUSED_PRESERVE src0_sel:WORD_1"),
                V(f"v_pk_fma_f16 v{t}, v{u}, s{sK16}, s{sK16}"),
                V(f"v_rcp_f16 v{u}, v{t}"),
                V(f"v_rcp_f16_sdwa v{u}, v{t} dst_sel:WORD_1 dst_unused:UNUSED_PRESERVE src0_sel:WORD_1"),
                V(f"v_pk_mul_f16 v{G+p}, v{w}, v{u}")][k]
    for q in range(0, 8, 2):
        for k in range(9):
            ops += [st(q, k), st(q + 1, k)]
    return ops
def gelu(Sr): return gelu_C(Sr) if MODE[0] == "P" else gelu_B(Sr)

TR = "ds_read_b64_tr_b16"
def rd_w1(j, c):
    if MODE[0] == "P": return [DSR("ds_read_b128", W1F + 4 * j, 4, vW1c, f"offset:{WSET * c + 1024 * j}")]
    return [DSR(TR, W1F + 4 * j + 2 * r, 2, vW1c, f"offset:{WSET * c + 1024 * j + 256 * r}") for r in range(2)]
def rd_w2(sp, b, c):
    if MODE[0] == "P": return [DSR("ds_read_b128", W2F + 12 * sp + 4 * b, 4, vW1c, f"offset:{WSET * c + 6144 + 1024 * (3 * sp + b)}")]
    return [DSR(TR, W2F + 12 * sp + 4 * b + 2 * r, 2, vW2c, f"offset:{WSET * c + 6144 + (16 * sp + 8 * r) * 192 + 64 * b}") for r in range(2)]
def g1(X, j):
    return MFMA("32x32x16", ACC1[X], W1F + 4 * j, H + 8 * j + 4 * X, None if j == 0 else ACC1[X])
def g2(X, sp, b):
    return (MFMA16 if MODE[0] == "P" else MFMA)("32x32x16", acc2(X, b), W2F + 12 * sp + 4 * b, G + 4 * sp, acc2(X, b))
def w_addr():
    if MODE[0] == "P": return [V(f"v_add_u32 v{vW1c}, s{sRing}, v{vL16}")]
    return [V(f"v_add_u32 v{vW1c}, s{sRing}, v{vW1b}"), V(f"v_add_u32 v{vW2c}, s{sRing}, v{vW2b}")]

def step(X, c, extra):
    Y = 1 - X
    ld = (X == 0)
    att = [[g2(Y, 1, 0)] + (rd_w2(1, 0, c) if ld else []),
           [g1(Y, 0)] + (rd_w2(0, 0, c) + rd_w1(0, c) if ld else []),
           [g2(Y, 1, 1)] + (rd_w2(0, 1, c) + rd_w2(1, 1, c) if ld else []),
           [g1(Y, 1)] + (rd_w2(0, 2, c) + rd_w1(1, c) if ld else []),
           [g2(Y, 1, 2)] + (rd_w2(1, 2, c) if ld else []),
           [g1(Y, 2)] + (rd_w1(2, c) if ld else []),
           [g1(Y, 3)] + (rd_w1(3, c) if ld else []),
           [g2(X, 0, 0)],
           [g1(Y, 4)] + (rd_w1(4, c) if ld else []),
           [g2(X, 0, 1)],
           [g1(Y, 5)] + (rd_w1(5, c) if ld else []),
           [g2(X, 0, 2)]]
    for k, v in extra.items(): att[k] = att[k] + v
    ops = gelu(ACC1[X])
    return ops[:2] + interleave(ops[2:], att)

def loop_body(grp):
    bl = bar_lines()
    k = bl.index("s_waitcnt vmcnt(0)")
    L = [opaque(bl[:k + 1] + [f"Lnowait{grp}{MODE[0]}:"] + bl[k + 1:] + [f"Lbody{grp}{MODE[0]}:"])]
    L += w_addr()
    ex = [{}, {}, {}, {}]
    if grp in (0, 1):
        for k, g in enumerate(wdma_interval()):
            ex[k // 3 if k < 3 else 1][(7, 9, 11)[k] if k < 3 else (1, 3, 5)[k - 3]] = [opaque(g)]
    if grp == 1:
        rl = row_loads()
        for r in range(2):
            for k in range(3):
                blk = (row_setup() if k == 0 else []) + [f"s_mov_b64 exec, s[{sEx48}:{sEx48+1}]"] + rl[3 * k] + rl[3 * k + 1] + rl[3 * k + 2] + ["s_mov_b64 exec, -1"]
                if k == 2: blk += [f"s_add_u32 s{sXrow}, s{sXrow}, {7 if r else 1}"]
                st, sl = ((1, 8), (1, 11), (2, 7), (2, 11), (3, 3), (3, 7))[3 * r + k]
                ex[st][sl] = [opaque(blk)]
    for k in range(4):
        if k == 2: L += dry_point(f"Lhalf{grp}")
        if k in (1, 3) and grp in (1, 2): L += dry_point(f"Lq{k}{grp}")
        if cfg.PRIO: L.append(S(f"s_setprio {max(cfg.PBASE - k, 0)}"))
        L += step(k & 1, k >> 1, ex[k])
    return L

def last_body():
    L = [opaque(bar_lines() + [f"Lbody3{MODE[0]}:"])]
    L += w_addr()
    def g1x(X, acc, j): return MFMA("32x32x16", ACC1[acc], W1F + 4 * j, H + 8 * j + 4 * X, None if j == 0 else ACC1[acc])
    prev = T0 - 1 if False else vI_tmp
    base = vL16 if MODE[0] == "P" else vW1b
    L += [S(f"s_sub_u32 s{sT}, {RSUM}, s{sRing}"), V(f"v_add_u32 v{prev}, s{sT}, v{base}")]
    def rd_w1p(j):
        o = rd_w1(j, 1)
        return [DSR(i.text.split()[0], min(i.wr), len(i.wr), prev, i.text.split()[-1]) for i in o]
    def run(src, att, extra=()):
        ops = gelu(ACC1[src])
        main = ops[2:]
        if extra: main = interleave(main, [[e] for e in extra[0]], extra[1], 1.0)
        return ops[:2] + interleave(main, att)
    quad = [H + 8 * t for t in range(6)]
    def ocv(b): return [V(f"v_cvt_pk_bf16_f32 v{quad[2*b + i // 4] + i % 4}, v{acc2(0, b) + 2*i}, v{acc2(0, b) + 2*i + 1}") for i in range(8)]
    def ofin(b):
        o = [V(f"v_permlane16_swap_b32 v{quad[2*b] + i}, v{quad[2*b+1] + i}") for i in range(4)]
        for t in (2 * b, 2 * b + 1):
            st = store(0, t); d = quad[t]
            o.append(VMEM(re.sub(r"v\[\d+:\d+\]", vr(d, 4), st.text, 1), rd=[vSt] + list(R(d, 4)), store=True))
        return o
    w1 = lambda f: [x for j in range(6) for x in f(j)]
    L += rd_w1(0, 0) + rd_w1(1, 0) + rd_w1(2, 0)
    L += run(0, [[g2(1, 1, 0)] + rd_w2(1, 0, 0) + rd_w1(3, 0), [g2(1, 1, 1)] + rd_w2(1, 1, 0) + rd_w1(4, 0) + rd_w2(0, 0, 0), [g2(1, 1, 2)] + rd_w2(1, 2, 0) + rd_w1(5, 0) + rd_w2(0, 1, 0),
                 [g1x(0, 1, 0)] + rd_w1p(0) + rd_w2(0, 2, 0), [g1x(0, 1, 1)] + rd_w1p(1), [g1x(0, 1, 2)] + rd_w1p(2), [g1x(0, 1, 3)] + rd_w1p(3),
                 [g2(0, 0, 0)] + rd_w2(0, 0, 1), [g1x(0, 1, 4)] + rd_w1p(4), [g2(0, 0, 1)] + rd_w2(0, 1, 1), [g1x(0, 1, 5)] + rd_w1p(5), [g2(0, 0, 2)] + rd_w2(0, 2, 1)])
    L += dry_point("Lq13")
    L += run(1, [[g2(0, 1, 0)] + rd_w2(1, 0, 1), [g1x(1, 0, 0)] + rd_w1(0, 0), [g2(0, 1, 1)] + rd_w2(1, 1, 1), [g1x(1, 0, 1)] + rd_w1(1, 0), [g2(0, 1, 2)] + rd_w2(1, 2, 1),
                 [g1x(1, 0, 2)] + rd_w1(2, 0), [g1x(1, 0, 3)] + rd_w1(3, 0), [g2(0, 0, 0)] + rd_w2(0, 0, 0), [g1x(1, 0, 4)] + rd_w1(4, 0), [g2(0, 0, 1)] + rd_w2(0, 1, 0),
                 [g1x(1, 0, 5)] + rd_w1(5, 0), [g2(0, 0, 2)] + rd_w2(0, 2, 0)])
    L += dry_point("Lhalf3")
    L += run(0, [[g2(0, 1, 0)] + rd_w2(1, 0, 0), [g2(0, 1, 1)] + rd_w2(1, 1, 0), [g2(0, 1, 2)] + rd_w2(1, 2, 0), [g1x(1, 1, 0)], [g1x(1, 1, 1)], [g1x(1, 1, 2)], [g1x(1, 1, 3)],
                 [g2(1, 0, 0)] + rd_w2(0, 0, 1), [g1x(1, 1, 4)], [g2(1, 0, 1)] + rd_w2(0, 1, 1), [g1x(1, 1, 5)], [g2(1, 0, 2)] + rd_w2(0, 2, 1)],
             (ocv(0) + ocv(1)[:2] + ofin(0) + ocv(1)[2:], 0.35))
    L += dry_point("Lq33")
    L += run(1, [[g2(1, 1, 0)] + rd_w2(1, 0, 1), [g2(1, 1, 1)] + rd_w2(1, 1, 1), [g2(1, 1, 2)] + rd_w2(1, 2, 1), [], [], [], [], [g2(1, 0, 0)], [], [g2(1, 0, 1)], [], [g2(1, 0, 2)]],
             (ocv(2)[:2] + ofin(1) + ocv(2)[2:] + [V(f"v_mov_b32 v{vI_tmp}, 0"), V(f"v_mov_b32 v{vI_tmp}, 0")] + ofin(2), 0.0))
    L += [V(f"v_mov_b32 v{vI_tmp}, 0"), V(f"v_mov_b32 v{vI_tmp}, 0"), g2(1, 1, 0), g2(1, 1, 1), g2(1, 1, 2)]
    L += out_cvt(3) + out_cvt(4)[:2] + out_fin(3) + out_cvt(4)[2:] + out_cvt(5)[:2] + out_fin(4) + out_cvt(5)[2:] + [V(f"v_mov_b32 v{vI_tmp}, 0"), V(f"v_mov_b32 v{vI_tmp}, 0")] + out_fin(5)
    return L
vI_tmp = 15

def SM32(d, a, b, idx):
    ab = list(R(a, 4)) + list(R(b, 8)) + [idx]
    return Ins(f"v_smfmac_f32_32x32x32_bf16 {vr(d,16)}, {vr(a,4)}, {vr(b,8)}, v{idx}", "mfma",
               ab + list(R(d, 16)), R(d, 16), cost=12, passes=8, srcc=R(d, 16), srcab=ab)

def unit_reads(u, first=False):
    q, rho = divmod(u, 6); buf = cBuf[u % cfg.NBUF]; ta = cTa
    if first: rho, q = divmod(u, 6); ta = (cTa, 92, 93)[q // 2]
    o = 196 * (q % 2) + 8 * rho
    L = []
    if rho == 0 and q and q % 2 == 0 and not first: L.append(V(f"v_add_u32 v{cTa}, {2 * TGRP}, v{cTa}"))
    L += [DSR("ds_read2_b32", buf + 8, 2, ta, f"offset0:{o} offset1:{o+1}"), DSR("ds_read2_b32", buf + 10, 2, ta, f"offset0:{o+2} offset1:{o+3}")]
    for k, c in enumerate((0, 192, 784, 976)):
        L.append(DSR("ds_read_b64", buf + 2 * k, 2, cAddr + rho // 2, f"offset:{XS * (rho & 1) + c + 8 * q}"))
    return L

def store(X, t):
    d = H + 24 * X + 4 * t
    return VMEM(f"buffer_store_dwordx4 {vr(d,4)}, v{vSt}, s[{sO}:{sO+3}], s{sStO2 if X else sStO} offen offset:{64 * (t >> 1) + 3072 * (t & 1) if cfg.S64 else 32 * t}{fl(cfg.OF)}", rd=[vSt] + list(R(d, 4)), store=True)

def res_reads(k):
    X, s = divmod(k, 6)
    return [DSR("ds_read_b64", XF[k] + 2 * r, 2, cRes, f"offset:{XS * X + 32 * s + 8 * r}") for r in range(2)]

def pk(op, d, *src, mods=""):
    return V(f"v_pk_{op}_f32 v[{d}:{d+1}], " + ", ".join(f"v[{x}:{x+1}]" for x in src) + mods)

def signal():
    t = T0
    return [Ins(f"    s_mov_b64 exec, 1\n    ds_add_u32 v{t}, v{t+5}\n    s_mov_b64 exec, -1\n    s_add_u32 s{sTgt}, s{sTgt}, 4", "dsw_op", [t, t + 5], [])]
def poll():
    t = T0; l = lab("p")
    return [Ins(f"{l}:\n    ds_read_b32 v{t+1}, v{t}\n    s_waitcnt lgkmcnt(0)\n    v_readfirstlane_b32 s{sT+3}, v{t+1}\n"
                f"    s_cmp_ge_u32 s{sT+3}, s{sTgt}\n    s_cbranch_scc0 {l}", "waitall", [t], [t + 1])]

def cstage_setup():
    t = sT
    L = []
    for dst, add in ((sFh, 0), (sFres, 2)):
        L += [f"s_lshl_b32 s{t}, s{sJ}, 1", f"s_add_u32 s{t}, s{t}, s{sWin}", f"s_add_u32 s{t}, s{t}, {add}",
              f"s_cmp_ge_u32 s{t}, {NR}", f"s_cselect_b32 s{t+1}, {NR}, 0", f"s_sub_u32 s{t}, s{t}, s{t+1}", f"s_mul_i32 s{dst}, s{t}, {XS}"]
    L += [f"s_add_u32 s{t}, s{sJ}, 1", f"s_and_b32 s{t}, s{t}, 2", f"s_lshl_b32 s{t}, s{t}, 2", f"s_add_u32 s{sFres}, s{sFres}, s{t}"]
    return L

def dry_exit(): return [f"s_cmp_lg_u32 s{sDry}, 0", "s_cbranch_scc1 Ldry_ret"] if cfg.WARM and MODE[0] == "P" else []
def dry_point(name): return [opaque(dry_exit() + [name + ":"])] if cfg.WARM and MODE[0] == "P" else []

def cs(k):
    if not (cfg.STAMP and cfg.CST): return []
    return [Ins("\n".join("    " + l for l in [f"s_lshl_b32 s95, s{sP}, 3", f"s_add_u32 s95, s95, {30 + k}"] + stamp(17, "s95")), "waitall")]

def csetup():
    L = [S(x) for x in cstage_setup()]
    L += [S(f"s_mov_b32 s{sT}, {XS}")]
    t0, t1, t2 = T0, T0 + 1, T0 + 4
    L += [V(f"v_bfe_u32 v{t2}, v{vL16}, 7, 2"), V(f"v_lshlrev_b32 v{t2}, 1, v{t2}"), V(f"v_mov_b32 v{T0+2}, 0"), V(f"v_mov_b32 v{T0+3}, 0")]
    for k in range(3):
        if k: L += [V(f"v_add_u32 v{t2}, 2, v{t2}")]
        L += [V(f"v_add_u32 v{t0}, s{sWin}, v{t2}"), V(f"v_subrev_u32 v{t1}, {NR}, v{t0}"), V(f"v_min_u32 v{t0}, v{t0}, v{t1}"),
              V(f"v_mad_u32_u24 v{t0}, v{t0}, s{sT}, v{vColB}"), V(f"v_and_b32 v{t1}, 4, v{t2}"), V(f"v_lshl_add_u32 v{cAddr+k}, v{t1}, 1, v{t0}")]
    L += [V(f"v_mov_b32 v{cTa}, v{vTa}"), V(f"v_bfe_u32 v{cIdx}, v{vL16}, 4, 2"), V(f"v_mul_u32_u24 v{cIdx}, 0x5555, v{cIdx}")]
    L += [V(f"v_add_u32 v{cRes}, s{sFres}, v{vRes}"), V(f"v_add_u32 v{cHw}, v{cAddr}, v{vHwA}"), V(f"v_add_u32 v{cHr}, s{sFh}, v{vHr}")]
    L += [S(f"s_lshl_b32 s{sT}, s{sJ}, 11"), V(f"v_add_u32 v{T0+4}, s{sT}, v{vL16}"),
          S(f"s_lshl_b32 s{sT}, s{sGrp}, 2"), S(f"s_add_u32 s{sT}, s{sT}, {CBASE}"), V(f"v_mov_b32 v{T0}, s{sT}"), V(f"v_mov_b32 v{T0+5}, 1")]
    return L

def out_cvt(q):
    X, b = divmod(q, 3); a = acc2(X, b); d = H + 24 * X + 8 * b
    return [V(f"v_cvt_pk_bf16_f32 v{d+i}, v{a+2*i}, v{a+2*i+1}") for i in range(8)]
def out_fin(q):
    X, b = divmod(q, 3); d = H + 24 * X + 8 * b
    return [V(f"v_permlane16_swap_b32 v{d+i}, v{d+4+i}") for i in range(4)] + [store(X, 2 * b), store(X, 2 * b + 1)]

def pk_stats():
    ST, QT = G, G + 4
    L = []
    SA, QA = 56, 64
    for q in range(6):
        for u in range(4):
            y = ACC2 + 16 * q + 4 * u
            if q == 0: L += [pk("add", SA + 2 * u, y, y + 2), pk("mul", QA + 2 * u, y, y), pk("fma", QA + 2 * u, y + 2, y + 2, QA + 2 * u)]
            else:
                for e in (0, 2): L += [pk("add", SA + 2 * u, SA + 2 * u, y + e), pk("fma", QA + 2 * u, y + e, y + e, QA + 2 * u)]
    for u in range(4): L += [V(f"v_add_f32 v{ST+u}, v{SA+2*u}, v{SA+2*u+1}"), V(f"v_add_f32 v{QT+u}, v{QA+2*u}, v{QA+2*u+1}")]
    return L

def conv_first():
    ST, QT = G, G + 4
    L = [S(f"s_setprio {cfg.CPRIO}"), V(f"v_add_u32 v92, {2 * TGRP}, v{cTa}"), V(f"v_add_u32 v93, {4 * TGRP}, v{cTa}")]
    L += unit_reads(0, True) + unit_reads(1, True)
    L += [MFMA("32x32x8", ACC2 + 16 * q, T0 + 2, T0 + 2, None) for q in range(6)]
    for u in range(36):
        buf = cBuf[u % 2]
        if u == 18: L += dry_point("Ldry0")
        L.append(SM32(ACC2 + 16 * (u % 6), buf + 8, buf, cIdx))
        if u + 2 in (12, 24):
            l = lab("r"); L.append(opaque([f"s_cmp_lg_u32 s{sDry}, 0", f"s_cbranch_scc1 {l}", "s_barrier", f"{l}:"]))
        L += unit_reads(u + 2, True) if u + 2 < 36 else res_reads(3 * (u - 34)) + res_reads(3 * (u - 34) + 1) + res_reads(3 * (u - 34) + 2)
    for k in range(6, 12): L += res_reads(k)
    L += [S(f"s_mov_b32 s{sO+2}, 50331648"), S(f"s_mov_b32 s{sStInc}, {16 * 98304}")]
    L += pk_stats()
    L.append(Ins("s_waitcnt lgkmcnt(0)", "waitall"))
    return L

def cstage():
    NB = cfg.NBUF
    ST, QT = G, G + 4
    L = [COMMENT("previous tile out, convolution")]
    if cfg.CPRIO: L.append(S(f"s_setprio {cfg.CPRIO}"))
    def zero(q): return MFMA("32x32x8", ACC2 + 16 * q, T0 + 2, T0 + 2, None)
    def stat(q):
        o = []
        for e in range(4):
            for u in range(4):
                y = ACC2 + 16 * q + 4 * u + e
                if q == 0 and e == 0: o += [V(f"v_mul_f32 v{QT+u}, v{y}, v{y}")]
                elif q == 0 and e == 1: o += [V(f"v_add_f32 v{ST+u}, v{y-1}, v{y}"), V(f"v_fmac_f32 v{QT+u}, v{y}, v{y}")]
                else: o += [V(f"v_add_f32 v{ST+u}, v{ST+u}, v{y}"), V(f"v_fmac_f32 v{QT+u}, v{y}, v{y}")]
        return o
    L += cs(0) + unit_reads(0) + unit_reads(1)
    c0 = out_cvt(0)
    L += [g2(1, 1, 0)] + c0[:4] + [g2(1, 1, 1)] + c0[4:] + [g2(1, 1, 2), zero(0)]
    nst = 0
    for u in range(36):
        q, rho = divmod(u, 6); buf = cBuf[u % NB]
        if u == 18: L += dry_point("Ldry1")
        if u == cfg.MIDU:
            lm = lab("m")
            L.append(opaque([f"s_or_b32 s{sT}, s{sFirst}, s{sDry}", f"s_cbranch_scc1 {lm}"] + bar_lines(f"s_waitcnt vmcnt({nst})") +
                            [f"s_cmp_eq_u32 s{sGrp}, 0", f"s_cbranch_scc0 {lm}"] + [l for gg in wdma_interval() for l in gg] + [f"{lm}:"]))
        nxt = unit_reads(u + 2) if u + 2 < 36 else res_reads(3 * (u - 34)) + res_reads(3 * (u - 34) + 1) + res_reads(3 * (u - 34) + 2)
        early = 3 if NB == 3 else 0
        if nxt[0].kind == "valu": early += 1
        L += nxt[:early] + [SM32(ACC2 + 16 * q, buf + 8, buf, cIdx)] + nxt[early:]
        st = stat(q - 1) if q and not cfg.PKST else []
        fill = {0: out_fin(q), 1: st[:8], 2: (out_cvt(q + 1) if q < 5 else []), 3: st[8:16] + ([zero(q + 1)] if q < 5 else []), 4: st[16:24], 5: st[24:]}[rho]
        nst += sum(i.kind == "vstore" for i in fill)
        L += fill
    for k in range(6, 12): L += res_reads(k)
    L += [S(f"s_add_u32 s{sStO}, s{sStO}, s{sStInc}"), S(f"s_add_u32 s{sStO2}, s{sStO}, 98304"), S(f"s_mov_b32 s{sO+2}, 50331648"), S(f"s_mov_b32 s{sStInc}, {16 * 98304}")]
    L += cs(1) + (pk_stats() if cfg.PKST else stat(5))
    if MODE[0] == "P": L.append(opaque(dry_exit() + ["Ljoin:"]))
    L += [DSW("ds_write_b64", T0 + 4, ST + 2 * k, 2, f"offset:{PBASE + 1024 * (k >> 1) + 8 * (k & 1)}") for k in range(4)]
    L.append(Ins("", "touch", [r for x in XF for r in R(x, 4)], [], cost=0))
    L += cs(2) + signal() + poll()
    L += cs(3)
    L += [COMMENT("LayerNorm, exchange of the normalised tile, residual into the accumulators, first GEMM1")]
    dst = {(0, 0): ST, (0, 1): QT, (1, 0): 56, (1, 1): 60, (2, 0): 64, (2, 1): 68, (3, 0): 72, (3, 1): 76}
    for w in range(4):
        for k in range(2): L.append(DSR("ds_read_b128", dst[(w, k)], 4, vL16, f"offset:{PBASE + 2048 * w + 1024 * k}"))
    for k in range(2):
        for u in range(4): L += [V(f"v_add_f32 v{dst[(0,k)]+u}, v{dst[(0,k)]+u}, v{dst[(1,k)]+u}")]
        for u in range(4): L += [V(f"v_add_f32 v{dst[(2,k)]+u}, v{dst[(2,k)]+u}, v{dst[(3,k)]+u}")]
        for u in range(4): L += [V(f"v_add_f32 v{dst[(0,k)]+u}, v{dst[(0,k)]+u}, v{dst[(2,k)]+u}")]
    MN, SQ, SC, SH = 56, 60, 64, 68
    for u in range(4): L += [V(f"v_mul_f32 v{MN+u}, s{sInv96}, v{ST+u}")]
    for u in range(4): L += [V(f"v_mul_f32 v{SQ+u}, v{MN+u}, v{MN+u}")]
    for u in range(4): L += [V(f"v_fma_f32 v{SQ+u}, v{QT+u}, s{sInv96}, -v{SQ+u}")]
    L += [DSR("ds_read_b128", G, 4, vL16, f"offset:{IBASE}"), DSR("ds_read_b128", G + 4, 4, vL16, f"offset:{IBASE + 1024}")]
    for u in range(4): L += [V(f"v_max_f32 v{SQ+u}, 0, v{SQ+u}")]
    for u in range(4): L += [V(f"v_add_f32 v{SQ+u}, s{sEps}, v{SQ+u}")]
    for u in range(4): L += [V(f"v_rsq_f32 v{SQ+u}, v{SQ+u}")]
    for u in range(4): L += [V(f"v_mul_f32 v{SC+u}, s{sKap}, v{SQ+u}")]
    for u in range(4): L += [V(f"v_mul_f32 v{SH+u}, -v{MN+u}, v{SC+u}")]
    L += dry_point("Ldry3")
    if cfg.PKN:
        for q in range(6):
            for u in range(4):
                for e in (0, 2):
                    y = ACC2 + 16 * q + 4 * u + e; o = u & 1
                    L.append(pk("fma", y, y, SC + (u & 2), SH + (u & 2), mods=f" op_sel:[0,{o},{o}] op_sel_hi:[1,{o},{o}]"))
    L += cs(4)
    first_w1 = opaque([f"s_cmp_lg_u32 s{sFirst}, 0", "s_cbranch_scc1 Lw1wait", f"Lw1wait_ret{MODE[0]}:"] + [w_addr()[0].text])
    def ident(q):
        X, b = divmod(q, 3)
        return [MFMA("32x32x16", acc2(X, b), G, XF[6 * X + 2 * b], None), MFMA("32x32x16", acc2(X, b), G + 4, XF[6 * X + 2 * b + 1], acc2(X, b))]
    def cvt(q):
        o = []
        for u in range(4):
            y = ACC2 + 16 * q + 4 * u
            if not cfg.PKN: o += [V(f"v_fma_f32 v{y+e}, v{y+e}, v{SC+u}, v{SH+u}") for e in range(4)]
            o += [V(f"v_cvt_pk_bf16_f32 v{H+12*u+2*q+h}, v{y+2*h}, v{y+2*h+1}") for h in range(2)]
            o += [DSW("ds_write_b64", cHw, H + 12 * u + 2 * q, 2, f"offset:{192 * u + 8 * q}")]
        return o
    for q in range(6):
        c = cvt(q)
        if q >= 1:
            i0, i1 = ident(q - 1); n = len(c)
            c = c[:1] + [i0] + c[1:n // 2] + [i1] + c[n // 2:]
        L += c
    L += cs(5) + signal()
    L += ident(5)
    L.append(first_w1)
    for j in range(6): L += rd_w1(j, 1)
    L += [V(f"v_mov_b32 v{G+4+i}, 0") for i in range(4)]
    L += poll()
    L += cs(6)
    L += [DSR("ds_read_b128", H + 8 * s + 4 * X, 4, cHr, f"offset:{XS * X + 32 * s}") for X in range(2) for s in range(6)]
    L += [g1(0, j) for j in range(6)]
    L.append(Ins("s_waitcnt lgkmcnt(0)", "waitall"))
    L += cs(7)
    if cfg.CPRIO: L.append(S("s_setprio 0"))
    ab = cfg.ABL.split("+")
    if "hw" in ab: L = [i for i in L if not (i.kind == "dsw" and cHw in i.rd)]
    if "pk" in ab: L = [i for i in L if i.kind != "pk32"]
    if "brd" in ab: L = [i for i in L if not (i.text.startswith("ds_read_b64") and i.rd & set(R(cAddr, 3)))]
    if "sm" in ab: L = [i for i in L if "smfmac" not in i.text]
    if "st" in ab: L = [i for i in L if i.kind != "vstore"]
    if "unpk" in ab:
        out = []
        for i in L:
            if i.kind != "pk32": out.append(i); continue
            m = re.match(r"v_pk_(\w+)_f32 (.*?)( op_sel.*)?$", i.text); regs = [int(x) for x in re.findall(r"v\[(\d+):", m.group(2))]
            o = 1 if m.group(3) and "op_sel:[0,1" in m.group(3) else 0
            for h in range(2):
                r = [regs[0] + h, regs[1] + h] + [(x + o if m.group(3) else x + h) for x in regs[2:]]
                out.append(V(f"v_{m.group(1)}_f32 " + ", ".join(f"v{x}" for x in r)))
        L = out
    return L

def epilogue(with_stores):
    L = [COMMENT("epilogue: last GEMM2 k-step, convert")]
    att = [[g2(1, 1, b)] for b in range(3)]
    def cv(X, t):
        a = acc2(X, t >> 1) + 8 * (t & 1); d = H + 24 * X + 4 * t
        return [V(f"v_cvt_pk_bf16_f32 v{d+i}, v{a+2*i}, v{a+2*i+1}") for i in range(4)]
    def fin(X, u):
        d = H + 24 * X + 8 * u
        o = [V(f"v_permlane16_swap_b32 v{d+i}, v{d+4+i}") for i in range(4)] if cfg.S64 else []
        return o + ([store(X, 2 * u), store(X, 2 * u + 1)] if with_stores else [])
    seq = [(X, u) for X in range(2) for u in range(3)]
    body = []
    for k, (X, u) in enumerate(seq):
        body.append(cv(X, 2 * u) + cv(X, 2 * u + 1) + (fin(*seq[k - 1]) if k else []))
    first = body[0] + body[1] + body[2]
    L += first[:2] + interleave(first[2:], att, 0.0, 0.5)
    L += body[3] + body[4] + body[5] + fin(*seq[5])
    return L

def wparams(mode, first):
    P = []; a = P.append
    if mode == "P":
        a(f"s_mov_b32 s{sW}, s6"); a(f"s_and_b32 s{sW+1}, s7, 0xffff"); a(f"s_mov_b32 s{sW+2}, {12 * WSET}"); a(f"s_mov_b32 s{sW+3}, 0x20000")
        a(f"s_mov_b32 s{sWstep}, {WSET}"); a(f"s_mov_b32 s{sWlim}, {12 * WSET}"); a(f"s_mov_b32 s{sWins}, 1024"); a(f"s_mov_b32 s{sWbase}, s{sJ3k}")
        a(f"s_mov_b32 s{sWsrc}, {first * WSET}"); a(f"v_mov_b32 v{vDMA}, v{vL16}")
        return P
    a(f"s_cmp_lt_u32 s{sJ}, 2"); a(f"s_cselect_b32 s{sW}, s10, s12"); a(f"s_cselect_b32 s{sW+1}, s11, s13")
    a(f"s_cselect_b32 s{sWstep}, 64, 6144"); a(f"s_mov_b32 s{sWins}, 1024")
    a(f"s_cselect_b32 s{sWins}, 12288, s{sWins}"); a(f"s_cselect_b32 s{sWsrc}, {first + 1}, {first}"); a(f"s_mul_i32 s{sWsrc}, s{sWsrc}, s{sWstep}"); a(f"s_mul_i32 s{sWlim}, s{sWstep}, 12")
    a(f"s_and_b32 s{sW+1}, s{sW+1}, 0xffff"); a(f"s_mov_b32 s{sW+2}, 73728"); a(f"s_mov_b32 s{sW+3}, 0x20000")
    a(f"s_and_b32 s{sT+3}, s{sJ}, 1"); a(f"s_mul_i32 s{sT+3}, s{sT+3}, 3"); a(f"s_mul_i32 s{sWbase}, s{sT+3}, s{sWins}")
    a(f"v_lshrrev_b32 v20, 6, v{vL16}"); a("v_mul_u32_u24 v20, 768, v20"); a(f"v_and_b32 v21, 48, v{vL16}"); a("v_add_u32 v20, v20, v21")
    a(f"s_cmp_lt_u32 s{sJ}, 2"); a("s_cselect_b64 vcc, -1, 0"); a(f"v_cndmask_b32 v{vDMA}, v{vL16}, v20, vcc")
    return P

def prologue():
    P = []
    a = P.append
    a(f"s_cmp_ge_u32 s2, 256"); a("s_cbranch_scc1 Lend")
    if cfg.STAMP: a("s_memtime s[92:93]"); a("s_load_dwordx2 s[94:95], s[0:1], 56")
    if cfg.DBG: a("s_memtime s[92:93]"); a("s_memrealtime s[94:95]")
    a("s_load_dwordx8 s[4:11], s[0:1], 0"); a("s_load_dwordx4 s[12:15], s[0:1], 32"); a("s_load_dwordx4 s[56:59], s[0:1], 48")
    a("v_lshrrev_b32 v16, 6, v0"); a("v_and_b32 v17, 63, v0")
    a(f"v_readfirstlane_b32 s{sT}, v16")
    if cfg.WARM:
        a("s_getpc_b64 s[60:61]"); a("v_lshlrev_b32 v38, 6, v0"); a("v_min_u32 v38, CODE_LAST, v38")
        a("global_load_dword v39, v38, s[60:61]")
    a(f"s_and_b32 s{sT+1}, s2, 7"); a(f"s_lshl_b32 s{sT+1}, s{sT+1}, 5"); a(f"s_lshr_b32 s{sT+2}, s2, 3"); a(f"s_add_u32 s{sT+1}, s{sT+1}, s{sT+2}")
    a(f"s_lshr_b32 s{sTy}, s{sT+1}, 4"); a(f"s_and_b32 s{sTx}, s{sT+1}, 15")
    a(f"s_lshr_b32 s{sGrp}, s{sT}, 2"); a(f"s_and_b32 s{sJ}, s{sT}, 3"); a(f"s_mov_b32 s{sXrow}, s{sT}")
    a(f"s_mul_i32 s{sJ3k}, s{sJ}, 3072"); a(f"s_movk_i32 s{s1k}, 1024")
    a(f"s_mov_b32 s{sEx48}, -1"); a(f"s_mov_b32 s{sEx48+1}, 0xffff")
    a(f"v_lshlrev_b32 v{vL16}, 4, v17")
    a(f"s_cmp_eq_u32 s{sTx}, 0"); a(f"s_cselect_b32 s{sAdjL}, 0, 384"); a(f"s_cselect_b32 s{sT+3}, 384, 0"); a(f"s_cselect_b32 s{sT+4}, 24, 0")
    a(f"v_subrev_u32 v{vOffL}, s{sT+3}, v{vL16}"); a(f"v_cmp_le_u32 vcc, s{sT+4}, v17"); a("s_nop 1")
    a(f"v_cndmask_b32 v{vOffL}, 2.0, v{vOffL}, vcc")
    a(f"s_cmp_eq_u32 s{sTx}, 15"); a(f"s_cselect_b32 s{sT+4}, 24, 64"); a(f"v_cmp_gt_u32 vcc, s{sT+4}, v17"); a("s_nop 1")
    a(f"v_cndmask_b32 v{vOffR}, 2.0, v{vL16}, vcc")
    a("v_mul_u32_u24 v18, 683, v0"); a("v_lshrrev_b32 v18, 16, v18")
    a("v_mul_u32_u24 v19, 96, v18"); a("v_sub_u32 v19, v0, v19")
    a("v_mul_u32_u24 v20, 960, v18"); a("v_lshl_add_u32 v20, v19, 1, v20")
    a("v_lshlrev_b32 v21, 1, v19")
    P += row_setup()
    a("s_waitcnt lgkmcnt(0)")
    if cfg.STAMP: a("s_memtime s[96:97]"); a("s_memrealtime s[98:99]"); a("s_waitcnt lgkmcnt(0)")
    for (d, p, n) in ((sX, 4, 50331648), (28, 8, 4800), (32, 6, 192), (sO, 14, 0)):
        a(f"s_mov_b32 s{d}, s{p}"); a(f"s_and_b32 s{d+1}, s{p+1}, 0xffff"); a(f"s_mov_b32 s{d+2}, {n}"); a(f"s_mov_b32 s{d+3}, 0x20000")
    for j in range(5): a(f"buffer_load_ushort v{24+j}, v20, s[28:31], 0 offen offset:{192*j}")
    a("buffer_load_ushort v29, v21, s[32:35], 0 offen")
    a("s_mov_b64 s[4:5], s[56:57]"); a("s_mov_b64 s[6:7], s[58:59]")
    a(f"s_cmp_eq_u32 s{sXrow}, 3"); a(f"s_cselect_b32 s{sFrag}, s2, {NPROD}")
    a("v_mov_b32 v48, 0"); a(f"v_lshlrev_b32 v49, 2, v17")
    a(f"s_cmp_lt_u32 s{sFrag}, {NPROD}"); a("s_cbranch_scc0 Lprep_noload")
    a(f"s_mul_i32 s{sT+2}, s{sFrag}, 21846"); a(f"s_lshr_b32 s{sT+2}, s{sT+2}, 16"); a(f"s_mul_i32 s{sT+3}, s{sT+2}, 3"); a(f"s_sub_u32 s{sT+6}, s{sFrag}, s{sT+3}")
    a("s_mov_b32 s28, s10"); a("s_and_b32 s29, s11, 0xffff"); a("s_mov_b32 s30, 73728"); a("s_mov_b32 s31, 0x20000")
    a("s_mov_b32 s32, s12"); a("s_and_b32 s33, s13, 0xffff"); a("s_mov_b32 s34, 73728"); a("s_mov_b32 s35, 0x20000")
    a(f"s_add_u32 s{sT+3}, s{sT+2}, 1"); a(f"s_cmp_eq_u32 s{sT+3}, 12"); a(f"s_cselect_b32 s{sT+3}, 0, s{sT+3}"); a(f"s_lshl_b32 s{sT+3}, s{sT+3}, 6")
    a(f"s_mul_i32 s{sT+4}, s{sT+2}, 6144")
    a("v_lshrrev_b32 v50, 5, v17"); a("v_and_b32 v51, 31, v17")
    a("v_mul_u32_u24 v52, 6144, v50"); a("v_lshl_add_u32 v52, v51, 1, v52"); a("v_add_u32 v53, 3072, v52")
    a("v_mul_u32_u24 v54, 768, v50"); a("v_and_b32 v50, 19, v51"); a("v_lshl_add_u32 v54, v50, 1, v54")
    a("v_and_b32 v50, 4, v51"); a("v_lshl_add_u32 v54, v50, 2, v54"); a("v_and_b32 v50, 8, v51"); a("v_add_u32 v54, v54, v50")
    def ld(q, r):
        if q < 6:
            a(f"s_add_u32 s{sT+5}, s{sT+3}, {q * 12288}")
            for i in range(8): a(f"buffer_load_ushort v{r+i}, v{52 + i // 4}, s[28:31], s{sT+5} offen offset:{768 * (i & 3)}")
        else:
            sp, bb = divmod(q - 6, 3)
            a(f"s_add_u32 s{sT+5}, s{sT+4}, {sp * 3072 + bb * 64}")
            for i in range(8): a(f"buffer_load_ushort v{r+i}, v54, s[32:35], s{sT+5} offen offset:{192 * (i & 3) + 1536 * (i >> 2)}")
    def cv(q, r, mx):
        for i in range(0, 8, 2): a(f"v_and_b32 v50, 0x7fff, v{r+i}"); a(f"v_and_b32 v51, 0x7fff, v{r+i+1}"); a(f"v_max3_u32 v{mx}, v{mx}, v50, v51")
        if q < 6:
            for i in range(4): a(f"v_lshl_or_b32 v{r+i}, v{r+1+2*i}, 16, v{r+2*i}")
        else:
            for i in range(8): a(f"v_lshlrev_b32 v{r+i}, 16, v{r+i}")
            for i in range(4): a(f"v_cvt_pk_f16_f32 v{r+i}, v{r+2*i}, v{r+1+2*i}")
    a(f"s_mov_b32 s{sThird}, s{sT+6}")
    for third in range(3):
        if third < 2: a(f"s_cmp_eq_u32 s{sT+6}, {third}"); a(f"s_cbranch_scc0 Lprep_t{third + 1}")
        for i in range(4): ld(4 * third + i, 64 + 8 * i)
        if third < 2: a("s_branch Lprep_noload"); a(f"Lprep_t{third + 1}:")
    def prep_convert():
        a(f"s_cmp_lt_u32 s{sFrag}, {NPROD}"); a("s_cbranch_scc0 Lprep_nocv")
        a("v_mov_b32 v56, 0"); a("v_mov_b32 v57, 0"); a("s_waitcnt vmcnt(9)")
        for third in range(3):
            if third < 2: a(f"s_cmp_eq_u32 s{sThird}, {third}"); a(f"s_cbranch_scc0 Lprep_c{third + 1}")
            for i in range(4): cv(4 * third + i, 64 + 8 * i, 56 if 4 * third + i < 6 else 57)
            if third < 2: a("s_branch Lprep_st"); a(f"Lprep_c{third + 1}:")
        a("Lprep_st:")
        a("s_mov_b32 s28, s6"); a("s_and_b32 s29, s7, 0xffff"); a(f"s_mov_b32 s30, {12 * WSET}"); a("s_mov_b32 s31, 0x20000"); a(f"s_lshl_b32 s{sT+2}, s{sFrag}, 12")
        for i in range(4): a(f"buffer_store_dwordx4 v[{64+8*i}:{67+8*i}], v{vL16}, s[28:31], s{sT+2} offen offset:{1024 * i} sc0 sc1")
        a("v_max_u32 v50, v56, v57"); a("v_cmp_lt_u32 vcc, 0x4100, v50"); a("s_cmp_lg_u64 vcc, 0"); a(f"s_cselect_b32 s{sT+4}, 3, 1")
        a("v_cmp_le_u32 vcc, 0x3a80, v56"); a("s_cmp_lg_u64 vcc, 0"); a(f"s_cselect_b32 s{sT+5}, 4, 0"); a(f"s_or_b32 s{sT+4}, s{sT+4}, s{sT+5}")
        a("v_cmp_le_u32 vcc, 0x3a80, v57"); a("s_cmp_lg_u64 vcc, 0"); a(f"s_cselect_b32 s{sT+5}, 8, 0"); a(f"s_or_b32 s{sT+4}, s{sT+4}, s{sT+5}")
        a(f"v_mov_b32 v48, s{sT+4}"); a("s_branch Ldry_skip")
        a("Lprep_nocv:")
    a("Lprep_noload:")
    a(f"s_mov_b64 exec, s[{sEx48}:{sEx48+1}]")
    for g in row_loads(): P += g
    a("s_mov_b64 exec, -1")
    a("s_mov_b32 s32, s4"); a("s_and_b32 s33, s5, 0xffff"); a("s_mov_b32 s34, 256"); a("s_mov_b32 s35, 0x20000")
    P += wparams("P", 1)
    assert cfg.WLATE
    if cfg.STAMP: a("s_memtime s[100:101]"); a("s_waitcnt lgkmcnt(0)")
    a(f"s_mov_b32 s{sA16}, {A_imm:#x}"); a(f"s_mov_b32 s{sK16}, {K_imm:#x}")
    a(f"s_mov_b32 s{sInv96}, {f32bits(1/96):#x}"); a(f"s_mov_b32 s{sEps}, {f32bits(1e-5):#x}"); a(f"s_mov_b32 s{sKap}, {f32bits(kap_use):#x}")
    D = cfg.D
    a(f"s_lshl_b32 s{sT}, s{sTy}, 5"); a(f"s_lshl_b32 s{sT+1}, s{sGrp}, 3"); a(f"s_add_u32 s{sT}, s{sT}, s{sT+1}"); a(f"s_lshl_b32 s{sT+1}, s{sJ}, 1")
    a(f"s_add_u32 s{sT}, s{sT}, s{sT+1}"); a(f"s_mul_i32 s{sT}, s{sT}, 98304"); a(f"s_mul_i32 s{sT+1}, s{sTx}, 6144"); a(f"s_add_u32 s{sStO}, s{sT}, s{sT+1}")
    a(f"s_mov_b32 s{sDry+1}, s{sStO}")
    def addresses():
        a(f"v_lshrrev_b32 v37, 4, v{vL16}")
        a("v_and_b32 v30, 7, v37"); a("v_lshrrev_b32 v31, 5, v37"); a("v_bfe_u32 v32, v37, 4, 1")
        a(f"s_mul_i32 s{sT}, s{sJ}, 48"); a(f"s_add_u32 s{sT}, s{sT}, {XBASE}")
        a("v_mul_u32_u24 v33, 784, v30"); a("v_mul_u32_u24 v34, 384, v31"); a(f"v_add3_u32 v{vColB}, v33, v34, s{sT}")
        a(f"v_mul_u32_u24 v33, {XS - 384}, v31"); a("v_lshlrev_b32 v34, 3, v32"); a(f"v_sub_u32 v{vHwA}, v33, v34")
        a("v_and_b32 v35, 31, v37"); a("v_lshlrev_b32 v36, 4, v31")
        a(f"v_mul_u32_u24 v33, 192, v35"); a(f"v_add_u32 v{vSt}, v33, v36")
        a("v_lshrrev_b32 v33, 2, v35"); a(f"v_lshl_add_u32 v33, v33, 4, v{vSt}"); a(f"v_add_u32 v{vHr}, {XBASE}, v33")
        a("v_add_u32 v33, 2, v35"); a("v_lshrrev_b32 v33, 2, v33"); a(f"v_lshl_add_u32 v33, v33, 4, v{vSt}"); a(f"v_add_u32 v{vRes}, {XBASE + 384}, v33")
        if cfg.S64:
            a("v_and_b32 v33, 15, v37"); a("v_mul_u32_u24 v33, 192, v33"); a("v_lshl_add_u32 v33, v32, 5, v33"); a(f"v_add_u32 v{vSt}, v33, v36")
        a("v_and_b32 v33, 3, v37"); a("v_bfe_u32 v34, v37, 2, 2")
        a("v_and_b32 v35, 1, v37"); a("v_mul_u32_u24 v35, 400, v35"); a("v_bfe_u32 v36, v37, 1, 1"); a("v_mul_u32_u24 v36, 192, v36"); a("v_add_u32 v35, v35, v36")
        a("v_bfe_u32 v36, v37, 2, 1"); a("v_lshlrev_b32 v36, 5, v36"); a("v_sub_u32 v35, v35, v36")
        a("v_bfe_u32 v36, v37, 3, 2"); a("v_lshlrev_b32 v36, 2, v36"); a("v_sub_u32 v35, v35, v36")
        a(f"s_mul_i32 s{sT}, s{sJ}, {6 * TGRP}"); a(f"s_add_u32 s{sT}, s{sT}, {TBASE}")
        a("v_lshl_add_u32 v35, v31, 4, v35"); a(f"v_add_u32 v{vTa}, s{sT}, v35")
        a("v_lshl_add_u32 v35, v31, 3, v34"); a("v_lshlrev_b32 v35, 6, v35"); a("v_lshl_add_u32 v35, v32, 5, v35"); a(f"v_lshl_add_u32 v{vW1b}, v33, 3, v35")
        a("v_lshl_add_u32 v35, v31, 2, v34"); a("v_mul_u32_u24 v35, 192, v35"); a("v_lshl_add_u32 v35, v32, 5, v35")
        a("v_and_b32 v36, 1, v37"); a("v_lshl_add_u32 v35, v36, 4, v35"); a("v_bfe_u32 v36, v37, 1, 1"); a(f"v_lshl_add_u32 v{vW2b}, v36, 3, v35")
    def enter(targets, ret=0, keep=False):
        a(f"s_mov_b32 s{sDry+3}, {ret}"); a(f"s_mov_b32 s{sSave}, s{sRing}"); a(f"s_mov_b32 s{sSave+1}, s{sSig}")
        a(f"s_mov_b32 s{sDry}, 1"); a(f"s_mov_b32 s{sFirst}, 0"); a(f"s_mov_b32 s{sCnt}, 1"); a(f"s_mov_b32 s{sT+3}, -1"); a(f"s_mov_b32 s{sTgt}, 0")
        a(f"s_mov_b32 s{sDry+2}, s{sWsrc}"); a("s_waitcnt lgkmcnt(0)")
        a("s_setvskip -1, 0")
        for k, t in enumerate(targets[:3]): a(f"s_cmp_eq_u32 s{sJ}, {k}"); a(f"s_cbranch_scc1 {t}")
        a(f"s_branch {targets[3]}")
    def init_state():
        a(f"s_mov_b32 s{sXM}, 0"); a(f"s_mov_b32 s{sRing}, {WBASE}")
        a(f"s_mov_b32 s{sSig}, 1"); a(f"s_mov_b32 s{sP}, 0"); a(f"s_xor_b32 s{sFirst}, s{sGrp}, 1"); a(f"s_lshl_b32 s{sWin}, s{sGrp}, 3")
        a(f"s_mov_b32 s{sStInc}, 0"); a(f"s_mov_b32 s{sStO}, s{sDry+1}"); a(f"s_add_u32 s{sStO2}, s{sStO}, 98304"); a(f"s_mov_b32 s{sTgt}, 0")
        a(f"s_mov_b32 s{sO+2}, 0"); a(f"s_mov_b32 s{sDry}, 0")
    init_state()
    a(f"v_mov_b32 v{vSt}, 0")
    a(f"s_cmp_eq_u32 s{sGrp}, 0"); a("s_cbranch_scc0 Ldry_skip")
    addresses()
    a("v_bfe_u32 v35, v37, 3, 1"); a("v_lshl_add_u32 v35, v35, 2, v33")
    a("v_and_b32 v36, 1, v35"); a("v_lshlrev_b32 v36, 4, v36"); a("v_mov_b32 v38, 0x3f80"); a("v_lshlrev_b32 v36, v36, v38")
    a("v_lshrrev_b32 v35, 1, v35"); a("v_lshl_add_u32 v35, v32, 2, v35")
    a("v_bfe_u32 v38, v37, 2, 1"); a("v_cmp_eq_u32 vcc, v38, v31"); a("s_nop 1"); a("v_cndmask_b32 v35, 8, v35, vcc")
    for d in range(8):
        a(f"v_cmp_eq_u32 vcc, {d}, v35"); a("s_nop 1"); a(f"v_cndmask_b32 v{40+d}, 0, v36, vcc")
    a(f"ds_write_b128 v{vL16}, v[40:43] offset:{IBASE}"); a(f"ds_write_b128 v{vL16}, v[44:47] offset:{IBASE + 1024}")
    prep_convert()
    if cfg.WARM:
        enter(["Lc1", "Ldry0", "Ljoin", "Ldry3"])
        a("Ldry_ret:"); a("s_setvskip 0, 0"); a("s_mov_b64 exec, -1"); a("s_setprio 0"); a(f"s_mov_b32 s{sWsrc}, s{sDry+2}")
        init_state()
        a(f"s_mov_b32 s{sRing}, s{sSave}"); a(f"s_mov_b32 s{sSig}, s{sSave+1}")
        for k, n in ((1, "Ldry_B"), (2, "Ldry_B2"), (3, "Ldry_B3")) + (((4, "Ldry_A4"),) if cfg.LAST else ()): a(f"s_cmp_eq_u32 s{sDry+3}, {k}"); a(f"s_cbranch_scc1 {n}")
    a("Ldry_skip:")
    a("s_waitcnt vmcnt(9)")
    a("v_cmp_eq_u32 vcc, 2, v18"); a("v_lshlrev_b32 v29, 16, v29"); a("s_nop 0"); a("v_cndmask_b32 v29, 0, v29, vcc"); a("v_or_b32 v26, v26, v29")
    a("v_mov_b32 v29, 0"); a("v_mov_b32 v30, 0"); a("v_mov_b32 v31, 0")
    a(f"v_lshrrev_b32 v33, 2, v19"); a(f"v_mul_u32_u24 v33, {TGRP}, v33"); a("v_lshl_add_u32 v33, v18, 5, v33")
    a("v_and_b32 v34, 1, v19"); a("v_mul_u32_u24 v34, 400, v34"); a("v_bfe_u32 v35, v19, 1, 1"); a("v_mul_u32_u24 v35, 192, v35"); a("v_add3_u32 v33, v33, v34, v35")
    a("v_cmp_gt_u32 vcc, 480, v0"); a("s_and_saveexec_b64 s[72:73], vcc")
    a(f"ds_write_b128 v33, v[24:27] offset:{TBASE}"); a(f"ds_write_b128 v33, v[28:31] offset:{TBASE + 16}")
    a("s_mov_b64 exec, -1")
    a("v_mov_b32 v28, 0")
    a("v_cmp_eq_u32 vcc, 4, v18"); a("s_and_saveexec_b64 s[72:73], vcc")
    a(f"ds_write_b128 v33, v[28:31] offset:{TBASE + 32}"); a(f"ds_write_b128 v33, v[28:31] offset:{TBASE + 48}")
    a("v_and_b32 v34, 3, v19"); a("v_cmp_eq_u32 vcc, 2, v34"); a("s_and_b64 exec, exec, vcc")
    a(f"ds_write_b128 v33, v[28:31] offset:{TBASE + 64}")
    a("s_mov_b64 exec, -1")
    a("v_mov_b32 v33, 0")
    for o in (0, 16, 32): a(f"ds_write_b128 v33, v[28:31] offset:{TPAD + o}")
    a(f"ds_write_b128 v33, v[28:31] offset:{CBASE}")
    if cfg.STAMP:
        a("v_mov_b32 v16, 0"); a("v_mov_b32 v17, 0"); a("v_writelane_b32 v16, s92, 60"); a("v_writelane_b32 v16, s96, 56")
        a("v_writelane_b32 v16, s98, 54"); a("v_writelane_b32 v16, s100, 57")
        P += stamp(16, 61)
        a(f"s_mov_b32 s96, {cfg.SMASK & 0xffffffff:#x}"); a(f"s_mov_b32 s97, {(cfg.SMASK >> 32) & 0xffffffff:#x}")
    a(f"s_cmp_eq_u32 s{sGrp}, 0"); a("s_cbranch_scc0 Lpro_w4")
    P += [i.text for i in csetup()]
    a("s_waitcnt vmcnt(0) lgkmcnt(0)"); P += stamp(16, 58)
    a(f"s_cmp_lt_u32 s{sFrag}, {NPROD}"); a("s_cbranch_scc0 Lflag_done"); a(f"s_lshl_b32 s{sT+2}, s{sFrag}, 2")
    a("s_mov_b64 exec, 1"); a(f"buffer_store_dword v48, v49, s[32:35], s{sT+2} offen sc0 sc1"); a("s_mov_b64 exec, -1")
    P += stamp(16, 57); a("Lflag_done:")
    a(f"s_mov_b32 s{sWsrc}, {8 * WSET}"); a(f"s_lshl_b32 s{sXrow}, s{sJ}, 1"); a(f"s_add_u32 s{sXrow}, s{sXrow}, 20")
    a("s_barrier")
    P += stamp(17, 58); a("s_branch Lc1")
    a("Lpro_w4:")
    a(f"s_mov_b64 exec, s[{sEx48}:{sEx48+1}]")
    a(f"s_and_b32 s{sXrow}, s{sJ}, 1"); a(f"s_add_u32 s{sXrow}, s{sXrow}, 8")
    for r in range(2):
        P += row_setup()
        a(f"s_cmp_lt_u32 s{sJ}, 2"); a(f"s_cbranch_scc0 Lpro_h{r}")
        for g in row_loads()[:5]: P += g
        a(f"s_branch Lpro_g{r}"); a(f"Lpro_h{r}:")
        for g in row_loads()[5:] + row_loads()[8:]: P += g
        a(f"Lpro_g{r}:"); a(f"s_add_u32 s{sXrow}, s{sXrow}, 2")
        if r == 0: a("s_waitcnt vmcnt(5) lgkmcnt(0)"); P += stamp(16, 58); a("s_barrier")
    a("s_mov_b64 exec, -1")
    a("s_waitcnt vmcnt(5)"); a("s_barrier"); a("s_waitcnt vmcnt(0)"); a("s_barrier")
    P += stamp(17, 50)
    addresses()
    if cfg.WARM:
        enter(["Lbody2P", "Lq12", "Lhalf2", "Lq32"], 1); a("Ldry_B:")
    a(f"v_mov_b32 v18, {CBASE + 8}"); a(f"s_cmp_eq_u32 s{sJ}, 0"); a("s_cbranch_scc0 Lmode_wait")
    a(f"v_lshrrev_b32 v20, 2, v{vL16}"); a(f"s_mov_b32 s{sT}, {cfg.POLLS}"); a(f"s_mov_b32 s{sMode}, 2")
    P += stamp(17, 51)
    a("Lpoll_g:"); a("buffer_load_dword v19, v20, s[32:35], 0 offen sc1"); a("s_waitcnt vmcnt(0)")
    a("v_cmp_ne_u32 vcc, 0, v19"); a(f"s_bcnt1_i32_b64 s{sT+2}, vcc"); a(f"s_cmp_eq_u32 s{sT+2}, {NPROD}"); a("s_cbranch_scc1 Lpoll_ok")
    a("s_sleep 12"); a(f"s_sub_u32 s{sT}, s{sT}, 1"); a(f"s_cmp_lg_u32 s{sT}, 0"); a("s_cbranch_scc1 Lpoll_g"); a("s_branch Lmode_set")
    a("Lpoll_ok:")
    P += stamp(17, 52)
    if cfg.STAMP: a(f"v_writelane_b32 v17, s{sT}, 53")
    for bit, want in ((2, 0), (4, 1), (8, 1)):
        a(f"v_and_b32 v21, {bit}, v19"); a("v_cmp_ne_u32 vcc, 0, v21"); a("s_cmp_lg_u64 vcc, 0"); a(f"s_cbranch_scc{1 - want} Lmode_set")
    a(f"s_mov_b32 s{sMode}, {cfg.FORCE or 1}")
    a("Lmode_set:"); a(f"v_mov_b32 v19, s{sMode}"); a("ds_write_b32 v18, v19")
    a("Lmode_wait:"); a("ds_read_b32 v19, v18"); a("s_waitcnt lgkmcnt(0)"); a(f"v_readfirstlane_b32 s{sMode}, v19")
    a(f"s_cmp_eq_u32 s{sMode}, 0"); a("s_cbranch_scc1 Lmode_wait")
    P += stamp(16, 59)
    a(f"s_cmp_eq_u32 s{sMode}, 1"); a("s_cbranch_scc1 Lmode_P")
    P += wparams("R", 1)
    a("Lmode_P:")
    for q in range(1, 4):
        for g in wdma_groups(f"{WBASE + q * WSET}"): P += g
    if cfg.WARM:
        enter(["Lbody1P", "Lq11", "Lhalf1", "Lq31"], 2); a("Ldry_B2:")
    a("s_waitcnt vmcnt(6)"); a("s_barrier")
    assert D == 3
    P += bar_lines()
    for g in wdma_interval(): P += g
    a(f"s_lshl_b32 s{sXrow}, s{sJ}, 1"); a(f"s_add_u32 s{sXrow}, s{sXrow}, 12"); a(f"s_mov_b64 exec, s[{sEx48}:{sEx48+1}]")
    P += row_dma_lines(); a(f"s_add_u32 s{sXrow}, s{sXrow}, 1")
    P += row_dma_lines(); a(f"s_add_u32 s{sXrow}, s{sXrow}, 7")
    a("s_mov_b64 exec, -1")
    P += bar_lines("s_waitcnt vmcnt(18)")
    for g in wdma_interval(): P += g
    if cfg.WARM:
        enter(["LconvP", "Ldry1", "Lbody0P", "Lhalf0"], 3); a("Ldry_B3:")
    a(f"s_cmp_eq_u32 s{sMode}, 1"); a("s_cbranch_scc0 LouterR")
    return P

def build():
    D = cfg.D
    out = []
    hdr = ["; fused depthwise 5x5 + LayerNorm + MLP(GELU) + residual; generated by gen/gen.py",
           f"; @launch grid=(256,1,1) block=(512,1,1) lds={LDS_BYTES}",
           '.amdgcn_target "amdgcn-amd-amdhsa--gfx950"', ".text", f".globl {KNAME}", ".p2align 8", f".type {KNAME},@function", f"{KNAME}:"]
    out += hdr
    def raw(lines):
        for l in lines: out.append(l if l.endswith(":") or l.startswith(".") else "    " + l)
    raw(prologue())
    for m in "PR":
        MODE[0] = m
        epi0, epi1 = csetup(), epilogue(True)
        cs = cstage()
        bodies = [loop_body(0), loop_body(1), loop_body(2)]
        marks = [LABEL(n) for n in ("@c", "@a1", "@a2", "@b2", "@e0", "@x", "@e1", "@end")]
        lin = [marks[0]] + cs + [marks[1]] + bodies[0] + [marks[2]] + bodies[0] + [marks[3]] + bodies[1] + [marks[4]] + epi0 + [marks[5]] + bodies[2] + [marks[6]] + epi1 + [marks[7]]
        lin, pend = insert_lgkm(lin, cfg.OLD); assert not pend
        lin, _ = fix_hazards(lin)
        idx = [next(k for k, i in enumerate(lin) if i is m) for m in marks]
        cst, a1, a2, b2, e0, n2, e1 = (lin[idx[k] + 1: idx[k + 1]] for k in range(7))
        n1 = sum(states(i) for i in a1 if i.kind == "nop") - sum(states(i) for i in a2 if i.kind == "nop")
        assert [i.text for i in a1 if i.kind != "nop"] == [i.text for i in a2 if i.kind != "nop"]
        if n1 > 0: cst = cst + [Ins(f"s_nop {n1 - 1}", "nop")]
        for path in ([cst, n2, a2, a2, b2, a2, e0, cst, b2, a2, e1], [cst, n2, n2, e0, cst, n2, n2, e1]):
            seq = [i for blk in path for i in blk]
            _, bad = fix_hazards(seq, check_only=True); assert not bad, bad
            assert not check_lgkm(seq)
        def emit(blk):
            for i in blk:
                if i.kind == "touch": continue
                for l in i.text.split("\n"): out.append(l if i.kind in ("label", "opaque", "dsw_op") or l.startswith("    ") or l.endswith(":") else "    " + l)
        if m == "P":
            c1, pend = insert_lgkm(e0 + [LABEL("@")] + conv_first(), cfg.OLD); c1, _ = fix_hazards(c1)
            c1 = c1[[i.text for i in c1].index("@:") + 1:]
            kj = [k for k, i in enumerate(cst) if "Ljoin:" in i.text][0]
            _, bad = fix_hazards(c1 + cst[kj:], check_only=True); assert not bad, bad
            check_lgkm(c1 + cst[kj:])
            raw(["s_branch LouterP", "Lc1:"]); emit(c1); raw(dry_exit() + ["s_branch Ljoin"])
        out.append(f"Louter{m}:")
        emit(e0)
        raw(bar_lines())
        raw([f"s_cmp_eq_u32 s{sGrp}, 0", f"s_cbranch_scc0 Lno_w{m}"] + [l for g in wdma_interval() for l in g] + [f"Lno_w{m}:"])
        out.append(f"Lconv{m}:")
        emit(cst)
        raw(dry_exit())
        raw([f"s_or_b32 s{sT}, s{sGrp}, s{sFirst}", f"s_cbranch_scc0 LloopX{m}",
             f"s_sub_u32 s{sCnt}, 6, s{sP}" if cfg.LAST else f"s_mov_b32 s{sCnt}, 6", f"s_cmp_lg_u32 s{sFirst}, 0", f"s_cselect_b32 s{sCnt}, 2, s{sCnt}", f"s_branch LloopN{m}"])
        tail = [f"s_add_u32 s{sWin}, s{sWin}, 4", f"s_cmp_ge_u32 s{sWin}, {NR}", f"s_cselect_b32 s{sWin}, 0, s{sWin}",
                f"s_add_u32 s{sP}, s{sP}, 1", f"s_cmp_eq_u32 s{sP}, 1", f"s_cbranch_scc1 Louter{m}"]
        raw([".p2align 6", f"LloopX{m}:"]); emit(b2)
        raw(dry_exit() + [f"s_mov_b32 s{sXM}, 1", f"s_cmp_eq_u32 s{sP}, 0", f"s_cselect_b32 s{sCnt}, 1, 5", "s_waitcnt vmcnt(18)", f"s_branch Lnowait0{m}"])
        raw([".p2align 6", f"LloopA{m}:"]); emit(a2)
        raw([f"s_sub_u32 s{sCnt}, s{sCnt}, 1", f"s_cmp_lg_u32 s{sCnt}, 0", f"s_cbranch_scc1 LloopA{m}"] + dry_exit() +
            [f"s_cmp_eq_u32 s{sXM}, 0", f"s_cbranch_scc1 LloopX{m}"] + tail)
        k6 = [k for k, i in enumerate(e1) if i.kind == "vstore"][5] + 1
        raw(bar_lines()); raw([l for g in wdma_interval() for l in g]); emit(e1[:k6])
        raw(bar_lines("s_waitcnt vmcnt(6)")); raw([l for g in wdma_interval() for l in g]); emit(e1[k6:])
        raw(stamp(16, 62))
        raw(bar_lines("s_waitcnt vmcnt(6)")); raw([l for g in wdma_interval() for l in g])
        if cfg.LAST and cfg.WARM and m == "P":
            raw([f"s_mov_b32 s{sDry+3}, 4", f"s_mov_b32 s{sDry}, 1", "s_setvskip -1, 0", f"s_cmp_eq_u32 s{sJ}, 0", "s_cbranch_scc1 Lbody3P", f"s_cmp_eq_u32 s{sJ}, 1", "s_cbranch_scc1 Lq13",
                 f"s_cmp_eq_u32 s{sJ}, 2", "s_cbranch_scc1 Lhalf3", "s_branch Lq33", "Ldry_A4:"])
        raw(bar_lines())
        raw(["s_branch Lfin"])
        raw([".p2align 6", f"LloopN{m}:"]); emit(n2)
        raw([f"s_sub_u32 s{sCnt}, s{sCnt}, 1", f"s_cmp_lg_u32 s{sCnt}, 0", f"s_cbranch_scc1 LloopN{m}"] + dry_exit() + [
             f"s_cmp_lg_u32 s{sFirst}, 0", f"s_mov_b32 s{sFirst}, 0", f"s_mov_b32 s{sCnt}, 2", f"s_cbranch_scc1 LloopA{m}"] + tail)
        if cfg.LAST:
            lb, _ = insert_lgkm(n2 + [LABEL("@")] + last_body(), cfg.OLD); lb, _ = fix_hazards(lb)
            lb = lb[[i.text for i in lb].index("@:") + 1:]
            check_lgkm(n2 + lb)
            emit(lb)
        else:
            out.append(f"Lepi1{m}:")
            emit(e1)
        raw(dry_exit())
        raw(stamp(16, 62))
        raw(["s_branch Lfin"] if m == "P" else [])
        if m == "P": out.append("Lraw:")
    out.append("Lfin:")
    if cfg.STAMP:
        raw(["s_waitcnt vmcnt(0)"] + stamp(16, 63) + ["s_memrealtime s[98:99]", "s_waitcnt lgkmcnt(0)", "v_writelane_b32 v16, s98, 55",
             "s_load_dwordx2 s[94:95], s[0:1], 56", "s_waitcnt lgkmcnt(0)", "s_mov_b32 s28, s94", "s_and_b32 s29, s95, 0xffff", "s_mov_b32 s30, 0x1000000", "s_mov_b32 s31, 0x20000",
             f"s_lshl_b32 s89, s{sGrp}, 2", f"s_add_u32 s89, s89, s{sJ}", "s_lshl_b32 s90, s2, 3", "s_add_u32 s89, s89, s90", "s_lshl_b32 s89, s89, 9", "s_add_u32 s89, s89, 0x100000",
             f"v_lshrrev_b32 v18, 2, v{vL16}", "buffer_store_dword v16, v18, s[28:31], s89 offen", "buffer_store_dword v17, v18, s[28:31], s89 offen offset:256"])
    if cfg.DBG:
        raw(["s_waitcnt vmcnt(0)", "s_memtime s[90:91]", "s_memrealtime s[96:97]", "s_load_dwordx2 s[98:99], s[0:1], 48", "s_waitcnt lgkmcnt(0)",
             "s_sub_u32 s90, s90, s92", "s_sub_u32 s96, s96, s94", "s_mov_b32 s28, s98", "s_and_b32 s29, s99, 0xffff", "s_mov_b32 s30, 64", "s_mov_b32 s31, 0x20000",
             f"s_cmp_eq_u32 s{sGrp}, 1", "s_cbranch_scc0 Lend", f"s_cmp_eq_u32 s{sJ}, 0", "s_cbranch_scc0 Lend",
             "s_lshr_b32 s89, s2, 5", "s_lshl_b32 s89, s89, 3", "s_and_b32 s91, s2, 31", "s_cmp_eq_u32 s91, 0", "s_cbranch_scc0 Lend",
             "v_mov_b32 v16, s90", "v_mov_b32 v17, s96", "v_mov_b32 v18, 0", "s_mov_b64 exec, 1", "buffer_store_dwordx2 v[16:17], v18, s[28:31], s89 offen"])
    raw(["Lend:", "s_endpgm"])
    raw(["Lw1wait:", "s_barrier", f"ds_read_b32 v{T0+1}, v{T0} offset:8", "s_waitcnt lgkmcnt(0)", f"v_readfirstlane_b32 s{sMode}, v{T0+1}",
         f"s_cmp_eq_u32 s{sMode}, 1", "s_cbranch_scc1 Lw1wait_retP"] + wparams("R", 8) + ["s_branch Lw1wait_retR"])
    if cfg.ALIGN:
        tmp, npad, nwid = align8([l.replace("CODE_LAST", "0x1000") for l in out], "Lc1", "Lend")
        out = [l.replace("v38, 0x1000", "v38, CODE_LAST") for l in tmp]
        sys.stderr.write(f"align8: {npad} pads, {nwid} widened\n")
    nbytes = sum(insn_sizes([l.replace("CODE_LAST", "0x1000") for l in out])[:out.index("Lraw:")])
    out = [l.replace("CODE_LAST", str(nbytes // 64 * 64 - 128)) for l in out]
    sys.stderr.write(f"hot code bytes {nbytes}\n"); assert nbytes <= 32768 or cfg.STAMP
    out += ['.section .rodata,"a"', ".p2align 6", f".amdhsa_kernel {KNAME}", "  .amdhsa_next_free_vgpr 256", f"  .amdhsa_next_free_sgpr {102 if cfg.STAMP or cfg.DBG else 96}",
            "  .amdhsa_accum_offset 256", "  .amdhsa_group_segment_fixed_size 0", "  .amdhsa_kernarg_size 64", "  .amdhsa_user_sgpr_count 2",
            "  .amdhsa_user_sgpr_kernarg_segment_ptr 1", "  .amdhsa_system_sgpr_workgroup_id_x 1", ".end_amdhsa_kernel"]
    return "\n".join(out) + "\n"

open(sys.argv[1], "w").write(build())
```

```python
import sys, struct, math
import numpy as np, re
from asmlib import *

class Cfg:
    D = 3
    GELU = "B"
    PRIO = 1
    CPRIO = 3
    XF = 'nt'
    OF = 'sc0+sc1'
    WF = 'sc1'
    ALIGN = True
    STAMP = False
    SMASK = -1
    OLD = 200
    ENC = False
    LAST = True
    PKST = 0
    MIDU = 33
    NBUF = 2
    RT = False
    NOINV = False
    FORCE = 0
    POLLS = 300
    S64 = True
    DBG = False
    WARM = True
    HW64 = True
    PBASE = 3
    ABL = ''
    CST = False
    PKS = 0
    PKN = True
    W1G = True
    R2 = False
    NOSTAT = False
    NOCRD = False
    N0 = 15
    WLATE = True
cfg = Cfg()
for a in sys.argv[2:]:
    k, v = a.split("=")
    setattr(cfg, k, type(getattr(cfg, k))(v) if not isinstance(getattr(cfg, k), bool) else v in ("1", "True"))

KNAME = "standalone__modern_conv_block_replknet__vision_kernel"
XS = 7104; NR = 12
TPAD = 0
TBASE = 48
TGRP = 784
IBASE = TBASE + 24 * TGRP
PBASE = IBASE + 2048
CBASE = PBASE + 8192
WBASE = CBASE + 16
WSET = 12288
XBASE = WBASE + 4 * WSET
LDS_BYTES = XBASE + NR * XS
assert LDS_BYTES <= 163840, LDS_BYTES
assert WBASE % 16 == 0 and IBASE % 16 == 0
vColB, vHwA, vRes, vHr, vTa, vSt, vW1b, vW2b, vW1c, vW2c, vDMA, vOffL, vOffR, vL16 = range(1, 15)
T0 = 18
G = 24
W2F = 32
W1F = 56
ACC1 = (80, 96)
H = 112
ACC2 = 160
def acc2(X, b): return ACC2 + 48 * X + 16 * b
cBuf = (56, 68, 80)
cAddr = 104
cTa, cIdx, cRes, cHw, cHr = 107, 108, 109, 110, 111
XF = [32, 36, 40, 44, 48, 52, 92, 96, 100, 80, 84, 88]
sX, sO, sW = 16, 20, 24
sGrp, sJ, sTx, sTy, sSig, sRing, sWsrc, sWstep, sWlim, sWins, sWbase, sP, sCnt = range(36, 49)
sA16, sK16, sStO = 49, 50, 51
sWin, sXrow, sFirst = 63, 64, 65
sXM, sXinc = 66, 67
sExX = 68
sAdjL = 70
sT = 71
sEx48 = 80
sInv96, sEps, sKap = 82, 83, 84
sDry = 56
sFrag, sMode, sThird = 62, 3, 60
sSave = 68
sStO2, sTgt = 52, 53
sFres, sFh = 54, 55
sXo, sXm = 85, 86
sStInc = 87
s1k = 89
sJ3k = 88
RSUM = 2 * WBASE + 2 * WSET

def f32bits(x): return struct.unpack("<I", struct.pack("<f", x))[0]
def f16bits(x): return int(np.float16(x).view(np.uint16))
a_c = -2.0 * math.log2(math.e) * math.sqrt(2.0 / math.pi)
b_c = a_c * 0.044715
kap = -((-b_c) ** (1.0 / 3.0))
if cfg.GELU in ("B",):
    kap_use = float(np.float16(kap))
    A_imm = f16bits(a_c / kap_use) * 0x10001
    K_imm = f16bits(kap_use) * 0x10001
else:
    kap_use = kap
    A_imm = f32bits(a_c / kap)
    K_imm = f32bits(kap)

def fl(s): return ''.join(' ' + w for w in s.split('+') if w)
uid = [0]
MODE = ['P']
NPROD = 36
def lab(p):
    uid[0] += 1
    return f"L{p}_{uid[0]}"

def opaque(lines):
    return Ins("\n".join("    " + l if not l.endswith(":") else l for l in lines), "opaque", cost=0)

def stamp(vreg, lane):
    if not cfg.STAMP: return []
    return ["s_memtime s[90:91]", f"s_mov_b32 m0, {lane}", "s_waitcnt lgkmcnt(0)", f"v_writelane_b32 v{vreg}, s90, m0"]
def cstamp(vreg):
    if not cfg.STAMP: return []
    if cfg.RT:
        if vreg == 16: return []
        return stamp(17, f"s{sSig}") + [x.replace("s_memtime", "s_memrealtime") for x in stamp(16, f"s{sSig}")]
    if cfg.SMASK == -1: return stamp(vreg, f"s{sSig}")
    l = lab("s")
    return [f"s_bitcmp1_b64 s[96:97], s{sSig}", f"s_cbranch_scc0 {l}"] + stamp(vreg, f"s{sSig}") + [f"{l}:"]

def wdma_groups(dst):
    out = []
    for u in range(3):
        g = [f"s_add_u32 m0, {dst}, s{sJ3k}", f"s_add_u32 s{sT+8}, s{sWsrc}, s{sWbase}"] if u == 0 else \
            [f"s_add_u32 m0, m0, s{s1k}", f"s_add_u32 s{sT+8}, s{sT+8}, s{sWins}"]
        g.append(f"buffer_load_dwordx4 v{vDMA}, s[{sW}:{sW+3}], s{sT+8} offen{fl(cfg.WF)} lds")
        if u == 2: g += [f"s_add_u32 s{sWsrc}, s{sWsrc}, s{sWstep}", f"s_cmp_eq_u32 s{sWsrc}, s{sWlim}", f"s_cselect_b32 s{sWsrc}, 0, s{sWsrc}"]
        out.append(g)
    return out
def wdma_interval():
    g = wdma_groups(f"s{sT+7}") + wdma_groups(f"s{sT+7}")
    g[0] = [f"s_sub_u32 s{sT+7}, {RSUM}, s{sRing}"] + g[0]
    g[3] = [f"s_add_u32 s{sT+7}, s{sT+7}, {WSET}"] + g[3]
    return g

def row_setup():
    t0, t1, t2 = sT, sXo, sT + 1
    return [f"s_lshl_b32 s{t0}, s{sTy}, 5", f"s_add_u32 s{t0}, s{t0}, s{sXrow}", f"s_sub_u32 s{t0}, s{t0}, 2",
            f"s_mul_i32 s{t1}, s{t0}, 98304", f"s_mul_i32 s{t2}, s{sTx}, 6144", f"s_add_u32 s{t1}, s{t1}, s{t2}",
            f"s_cmp_lt_u32 s{t0}, 512", f"s_cselect_b32 s{t1}, s{t1}, 0x80000000",
            f"s_cmp_ge_u32 s{sXrow}, 24", f"s_cselect_b32 s{t2}, 24, 0", f"s_sub_u32 s{t0}, s{sXrow}, s{t2}",
            f"s_cmp_ge_u32 s{t0}, 12", f"s_cselect_b32 s{t2}, 12, 0", f"s_sub_u32 s{t0}, s{t0}, s{t2}",
            f"s_and_b32 s{t2}, s{sXrow}, 4", f"s_lshl_b32 s{t2}, s{t2}, 1", f"s_mul_i32 s{t0}, s{t0}, {XS}", f"s_add_u32 s{t0}, s{t0}, s{t2}",
            f"s_add_u32 s{sXm}, s{t0}, {XBASE}"]
def row_loads():
    out = [[f"s_mov_b32 m0, s{sXm}", f"s_sub_u32 s{sT}, s{sXo}, s{sAdjL}", f"buffer_load_dwordx4 v{vOffL}, s[{sX}:{sX+3}], s{sT} offen{fl(cfg.XF)} lds"]]
    for a in range(1, 9):
        out.append([f"s_add_u32 m0, s{sXm}, {784 * a}", f"s_add_u32 s{sT}, s{sXo}, {768 * a - 384}",
                    f"buffer_load_dwordx4 v{vOffR if a == 8 else vL16}, s[{sX}:{sX+3}], s{sT} offen{fl(cfg.XF)} lds"])
    return out
def row_dma_lines(): return row_setup() + [l for g in row_loads() for l in g]

def bar_lines(wait="s_waitcnt vmcnt(0)"):
    L = cstamp(16) + ([wait] if wait else []) + ["s_barrier"] + cstamp(17)
    L += [f"s_sub_u32 s{sRing}, {RSUM}, s{sRing}"]
    if cfg.STAMP: L += [f"s_add_u32 s{sSig}, s{sSig}, 1"]
    return L

def gelu_B(Sr):
    ops = []
    def st(p, k):
        a0 = Sr + 2 * p; a1 = a0 + 1; t = T0 + (p % 2) * 3; u = t + 1; w = t + 2
        return [V(f"v_cvt_pk_f16_f32 v{t}, v{a0}, v{a1}"),
                V(f"v_pk_fma_f16 v{u}, v{t}, v{t}, s{sA16}"),
                V(f"v_pk_mul_f16 v{t}, v{t}, v{u}"),
                V(f"v_exp_f16 v{u}, v{t}"),
                V(f"v_exp_f16_sdwa v{u}, v{t} dst_sel:WORD_1 dst_unused:UNUSED_PRESERVE src0_sel:WORD_1"),
                V(f"v_pk_fma_f16 v{t}, v{u}, s{sK16}, s{sK16}"),
                V(f"v_rcp_f16 v{u}, v{t}"),
                V(f"v_rcp_f16_sdwa v{w}, v{t} dst_sel:DWORD dst_unused:UNUSED_PAD src0_sel:WORD_1"),
                V(f"v_fma_mix_f32 v{u}, v{a0}, v{u}, 0 op_sel_hi:[0,1,0]"),
                V(f"v_fma_mix_f32 v{w}, v{a1}, v{w}, 0 op_sel_hi:[0,1,0]"),
                V(f"v_cvt_pk_bf16_f32 v{G+p}, v{u}, v{w}")][k]
    for q in range(0, 8, 2):
        for k in range(11):
            ops += [st(q, k), st(q + 1, k)]
    return ops

def gelu_A(Sr):
    ops = []
    for q in range(0, 16, 4):
        for k in range(6):
            for e in range(4):
                a = Sr + q + e; r = T0 + e
                ops.append([V(f"v_fma_f32 v{r}, v{a}, v{a}, s{sA16}"), V(f"v_mul_f32 v{r}, v{a}, v{r}"), V(f"v_exp_f32 v{r}, v{r}"),
                            V(f"v_fma_f32 v{r}, v{r}, s{sK16}, s{sK16}"), V(f"v_rcp_f32 v{r}, v{r}"), V(f"v_mul_f32 v{r}, v{a}, v{r}")][k])
        ops += [V(f"v_cvt_pk_bf16_f32 v{G+q//2}, v{T0}, v{T0+1}"), V(f"v_cvt_pk_bf16_f32 v{G+q//2+1}, v{T0+2}, v{T0+3}")]
    return ops
def gelu_C(Sr):
    ops = []
    def st(p, k):
        a0 = Sr + 2 * p; a1 = a0 + 1; t = T0 + (p % 2) * 3; u = t + 1; w = t + 2
        return [V(f"v_cvt_pk_f16_f32 v{w}, v{a0}, v{a1}"),
                V(f"v_pk_fma_f16 v{u}, v{w}, v{w}, s{sA16}"),
                V(f"v_pk_mul_f16 v{t}, v{w}, v{u}"),
                V(f"v_exp_f16 v{u}, v{t}"),
                V(f"v_exp_f16_sdwa v{u}, v{t} dst_sel:WORD_1 dst_unused:UNUSED_PRESERVE src0_sel:WORD_1"),
                V(f"v_pk_fma_f16 v{t}, v{u}, s{sK16}, s{sK16}"),
                V(f"v_rcp_f16 v{u}, v{t}"),
                V(f"v_rcp_f16_sdwa v{u}, v{t} dst_sel:WORD_1 dst_unused:UNUSED_PRESERVE src0_sel:WORD_1"),
                V(f"v_pk_mul_f16 v{G+p}, v{w}, v{u}")][k]
    for q in range(0, 8, 2):
        for k in range(9):
            ops += [st(q, k), st(q + 1, k)]
    return ops
def gelu(Sr): return gelu_C(Sr) if MODE[0] == "P" else gelu_B(Sr)

TR = "ds_read_b64_tr_b16"
def rd_w1(j, c):
    if MODE[0] == "P": return [DSR("ds_read_b128", W1F + 4 * j, 4, vW1c, f"offset:{WSET * c + 1024 * j}")]
    return [DSR(TR, W1F + 4 * j + 2 * r, 2, vW1c, f"offset:{WSET * c + 1024 * j + 256 * r}") for r in range(2)]
def rd_w2(sp, b, c):
    if MODE[0] == "P": return [DSR("ds_read_b128", W2F + 12 * sp + 4 * b, 4, vW1c, f"offset:{WSET * c + 6144 + 1024 * (3 * sp + b)}")]
    return [DSR(TR, W2F + 12 * sp + 4 * b + 2 * r, 2, vW2c, f"offset:{WSET * c + 6144 + (16 * sp + 8 * r) * 192 + 64 * b}") for r in range(2)]
def g1(X, j):
    return MFMA("32x32x16", ACC1[X], W1F + 4 * j, H + 8 * j + 4 * X, None if j == 0 else ACC1[X])
def g2(X, sp, b):
    return (MFMA16 if MODE[0] == "P" else MFMA)("32x32x16", acc2(X, b), W2F + 12 * sp + 4 * b, G + 4 * sp, acc2(X, b))
def w_addr():
    if MODE[0] == "P": return [V(f"v_add_u32 v{vW1c}, s{sRing}, v{vL16}")]
    return [V(f"v_add_u32 v{vW1c}, s{sRing}, v{vW1b}"), V(f"v_add_u32 v{vW2c}, s{sRing}, v{vW2b}")]

def step(X, c, extra):
    Y = 1 - X
    ld = (X == 0)
    att = [[g2(Y, 1, 0)] + (rd_w2(1, 0, c) if ld else []),
           [g1(Y, 0)] + (rd_w2(0, 0, c) + rd_w1(0, c) if ld else []),
           [g2(Y, 1, 1)] + (rd_w2(0, 1, c) + rd_w2(1, 1, c) if ld else []),
           [g1(Y, 1)] + (rd_w2(0, 2, c) + rd_w1(1, c) if ld else []),
           [g2(Y, 1, 2)] + (rd_w2(1, 2, c) if ld else []),
           [g1(Y, 2)] + (rd_w1(2, c) if ld else []),
           [g1(Y, 3)] + (rd_w1(3, c) if ld else []),
           [g2(X, 0, 0)],
           [g1(Y, 4)] + (rd_w1(4, c) if ld else []),
           [g2(X, 0, 1)],
           [g1(Y, 5)] + (rd_w1(5, c) if ld else []),
           [g2(X, 0, 2)]]
    for k, v in extra.items(): att[k] = att[k] + v
    ops = gelu(ACC1[X])
    return ops[:2] + interleave(ops[2:], att)

def loop_body(grp):
    bl = bar_lines()
    k = bl.index("s_waitcnt vmcnt(0)")
    L = [opaque(bl[:k + 1] + [f"Lnowait{grp}{MODE[0]}:"] + bl[k + 1:] + [f"Lbody{grp}{MODE[0]}:"])]
    L += w_addr()
    ex = [{}, {}, {}, {}]
    if grp in (0, 1):
        for k, g in enumerate(wdma_interval()):
            ex[k // 3 if k < 3 else 1][(7, 9, 11)[k] if k < 3 else (1, 3, 5)[k - 3]] = [opaque(g)]
    if grp == 1:
        rl = row_loads()
        for r in range(2):
            for k in range(3):
                blk = (row_setup() if k == 0 else []) + [f"s_mov_b64 exec, s[{sEx48}:{sEx48+1}]"] + rl[3 * k] + rl[3 * k + 1] + rl[3 * k + 2] + ["s_mov_b64 exec, -1"]
                if k == 2: blk += [f"s_add_u32 s{sXrow}, s{sXrow}, {7 if r else 1}"]
                st, sl = ((1, 8), (1, 11), (2, 7), (2, 11), (3, 3), (3, 7))[3 * r + k]
                ex[st][sl] = [opaque(blk)]
    for k in range(4):
        if k == 2: L += dry_point(f"Lhalf{grp}")
        if k in (1, 3) and grp in (1, 2): L += dry_point(f"Lq{k}{grp}")
        if cfg.PRIO: L.append(S(f"s_setprio {max(cfg.PBASE - k, 0)}"))
        L += step(k & 1, k >> 1, ex[k])
    return L

def last_body():
    L = [opaque(bar_lines() + [f"Lbody3{MODE[0]}:"])]
    L += w_addr()
    def g1x(X, acc, j): return MFMA("32x32x16", ACC1[acc], W1F + 4 * j, H + 8 * j + 4 * X, None if j == 0 else ACC1[acc])
    prev = T0 - 1 if False else vI_tmp
    base = vL16 if MODE[0] == "P" else vW1b
    L += [S(f"s_sub_u32 s{sT}, {RSUM}, s{sRing}"), V(f"v_add_u32 v{prev}, s{sT}, v{base}")]
    def rd_w1p(j):
        o = rd_w1(j, 1)
        return [DSR(i.text.split()[0], min(i.wr), len(i.wr), prev, i.text.split()[-1]) for i in o]
    def run(src, att, extra=()):
        ops = gelu(ACC1[src])
        main = ops[2:]
        if extra: main = interleave(main, [[e] for e in extra[0]], extra[1], 1.0)
        return ops[:2] + interleave(main, att)
    quad = [H + 8 * t for t in range(6)]
    def ocv(b): return [V(f"v_cvt_pk_bf16_f32 v{quad[2*b + i // 4] + i % 4}, v{acc2(0, b) + 2*i}, v{acc2(0, b) + 2*i + 1}") for i in range(8)]
    def ofin(b):
        o = [V(f"v_permlane16_swap_b32 v{quad[2*b] + i}, v{quad[2*b+1] + i}") for i in range(4)]
        for t in (2 * b, 2 * b + 1):
            st = store(0, t); d = quad[t]
            o.append(VMEM(re.sub(r"v\[\d+:\d+\]", vr(d, 4), st.text, 1), rd=[vSt] + list(R(d, 4)), store=True))
        return o
    w1 = lambda f: [x for j in range(6) for x in f(j)]
    L += rd_w1(0, 0) + rd_w1(1, 0) + rd_w1(2, 0)
    L += run(0, [[g2(1, 1, 0)] + rd_w2(1, 0, 0) + rd_w1(3, 0), [g2(1, 1, 1)] + rd_w2(1, 1, 0) + rd_w1(4, 0) + rd_w2(0, 0, 0), [g2(1, 1, 2)] + rd_w2(1, 2, 0) + rd_w1(5, 0) + rd_w2(0, 1, 0),
                 [g1x(0, 1, 0)] + rd_w1p(0) + rd_w2(0, 2, 0), [g1x(0, 1, 1)] + rd_w1p(1), [g1x(0, 1, 2)] + rd_w1p(2), [g1x(0, 1, 3)] + rd_w1p(3),
                 [g2(0, 0, 0)] + rd_w2(0, 0, 1), [g1x(0, 1, 4)] + rd_w1p(4), [g2(0, 0, 1)] + rd_w2(0, 1, 1), [g1x(0, 1, 5)] + rd_w1p(5), [g2(0, 0, 2)] + rd_w2(0, 2, 1)])
    L += dry_point("Lq13")
    L += run(1, [[g2(0, 1, 0)] + rd_w2(1, 0, 1), [g1x(1, 0, 0)] + rd_w1(0, 0), [g2(0, 1, 1)] + rd_w2(1, 1, 1), [g1x(1, 0, 1)] + rd_w1(1, 0), [g2(0, 1, 2)] + rd_w2(1, 2, 1),
                 [g1x(1, 0, 2)] + rd_w1(2, 0), [g1x(1, 0, 3)] + rd_w1(3, 0), [g2(0, 0, 0)] + rd_w2(0, 0, 0), [g1x(1, 0, 4)] + rd_w1(4, 0), [g2(0, 0, 1)] + rd_w2(0, 1, 0),
                 [g1x(1, 0, 5)] + rd_w1(5, 0), [g2(0, 0, 2)] + rd_w2(0, 2, 0)])
    L += dry_point("Lhalf3")
    L += run(0, [[g2(0, 1, 0)] + rd_w2(1, 0, 0), [g2(0, 1, 1)] + rd_w2(1, 1, 0), [g2(0, 1, 2)] + rd_w2(1, 2, 0), [g1x(1, 1, 0)], [g1x(1, 1, 1)], [g1x(1, 1, 2)], [g1x(1, 1, 3)],
                 [g2(1, 0, 0)] + rd_w2(0, 0, 1), [g1x(1, 1, 4)], [g2(1, 0, 1)] + rd_w2(0, 1, 1), [g1x(1, 1, 5)], [g2(1, 0, 2)] + rd_w2(0, 2, 1)],
             (ocv(0) + ocv(1)[:2] + ofin(0) + ocv(1)[2:], 0.35))
    L += dry_point("Lq33")
    L += run(1, [[g2(1, 1, 0)] + rd_w2(1, 0, 1), [g2(1, 1, 1)] + rd_w2(1, 1, 1), [g2(1, 1, 2)] + rd_w2(1, 2, 1), [], [], [], [], [g2(1, 0, 0)], [], [g2(1, 0, 1)], [], [g2(1, 0, 2)]],
             (ocv(2)[:2] + ofin(1) + ocv(2)[2:] + [V(f"v_mov_b32 v{vI_tmp}, 0"), V(f"v_mov_b32 v{vI_tmp}, 0")] + ofin(2), 0.0))
    L += [V(f"v_mov_b32 v{vI_tmp}, 0"), V(f"v_mov_b32 v{vI_tmp}, 0"), g2(1, 1, 0), g2(1, 1, 1), g2(1, 1, 2)]
    L += out_cvt(3) + out_cvt(4)[:2] + out_fin(3) + out_cvt(4)[2:] + out_cvt(5)[:2] + out_fin(4) + out_cvt(5)[2:] + [V(f"v_mov_b32 v{vI_tmp}, 0"), V(f"v_mov_b32 v{vI_tmp}, 0")] + out_fin(5)
    return L
vI_tmp = 15

def SM32(d, a, b, idx):
    ab = list(R(a, 4)) + list(R(b, 8)) + [idx]
    return Ins(f"v_smfmac_f32_32x32x32_bf16 {vr(d,16)}, {vr(a,4)}, {vr(b,8)}, v{idx}", "mfma",
               ab + list(R(d, 16)), R(d, 16), cost=12, passes=8, srcc=R(d, 16), srcab=ab)

def unit_reads(u, first=False):
    q, rho = divmod(u, 6); buf = cBuf[u % cfg.NBUF]; ta = cTa
    if first: rho, q = divmod(u, 6); ta = (cTa, 92, 93)[q // 2]
    o = 196 * (q % 2) + 8 * rho
    L = []
    if rho == 0 and q and q % 2 == 0 and not first: L.append(V(f"v_add_u32 v{cTa}, {2 * TGRP}, v{cTa}"))
    L += [DSR("ds_read2_b32", buf + 8, 2, ta, f"offset0:{o} offset1:{o+1}"), DSR("ds_read2_b32", buf + 10, 2, ta, f"offset0:{o+2} offset1:{o+3}")]
    for k, c in enumerate((0, 192, 784, 976)):
        L.append(DSR("ds_read_b64", buf + 2 * k, 2, cAddr + rho // 2, f"offset:{XS * (rho & 1) + c + 8 * q}"))
    return L

def store(X, t):
    d = H + 24 * X + 4 * t
    return VMEM(f"buffer_store_dwordx4 {vr(d,4)}, v{vSt}, s[{sO}:{sO+3}], s{sStO2 if X else sStO} offen offset:{64 * (t >> 1) + 3072 * (t & 1) if cfg.S64 else 32 * t}{fl(cfg.OF)}", rd=[vSt] + list(R(d, 4)), store=True)

def res_reads(k):
    X, s = divmod(k, 6)
    return [DSR("ds_read_b64", XF[k] + 2 * r, 2, cRes, f"offset:{XS * X + 32 * s + 8 * r}") for r in range(2)]

def pk(op, d, *src, mods=""):
    return V(f"v_pk_{op}_f32 v[{d}:{d+1}], " + ", ".join(f"v[{x}:{x+1}]" for x in src) + mods)

def signal():
    t = T0
    return [Ins(f"    s_mov_b64 exec, 1\n    ds_add_u32 v{t}, v{t+5}\n    s_mov_b64 exec, -1\n    s_add_u32 s{sTgt}, s{sTgt}, 4", "dsw_op", [t, t + 5], [])]
def poll():
    t = T0; l = lab("p")
    return [Ins(f"{l}:\n    ds_read_b32 v{t+1}, v{t}\n    s_waitcnt lgkmcnt(0)\n    v_readfirstlane_b32 s{sT+3}, v{t+1}\n"
                f"    s_cmp_ge_u32 s{sT+3}, s{sTgt}\n    s_cbranch_scc0 {l}", "waitall", [t], [t + 1])]

def cstage_setup():
    t = sT
    L = []
    for dst, add in ((sFh, 0), (sFres, 2)):
        L += [f"s_lshl_b32 s{t}, s{sJ}, 1", f"s_add_u32 s{t}, s{t}, s{sWin}", f"s_add_u32 s{t}, s{t}, {add}",
              f"s_cmp_ge_u32 s{t}, {NR}", f"s_cselect_b32 s{t+1}, {NR}, 0", f"s_sub_u32 s{t}, s{t}, s{t+1}", f"s_mul_i32 s{dst}, s{t}, {XS}"]
    L += [f"s_add_u32 s{t}, s{sJ}, 1", f"s_and_b32 s{t}, s{t}, 2", f"s_lshl_b32 s{t}, s{t}, 2", f"s_add_u32 s{sFres}, s{sFres}, s{t}"]
    return L

def dry_exit(): return [f"s_cmp_lg_u32 s{sDry}, 0", "s_cbranch_scc1 Ldry_ret"] if cfg.WARM and MODE[0] == "P" else []
def dry_point(name): return [opaque(dry_exit() + [name + ":"])] if cfg.WARM and MODE[0] == "P" else []

def cs(k):
    if not (cfg.STAMP and cfg.CST): return []
    return [Ins("\n".join("    " + l for l in [f"s_lshl_b32 s95, s{sP}, 3", f"s_add_u32 s95, s95, {30 + k}"] + stamp(17, "s95")), "waitall")]

def csetup():
    L = [S(x) for x in cstage_setup()]
    L += [S(f"s_mov_b32 s{sT}, {XS}")]
    t0, t1, t2 = T0, T0 + 1, T0 + 4
    L += [V(f"v_bfe_u32 v{t2}, v{vL16}, 7, 2"), V(f"v_lshlrev_b32 v{t2}, 1, v{t2}"), V(f"v_mov_b32 v{T0+2}, 0"), V(f"v_mov_b32 v{T0+3}, 0")]
    for k in range(3):
        if k: L += [V(f"v_add_u32 v{t2}, 2, v{t2}")]
        L += [V(f"v_add_u32 v{t0}, s{sWin}, v{t2}"), V(f"v_subrev_u32 v{t1}, {NR}, v{t0}"), V(f"v_min_u32 v{t0}, v{t0}, v{t1}"),
              V(f"v_mad_u32_u24 v{t0}, v{t0}, s{sT}, v{vColB}"), V(f"v_and_b32 v{t1}, 4, v{t2}"), V(f"v_lshl_add_u32 v{cAddr+k}, v{t1}, 1, v{t0}")]
    L += [V(f"v_mov_b32 v{cTa}, v{vTa}"), V(f"v_bfe_u32 v{cIdx}, v{vL16}, 4, 2"), V(f"v_mul_u32_u24 v{cIdx}, 0x5555, v{cIdx}")]
    L += [V(f"v_add_u32 v{cRes}, s{sFres}, v{vRes}"), V(f"v_add_u32 v{cHw}, v{cAddr}, v{vHwA}"), V(f"v_add_u32 v{cHr}, s{sFh}, v{vHr}")]
    L += [S(f"s_lshl_b32 s{sT}, s{sJ}, 11"), V(f"v_add_u32 v{T0+4}, s{sT}, v{vL16}"),
          S(f"s_lshl_b32 s{sT}, s{sGrp}, 2"), S(f"s_add_u32 s{sT}, s{sT}, {CBASE}"), V(f"v_mov_b32 v{T0}, s{sT}"), V(f"v_mov_b32 v{T0+5}, 1")]
    return L

def out_cvt(q):
    X, b = divmod(q, 3); a = acc2(X, b); d = H + 24 * X + 8 * b
    return [V(f"v_cvt_pk_bf16_f32 v{d+i}, v{a+2*i}, v{a+2*i+1}") for i in range(8)]
def out_fin(q):
    X, b = divmod(q, 3); d = H + 24 * X + 8 * b
    return [V(f"v_permlane16_swap_b32 v{d+i}, v{d+4+i}") for i in range(4)] + [store(X, 2 * b), store(X, 2 * b + 1)]

def pk_stats():
    ST, QT = G, G + 4
    L = []
    SA, QA = 56, 64
    for q in range(6):
        for u in range(4):
            y = ACC2 + 16 * q + 4 * u
            if q == 0: L += [pk("add", SA + 2 * u, y, y + 2), pk("mul", QA + 2 * u, y, y), pk("fma", QA + 2 * u, y + 2, y + 2, QA + 2 * u)]
            else:
                for e in (0, 2): L += [pk("add", SA + 2 * u, SA + 2 * u, y + e), pk("fma", QA + 2 * u, y + e, y + e, QA + 2 * u)]
    for u in range(4): L += [V(f"v_add_f32 v{ST+u}, v{SA+2*u}, v{SA+2*u+1}"), V(f"v_add_f32 v{QT+u}, v{QA+2*u}, v{QA+2*u+1}")]
    return L

def conv_first():
    ST, QT = G, G + 4
    L = [S(f"s_setprio {cfg.CPRIO}"), V(f"v_add_u32 v92, {2 * TGRP}, v{cTa}"), V(f"v_add_u32 v93, {4 * TGRP}, v{cTa}")]
    L += unit_reads(0, True) + unit_reads(1, True)
    L += [MFMA("32x32x8", ACC2 + 16 * q, T0 + 2, T0 + 2, None) for q in range(6)]
    for u in range(36):
        buf = cBuf[u % 2]
        if u == 18: L += dry_point("Ldry0")
        L.append(SM32(ACC2 + 16 * (u % 6), buf + 8, buf, cIdx))
        if u + 2 in (12, 24):
            l = lab("r"); L.append(opaque([f"s_cmp_lg_u32 s{sDry}, 0", f"s_cbranch_scc1 {l}", "s_barrier", f"{l}:"]))
        L += unit_reads(u + 2, True) if u + 2 < 36 else res_reads(3 * (u - 34)) + res_reads(3 * (u - 34) + 1) + res_reads(3 * (u - 34) + 2)
    for k in range(6, 12): L += res_reads(k)
    L += [S(f"s_mov_b32 s{sO+2}, 50331648"), S(f"s_mov_b32 s{sStInc}, {16 * 98304}")]
    L += pk_stats()
    L.append(Ins("s_waitcnt lgkmcnt(0)", "waitall"))
    return L

def cstage():
    NB = cfg.NBUF
    ST, QT = G, G + 4
    L = [COMMENT("previous tile out, convolution")]
    if cfg.CPRIO: L.append(S(f"s_setprio {cfg.CPRIO}"))
    def zero(q): return MFMA("32x32x8", ACC2 + 16 * q, T0 + 2, T0 + 2, None)
    def stat(q):
        o = []
        for e in range(4):
            for u in range(4):
                y = ACC2 + 16 * q + 4 * u + e
                if q == 0 and e == 0: o += [V(f"v_mul_f32 v{QT+u}, v{y}, v{y}")]
                elif q == 0 and e == 1: o += [V(f"v_add_f32 v{ST+u}, v{y-1}, v{y}"), V(f"v_fmac_f32 v{QT+u}, v{y}, v{y}")]
                else: o += [V(f"v_add_f32 v{ST+u}, v{ST+u}, v{y}"), V(f"v_fmac_f32 v{QT+u}, v{y}, v{y}")]
        return o
    L += cs(0) + unit_reads(0) + unit_reads(1)
    c0 = out_cvt(0)
    L += [g2(1, 1, 0)] + c0[:4] + [g2(1, 1, 1)] + c0[4:] + [g2(1, 1, 2), zero(0)]
    nst = 0
    for u in range(36):
        q, rho = divmod(u, 6); buf = cBuf[u % NB]
        if u == 18: L += dry_point("Ldry1")
        if u == cfg.MIDU:
            lm = lab("m")
            L.append(opaque([f"s_or_b32 s{sT}, s{sFirst}, s{sDry}", f"s_cbranch_scc1 {lm}"] + bar_lines(f"s_waitcnt vmcnt({nst})") +
                            [f"s_cmp_eq_u32 s{sGrp}, 0", f"s_cbranch_scc0 {lm}"] + [l for gg in wdma_interval() for l in gg] + [f"{lm}:"]))
        nxt = unit_reads(u + 2) if u + 2 < 36 else res_reads(3 * (u - 34)) + res_reads(3 * (u - 34) + 1) + res_reads(3 * (u - 34) + 2)
        early = 3 if NB == 3 else 0
        if nxt[0].kind == "valu": early += 1
        L += nxt[:early] + [SM32(ACC2 + 16 * q, buf + 8, buf, cIdx)] + nxt[early:]
        st = stat(q - 1) if q and not cfg.PKST else []
        fill = {0: out_fin(q), 1: st[:8], 2: (out_cvt(q + 1) if q < 5 else []), 3: st[8:16] + ([zero(q + 1)] if q < 5 else []), 4: st[16:24], 5: st[24:]}[rho]
        nst += sum(i.kind == "vstore" for i in fill)
        L += fill
    for k in range(6, 12): L += res_reads(k)
    L += [S(f"s_add_u32 s{sStO}, s{sStO}, s{sStInc}"), S(f"s_add_u32 s{sStO2}, s{sStO}, 98304"), S(f"s_mov_b32 s{sO+2}, 50331648"), S(f"s_mov_b32 s{sStInc}, {16 * 98304}")]
    L += cs(1) + (pk_stats() if cfg.PKST else stat(5))
    if MODE[0] == "P": L.append(opaque(dry_exit() + ["Ljoin:"]))
    L += [DSW("ds_write_b64", T0 + 4, ST + 2 * k, 2, f"offset:{PBASE + 1024 * (k >> 1) + 8 * (k & 1)}") for k in range(4)]
    L.append(Ins("", "touch", [r for x in XF for r in R(x, 4)], [], cost=0))
    L += cs(2) + signal() + poll()
    L += cs(3)
    L += [COMMENT("LayerNorm, exchange of the normalised tile, residual into the accumulators, first GEMM1")]
    dst = {(0, 0): ST, (0, 1): QT, (1, 0): 56, (1, 1): 60, (2, 0): 64, (2, 1): 68, (3, 0): 72, (3, 1): 76}
    for w in range(4):
        for k in range(2): L.append(DSR("ds_read_b128", dst[(w, k)], 4, vL16, f"offset:{PBASE + 2048 * w + 1024 * k}"))
    for k in range(2):
        for u in range(4): L += [V(f"v_add_f32 v{dst[(0,k)]+u}, v{dst[(0,k)]+u}, v{dst[(1,k)]+u}")]
        for u in range(4): L += [V(f"v_add_f32 v{dst[(2,k)]+u}, v{dst[(2,k)]+u}, v{dst[(3,k)]+u}")]
        for u in range(4): L += [V(f"v_add_f32 v{dst[(0,k)]+u}, v{dst[(0,k)]+u}, v{dst[(2,k)]+u}")]
    MN, SQ, SC, SH = 56, 60, 64, 68
    for u in range(4): L += [V(f"v_mul_f32 v{MN+u}, s{sInv96}, v{ST+u}")]
    for u in range(4): L += [V(f"v_mul_f32 v{SQ+u}, v{MN+u}, v{MN+u}")]
    for u in range(4): L += [V(f"v_fma_f32 v{SQ+u}, v{QT+u}, s{sInv96}, -v{SQ+u}")]
    L += [DSR("ds_read_b128", G, 4, vL16, f"offset:{IBASE}"), DSR("ds_read_b128", G + 4, 4, vL16, f"offset:{IBASE + 1024}")]
    for u in range(4): L += [V(f"v_max_f32 v{SQ+u}, 0, v{SQ+u}")]
    for u in range(4): L += [V(f"v_add_f32 v{SQ+u}, s{sEps}, v{SQ+u}")]
    for u in range(4): L += [V(f"v_rsq_f32 v{SQ+u}, v{SQ+u}")]
    for u in range(4): L += [V(f"v_mul_f32 v{SC+u}, s{sKap}, v{SQ+u}")]
    for u in range(4): L += [V(f"v_mul_f32 v{SH+u}, -v{MN+u}, v{SC+u}")]
    L += dry_point("Ldry3")
    if cfg.PKN:
        for q in range(6):
            for u in range(4):
                for e in (0, 2):
                    y = ACC2 + 16 * q + 4 * u + e; o = u & 1
                    L.append(pk("fma", y, y, SC + (u & 2), SH + (u & 2), mods=f" op_sel:[0,{o},{o}] op_sel_hi:[1,{o},{o}]"))
    L += cs(4)
    first_w1 = opaque([f"s_cmp_lg_u32 s{sFirst}, 0", "s_cbranch_scc1 Lw1wait", f"Lw1wait_ret{MODE[0]}:"] + [w_addr()[0].text])
    def ident(q):
        X, b = divmod(q, 3)
        return [MFMA("32x32x16", acc2(X, b), G, XF[6 * X + 2 * b], None), MFMA("32x32x16", acc2(X, b), G + 4, XF[6 * X + 2 * b + 1], acc2(X, b))]
    def cvt(q):
        o = []
        for u in range(4):
            y = ACC2 + 16 * q + 4 * u
            if not cfg.PKN: o += [V(f"v_fma_f32 v{y+e}, v{y+e}, v{SC+u}, v{SH+u}") for e in range(4)]
            o += [V(f"v_cvt_pk_bf16_f32 v{H+12*u+2*q+h}, v{y+2*h}, v{y+2*h+1}") for h in range(2)]
            o += [DSW("ds_write_b64", cHw, H + 12 * u + 2 * q, 2, f"offset:{192 * u + 8 * q}")]
        return o
    for q in range(6):
        c = cvt(q)
        if q >= 1:
            i0, i1 = ident(q - 1); n = len(c)
            c = c[:1] + [i0] + c[1:n // 2] + [i1] + c[n // 2:]
        L += c
    L += cs(5) + signal()
    L += ident(5)
    L.append(first_w1)
    for j in range(6): L += rd_w1(j, 1)
    L += [V(f"v_mov_b32 v{G+4+i}, 0") for i in range(4)]
    L += poll()
    L += cs(6)
    L += [DSR("ds_read_b128", H + 8 * s + 4 * X, 4, cHr, f"offset:{XS * X + 32 * s}") for X in range(2) for s in range(6)]
    L += [g1(0, j) for j in range(6)]
    L.append(Ins("s_waitcnt lgkmcnt(0)", "waitall"))
    L += cs(7)
    if cfg.CPRIO: L.append(S("s_setprio 0"))
    ab = cfg.ABL.split("+")
    if "hw" in ab: L = [i for i in L if not (i.kind == "dsw" and cHw in i.rd)]
    if "pk" in ab: L = [i for i in L if i.kind != "pk32"]
    if "brd" in ab: L = [i for i in L if not (i.text.startswith("ds_read_b64") and i.rd & set(R(cAddr, 3)))]
    if "sm" in ab: L = [i for i in L if "smfmac" not in i.text]
    if "st" in ab: L = [i for i in L if i.kind != "vstore"]
    if "unpk" in ab:
        out = []
        for i in L:
            if i.kind != "pk32": out.append(i); continue
            m = re.match(r"v_pk_(\w+)_f32 (.*?)( op_sel.*)?$", i.text); regs = [int(x) for x in re.findall(r"v\[(\d+):", m.group(2))]
            o = 1 if m.group(3) and "op_sel:[0,1" in m.group(3) else 0
            for h in range(2):
                r = [regs[0] + h, regs[1] + h] + [(x + o if m.group(3) else x + h) for x in regs[2:]]
                out.append(V(f"v_{m.group(1)}_f32 " + ", ".join(f"v{x}" for x in r)))
        L = out
    return L

def epilogue(with_stores):
    L = [COMMENT("epilogue: last GEMM2 k-step, convert")]
    att = [[g2(1, 1, b)] for b in range(3)]
    def cv(X, t):
        a = acc2(X, t >> 1) + 8 * (t & 1); d = H + 24 * X + 4 * t
        return [V(f"v_cvt_pk_bf16_f32 v{d+i}, v{a+2*i}, v{a+2*i+1}") for i in range(4)]
    def fin(X, u):
        d = H + 24 * X + 8 * u
        o = [V(f"v_permlane16_swap_b32 v{d+i}, v{d+4+i}") for i in range(4)] if cfg.S64 else []
        return o + ([store(X, 2 * u), store(X, 2 * u + 1)] if with_stores else [])
    seq = [(X, u) for X in range(2) for u in range(3)]
    body = []
    for k, (X, u) in enumerate(seq):
        body.append(cv(X, 2 * u) + cv(X, 2 * u + 1) + (fin(*seq[k - 1]) if k else []))
    first = body[0] + body[1] + body[2]
    L += first[:2] + interleave(first[2:], att, 0.0, 0.5)
    L += body[3] + body[4] + body[5] + fin(*seq[5])
    return L

def wparams(mode, first):
    P = []; a = P.append
    if mode == "P":
        a(f"s_mov_b32 s{sW}, s6"); a(f"s_and_b32 s{sW+1}, s7, 0xffff"); a(f"s_mov_b32 s{sW+2}, {12 * WSET}"); a(f"s_mov_b32 s{sW+3}, 0x20000")
        a(f"s_mov_b32 s{sWstep}, {WSET}"); a(f"s_mov_b32 s{sWlim}, {12 * WSET}"); a(f"s_mov_b32 s{sWins}, 1024"); a(f"s_mov_b32 s{sWbase}, s{sJ3k}")
        a(f"s_mov_b32 s{sWsrc}, {first * WSET}"); a(f"v_mov_b32 v{vDMA}, v{vL16}")
        return P
    a(f"s_cmp_lt_u32 s{sJ}, 2"); a(f"s_cselect_b32 s{sW}, s10, s12"); a(f"s_cselect_b32 s{sW+1}, s11, s13")
    a(f"s_cselect_b32 s{sWstep}, 64, 6144"); a(f"s_mov_b32 s{sWins}, 1024")
    a(f"s_cselect_b32 s{sWins}, 12288, s{sWins}"); a(f"s_cselect_b32 s{sWsrc}, {first + 1}, {first}"); a(f"s_mul_i32 s{sWsrc}, s{sWsrc}, s{sWstep}"); a(f"s_mul_i32 s{sWlim}, s{sWstep}, 12")
    a(f"s_and_b32 s{sW+1}, s{sW+1}, 0xffff"); a(f"s_mov_b32 s{sW+2}, 73728"); a(f"s_mov_b32 s{sW+3}, 0x20000")
    a(f"s_and_b32 s{sT+3}, s{sJ}, 1"); a(f"s_mul_i32 s{sT+3}, s{sT+3}, 3"); a(f"s_mul_i32 s{sWbase}, s{sT+3}, s{sWins}")
    a(f"v_lshrrev_b32 v20, 6, v{vL16}"); a("v_mul_u32_u24 v20, 768, v20"); a(f"v_and_b32 v21, 48, v{vL16}"); a("v_add_u32 v20, v20, v21")
    a(f"s_cmp_lt_u32 s{sJ}, 2"); a("s_cselect_b64 vcc, -1, 0"); a(f"v_cndmask_b32 v{vDMA}, v{vL16}, v20, vcc")
    return P

def prologue():
    P = []
    a = P.append
    a(f"s_cmp_ge_u32 s2, 256"); a("s_cbranch_scc1 Lend")
    if cfg.STAMP: a("s_memtime s[92:93]"); a("s_load_dwordx2 s[94:95], s[0:1], 56")
    if cfg.DBG or cfg.ENC: a("s_memtime s[92:93]"); a("s_memrealtime s[94:95]")
    a("s_load_dwordx8 s[4:11], s[0:1], 0"); a("s_load_dwordx4 s[12:15], s[0:1], 32"); a("s_load_dwordx4 s[56:59], s[0:1], 48")
    a("v_lshrrev_b32 v16, 6, v0"); a("v_and_b32 v17, 63, v0")
    a(f"v_readfirstlane_b32 s{sT}, v16")
    if cfg.WARM:
        a("s_getpc_b64 s[60:61]"); a("v_lshlrev_b32 v38, 6, v0"); a("v_min_u32 v38, CODE_LAST, v38")
        a("global_load_dword v39, v38, s[60:61]")
    a(f"s_and_b32 s{sT+1}, s2, 7"); a(f"s_lshl_b32 s{sT+1}, s{sT+1}, 5"); a(f"s_lshr_b32 s{sT+2}, s2, 3"); a(f"s_add_u32 s{sT+1}, s{sT+1}, s{sT+2}")
    a(f"s_lshr_b32 s{sTy}, s{sT+1}, 4"); a(f"s_and_b32 s{sTx}, s{sT+1}, 15")
    a(f"s_lshr_b32 s{sGrp}, s{sT}, 2"); a(f"s_and_b32 s{sJ}, s{sT}, 3"); a(f"s_mov_b32 s{sXrow}, s{sT}")
    a(f"s_mul_i32 s{sJ3k}, s{sJ}, 3072"); a(f"s_movk_i32 s{s1k}, 1024")
    a(f"s_mov_b32 s{sEx48}, -1"); a(f"s_mov_b32 s{sEx48+1}, 0xffff")
    a(f"v_lshlrev_b32 v{vL16}, 4, v17")
    a(f"s_cmp_eq_u32 s{sTx}, 0"); a(f"s_cselect_b32 s{sAdjL}, 0, 384"); a(f"s_cselect_b32 s{sT+3}, 384, 0"); a(f"s_cselect_b32 s{sT+4}, 24, 0")
    a(f"v_subrev_u32 v{vOffL}, s{sT+3}, v{vL16}"); a(f"v_cmp_le_u32 vcc, s{sT+4}, v17"); a("s_nop 1")
    a(f"v_cndmask_b32 v{vOffL}, 2.0, v{vOffL}, vcc")
    a(f"s_cmp_eq_u32 s{sTx}, 15"); a(f"s_cselect_b32 s{sT+4}, 24, 64"); a(f"v_cmp_gt_u32 vcc, s{sT+4}, v17"); a("s_nop 1")
    a(f"v_cndmask_b32 v{vOffR}, 2.0, v{vL16}, vcc")
    a("v_mul_u32_u24 v18, 683, v0"); a("v_lshrrev_b32 v18, 16, v18")
    a("v_mul_u32_u24 v19, 96, v18"); a("v_sub_u32 v19, v0, v19")
    a("v_mul_u32_u24 v20, 960, v18"); a("v_lshl_add_u32 v20, v19, 1, v20")
    a("v_lshlrev_b32 v21, 1, v19")
    P += row_setup()
    a("s_waitcnt lgkmcnt(0)")
    if cfg.STAMP: a("s_memtime s[96:97]"); a("s_memrealtime s[98:99]"); a("s_waitcnt lgkmcnt(0)")
    for (d, p, n) in ((sX, 4, 50331648), (28, 8, 4800), (32, 6, 192), (sO, 14, 0)):
        a(f"s_mov_b32 s{d}, s{p}"); a(f"s_and_b32 s{d+1}, s{p+1}, 0xffff"); a(f"s_mov_b32 s{d+2}, {n}"); a(f"s_mov_b32 s{d+3}, 0x20000")
    for j in range(5): a(f"buffer_load_ushort v{24+j}, v20, s[28:31], 0 offen offset:{192*j}")
    a("buffer_load_ushort v29, v21, s[32:35], 0 offen")
    a("s_mov_b64 s[4:5], s[56:57]"); a("s_mov_b64 s[6:7], s[58:59]")
    a(f"s_cmp_eq_u32 s{sXrow}, 3"); a(f"s_cselect_b32 s{sFrag}, s2, {NPROD}")
    a("v_mov_b32 v48, 0"); a(f"v_lshlrev_b32 v49, 2, v17")
    a(f"s_cmp_lt_u32 s{sFrag}, {NPROD}"); a("s_cbranch_scc0 Lprep_noload")
    a(f"s_mul_i32 s{sT+2}, s{sFrag}, 21846"); a(f"s_lshr_b32 s{sT+2}, s{sT+2}, 16"); a(f"s_mul_i32 s{sT+3}, s{sT+2}, 3"); a(f"s_sub_u32 s{sT+6}, s{sFrag}, s{sT+3}")
    a("s_mov_b32 s28, s10"); a("s_and_b32 s29, s11, 0xffff"); a("s_mov_b32 s30, 73728"); a("s_mov_b32 s31, 0x20000")
    a("s_mov_b32 s32, s12"); a("s_and_b32 s33, s13, 0xffff"); a("s_mov_b32 s34, 73728"); a("s_mov_b32 s35, 0x20000")
    a(f"s_add_u32 s{sT+3}, s{sT+2}, 1"); a(f"s_cmp_eq_u32 s{sT+3}, 12"); a(f"s_cselect_b32 s{sT+3}, 0, s{sT+3}"); a(f"s_lshl_b32 s{sT+3}, s{sT+3}, 6")
    a(f"s_mul_i32 s{sT+4}, s{sT+2}, 6144")
    a("v_lshrrev_b32 v50, 5, v17"); a("v_and_b32 v51, 31, v17")
    a("v_mul_u32_u24 v52, 6144, v50"); a("v_lshl_add_u32 v52, v51, 1, v52"); a("v_add_u32 v53, 3072, v52")
    a("v_mul_u32_u24 v54, 768, v50"); a("v_and_b32 v50, 19, v51"); a("v_lshl_add_u32 v54, v50, 1, v54")
    a("v_and_b32 v50, 4, v51"); a("v_lshl_add_u32 v54, v50, 2, v54"); a("v_and_b32 v50, 8, v51"); a("v_add_u32 v54, v54, v50")
    def ld(q, r):
        if q < 6:
            a(f"s_add_u32 s{sT+5}, s{sT+3}, {q * 12288}")
            for i in range(8): a(f"buffer_load_ushort v{r+i}, v{52 + i // 4}, s[28:31], s{sT+5} offen offset:{768 * (i & 3)}")
        else:
            sp, bb = divmod(q - 6, 3)
            a(f"s_add_u32 s{sT+5}, s{sT+4}, {sp * 3072 + bb * 64}")
            for i in range(8): a(f"buffer_load_ushort v{r+i}, v54, s[32:35], s{sT+5} offen offset:{192 * (i & 3) + 1536 * (i >> 2)}")
    def cv(q, r, mx):
        for i in range(0, 8, 2): a(f"v_and_b32 v50, 0x7fff, v{r+i}"); a(f"v_and_b32 v51, 0x7fff, v{r+i+1}"); a(f"v_max3_u32 v{mx}, v{mx}, v50, v51")
        if q < 6:
            for i in range(4): a(f"v_lshl_or_b32 v{r+i}, v{r+1+2*i}, 16, v{r+2*i}")
        else:
            for i in range(8): a(f"v_lshlrev_b32 v{r+i}, 16, v{r+i}")
            for i in range(4): a(f"v_cvt_pk_f16_f32 v{r+i}, v{r+2*i}, v{r+1+2*i}")
    a(f"s_mov_b32 s{sThird}, s{sT+6}")
    for third in range(3):
        if third < 2: a(f"s_cmp_eq_u32 s{sT+6}, {third}"); a(f"s_cbranch_scc0 Lprep_t{third + 1}")
        for i in range(4): ld(4 * third + i, 64 + 8 * i)
        if third < 2: a("s_branch Lprep_noload"); a(f"Lprep_t{third + 1}:")
    def prep_convert():
        a(f"s_cmp_lt_u32 s{sFrag}, {NPROD}"); a("s_cbranch_scc0 Lprep_nocv")
        a("v_mov_b32 v56, 0"); a("v_mov_b32 v57, 0"); a("s_waitcnt vmcnt(9)")
        for third in range(3):
            if third < 2: a(f"s_cmp_eq_u32 s{sThird}, {third}"); a(f"s_cbranch_scc0 Lprep_c{third + 1}")
            for i in range(4): cv(4 * third + i, 64 + 8 * i, 56 if 4 * third + i < 6 else 57)
            if third < 2: a("s_branch Lprep_st"); a(f"Lprep_c{third + 1}:")
        a("Lprep_st:")
        a("s_mov_b32 s28, s6"); a("s_and_b32 s29, s7, 0xffff"); a(f"s_mov_b32 s30, {12 * WSET}"); a("s_mov_b32 s31, 0x20000"); a(f"s_lshl_b32 s{sT+2}, s{sFrag}, 12")
        for i in range(4): a(f"buffer_store_dwordx4 v[{64+8*i}:{67+8*i}], v{vL16}, s[28:31], s{sT+2} offen offset:{1024 * i} sc0 sc1")
        a("v_max_u32 v50, v56, v57"); a("v_cmp_lt_u32 vcc, 0x4100, v50"); a("s_cmp_lg_u64 vcc, 0"); a(f"s_cselect_b32 s{sT+4}, 3, 1")
        a("v_cmp_le_u32 vcc, 0x3a80, v56"); a("s_cmp_lg_u64 vcc, 0"); a(f"s_cselect_b32 s{sT+5}, 4, 0"); a(f"s_or_b32 s{sT+4}, s{sT+4}, s{sT+5}")
        a("v_cmp_le_u32 vcc, 0x3a80, v57"); a("s_cmp_lg_u64 vcc, 0"); a(f"s_cselect_b32 s{sT+5}, 8, 0"); a(f"s_or_b32 s{sT+4}, s{sT+4}, s{sT+5}")
        a(f"v_mov_b32 v48, s{sT+4}"); a("s_branch Ldry_skip")
        a("Lprep_nocv:")
    a("Lprep_noload:")
    a(f"s_mov_b64 exec, s[{sEx48}:{sEx48+1}]")
    for g in row_loads(): P += g
    a("s_mov_b64 exec, -1")
    a("s_mov_b32 s32, s4"); a("s_and_b32 s33, s5, 0xffff"); a("s_mov_b32 s34, 256"); a("s_mov_b32 s35, 0x20000")
    P += wparams("P", 1)
    assert cfg.WLATE
    if cfg.STAMP: a("s_memtime s[100:101]"); a("s_waitcnt lgkmcnt(0)")
    a(f"s_mov_b32 s{sA16}, {A_imm:#x}"); a(f"s_mov_b32 s{sK16}, {K_imm:#x}")
    a(f"s_mov_b32 s{sInv96}, {f32bits(1/96):#x}"); a(f"s_mov_b32 s{sEps}, {f32bits(1e-5):#x}"); a(f"s_mov_b32 s{sKap}, {f32bits(kap_use):#x}")
    D = cfg.D
    a(f"s_lshl_b32 s{sT}, s{sTy}, 5"); a(f"s_lshl_b32 s{sT+1}, s{sGrp}, 3"); a(f"s_add_u32 s{sT}, s{sT}, s{sT+1}"); a(f"s_lshl_b32 s{sT+1}, s{sJ}, 1")
    a(f"s_add_u32 s{sT}, s{sT}, s{sT+1}"); a(f"s_mul_i32 s{sT}, s{sT}, 98304"); a(f"s_mul_i32 s{sT+1}, s{sTx}, 6144"); a(f"s_add_u32 s{sStO}, s{sT}, s{sT+1}")
    a(f"s_mov_b32 s{sDry+1}, s{sStO}")
    def addresses():
        a(f"v_lshrrev_b32 v37, 4, v{vL16}")
        a("v_and_b32 v30, 7, v37"); a("v_lshrrev_b32 v31, 5, v37"); a("v_bfe_u32 v32, v37, 4, 1")
        a(f"s_mul_i32 s{sT}, s{sJ}, 48"); a(f"s_add_u32 s{sT}, s{sT}, {XBASE}")
        a("v_mul_u32_u24 v33, 784, v30"); a("v_mul_u32_u24 v34, 384, v31"); a(f"v_add3_u32 v{vColB}, v33, v34, s{sT}")
        a(f"v_mul_u32_u24 v33, {XS - 384}, v31"); a("v_lshlrev_b32 v34, 3, v32"); a(f"v_sub_u32 v{vHwA}, v33, v34")
        a("v_and_b32 v35, 31, v37"); a("v_lshlrev_b32 v36, 4, v31")
        a(f"v_mul_u32_u24 v33, 192, v35"); a(f"v_add_u32 v{vSt}, v33, v36")
        a("v_lshrrev_b32 v33, 2, v35"); a(f"v_lshl_add_u32 v33, v33, 4, v{vSt}"); a(f"v_add_u32 v{vHr}, {XBASE}, v33")
        a("v_add_u32 v33, 2, v35"); a("v_lshrrev_b32 v33, 2, v33"); a(f"v_lshl_add_u32 v33, v33, 4, v{vSt}"); a(f"v_add_u32 v{vRes}, {XBASE + 384}, v33")
        if cfg.S64:
            a("v_and_b32 v33, 15, v37"); a("v_mul_u32_u24 v33, 192, v33"); a("v_lshl_add_u32 v33, v32, 5, v33"); a(f"v_add_u32 v{vSt}, v33, v36")
        a("v_and_b32 v33, 3, v37"); a("v_bfe_u32 v34, v37, 2, 2")
        a("v_and_b32 v35, 1, v37"); a("v_mul_u32_u24 v35, 400, v35"); a("v_bfe_u32 v36, v37, 1, 1"); a("v_mul_u32_u24 v36, 192, v36"); a("v_add_u32 v35, v35, v36")
        a("v_bfe_u32 v36, v37, 2, 1"); a("v_lshlrev_b32 v36, 5, v36"); a("v_sub_u32 v35, v35, v36")
        a("v_bfe_u32 v36, v37, 3, 2"); a("v_lshlrev_b32 v36, 2, v36"); a("v_sub_u32 v35, v35, v36")
        a(f"s_mul_i32 s{sT}, s{sJ}, {6 * TGRP}"); a(f"s_add_u32 s{sT}, s{sT}, {TBASE}")
        a("v_lshl_add_u32 v35, v31, 4, v35"); a(f"v_add_u32 v{vTa}, s{sT}, v35")
        a("v_lshl_add_u32 v35, v31, 3, v34"); a("v_lshlrev_b32 v35, 6, v35"); a("v_lshl_add_u32 v35, v32, 5, v35"); a(f"v_lshl_add_u32 v{vW1b}, v33, 3, v35")
        a("v_lshl_add_u32 v35, v31, 2, v34"); a("v_mul_u32_u24 v35, 192, v35"); a("v_lshl_add_u32 v35, v32, 5, v35")
        a("v_and_b32 v36, 1, v37"); a("v_lshl_add_u32 v35, v36, 4, v35"); a("v_bfe_u32 v36, v37, 1, 1"); a(f"v_lshl_add_u32 v{vW2b}, v36, 3, v35")
    def enter(targets, ret=0, keep=False):
        a(f"s_mov_b32 s{sDry+3}, {ret}"); a(f"s_mov_b32 s{sSave}, s{sRing}"); a(f"s_mov_b32 s{sSave+1}, s{sSig}")
        a(f"s_mov_b32 s{sDry}, 1"); a(f"s_mov_b32 s{sFirst}, 0"); a(f"s_mov_b32 s{sCnt}, 1"); a(f"s_mov_b32 s{sT+3}, -1"); a(f"s_mov_b32 s{sTgt}, 0")
        a(f"s_mov_b32 s{sDry+2}, s{sWsrc}"); a("s_waitcnt lgkmcnt(0)")
        a("s_setvskip -1, 0")
        for k, t in enumerate(targets[:3]): a(f"s_cmp_eq_u32 s{sJ}, {k}"); a(f"s_cbranch_scc1 {t}")
        a(f"s_branch {targets[3]}")
    def init_state():
        a(f"s_mov_b32 s{sXM}, 0"); a(f"s_mov_b32 s{sRing}, {WBASE}")
        a(f"s_mov_b32 s{sSig}, 1"); a(f"s_mov_b32 s{sP}, 0"); a(f"s_xor_b32 s{sFirst}, s{sGrp}, 1"); a(f"s_lshl_b32 s{sWin}, s{sGrp}, 3")
        a(f"s_mov_b32 s{sStInc}, 0"); a(f"s_mov_b32 s{sStO}, s{sDry+1}"); a(f"s_add_u32 s{sStO2}, s{sStO}, 98304"); a(f"s_mov_b32 s{sTgt}, 0")
        a(f"s_mov_b32 s{sO+2}, 0"); a(f"s_mov_b32 s{sDry}, 0")
    init_state()
    a(f"v_mov_b32 v{vSt}, 0")
    a(f"s_cmp_eq_u32 s{sGrp}, 0"); a("s_cbranch_scc0 Ldry_skip")
    addresses()
    a("v_bfe_u32 v35, v37, 3, 1"); a("v_lshl_add_u32 v35, v35, 2, v33")
    a("v_and_b32 v36, 1, v35"); a("v_lshlrev_b32 v36, 4, v36"); a("v_mov_b32 v38, 0x3f80"); a("v_lshlrev_b32 v36, v36, v38")
    a("v_lshrrev_b32 v35, 1, v35"); a("v_lshl_add_u32 v35, v32, 2, v35")
    a("v_bfe_u32 v38, v37, 2, 1"); a("v_cmp_eq_u32 vcc, v38, v31"); a("s_nop 1"); a("v_cndmask_b32 v35, 8, v35, vcc")
    for d in range(8):
        a(f"v_cmp_eq_u32 vcc, {d}, v35"); a("s_nop 1"); a(f"v_cndmask_b32 v{40+d}, 0, v36, vcc")
    a(f"ds_write_b128 v{vL16}, v[40:43] offset:{IBASE}"); a(f"ds_write_b128 v{vL16}, v[44:47] offset:{IBASE + 1024}")
    prep_convert()
    if cfg.WARM:
        enter(["Lc1", "Ldry0", "Ljoin", "Ldry3"])
        a("Ldry_ret:"); a("s_setvskip 0, 0"); a("s_mov_b64 exec, -1"); a("s_setprio 0"); a(f"s_mov_b32 s{sWsrc}, s{sDry+2}")
        init_state()
        a(f"s_mov_b32 s{sRing}, s{sSave}"); a(f"s_mov_b32 s{sSig}, s{sSave+1}")
        for k, n in ((1, "Ldry_B"), (2, "Ldry_B2"), (3, "Ldry_B3")) + (((4, "Ldry_A4"),) if cfg.LAST else ()): a(f"s_cmp_eq_u32 s{sDry+3}, {k}"); a(f"s_cbranch_scc1 {n}")
    a("Ldry_skip:")
    a("s_waitcnt vmcnt(9)")
    a("v_cmp_eq_u32 vcc, 2, v18"); a("v_lshlrev_b32 v29, 16, v29"); a("s_nop 0"); a("v_cndmask_b32 v29, 0, v29, vcc"); a("v_or_b32 v26, v26, v29")
    a("v_mov_b32 v29, 0"); a("v_mov_b32 v30, 0"); a("v_mov_b32 v31, 0")
    a(f"v_lshrrev_b32 v33, 2, v19"); a(f"v_mul_u32_u24 v33, {TGRP}, v33"); a("v_lshl_add_u32 v33, v18, 5, v33")
    a("v_and_b32 v34, 1, v19"); a("v_mul_u32_u24 v34, 400, v34"); a("v_bfe_u32 v35, v19, 1, 1"); a("v_mul_u32_u24 v35, 192, v35"); a("v_add3_u32 v33, v33, v34, v35")
    a("v_cmp_gt_u32 vcc, 480, v0"); a("s_and_saveexec_b64 s[72:73], vcc")
    a(f"ds_write_b128 v33, v[24:27] offset:{TBASE}"); a(f"ds_write_b128 v33, v[28:31] offset:{TBASE + 16}")
    a("s_mov_b64 exec, -1")
    a("v_mov_b32 v28, 0")
    a("v_cmp_eq_u32 vcc, 4, v18"); a("s_and_saveexec_b64 s[72:73], vcc")
    a(f"ds_write_b128 v33, v[28:31] offset:{TBASE + 32}"); a(f"ds_write_b128 v33, v[28:31] offset:{TBASE + 48}")
    a("v_and_b32 v34, 3, v19"); a("v_cmp_eq_u32 vcc, 2, v34"); a("s_and_b64 exec, exec, vcc")
    a(f"ds_write_b128 v33, v[28:31] offset:{TBASE + 64}")
    a("s_mov_b64 exec, -1")
    a("v_mov_b32 v33, 0")
    for o in (0, 16, 32): a(f"ds_write_b128 v33, v[28:31] offset:{TPAD + o}")
    a(f"ds_write_b128 v33, v[28:31] offset:{CBASE}")
    if cfg.STAMP:
        a("v_mov_b32 v16, 0"); a("v_mov_b32 v17, 0"); a("v_writelane_b32 v16, s92, 60"); a("v_writelane_b32 v16, s96, 56")
        a("v_writelane_b32 v16, s98, 54"); a("v_writelane_b32 v16, s100, 57")
        P += stamp(16, 61)
        a(f"s_mov_b32 s96, {cfg.SMASK & 0xffffffff:#x}"); a(f"s_mov_b32 s97, {(cfg.SMASK >> 32) & 0xffffffff:#x}")
    a(f"s_cmp_eq_u32 s{sGrp}, 0"); a("s_cbranch_scc0 Lpro_w4")
    P += [i.text for i in csetup()]
    a("s_waitcnt vmcnt(0) lgkmcnt(0)"); P += stamp(16, 58)
    a(f"s_cmp_lt_u32 s{sFrag}, {NPROD}"); a("s_cbranch_scc0 Lflag_done"); a(f"s_lshl_b32 s{sT+2}, s{sFrag}, 2")
    a("s_mov_b64 exec, 1"); a(f"buffer_store_dword v48, v49, s[32:35], s{sT+2} offen sc0 sc1"); a("s_mov_b64 exec, -1")
    P += stamp(16, 57); a("Lflag_done:")
    a(f"s_mov_b32 s{sWsrc}, {8 * WSET}"); a(f"s_lshl_b32 s{sXrow}, s{sJ}, 1"); a(f"s_add_u32 s{sXrow}, s{sXrow}, 20")
    a("s_barrier")
    P += stamp(17, 58); a("s_branch Lc1")
    a("Lpro_w4:")
    a(f"s_mov_b64 exec, s[{sEx48}:{sEx48+1}]")
    a(f"s_and_b32 s{sXrow}, s{sJ}, 1"); a(f"s_add_u32 s{sXrow}, s{sXrow}, 8")
    for r in range(2):
        P += row_setup()
        a(f"s_cmp_lt_u32 s{sJ}, 2"); a(f"s_cbranch_scc0 Lpro_h{r}")
        for g in row_loads()[:5]: P += g
        a(f"s_branch Lpro_g{r}"); a(f"Lpro_h{r}:")
        for g in row_loads()[5:] + row_loads()[8:]: P += g
        a(f"Lpro_g{r}:"); a(f"s_add_u32 s{sXrow}, s{sXrow}, 2")
        if r == 0: a("s_waitcnt vmcnt(5) lgkmcnt(0)"); P += stamp(16, 58); a("s_barrier")
    a("s_mov_b64 exec, -1")
    a("s_waitcnt vmcnt(5)"); a("s_barrier"); a("s_waitcnt vmcnt(0)"); a("s_barrier")
    P += stamp(17, 50)
    addresses()
    if cfg.WARM:
        enter(["Lbody2P", "Lq12", "Lhalf2", "Lq32"], 1); a("Ldry_B:")
    a(f"v_mov_b32 v18, {CBASE + 8}"); a(f"s_cmp_eq_u32 s{sJ}, 0"); a("s_cbranch_scc0 Lmode_wait")
    a(f"v_lshrrev_b32 v20, 2, v{vL16}"); a(f"s_mov_b32 s{sT}, {cfg.POLLS}"); a(f"s_mov_b32 s{sMode}, 2")
    P += stamp(17, 51)
    a("Lpoll_g:"); a("buffer_load_dword v19, v20, s[32:35], 0 offen sc1"); a("s_waitcnt vmcnt(0)")
    a("v_cmp_ne_u32 vcc, 0, v19"); a(f"s_bcnt1_i32_b64 s{sT+2}, vcc"); a(f"s_cmp_eq_u32 s{sT+2}, {NPROD}"); a("s_cbranch_scc1 Lpoll_ok")
    a("s_sleep 12"); a(f"s_sub_u32 s{sT}, s{sT}, 1"); a(f"s_cmp_lg_u32 s{sT}, 0"); a("s_cbranch_scc1 Lpoll_g"); a("s_branch Lmode_set")
    a("Lpoll_ok:")
    P += stamp(17, 52)
    if cfg.STAMP: a(f"v_writelane_b32 v17, s{sT}, 53")
    for bit, want in ((2, 0), (4, 1), (8, 1)):
        a(f"v_and_b32 v21, {bit}, v19"); a("v_cmp_ne_u32 vcc, 0, v21"); a("s_cmp_lg_u64 vcc, 0"); a(f"s_cbranch_scc{1 - want} Lmode_set")
    a(f"s_mov_b32 s{sMode}, {cfg.FORCE or 1}")
    a("Lmode_set:"); a(f"v_mov_b32 v19, s{sMode}"); a("ds_write_b32 v18, v19")
    a("Lmode_wait:"); a("ds_read_b32 v19, v18"); a("s_waitcnt lgkmcnt(0)"); a(f"v_readfirstlane_b32 s{sMode}, v19")
    a(f"s_cmp_eq_u32 s{sMode}, 0"); a("s_cbranch_scc1 Lmode_wait")
    P += stamp(16, 59)
    a(f"s_cmp_eq_u32 s{sMode}, 1"); a("s_cbranch_scc1 Lmode_P")
    P += wparams("R", 1)
    a("Lmode_P:")
    for q in range(1, 4):
        for g in wdma_groups(f"{WBASE + q * WSET}"): P += g
    if cfg.WARM:
        enter(["Lbody1P", "Lq11", "Lhalf1", "Lq31"], 2); a("Ldry_B2:")
    a("s_waitcnt vmcnt(6)"); a("s_barrier")
    assert D == 3
    P += bar_lines()
    for g in wdma_interval(): P += g
    a(f"s_lshl_b32 s{sXrow}, s{sJ}, 1"); a(f"s_add_u32 s{sXrow}, s{sXrow}, 12"); a(f"s_mov_b64 exec, s[{sEx48}:{sEx48+1}]")
    P += row_dma_lines(); a(f"s_add_u32 s{sXrow}, s{sXrow}, 1")
    P += row_dma_lines(); a(f"s_add_u32 s{sXrow}, s{sXrow}, 7")
    a("s_mov_b64 exec, -1")
    P += bar_lines("s_waitcnt vmcnt(18)")
    for g in wdma_interval(): P += g
    if cfg.WARM:
        enter(["LconvP", "Ldry1", "Lbody0P", "Lhalf0"], 3); a("Ldry_B3:")
    a(f"s_cmp_eq_u32 s{sMode}, 1"); a("s_cbranch_scc0 LouterR")
    return P

def build():
    D = cfg.D
    out = []
    hdr = ["; fused depthwise 5x5 + LayerNorm + MLP(GELU) + residual; generated by gen/gen.py",
           f"; @launch grid=(256,1,1) block=(512,1,1) lds={LDS_BYTES}",
           '.amdgcn_target "amdgcn-amd-amdhsa--gfx950"', ".text", f".globl {KNAME}", ".p2align 8", f".type {KNAME},@function", f"{KNAME}:"]
    out += hdr
    def raw(lines):
        for l in lines: out.append(l if l.endswith(":") or l.startswith(".") else "    " + l)
    raw(prologue())
    for m in "PR":
        MODE[0] = m
        epi0, epi1 = csetup(), epilogue(True)
        cs = cstage()
        bodies = [loop_body(0), loop_body(1), loop_body(2)]
        marks = [LABEL(n) for n in ("@c", "@a1", "@a2", "@b2", "@e0", "@x", "@e1", "@end")]
        lin = [marks[0]] + cs + [marks[1]] + bodies[0] + [marks[2]] + bodies[0] + [marks[3]] + bodies[1] + [marks[4]] + epi0 + [marks[5]] + bodies[2] + [marks[6]] + epi1 + [marks[7]]
        lin, pend = insert_lgkm(lin, cfg.OLD); assert not pend
        lin, _ = fix_hazards(lin)
        idx = [next(k for k, i in enumerate(lin) if i is m) for m in marks]
        cst, a1, a2, b2, e0, n2, e1 = (lin[idx[k] + 1: idx[k + 1]] for k in range(7))
        n1 = sum(states(i) for i in a1 if i.kind == "nop") - sum(states(i) for i in a2 if i.kind == "nop")
        assert [i.text for i in a1 if i.kind != "nop"] == [i.text for i in a2 if i.kind != "nop"]
        if n1 > 0: cst = cst + [Ins(f"s_nop {n1 - 1}", "nop")]
        for path in ([cst, n2, a2, a2, b2, a2, e0, cst, b2, a2, e1], [cst, n2, n2, e0, cst, n2, n2, e1]):
            seq = [i for blk in path for i in blk]
            _, bad = fix_hazards(seq, check_only=True); assert not bad, bad
            assert not check_lgkm(seq)
        def emit(blk):
            for i in blk:
                if i.kind == "touch": continue
                for l in i.text.split("\n"): out.append(l if i.kind in ("label", "opaque", "dsw_op") or l.startswith("    ") or l.endswith(":") else "    " + l)
        if m == "P":
            c1, pend = insert_lgkm(e0 + [LABEL("@")] + conv_first(), cfg.OLD); c1, _ = fix_hazards(c1)
            c1 = c1[[i.text for i in c1].index("@:") + 1:]
            kj = [k for k, i in enumerate(cst) if "Ljoin:" in i.text][0]
            _, bad = fix_hazards(c1 + cst[kj:], check_only=True); assert not bad, bad
            check_lgkm(c1 + cst[kj:])
            raw(["s_branch LouterP", "Lc1:"]); emit(c1); raw(dry_exit() + ["s_branch Ljoin"])
        out.append(f"Louter{m}:")
        emit(e0)
        raw(bar_lines())
        raw([f"s_cmp_eq_u32 s{sGrp}, 0", f"s_cbranch_scc0 Lno_w{m}"] + [l for g in wdma_interval() for l in g] + [f"Lno_w{m}:"])
        out.append(f"Lconv{m}:")
        emit(cst)
        raw(dry_exit())
        raw([f"s_or_b32 s{sT}, s{sGrp}, s{sFirst}", f"s_cbranch_scc0 LloopX{m}",
             f"s_sub_u32 s{sCnt}, 6, s{sP}" if cfg.LAST else f"s_mov_b32 s{sCnt}, 6", f"s_cmp_lg_u32 s{sFirst}, 0", f"s_cselect_b32 s{sCnt}, 2, s{sCnt}", f"s_branch LloopN{m}"])
        tail = [f"s_add_u32 s{sWin}, s{sWin}, 4", f"s_cmp_ge_u32 s{sWin}, {NR}", f"s_cselect_b32 s{sWin}, 0, s{sWin}",
                f"s_add_u32 s{sP}, s{sP}, 1", f"s_cmp_eq_u32 s{sP}, 1", f"s_cbranch_scc1 Louter{m}"]
        raw([".p2align 6", f"LloopX{m}:"]); emit(b2)
        raw(dry_exit() + [f"s_mov_b32 s{sXM}, 1", f"s_cmp_eq_u32 s{sP}, 0", f"s_cselect_b32 s{sCnt}, 1, 5", "s_waitcnt vmcnt(18)", f"s_branch Lnowait0{m}"])
        raw([".p2align 6", f"LloopA{m}:"]); emit(a2)
        raw([f"s_sub_u32 s{sCnt}, s{sCnt}, 1", f"s_cmp_lg_u32 s{sCnt}, 0", f"s_cbranch_scc1 LloopA{m}"] + dry_exit() +
            [f"s_cmp_eq_u32 s{sXM}, 0", f"s_cbranch_scc1 LloopX{m}"] + tail)
        k6 = [k for k, i in enumerate(e1) if i.kind == "vstore"][5] + 1
        raw(bar_lines()); raw([l for g in wdma_interval() for l in g]); emit(e1[:k6])
        raw(bar_lines("s_waitcnt vmcnt(6)")); raw([l for g in wdma_interval() for l in g]); emit(e1[k6:])
        raw(stamp(16, 62))
        raw(bar_lines("s_waitcnt vmcnt(6)")); raw([l for g in wdma_interval() for l in g])
        if cfg.LAST and cfg.WARM and m == "P":
            raw([f"s_mov_b32 s{sDry+3}, 4", f"s_mov_b32 s{sDry}, 1", "s_setvskip -1, 0", f"s_cmp_eq_u32 s{sJ}, 0", "s_cbranch_scc1 Lbody3P", f"s_cmp_eq_u32 s{sJ}, 1", "s_cbranch_scc1 Lq13",
                 f"s_cmp_eq_u32 s{sJ}, 2", "s_cbranch_scc1 Lhalf3", "s_branch Lq33", "Ldry_A4:"])
        raw(bar_lines())
        raw(["s_branch Lfin"])
        raw([".p2align 6", f"LloopN{m}:"]); emit(n2)
        raw([f"s_sub_u32 s{sCnt}, s{sCnt}, 1", f"s_cmp_lg_u32 s{sCnt}, 0", f"s_cbranch_scc1 LloopN{m}"] + dry_exit() + [
             f"s_cmp_lg_u32 s{sFirst}, 0", f"s_mov_b32 s{sFirst}, 0", f"s_mov_b32 s{sCnt}, 2", f"s_cbranch_scc1 LloopA{m}"] + tail)
        if cfg.LAST:
            lb, _ = insert_lgkm(n2 + [LABEL("@")] + last_body(), cfg.OLD); lb, _ = fix_hazards(lb)
            lb = lb[[i.text for i in lb].index("@:") + 1:]
            check_lgkm(n2 + lb)
            emit(lb)
        else:
            out.append(f"Lepi1{m}:")
            emit(e1)
        raw(dry_exit())
        raw(stamp(16, 62))
        raw(["s_branch Lfin"] if m == "P" else [])
        if m == "P": out.append("Lraw:")
    out.append("Lfin:")
    if cfg.STAMP:
        raw(["s_waitcnt vmcnt(0)"] + stamp(16, 63) + ["s_memrealtime s[98:99]", "s_waitcnt lgkmcnt(0)", "v_writelane_b32 v16, s98, 55",
             "s_load_dwordx2 s[94:95], s[0:1], 56", "s_waitcnt lgkmcnt(0)", "s_mov_b32 s28, s94", "s_and_b32 s29, s95, 0xffff", "s_mov_b32 s30, 0x1000000", "s_mov_b32 s31, 0x20000",
             f"s_lshl_b32 s89, s{sGrp}, 2", f"s_add_u32 s89, s89, s{sJ}", "s_lshl_b32 s90, s2, 3", "s_add_u32 s89, s89, s90", "s_lshl_b32 s89, s89, 9", "s_add_u32 s89, s89, 0x100000",
             f"v_lshrrev_b32 v18, 2, v{vL16}", "buffer_store_dword v16, v18, s[28:31], s89 offen", "buffer_store_dword v17, v18, s[28:31], s89 offen offset:256"])
    if cfg.DBG:
        raw(["s_waitcnt vmcnt(0)", "s_memtime s[90:91]", "s_memrealtime s[96:97]", "s_load_dwordx2 s[98:99], s[0:1], 48", "s_waitcnt lgkmcnt(0)",
             "s_sub_u32 s90, s90, s92", "s_sub_u32 s96, s96, s94", "s_mov_b32 s28, s98", "s_and_b32 s29, s99, 0xffff", "s_mov_b32 s30, 64", "s_mov_b32 s31, 0x20000",
             f"s_cmp_eq_u32 s{sGrp}, 1", "s_cbranch_scc0 Lend", f"s_cmp_eq_u32 s{sJ}, 0", "s_cbranch_scc0 Lend",
             "s_lshr_b32 s89, s2, 5", "s_lshl_b32 s89, s89, 3", "s_and_b32 s91, s2, 31", "s_cmp_eq_u32 s91, 0", "s_cbranch_scc0 Lend",
             "v_mov_b32 v16, s90", "v_mov_b32 v17, s96", "v_mov_b32 v18, 0", "s_mov_b64 exec, 1", "buffer_store_dwordx2 v[16:17], v18, s[28:31], s89 offen"])
    if cfg.ENC:
        raw(["s_waitcnt vmcnt(0)", "s_memtime s[90:91]", "s_memrealtime s[96:97]", "s_waitcnt lgkmcnt(0)", "s_sub_u32 s90, s90, s92", "s_sub_u32 s96, s96, s94",
             f"s_cmp_eq_u32 s{sGrp}, 1", "s_cbranch_scc0 Lend", f"s_cmp_eq_u32 s{sJ}, 0", "s_cbranch_scc0 Lend",
             f"v_lshrrev_b32 v18, 3, v{vL16}", f"buffer_load_ushort v19, v18, s[{sO}:{sO+3}], s{sStO} offen sc0 sc1",
             f"v_lshrrev_b32 v20, 4, v{vL16}", "v_and_b32 v21, 7, v20", "v_mul_u32_u24 v21, 3, v21", "v_cmp_gt_u32 vcc, 8, v20", "v_mov_b32 v22, s90", "v_mov_b32 v23, s96",
             "v_cndmask_b32 v22, v23, v22, vcc", "v_lshrrev_b32 v22, v21, v22", "v_and_b32 v22, 7, v22", "s_waitcnt vmcnt(0)", "v_and_b32 v19, 0xfff8, v19", "v_or_b32 v19, v19, v22",
             "s_mov_b64 exec, 0xffff", f"buffer_store_short v19, v18, s[{sO}:{sO+3}], s{sStO} offen sc0 sc1"])
    raw(["Lend:", "s_endpgm"])
    raw(["Lw1wait:", "s_barrier", f"ds_read_b32 v{T0+1}, v{T0} offset:8", "s_waitcnt lgkmcnt(0)", f"v_readfirstlane_b32 s{sMode}, v{T0+1}",
         f"s_cmp_eq_u32 s{sMode}, 1", "s_cbranch_scc1 Lw1wait_retP"] + wparams("R", 8) + ["s_branch Lw1wait_retR"])
    if cfg.ALIGN:
        tmp, npad, nwid = align8([l.replace("CODE_LAST", "0x1000") for l in out], "Lc1", "Lend")
        out = [l.replace("v38, 0x1000", "v38, CODE_LAST") for l in tmp]
        sys.stderr.write(f"align8: {npad} pads, {nwid} widened\n")
    nbytes = sum(insn_sizes([l.replace("CODE_LAST", "0x1000") for l in out])[:out.index("Lraw:")])
    out = [l.replace("CODE_LAST", str(nbytes // 64 * 64 - 128)) for l in out]
    sys.stderr.write(f"hot code bytes {nbytes}\n"); assert nbytes <= 32768 or cfg.STAMP
    out += ['.section .rodata,"a"', ".p2align 6", f".amdhsa_kernel {KNAME}", "  .amdhsa_next_free_vgpr 256", f"  .amdhsa_next_free_sgpr {102 if cfg.STAMP or cfg.DBG or cfg.ENC else 96}",
            "  .amdhsa_accum_offset 256", "  .amdhsa_group_segment_fixed_size 0", "  .amdhsa_kernarg_size 64", "  .amdhsa_user_sgpr_count 2",
            "  .amdhsa_user_sgpr_kernarg_segment_ptr 1", "  .amdhsa_system_sgpr_workgroup_id_x 1", ".end_amdhsa_kernel"]
    return "\n".join(out) + "\n"

open(sys.argv[1], "w").write(build())
```

```python
import sys, struct, math
import numpy as np, re
from asmlib import *

class Cfg:
    D = 3
    GELU = "B"
    PRIO = 1
    CPRIO = 3
    XF = 'nt'
    OF = 'sc0+sc1'
    WF = 'sc1'
    ALIGN = True
    STAMP = False
    SMASK = -1
    OLD = 200
    THR = 0
    ENC = False
    LAST = True
    PKST = 0
    MIDU = 33
    NBUF = 2
    RT = False
    NOINV = False
    FORCE = 0
    POLLS = 300
    S64 = True
    DBG = False
    WARM = True
    HW64 = True
    PBASE = 3
    ABL = ''
    CST = False
    PKS = 0
    PKN = True
    W1G = True
    R2 = False
    NOSTAT = False
    NOCRD = False
    N0 = 15
    WLATE = True
cfg = Cfg()
for a in sys.argv[2:]:
    k, v = a.split("=")
    setattr(cfg, k, type(getattr(cfg, k))(v) if not isinstance(getattr(cfg, k), bool) else v in ("1", "True"))

KNAME = "standalone__modern_conv_block_replknet__vision_kernel"
XS = 7104; NR = 12
TPAD = 0
TBASE = 48
TGRP = 784
IBASE = TBASE + 24 * TGRP
PBASE = IBASE + 2048
CBASE = PBASE + 8192
WBASE = CBASE + 16
WSET = 12288
XBASE = WBASE + 4 * WSET
LDS_BYTES = XBASE + NR * XS
assert LDS_BYTES <= 163840, LDS_BYTES
assert WBASE % 16 == 0 and IBASE % 16 == 0
vColB, vHwA, vRes, vHr, vTa, vSt, vW1b, vW2b, vW1c, vW2c, vDMA, vOffL, vOffR, vL16 = range(1, 15)
T0 = 18
G = 24
W2F = 32
W1F = 56
ACC1 = (80, 96)
H = 112
ACC2 = 160
def acc2(X, b): return ACC2 + 48 * X + 16 * b
cBuf = (56, 68, 80)
cAddr = 104
cTa, cIdx, cRes, cHw, cHr = 107, 108, 109, 110, 111
XF = [32, 36, 40, 44, 48, 52, 92, 96, 100, 80, 84, 88]
sX, sO, sW = 16, 20, 24
sGrp, sJ, sTx, sTy, sSig, sRing, sWsrc, sWstep, sWlim, sWins, sWbase, sP, sCnt = range(36, 49)
sA16, sK16, sStO = 49, 50, 51
sWin, sXrow, sFirst = 63, 64, 65
sXM, sXinc = 66, 67
sExX = 68
sAdjL = 70
sT = 71
sEx48 = 80
sInv96, sEps, sKap = 82, 83, 84
sDry = 56
sFrag, sMode, sThird = 62, 3, 60
sSave = 68
sStO2, sTgt = 52, 53
sFres, sFh = 54, 55
sXo, sXm = 85, 86
sStInc = 87
s1k = 89
sJ3k = 88
RSUM = 2 * WBASE + 2 * WSET

def f32bits(x): return struct.unpack("<I", struct.pack("<f", x))[0]
def f16bits(x): return int(np.float16(x).view(np.uint16))
a_c = -2.0 * math.log2(math.e) * math.sqrt(2.0 / math.pi)
b_c = a_c * 0.044715
kap = -((-b_c) ** (1.0 / 3.0))
if cfg.GELU in ("B",):
    kap_use = float(np.float16(kap))
    A_imm = f16bits(a_c / kap_use) * 0x10001
    K_imm = f16bits(kap_use) * 0x10001
else:
    kap_use = kap
    A_imm = f32bits(a_c / kap)
    K_imm = f32bits(kap)

def fl(s): return ''.join(' ' + w for w in s.split('+') if w)
uid = [0]
MODE = ['P']
NPROD = 36
def lab(p):
    uid[0] += 1
    return f"L{p}_{uid[0]}"

def opaque(lines):
    return Ins("\n".join("    " + l if not l.endswith(":") else l for l in lines), "opaque", cost=0)

def stamp(vreg, lane):
    if not cfg.STAMP: return []
    return ["s_memtime s[90:91]", f"s_mov_b32 m0, {lane}", "s_waitcnt lgkmcnt(0)", f"v_writelane_b32 v{vreg}, s90, m0"]
def cstamp(vreg):
    if not cfg.STAMP: return []
    if cfg.RT:
        if vreg == 16: return []
        return stamp(17, f"s{sSig}") + [x.replace("s_memtime", "s_memrealtime") for x in stamp(16, f"s{sSig}")]
    if cfg.SMASK == -1: return stamp(vreg, f"s{sSig}")
    l = lab("s")
    return [f"s_bitcmp1_b64 s[96:97], s{sSig}", f"s_cbranch_scc0 {l}"] + stamp(vreg, f"s{sSig}") + [f"{l}:"]

def wdma_groups(dst):
    out = []
    for u in range(3):
        g = [f"s_add_u32 m0, {dst}, s{sJ3k}", f"s_add_u32 s{sT+8}, s{sWsrc}, s{sWbase}"] if u == 0 else \
            [f"s_add_u32 m0, m0, s{s1k}", f"s_add_u32 s{sT+8}, s{sT+8}, s{sWins}"]
        g.append(f"buffer_load_dwordx4 v{vDMA}, s[{sW}:{sW+3}], s{sT+8} offen{fl(cfg.WF)} lds")
        if u == 2: g += [f"s_add_u32 s{sWsrc}, s{sWsrc}, s{sWstep}", f"s_cmp_eq_u32 s{sWsrc}, s{sWlim}", f"s_cselect_b32 s{sWsrc}, 0, s{sWsrc}"]
        out.append(g)
    return out
def wdma_interval():
    g = wdma_groups(f"s{sT+7}") + wdma_groups(f"s{sT+7}")
    g[0] = [f"s_sub_u32 s{sT+7}, {RSUM}, s{sRing}"] + g[0]
    g[3] = [f"s_add_u32 s{sT+7}, s{sT+7}, {WSET}"] + g[3]
    return g

def row_setup():
    t0, t1, t2 = sT, sXo, sT + 1
    return [f"s_lshl_b32 s{t0}, s{sTy}, 5", f"s_add_u32 s{t0}, s{t0}, s{sXrow}", f"s_sub_u32 s{t0}, s{t0}, 2",
            f"s_mul_i32 s{t1}, s{t0}, 98304", f"s_mul_i32 s{t2}, s{sTx}, 6144", f"s_add_u32 s{t1}, s{t1}, s{t2}",
            f"s_cmp_lt_u32 s{t0}, 512", f"s_cselect_b32 s{t1}, s{t1}, 0x80000000",
            f"s_cmp_ge_u32 s{sXrow}, 24", f"s_cselect_b32 s{t2}, 24, 0", f"s_sub_u32 s{t0}, s{sXrow}, s{t2}",
            f"s_cmp_ge_u32 s{t0}, 12", f"s_cselect_b32 s{t2}, 12, 0", f"s_sub_u32 s{t0}, s{t0}, s{t2}",
            f"s_and_b32 s{t2}, s{sXrow}, 4", f"s_lshl_b32 s{t2}, s{t2}, 1", f"s_mul_i32 s{t0}, s{t0}, {XS}", f"s_add_u32 s{t0}, s{t0}, s{t2}",
            f"s_add_u32 s{sXm}, s{t0}, {XBASE}"]
def row_loads():
    out = [[f"s_mov_b32 m0, s{sXm}", f"s_sub_u32 s{sT}, s{sXo}, s{sAdjL}", f"buffer_load_dwordx4 v{vOffL}, s[{sX}:{sX+3}], s{sT} offen{fl(cfg.XF)} lds"]]
    for a in range(1, 9):
        out.append([f"s_add_u32 m0, s{sXm}, {784 * a}", f"s_add_u32 s{sT}, s{sXo}, {768 * a - 384}",
                    f"buffer_load_dwordx4 v{vOffR if a == 8 else vL16}, s[{sX}:{sX+3}], s{sT} offen{fl(cfg.XF)} lds"])
    return out
def row_dma_lines(): return row_setup() + [l for g in row_loads() for l in g]

def bar_lines(wait="s_waitcnt vmcnt(0)"):
    L = cstamp(16) + ([wait] if wait else []) + ["s_barrier"] + cstamp(17)
    L += [f"s_sub_u32 s{sRing}, {RSUM}, s{sRing}"]
    if cfg.STAMP: L += [f"s_add_u32 s{sSig}, s{sSig}, 1"]
    return L

def gelu_B(Sr):
    ops = []
    def st(p, k):
        a0 = Sr + 2 * p; a1 = a0 + 1; t = T0 + (p % 2) * 3; u = t + 1; w = t + 2
        return [V(f"v_cvt_pk_f16_f32 v{t}, v{a0}, v{a1}"),
                V(f"v_pk_fma_f16 v{u}, v{t}, v{t}, s{sA16}"),
                V(f"v_pk_mul_f16 v{t}, v{t}, v{u}"),
                V(f"v_exp_f16 v{u}, v{t}"),
                V(f"v_exp_f16_sdwa v{u}, v{t} dst_sel:WORD_1 dst_unused:UNUSED_PRESERVE src0_sel:WORD_1"),
                V(f"v_pk_fma_f16 v{t}, v{u}, s{sK16}, s{sK16}"),
                V(f"v_rcp_f16 v{u}, v{t}"),
                V(f"v_rcp_f16_sdwa v{w}, v{t} dst_sel:DWORD dst_unused:UNUSED_PAD src0_sel:WORD_1"),
                V(f"v_fma_mix_f32 v{u}, v{a0}, v{u}, 0 op_sel_hi:[0,1,0]"),
                V(f"v_fma_mix_f32 v{w}, v{a1}, v{w}, 0 op_sel_hi:[0,1,0]"),
                V(f"v_cvt_pk_bf16_f32 v{G+p}, v{u}, v{w}")][k]
    for q in range(0, 8, 2):
        for k in range(11):
            ops += [st(q, k), st(q + 1, k)]
    return ops

def gelu_A(Sr):
    ops = []
    for q in range(0, 16, 4):
        for k in range(6):
            for e in range(4):
                a = Sr + q + e; r = T0 + e
                ops.append([V(f"v_fma_f32 v{r}, v{a}, v{a}, s{sA16}"), V(f"v_mul_f32 v{r}, v{a}, v{r}"), V(f"v_exp_f32 v{r}, v{r}"),
                            V(f"v_fma_f32 v{r}, v{r}, s{sK16}, s{sK16}"), V(f"v_rcp_f32 v{r}, v{r}"), V(f"v_mul_f32 v{r}, v{a}, v{r}")][k])
        ops += [V(f"v_cvt_pk_bf16_f32 v{G+q//2}, v{T0}, v{T0+1}"), V(f"v_cvt_pk_bf16_f32 v{G+q//2+1}, v{T0+2}, v{T0+3}")]
    return ops
def gelu_C(Sr):
    ops = []
    def st(p, k):
        a0 = Sr + 2 * p; a1 = a0 + 1; t = T0 + (p % 2) * 3; u = t + 1; w = t + 2
        return [V(f"v_cvt_pk_f16_f32 v{w}, v{a0}, v{a1}"),
                V(f"v_pk_fma_f16 v{u}, v{w}, v{w}, s{sA16}"),
                V(f"v_pk_mul_f16 v{t}, v{w}, v{u}"),
                V(f"v_exp_f16 v{u}, v{t}"),
                V(f"v_exp_f16_sdwa v{u}, v{t} dst_sel:WORD_1 dst_unused:UNUSED_PRESERVE src0_sel:WORD_1"),
                V(f"v_pk_fma_f16 v{t}, v{u}, s{sK16}, s{sK16}"),
                V(f"v_rcp_f16 v{u}, v{t}"),
                V(f"v_rcp_f16_sdwa v{u}, v{t} dst_sel:WORD_1 dst_unused:UNUSED_PRESERVE src0_sel:WORD_1"),
                V(f"v_pk_mul_f16 v{G+p}, v{w}, v{u}")][k]
    for q in range(0, 8, 2):
        for k in range(9):
            ops += [st(q, k), st(q + 1, k)]
    return ops
def gelu(Sr): return gelu_C(Sr) if MODE[0] == "P" else gelu_B(Sr)

TR = "ds_read_b64_tr_b16"
def rd_w1(j, c):
    if MODE[0] == "P": return [DSR("ds_read_b128", W1F + 4 * j, 4, vW1c, f"offset:{WSET * c + 1024 * j}")]
    return [DSR(TR, W1F + 4 * j + 2 * r, 2, vW1c, f"offset:{WSET * c + 1024 * j + 256 * r}") for r in range(2)]
def rd_w2(sp, b, c):
    if MODE[0] == "P": return [DSR("ds_read_b128", W2F + 12 * sp + 4 * b, 4, vW1c, f"offset:{WSET * c + 6144 + 1024 * (3 * sp + b)}")]
    return [DSR(TR, W2F + 12 * sp + 4 * b + 2 * r, 2, vW2c, f"offset:{WSET * c + 6144 + (16 * sp + 8 * r) * 192 + 64 * b}") for r in range(2)]
def g1(X, j):
    return MFMA("32x32x16", ACC1[X], W1F + 4 * j, H + 8 * j + 4 * X, None if j == 0 else ACC1[X])
def g2(X, sp, b):
    return (MFMA16 if MODE[0] == "P" else MFMA)("32x32x16", acc2(X, b), W2F + 12 * sp + 4 * b, G + 4 * sp, acc2(X, b))
def w_addr():
    if MODE[0] == "P": return [V(f"v_add_u32 v{vW1c}, s{sRing}, v{vL16}")]
    return [V(f"v_add_u32 v{vW1c}, s{sRing}, v{vW1b}"), V(f"v_add_u32 v{vW2c}, s{sRing}, v{vW2b}")]

def step(X, c, extra):
    Y = 1 - X
    ld = (X == 0)
    att = [[g2(Y, 1, 0)] + (rd_w2(1, 0, c) if ld else []),
           [g1(Y, 0)] + (rd_w2(0, 0, c) + rd_w1(0, c) if ld else []),
           [g2(Y, 1, 1)] + (rd_w2(0, 1, c) + rd_w2(1, 1, c) if ld else []),
           [g1(Y, 1)] + (rd_w2(0, 2, c) + rd_w1(1, c) if ld else []),
           [g2(Y, 1, 2)] + (rd_w2(1, 2, c) if ld else []),
           [g1(Y, 2)] + (rd_w1(2, c) if ld else []),
           [g1(Y, 3)] + (rd_w1(3, c) if ld else []),
           [g2(X, 0, 0)],
           [g1(Y, 4)] + (rd_w1(4, c) if ld else []),
           [g2(X, 0, 1)],
           [g1(Y, 5)] + (rd_w1(5, c) if ld else []),
           [g2(X, 0, 2)]]
    for k, v in extra.items(): att[k] = att[k] + v
    ops = gelu(ACC1[X])
    return ops[:2] + interleave(ops[2:], att)

def loop_body(grp):
    bl = bar_lines()
    k = bl.index("s_waitcnt vmcnt(0)")
    L = [opaque(bl[:k + 1] + [f"Lnowait{grp}{MODE[0]}:"] + bl[k + 1:] + [f"Lbody{grp}{MODE[0]}:"])]
    L += w_addr()
    ex = [{}, {}, {}, {}]
    if grp in (0, 1):
        for k, g in enumerate(wdma_interval()):
            ex[k // 3 if k < 3 else 1][(7, 9, 11)[k] if k < 3 else (1, 3, 5)[k - 3]] = [opaque(g)]
    if grp == 1:
        rl = row_loads()
        for r in range(2):
            for k in range(3):
                blk = (row_setup() if k == 0 else []) + [f"s_mov_b64 exec, s[{sEx48}:{sEx48+1}]"] + rl[3 * k] + rl[3 * k + 1] + rl[3 * k + 2] + ["s_mov_b64 exec, -1"]
                if k == 2: blk += [f"s_add_u32 s{sXrow}, s{sXrow}, {7 if r else 1}"]
                st, sl = ((1, 8), (1, 11), (2, 7), (2, 11), (3, 3), (3, 7))[3 * r + k]
                ex[st][sl] = [opaque(blk)]
    for k in range(4):
        if k == 2: L += dry_point(f"Lhalf{grp}")
        if k in (1, 3) and grp in (1, 2): L += dry_point(f"Lq{k}{grp}")
        if cfg.PRIO: L.append(S(f"s_setprio {max(cfg.PBASE - k, 0)}"))
        L += step(k & 1, k >> 1, ex[k])
    return L

def last_body():
    L = [opaque(bar_lines() + [f"Lbody3{MODE[0]}:"])]
    L += w_addr()
    def g1x(X, acc, j): return MFMA("32x32x16", ACC1[acc], W1F + 4 * j, H + 8 * j + 4 * X, None if j == 0 else ACC1[acc])
    prev = T0 - 1 if False else vI_tmp
    base = vL16 if MODE[0] == "P" else vW1b
    L += [S(f"s_sub_u32 s{sT}, {RSUM}, s{sRing}"), V(f"v_add_u32 v{prev}, s{sT}, v{base}")]
    def rd_w1p(j):
        o = rd_w1(j, 1)
        return [DSR(i.text.split()[0], min(i.wr), len(i.wr), prev, i.text.split()[-1]) for i in o]
    def run(src, att, extra=()):
        ops = gelu(ACC1[src])
        main = ops[2:]
        if extra: main = interleave(main, [[e] for e in extra[0]], extra[1], 1.0)
        return ops[:2] + interleave(main, att)
    quad = [H + 8 * t for t in range(6)]
    def ocv(b): return [V(f"v_cvt_pk_bf16_f32 v{quad[2*b + i // 4] + i % 4}, v{acc2(0, b) + 2*i}, v{acc2(0, b) + 2*i + 1}") for i in range(8)]
    def ofin(b):
        o = [V(f"v_permlane16_swap_b32 v{quad[2*b] + i}, v{quad[2*b+1] + i}") for i in range(4)]
        for t in (2 * b, 2 * b + 1):
            st = store(0, t); d = quad[t]
            o.append(VMEM(re.sub(r"v\[\d+:\d+\]", vr(d, 4), st.text, 1), rd=[vSt] + list(R(d, 4)), store=True))
        return o
    w1 = lambda f: [x for j in range(6) for x in f(j)]
    L += rd_w1(0, 0) + rd_w1(1, 0) + rd_w1(2, 0)
    L += run(0, [[g2(1, 1, 0)] + rd_w2(1, 0, 0) + rd_w1(3, 0), [g2(1, 1, 1)] + rd_w2(1, 1, 0) + rd_w1(4, 0) + rd_w2(0, 0, 0), [g2(1, 1, 2)] + rd_w2(1, 2, 0) + rd_w1(5, 0) + rd_w2(0, 1, 0),
                 [g1x(0, 1, 0)] + rd_w1p(0) + rd_w2(0, 2, 0), [g1x(0, 1, 1)] + rd_w1p(1), [g1x(0, 1, 2)] + rd_w1p(2), [g1x(0, 1, 3)] + rd_w1p(3),
                 [g2(0, 0, 0)] + rd_w2(0, 0, 1), [g1x(0, 1, 4)] + rd_w1p(4), [g2(0, 0, 1)] + rd_w2(0, 1, 1), [g1x(0, 1, 5)] + rd_w1p(5), [g2(0, 0, 2)] + rd_w2(0, 2, 1)])
    L += dry_point("Lq13")
    L += run(1, [[g2(0, 1, 0)] + rd_w2(1, 0, 1), [g1x(1, 0, 0)] + rd_w1(0, 0), [g2(0, 1, 1)] + rd_w2(1, 1, 1), [g1x(1, 0, 1)] + rd_w1(1, 0), [g2(0, 1, 2)] + rd_w2(1, 2, 1),
                 [g1x(1, 0, 2)] + rd_w1(2, 0), [g1x(1, 0, 3)] + rd_w1(3, 0), [g2(0, 0, 0)] + rd_w2(0, 0, 0), [g1x(1, 0, 4)] + rd_w1(4, 0), [g2(0, 0, 1)] + rd_w2(0, 1, 0),
                 [g1x(1, 0, 5)] + rd_w1(5, 0), [g2(0, 0, 2)] + rd_w2(0, 2, 0)])
    L += dry_point("Lhalf3")
    L += run(0, [[g2(0, 1, 0)] + rd_w2(1, 0, 0), [g2(0, 1, 1)] + rd_w2(1, 1, 0), [g2(0, 1, 2)] + rd_w2(1, 2, 0), [g1x(1, 1, 0)], [g1x(1, 1, 1)], [g1x(1, 1, 2)], [g1x(1, 1, 3)],
                 [g2(1, 0, 0)] + rd_w2(0, 0, 1), [g1x(1, 1, 4)], [g2(1, 0, 1)] + rd_w2(0, 1, 1), [g1x(1, 1, 5)], [g2(1, 0, 2)] + rd_w2(0, 2, 1)],
             (ocv(0) + ocv(1)[:2] + ofin(0) + ocv(1)[2:], 0.35))
    L += dry_point("Lq33")
    L += run(1, [[g2(1, 1, 0)] + rd_w2(1, 0, 1), [g2(1, 1, 1)] + rd_w2(1, 1, 1), [g2(1, 1, 2)] + rd_w2(1, 2, 1), [], [], [], [], [g2(1, 0, 0)], [], [g2(1, 0, 1)], [], [g2(1, 0, 2)]],
             (ocv(2)[:2] + ofin(1) + ocv(2)[2:] + [V(f"v_mov_b32 v{vI_tmp}, 0"), V(f"v_mov_b32 v{vI_tmp}, 0")] + ofin(2), 0.0))
    L += [V(f"v_mov_b32 v{vI_tmp}, 0"), V(f"v_mov_b32 v{vI_tmp}, 0"), g2(1, 1, 0), g2(1, 1, 1), g2(1, 1, 2)]
    L += out_cvt(3) + out_cvt(4)[:2] + out_fin(3) + out_cvt(4)[2:] + out_cvt(5)[:2] + out_fin(4) + out_cvt(5)[2:] + [V(f"v_mov_b32 v{vI_tmp}, 0"), V(f"v_mov_b32 v{vI_tmp}, 0")] + out_fin(5)
    return L
vI_tmp = 15

def SM32(d, a, b, idx):
    ab = list(R(a, 4)) + list(R(b, 8)) + [idx]
    return Ins(f"v_smfmac_f32_32x32x32_bf16 {vr(d,16)}, {vr(a,4)}, {vr(b,8)}, v{idx}", "mfma",
               ab + list(R(d, 16)), R(d, 16), cost=12, passes=8, srcc=R(d, 16), srcab=ab)

def unit_reads(u, first=False):
    q, rho = divmod(u, 6); buf = cBuf[u % cfg.NBUF]; ta = cTa
    if first: rho, q = divmod(u, 6); ta = (cTa, 92, 93)[q // 2]
    o = 196 * (q % 2) + 8 * rho
    L = []
    if rho == 0 and q and q % 2 == 0 and not first: L.append(V(f"v_add_u32 v{cTa}, {2 * TGRP}, v{cTa}"))
    L += [DSR("ds_read2_b32", buf + 8, 2, ta, f"offset0:{o} offset1:{o+1}"), DSR("ds_read2_b32", buf + 10, 2, ta, f"offset0:{o+2} offset1:{o+3}")]
    for k, c in enumerate((0, 192, 784, 976)):
        L.append(DSR("ds_read_b64", buf + 2 * k, 2, cAddr + rho // 2, f"offset:{XS * (rho & 1) + c + 8 * q}"))
    return L

def store(X, t):
    d = H + 24 * X + 4 * t
    return VMEM(f"buffer_store_dwordx4 {vr(d,4)}, v{vSt}, s[{sO}:{sO+3}], s{sStO2 if X else sStO} offen offset:{64 * (t >> 1) + 3072 * (t & 1) if cfg.S64 else 32 * t}{fl(cfg.OF)}", rd=[vSt] + list(R(d, 4)), store=True)

def res_reads(k):
    X, s = divmod(k, 6)
    return [DSR("ds_read_b64", XF[k] + 2 * r, 2, cRes, f"offset:{XS * X + 32 * s + 8 * r}") for r in range(2)]

def pk(op, d, *src, mods=""):
    return V(f"v_pk_{op}_f32 v[{d}:{d+1}], " + ", ".join(f"v[{x}:{x+1}]" for x in src) + mods)

def signal():
    t = T0
    return [Ins(f"    s_mov_b64 exec, 1\n    ds_add_u32 v{t}, v{t+5}\n    s_mov_b64 exec, -1\n    s_add_u32 s{sTgt}, s{sTgt}, 4", "dsw_op", [t, t + 5], [])]
def poll():
    t = T0; l = lab("p")
    return [Ins(f"{l}:\n    ds_read_b32 v{t+1}, v{t}\n    s_waitcnt lgkmcnt(0)\n    v_readfirstlane_b32 s{sT+3}, v{t+1}\n"
                f"    s_cmp_ge_u32 s{sT+3}, s{sTgt}\n    s_cbranch_scc0 {l}", "waitall", [t], [t + 1])]

def cstage_setup():
    t = sT
    L = []
    for dst, add in ((sFh, 0), (sFres, 2)):
        L += [f"s_lshl_b32 s{t}, s{sJ}, 1", f"s_add_u32 s{t}, s{t}, s{sWin}", f"s_add_u32 s{t}, s{t}, {add}",
              f"s_cmp_ge_u32 s{t}, {NR}", f"s_cselect_b32 s{t+1}, {NR}, 0", f"s_sub_u32 s{t}, s{t}, s{t+1}", f"s_mul_i32 s{dst}, s{t}, {XS}"]
    L += [f"s_add_u32 s{t}, s{sJ}, 1", f"s_and_b32 s{t}, s{t}, 2", f"s_lshl_b32 s{t}, s{t}, 2", f"s_add_u32 s{sFres}, s{sFres}, s{t}"]
    return L

def dry_exit(): return [f"s_cmp_lg_u32 s{sDry}, 0", "s_cbranch_scc1 Ldry_ret"] if cfg.WARM and MODE[0] == "P" else []
def dry_point(name): return [opaque(dry_exit() + [name + ":"])] if cfg.WARM and MODE[0] == "P" else []

def cs(k):
    if not (cfg.STAMP and cfg.CST): return []
    return [Ins("\n".join("    " + l for l in [f"s_lshl_b32 s95, s{sP}, 3", f"s_add_u32 s95, s95, {30 + k}"] + stamp(17, "s95")), "waitall")]

def csetup():
    L = [S(x) for x in cstage_setup()]
    L += [S(f"s_mov_b32 s{sT}, {XS}")]
    t0, t1, t2 = T0, T0 + 1, T0 + 4
    L += [V(f"v_bfe_u32 v{t2}, v{vL16}, 7, 2"), V(f"v_lshlrev_b32 v{t2}, 1, v{t2}"), V(f"v_mov_b32 v{T0+2}, 0"), V(f"v_mov_b32 v{T0+3}, 0")]
    for k in range(3):
        if k: L += [V(f"v_add_u32 v{t2}, 2, v{t2}")]
        L += [V(f"v_add_u32 v{t0}, s{sWin}, v{t2}"), V(f"v_subrev_u32 v{t1}, {NR}, v{t0}"), V(f"v_min_u32 v{t0}, v{t0}, v{t1}"),
              V(f"v_mad_u32_u24 v{t0}, v{t0}, s{sT}, v{vColB}"), V(f"v_and_b32 v{t1}, 4, v{t2}"), V(f"v_lshl_add_u32 v{cAddr+k}, v{t1}, 1, v{t0}")]
    L += [V(f"v_mov_b32 v{cTa}, v{vTa}"), V(f"v_bfe_u32 v{cIdx}, v{vL16}, 4, 2"), V(f"v_mul_u32_u24 v{cIdx}, 0x5555, v{cIdx}")]
    L += [V(f"v_add_u32 v{cRes}, s{sFres}, v{vRes}"), V(f"v_add_u32 v{cHw}, v{cAddr}, v{vHwA}"), V(f"v_add_u32 v{cHr}, s{sFh}, v{vHr}")]
    L += [S(f"s_lshl_b32 s{sT}, s{sJ}, 11"), V(f"v_add_u32 v{T0+4}, s{sT}, v{vL16}"),
          S(f"s_lshl_b32 s{sT}, s{sGrp}, 2"), S(f"s_add_u32 s{sT}, s{sT}, {CBASE}"), V(f"v_mov_b32 v{T0}, s{sT}"), V(f"v_mov_b32 v{T0+5}, 1")]
    return L

def out_cvt(q):
    X, b = divmod(q, 3); a = acc2(X, b); d = H + 24 * X + 8 * b
    return [V(f"v_cvt_pk_bf16_f32 v{d+i}, v{a+2*i}, v{a+2*i+1}") for i in range(8)]
def out_fin(q):
    X, b = divmod(q, 3); d = H + 24 * X + 8 * b
    return [V(f"v_permlane16_swap_b32 v{d+i}, v{d+4+i}") for i in range(4)] + [store(X, 2 * b), store(X, 2 * b + 1)]

def pk_stats():
    ST, QT = G, G + 4
    L = []
    SA, QA = 56, 64
    for q in range(6):
        for u in range(4):
            y = ACC2 + 16 * q + 4 * u
            if q == 0: L += [pk("add", SA + 2 * u, y, y + 2), pk("mul", QA + 2 * u, y, y), pk("fma", QA + 2 * u, y + 2, y + 2, QA + 2 * u)]
            else:
                for e in (0, 2): L += [pk("add", SA + 2 * u, SA + 2 * u, y + e), pk("fma", QA + 2 * u, y + e, y + e, QA + 2 * u)]
    for u in range(4): L += [V(f"v_add_f32 v{ST+u}, v{SA+2*u}, v{SA+2*u+1}"), V(f"v_add_f32 v{QT+u}, v{QA+2*u}, v{QA+2*u+1}")]
    return L

def conv_first():
    ST, QT = G, G + 4
    L = [S(f"s_setprio {cfg.CPRIO}"), V(f"v_add_u32 v92, {2 * TGRP}, v{cTa}"), V(f"v_add_u32 v93, {4 * TGRP}, v{cTa}")]
    L += unit_reads(0, True) + unit_reads(1, True)
    L += [MFMA("32x32x8", ACC2 + 16 * q, T0 + 2, T0 + 2, None) for q in range(6)]
    for u in range(36):
        buf = cBuf[u % 2]
        if u == 18: L += dry_point("Ldry0")
        L.append(SM32(ACC2 + 16 * (u % 6), buf + 8, buf, cIdx))
        if u + 2 in (12, 24):
            l = lab("r"); L.append(opaque([f"s_cmp_lg_u32 s{sDry}, 0", f"s_cbranch_scc1 {l}", "s_barrier", f"{l}:"]))
        L += unit_reads(u + 2, True) if u + 2 < 36 else res_reads(3 * (u - 34)) + res_reads(3 * (u - 34) + 1) + res_reads(3 * (u - 34) + 2)
    for k in range(6, 12): L += res_reads(k)
    L += [S(f"s_mov_b32 s{sO+2}, 50331648"), S(f"s_mov_b32 s{sStInc}, {16 * 98304}")]
    L += pk_stats()
    L.append(Ins("s_waitcnt lgkmcnt(0)", "waitall"))
    return L

def cstage():
    NB = cfg.NBUF
    ST, QT = G, G + 4
    L = [COMMENT("previous tile out, convolution")]
    if cfg.CPRIO: L.append(S(f"s_setprio {cfg.CPRIO}"))
    def zero(q): return MFMA("32x32x8", ACC2 + 16 * q, T0 + 2, T0 + 2, None)
    def stat(q):
        o = []
        for e in range(4):
            for u in range(4):
                y = ACC2 + 16 * q + 4 * u + e
                if q == 0 and e == 0: o += [V(f"v_mul_f32 v{QT+u}, v{y}, v{y}")]
                elif q == 0 and e == 1: o += [V(f"v_add_f32 v{ST+u}, v{y-1}, v{y}"), V(f"v_fmac_f32 v{QT+u}, v{y}, v{y}")]
                else: o += [V(f"v_add_f32 v{ST+u}, v{ST+u}, v{y}"), V(f"v_fmac_f32 v{QT+u}, v{y}, v{y}")]
        return o
    L += cs(0) + unit_reads(0) + unit_reads(1)
    c0 = out_cvt(0)
    L += [g2(1, 1, 0)] + c0[:4] + [g2(1, 1, 1)] + c0[4:] + [g2(1, 1, 2), zero(0)]
    nst = 0
    for u in range(36):
        q, rho = divmod(u, 6); buf = cBuf[u % NB]
        if u == 18: L += dry_point("Ldry1")
        if u == cfg.MIDU:
            lm = lab("m")
            L.append(opaque([f"s_or_b32 s{sT}, s{sFirst}, s{sDry}", f"s_cbranch_scc1 {lm}"] + bar_lines(f"s_waitcnt vmcnt({nst})") +
                            [f"s_cmp_eq_u32 s{sGrp}, 0", f"s_cbranch_scc0 {lm}"] + [l for gg in wdma_interval() for l in gg] + [f"{lm}:"]))
        nxt = unit_reads(u + 2) if u + 2 < 36 else res_reads(3 * (u - 34)) + res_reads(3 * (u - 34) + 1) + res_reads(3 * (u - 34) + 2)
        early = 3 if NB == 3 else 0
        if nxt[0].kind == "valu": early += 1
        L += nxt[:early] + [SM32(ACC2 + 16 * q, buf + 8, buf, cIdx)] + nxt[early:]
        st = stat(q - 1) if q and not cfg.PKST else []
        fill = {0: out_fin(q), 1: st[:8], 2: (out_cvt(q + 1) if q < 5 else []), 3: st[8:16] + ([zero(q + 1)] if q < 5 else []), 4: st[16:24], 5: st[24:]}[rho]
        nst += sum(i.kind == "vstore" for i in fill)
        L += fill
    for k in range(6, 12): L += res_reads(k)
    L += [S(f"s_add_u32 s{sStO}, s{sStO}, s{sStInc}"), S(f"s_add_u32 s{sStO2}, s{sStO}, 98304"), S(f"s_mov_b32 s{sO+2}, 50331648"), S(f"s_mov_b32 s{sStInc}, {16 * 98304}")]
    L += cs(1) + (pk_stats() if cfg.PKST else stat(5))
    if MODE[0] == "P": L.append(opaque(dry_exit() + ["Ljoin:"]))
    L += [DSW("ds_write_b64", T0 + 4, ST + 2 * k, 2, f"offset:{PBASE + 1024 * (k >> 1) + 8 * (k & 1)}") for k in range(4)]
    L.append(Ins("", "touch", [r for x in XF for r in R(x, 4)], [], cost=0))
    L += cs(2) + signal() + poll()
    L += cs(3)
    L += [COMMENT("LayerNorm, exchange of the normalised tile, residual into the accumulators, first GEMM1")]
    dst = {(0, 0): ST, (0, 1): QT, (1, 0): 56, (1, 1): 60, (2, 0): 64, (2, 1): 68, (3, 0): 72, (3, 1): 76}
    for w in range(4):
        for k in range(2): L.append(DSR("ds_read_b128", dst[(w, k)], 4, vL16, f"offset:{PBASE + 2048 * w + 1024 * k}"))
    for k in range(2):
        for u in range(4): L += [V(f"v_add_f32 v{dst[(0,k)]+u}, v{dst[(0,k)]+u}, v{dst[(1,k)]+u}")]
        for u in range(4): L += [V(f"v_add_f32 v{dst[(2,k)]+u}, v{dst[(2,k)]+u}, v{dst[(3,k)]+u}")]
        for u in range(4): L += [V(f"v_add_f32 v{dst[(0,k)]+u}, v{dst[(0,k)]+u}, v{dst[(2,k)]+u}")]
    MN, SQ, SC, SH = 56, 60, 64, 68
    for u in range(4): L += [V(f"v_mul_f32 v{MN+u}, s{sInv96}, v{ST+u}")]
    for u in range(4): L += [V(f"v_mul_f32 v{SQ+u}, v{MN+u}, v{MN+u}")]
    for u in range(4): L += [V(f"v_fma_f32 v{SQ+u}, v{QT+u}, s{sInv96}, -v{SQ+u}")]
    L += [DSR("ds_read_b128", G, 4, vL16, f"offset:{IBASE}"), DSR("ds_read_b128", G + 4, 4, vL16, f"offset:{IBASE + 1024}")]
    for u in range(4): L += [V(f"v_max_f32 v{SQ+u}, 0, v{SQ+u}")]
    for u in range(4): L += [V(f"v_add_f32 v{SQ+u}, s{sEps}, v{SQ+u}")]
    for u in range(4): L += [V(f"v_rsq_f32 v{SQ+u}, v{SQ+u}")]
    for u in range(4): L += [V(f"v_mul_f32 v{SC+u}, s{sKap}, v{SQ+u}")]
    for u in range(4): L += [V(f"v_mul_f32 v{SH+u}, -v{MN+u}, v{SC+u}")]
    L += dry_point("Ldry3")
    if cfg.PKN:
        for q in range(6):
            for u in range(4):
                for e in (0, 2):
                    y = ACC2 + 16 * q + 4 * u + e; o = u & 1
                    L.append(pk("fma", y, y, SC + (u & 2), SH + (u & 2), mods=f" op_sel:[0,{o},{o}] op_sel_hi:[1,{o},{o}]"))
    L += cs(4)
    first_w1 = opaque([f"s_cmp_lg_u32 s{sFirst}, 0", "s_cbranch_scc1 Lw1wait", f"Lw1wait_ret{MODE[0]}:"] + [w_addr()[0].text])
    def ident(q):
        X, b = divmod(q, 3)
        return [MFMA("32x32x16", acc2(X, b), G, XF[6 * X + 2 * b], None), MFMA("32x32x16", acc2(X, b), G + 4, XF[6 * X + 2 * b + 1], acc2(X, b))]
    def cvt(q):
        o = []
        for u in range(4):
            y = ACC2 + 16 * q + 4 * u
            if not cfg.PKN: o += [V(f"v_fma_f32 v{y+e}, v{y+e}, v{SC+u}, v{SH+u}") for e in range(4)]
            o += [V(f"v_cvt_pk_bf16_f32 v{H+12*u+2*q+h}, v{y+2*h}, v{y+2*h+1}") for h in range(2)]
            o += [DSW("ds_write_b64", cHw, H + 12 * u + 2 * q, 2, f"offset:{192 * u + 8 * q}")]
        return o
    for q in range(6):
        c = cvt(q)
        if q >= 1:
            i0, i1 = ident(q - 1); n = len(c)
            c = c[:1] + [i0] + c[1:n // 2] + [i1] + c[n // 2:]
        L += c
    L += cs(5) + signal()
    L += ident(5)
    L.append(first_w1)
    for j in range(6): L += rd_w1(j, 1)
    L += [V(f"v_mov_b32 v{G+4+i}, 0") for i in range(4)]
    L += poll()
    L += cs(6)
    L += [DSR("ds_read_b128", H + 8 * s + 4 * X, 4, cHr, f"offset:{XS * X + 32 * s}") for X in range(2) for s in range(6)]
    L += [g1(0, j) for j in range(6)]
    L.append(Ins("s_waitcnt lgkmcnt(0)", "waitall"))
    L += cs(7)
    if cfg.CPRIO: L.append(S("s_setprio 0"))
    ab = cfg.ABL.split("+")
    if "hw" in ab: L = [i for i in L if not (i.kind == "dsw" and cHw in i.rd)]
    if "pk" in ab: L = [i for i in L if i.kind != "pk32"]
    if "brd" in ab: L = [i for i in L if not (i.text.startswith("ds_read_b64") and i.rd & set(R(cAddr, 3)))]
    if "sm" in ab: L = [i for i in L if "smfmac" not in i.text]
    if "st" in ab: L = [i for i in L if i.kind != "vstore"]
    if "unpk" in ab:
        out = []
        for i in L:
            if i.kind != "pk32": out.append(i); continue
            m = re.match(r"v_pk_(\w+)_f32 (.*?)( op_sel.*)?$", i.text); regs = [int(x) for x in re.findall(r"v\[(\d+):", m.group(2))]
            o = 1 if m.group(3) and "op_sel:[0,1" in m.group(3) else 0
            for h in range(2):
                r = [regs[0] + h, regs[1] + h] + [(x + o if m.group(3) else x + h) for x in regs[2:]]
                out.append(V(f"v_{m.group(1)}_f32 " + ", ".join(f"v{x}" for x in r)))
        L = out
    return L

def epilogue(with_stores):
    L = [COMMENT("epilogue: last GEMM2 k-step, convert")]
    att = [[g2(1, 1, b)] for b in range(3)]
    def cv(X, t):
        a = acc2(X, t >> 1) + 8 * (t & 1); d = H + 24 * X + 4 * t
        return [V(f"v_cvt_pk_bf16_f32 v{d+i}, v{a+2*i}, v{a+2*i+1}") for i in range(4)]
    def fin(X, u):
        d = H + 24 * X + 8 * u
        o = [V(f"v_permlane16_swap_b32 v{d+i}, v{d+4+i}") for i in range(4)] if cfg.S64 else []
        return o + ([store(X, 2 * u), store(X, 2 * u + 1)] if with_stores else [])
    seq = [(X, u) for X in range(2) for u in range(3)]
    body = []
    for k, (X, u) in enumerate(seq):
        body.append(cv(X, 2 * u) + cv(X, 2 * u + 1) + (fin(*seq[k - 1]) if k else []))
    first = body[0] + body[1] + body[2]
    L += first[:2] + interleave(first[2:], att, 0.0, 0.5)
    L += body[3] + body[4] + body[5] + fin(*seq[5])
    return L

def wparams(mode, first):
    P = []; a = P.append
    if mode == "P":
        a(f"s_mov_b32 s{sW}, s6"); a(f"s_and_b32 s{sW+1}, s7, 0xffff"); a(f"s_mov_b32 s{sW+2}, {12 * WSET}"); a(f"s_mov_b32 s{sW+3}, 0x20000")
        a(f"s_mov_b32 s{sWstep}, {WSET}"); a(f"s_mov_b32 s{sWlim}, {12 * WSET}"); a(f"s_mov_b32 s{sWins}, 1024"); a(f"s_mov_b32 s{sWbase}, s{sJ3k}")
        a(f"s_mov_b32 s{sWsrc}, {first * WSET}"); a(f"v_mov_b32 v{vDMA}, v{vL16}")
        return P
    a(f"s_cmp_lt_u32 s{sJ}, 2"); a(f"s_cselect_b32 s{sW}, s10, s12"); a(f"s_cselect_b32 s{sW+1}, s11, s13")
    a(f"s_cselect_b32 s{sWstep}, 64, 6144"); a(f"s_mov_b32 s{sWins}, 1024")
    a(f"s_cselect_b32 s{sWins}, 12288, s{sWins}"); a(f"s_cselect_b32 s{sWsrc}, {first + 1}, {first}"); a(f"s_mul_i32 s{sWsrc}, s{sWsrc}, s{sWstep}"); a(f"s_mul_i32 s{sWlim}, s{sWstep}, 12")
    a(f"s_and_b32 s{sW+1}, s{sW+1}, 0xffff"); a(f"s_mov_b32 s{sW+2}, 73728"); a(f"s_mov_b32 s{sW+3}, 0x20000")
    a(f"s_and_b32 s{sT+3}, s{sJ}, 1"); a(f"s_mul_i32 s{sT+3}, s{sT+3}, 3"); a(f"s_mul_i32 s{sWbase}, s{sT+3}, s{sWins}")
    a(f"v_lshrrev_b32 v20, 6, v{vL16}"); a("v_mul_u32_u24 v20, 768, v20"); a(f"v_and_b32 v21, 48, v{vL16}"); a("v_add_u32 v20, v20, v21")
    a(f"s_cmp_lt_u32 s{sJ}, 2"); a("s_cselect_b64 vcc, -1, 0"); a(f"v_cndmask_b32 v{vDMA}, v{vL16}, v20, vcc")
    return P

def prologue():
    P = []
    a = P.append
    a(f"s_cmp_ge_u32 s2, 256"); a("s_cbranch_scc1 Lend")
    if cfg.STAMP: a("s_memtime s[92:93]"); a("s_load_dwordx2 s[94:95], s[0:1], 56")
    if cfg.DBG or cfg.ENC or cfg.THR: a("s_memtime s[92:93]"); a("s_memrealtime s[94:95]")
    a("s_load_dwordx8 s[4:11], s[0:1], 0"); a("s_load_dwordx4 s[12:15], s[0:1], 32"); a("s_load_dwordx4 s[56:59], s[0:1], 48")
    a("v_lshrrev_b32 v16, 6, v0"); a("v_and_b32 v17, 63, v0")
    a(f"v_readfirstlane_b32 s{sT}, v16")
    if cfg.WARM:
        a("s_getpc_b64 s[60:61]"); a("v_lshlrev_b32 v38, 6, v0"); a("v_min_u32 v38, CODE_LAST, v38")
        a("global_load_dword v39, v38, s[60:61]")
    a(f"s_and_b32 s{sT+1}, s2, 7"); a(f"s_lshl_b32 s{sT+1}, s{sT+1}, 5"); a(f"s_lshr_b32 s{sT+2}, s2, 3"); a(f"s_add_u32 s{sT+1}, s{sT+1}, s{sT+2}")
    a(f"s_lshr_b32 s{sTy}, s{sT+1}, 4"); a(f"s_and_b32 s{sTx}, s{sT+1}, 15")
    a(f"s_lshr_b32 s{sGrp}, s{sT}, 2"); a(f"s_and_b32 s{sJ}, s{sT}, 3"); a(f"s_mov_b32 s{sXrow}, s{sT}")
    a(f"s_mul_i32 s{sJ3k}, s{sJ}, 3072"); a(f"s_movk_i32 s{s1k}, 1024")
    a(f"s_mov_b32 s{sEx48}, -1"); a(f"s_mov_b32 s{sEx48+1}, 0xffff")
    a(f"v_lshlrev_b32 v{vL16}, 4, v17")
    a(f"s_cmp_eq_u32 s{sTx}, 0"); a(f"s_cselect_b32 s{sAdjL}, 0, 384"); a(f"s_cselect_b32 s{sT+3}, 384, 0"); a(f"s_cselect_b32 s{sT+4}, 24, 0")
    a(f"v_subrev_u32 v{vOffL}, s{sT+3}, v{vL16}"); a(f"v_cmp_le_u32 vcc, s{sT+4}, v17"); a("s_nop 1")
    a(f"v_cndmask_b32 v{vOffL}, 2.0, v{vOffL}, vcc")
    a(f"s_cmp_eq_u32 s{sTx}, 15"); a(f"s_cselect_b32 s{sT+4}, 24, 64"); a(f"v_cmp_gt_u32 vcc, s{sT+4}, v17"); a("s_nop 1")
    a(f"v_cndmask_b32 v{vOffR}, 2.0, v{vL16}, vcc")
    a("v_mul_u32_u24 v18, 683, v0"); a("v_lshrrev_b32 v18, 16, v18")
    a("v_mul_u32_u24 v19, 96, v18"); a("v_sub_u32 v19, v0, v19")
    a("v_mul_u32_u24 v20, 960, v18"); a("v_lshl_add_u32 v20, v19, 1, v20")
    a("v_lshlrev_b32 v21, 1, v19")
    P += row_setup()
    a("s_waitcnt lgkmcnt(0)")
    if cfg.STAMP: a("s_memtime s[96:97]"); a("s_memrealtime s[98:99]"); a("s_waitcnt lgkmcnt(0)")
    for (d, p, n) in ((sX, 4, 50331648), (28, 8, 4800), (32, 6, 192), (sO, 14, 0)):
        a(f"s_mov_b32 s{d}, s{p}"); a(f"s_and_b32 s{d+1}, s{p+1}, 0xffff"); a(f"s_mov_b32 s{d+2}, {n}"); a(f"s_mov_b32 s{d+3}, 0x20000")
    for j in range(5): a(f"buffer_load_ushort v{24+j}, v20, s[28:31], 0 offen offset:{192*j}")
    a("buffer_load_ushort v29, v21, s[32:35], 0 offen")
    a("s_mov_b64 s[4:5], s[56:57]"); a("s_mov_b64 s[6:7], s[58:59]")
    a(f"s_cmp_eq_u32 s{sXrow}, 3"); a(f"s_cselect_b32 s{sFrag}, s2, {NPROD}")
    a("v_mov_b32 v48, 0"); a(f"v_lshlrev_b32 v49, 2, v17")
    a(f"s_cmp_lt_u32 s{sFrag}, {NPROD}"); a("s_cbranch_scc0 Lprep_noload")
    a(f"s_mul_i32 s{sT+2}, s{sFrag}, 21846"); a(f"s_lshr_b32 s{sT+2}, s{sT+2}, 16"); a(f"s_mul_i32 s{sT+3}, s{sT+2}, 3"); a(f"s_sub_u32 s{sT+6}, s{sFrag}, s{sT+3}")
    a("s_mov_b32 s28, s10"); a("s_and_b32 s29, s11, 0xffff"); a("s_mov_b32 s30, 73728"); a("s_mov_b32 s31, 0x20000")
    a("s_mov_b32 s32, s12"); a("s_and_b32 s33, s13, 0xffff"); a("s_mov_b32 s34, 73728"); a("s_mov_b32 s35, 0x20000")
    a(f"s_add_u32 s{sT+3}, s{sT+2}, 1"); a(f"s_cmp_eq_u32 s{sT+3}, 12"); a(f"s_cselect_b32 s{sT+3}, 0, s{sT+3}"); a(f"s_lshl_b32 s{sT+3}, s{sT+3}, 6")
    a(f"s_mul_i32 s{sT+4}, s{sT+2}, 6144")
    a("v_lshrrev_b32 v50, 5, v17"); a("v_and_b32 v51, 31, v17")
    a("v_mul_u32_u24 v52, 6144, v50"); a("v_lshl_add_u32 v52, v51, 1, v52"); a("v_add_u32 v53, 3072, v52")
    a("v_mul_u32_u24 v54, 768, v50"); a("v_and_b32 v50, 19, v51"); a("v_lshl_add_u32 v54, v50, 1, v54")
    a("v_and_b32 v50, 4, v51"); a("v_lshl_add_u32 v54, v50, 2, v54"); a("v_and_b32 v50, 8, v51"); a("v_add_u32 v54, v54, v50")
    def ld(q, r):
        if q < 6:
            a(f"s_add_u32 s{sT+5}, s{sT+3}, {q * 12288}")
            for i in range(8): a(f"buffer_load_ushort v{r+i}, v{52 + i // 4}, s[28:31], s{sT+5} offen offset:{768 * (i & 3)}")
        else:
            sp, bb = divmod(q - 6, 3)
            a(f"s_add_u32 s{sT+5}, s{sT+4}, {sp * 3072 + bb * 64}")
            for i in range(8): a(f"buffer_load_ushort v{r+i}, v54, s[32:35], s{sT+5} offen offset:{192 * (i & 3) + 1536 * (i >> 2)}")
    def cv(q, r, mx):
        for i in range(0, 8, 2): a(f"v_and_b32 v50, 0x7fff, v{r+i}"); a(f"v_and_b32 v51, 0x7fff, v{r+i+1}"); a(f"v_max3_u32 v{mx}, v{mx}, v50, v51")
        if q < 6:
            for i in range(4): a(f"v_lshl_or_b32 v{r+i}, v{r+1+2*i}, 16, v{r+2*i}")
        else:
            for i in range(8): a(f"v_lshlrev_b32 v{r+i}, 16, v{r+i}")
            for i in range(4): a(f"v_cvt_pk_f16_f32 v{r+i}, v{r+2*i}, v{r+1+2*i}")
    a(f"s_mov_b32 s{sThird}, s{sT+6}")
    for third in range(3):
        if third < 2: a(f"s_cmp_eq_u32 s{sT+6}, {third}"); a(f"s_cbranch_scc0 Lprep_t{third + 1}")
        for i in range(4): ld(4 * third + i, 64 + 8 * i)
        if third < 2: a("s_branch Lprep_noload"); a(f"Lprep_t{third + 1}:")
    def prep_convert():
        a(f"s_cmp_lt_u32 s{sFrag}, {NPROD}"); a("s_cbranch_scc0 Lprep_nocv")
        a("v_mov_b32 v56, 0"); a("v_mov_b32 v57, 0"); a("s_waitcnt vmcnt(9)")
        for third in range(3):
            if third < 2: a(f"s_cmp_eq_u32 s{sThird}, {third}"); a(f"s_cbranch_scc0 Lprep_c{third + 1}")
            for i in range(4): cv(4 * third + i, 64 + 8 * i, 56 if 4 * third + i < 6 else 57)
            if third < 2: a("s_branch Lprep_st"); a(f"Lprep_c{third + 1}:")
        a("Lprep_st:")
        a("s_mov_b32 s28, s6"); a("s_and_b32 s29, s7, 0xffff"); a(f"s_mov_b32 s30, {12 * WSET}"); a("s_mov_b32 s31, 0x20000"); a(f"s_lshl_b32 s{sT+2}, s{sFrag}, 12")
        for i in range(4): a(f"buffer_store_dwordx4 v[{64+8*i}:{67+8*i}], v{vL16}, s[28:31], s{sT+2} offen offset:{1024 * i} sc0 sc1")
        a("v_max_u32 v50, v56, v57"); a("v_cmp_lt_u32 vcc, 0x4100, v50"); a("s_cmp_lg_u64 vcc, 0"); a(f"s_cselect_b32 s{sT+4}, 3, 1")
        a("v_cmp_le_u32 vcc, 0x3a80, v56"); a("s_cmp_lg_u64 vcc, 0"); a(f"s_cselect_b32 s{sT+5}, 4, 0"); a(f"s_or_b32 s{sT+4}, s{sT+4}, s{sT+5}")
        a("v_cmp_le_u32 vcc, 0x3a80, v57"); a("s_cmp_lg_u64 vcc, 0"); a(f"s_cselect_b32 s{sT+5}, 8, 0"); a(f"s_or_b32 s{sT+4}, s{sT+4}, s{sT+5}")
        a(f"v_mov_b32 v48, s{sT+4}"); a("s_branch Ldry_skip")
        a("Lprep_nocv:")
    a("Lprep_noload:")
    a(f"s_mov_b64 exec, s[{sEx48}:{sEx48+1}]")
    for g in row_loads(): P += g
    a("s_mov_b64 exec, -1")
    a("s_mov_b32 s32, s4"); a("s_and_b32 s33, s5, 0xffff"); a("s_mov_b32 s34, 256"); a("s_mov_b32 s35, 0x20000")
    P += wparams("P", 1)
    assert cfg.WLATE
    if cfg.STAMP: a("s_memtime s[100:101]"); a("s_waitcnt lgkmcnt(0)")
    a(f"s_mov_b32 s{sA16}, {A_imm:#x}"); a(f"s_mov_b32 s{sK16}, {K_imm:#x}")
    a(f"s_mov_b32 s{sInv96}, {f32bits(1/96):#x}"); a(f"s_mov_b32 s{sEps}, {f32bits(1e-5):#x}"); a(f"s_mov_b32 s{sKap}, {f32bits(kap_use):#x}")
    D = cfg.D
    a(f"s_lshl_b32 s{sT}, s{sTy}, 5"); a(f"s_lshl_b32 s{sT+1}, s{sGrp}, 3"); a(f"s_add_u32 s{sT}, s{sT}, s{sT+1}"); a(f"s_lshl_b32 s{sT+1}, s{sJ}, 1")
    a(f"s_add_u32 s{sT}, s{sT}, s{sT+1}"); a(f"s_mul_i32 s{sT}, s{sT}, 98304"); a(f"s_mul_i32 s{sT+1}, s{sTx}, 6144"); a(f"s_add_u32 s{sStO}, s{sT}, s{sT+1}")
    a(f"s_mov_b32 s{sDry+1}, s{sStO}")
    def addresses():
        a(f"v_lshrrev_b32 v37, 4, v{vL16}")
        a("v_and_b32 v30, 7, v37"); a("v_lshrrev_b32 v31, 5, v37"); a("v_bfe_u32 v32, v37, 4, 1")
        a(f"s_mul_i32 s{sT}, s{sJ}, 48"); a(f"s_add_u32 s{sT}, s{sT}, {XBASE}")
        a("v_mul_u32_u24 v33, 784, v30"); a("v_mul_u32_u24 v34, 384, v31"); a(f"v_add3_u32 v{vColB}, v33, v34, s{sT}")
        a(f"v_mul_u32_u24 v33, {XS - 384}, v31"); a("v_lshlrev_b32 v34, 3, v32"); a(f"v_sub_u32 v{vHwA}, v33, v34")
        a("v_and_b32 v35, 31, v37"); a("v_lshlrev_b32 v36, 4, v31")
        a(f"v_mul_u32_u24 v33, 192, v35"); a(f"v_add_u32 v{vSt}, v33, v36")
        a("v_lshrrev_b32 v33, 2, v35"); a(f"v_lshl_add_u32 v33, v33, 4, v{vSt}"); a(f"v_add_u32 v{vHr}, {XBASE}, v33")
        a("v_add_u32 v33, 2, v35"); a("v_lshrrev_b32 v33, 2, v33"); a(f"v_lshl_add_u32 v33, v33, 4, v{vSt}"); a(f"v_add_u32 v{vRes}, {XBASE + 384}, v33")
        if cfg.S64:
            a("v_and_b32 v33, 15, v37"); a("v_mul_u32_u24 v33, 192, v33"); a("v_lshl_add_u32 v33, v32, 5, v33"); a(f"v_add_u32 v{vSt}, v33, v36")
        a("v_and_b32 v33, 3, v37"); a("v_bfe_u32 v34, v37, 2, 2")
        a("v_and_b32 v35, 1, v37"); a("v_mul_u32_u24 v35, 400, v35"); a("v_bfe_u32 v36, v37, 1, 1"); a("v_mul_u32_u24 v36, 192, v36"); a("v_add_u32 v35, v35, v36")
        a("v_bfe_u32 v36, v37, 2, 1"); a("v_lshlrev_b32 v36, 5, v36"); a("v_sub_u32 v35, v35, v36")
        a("v_bfe_u32 v36, v37, 3, 2"); a("v_lshlrev_b32 v36, 2, v36"); a("v_sub_u32 v35, v35, v36")
        a(f"s_mul_i32 s{sT}, s{sJ}, {6 * TGRP}"); a(f"s_add_u32 s{sT}, s{sT}, {TBASE}")
        a("v_lshl_add_u32 v35, v31, 4, v35"); a(f"v_add_u32 v{vTa}, s{sT}, v35")
        a("v_lshl_add_u32 v35, v31, 3, v34"); a("v_lshlrev_b32 v35, 6, v35"); a("v_lshl_add_u32 v35, v32, 5, v35"); a(f"v_lshl_add_u32 v{vW1b}, v33, 3, v35")
        a("v_lshl_add_u32 v35, v31, 2, v34"); a("v_mul_u32_u24 v35, 192, v35"); a("v_lshl_add_u32 v35, v32, 5, v35")
        a("v_and_b32 v36, 1, v37"); a("v_lshl_add_u32 v35, v36, 4, v35"); a("v_bfe_u32 v36, v37, 1, 1"); a(f"v_lshl_add_u32 v{vW2b}, v36, 3, v35")
    def enter(targets, ret=0, keep=False):
        a(f"s_mov_b32 s{sDry+3}, {ret}"); a(f"s_mov_b32 s{sSave}, s{sRing}"); a(f"s_mov_b32 s{sSave+1}, s{sSig}")
        a(f"s_mov_b32 s{sDry}, 1"); a(f"s_mov_b32 s{sFirst}, 0"); a(f"s_mov_b32 s{sCnt}, 1"); a(f"s_mov_b32 s{sT+3}, -1"); a(f"s_mov_b32 s{sTgt}, 0")
        a(f"s_mov_b32 s{sDry+2}, s{sWsrc}"); a("s_waitcnt lgkmcnt(0)")
        a("s_setvskip -1, 0")
        for k, t in enumerate(targets[:3]): a(f"s_cmp_eq_u32 s{sJ}, {k}"); a(f"s_cbranch_scc1 {t}")
        a(f"s_branch {targets[3]}")
    def init_state():
        a(f"s_mov_b32 s{sXM}, 0"); a(f"s_mov_b32 s{sRing}, {WBASE}")
        a(f"s_mov_b32 s{sSig}, 1"); a(f"s_mov_b32 s{sP}, 0"); a(f"s_xor_b32 s{sFirst}, s{sGrp}, 1"); a(f"s_lshl_b32 s{sWin}, s{sGrp}, 3")
        a(f"s_mov_b32 s{sStInc}, 0"); a(f"s_mov_b32 s{sStO}, s{sDry+1}"); a(f"s_add_u32 s{sStO2}, s{sStO}, 98304"); a(f"s_mov_b32 s{sTgt}, 0")
        a(f"s_mov_b32 s{sO+2}, 0"); a(f"s_mov_b32 s{sDry}, 0")
    init_state()
    a(f"v_mov_b32 v{vSt}, 0")
    a(f"s_cmp_eq_u32 s{sGrp}, 0"); a("s_cbranch_scc0 Ldry_skip")
    addresses()
    a("v_bfe_u32 v35, v37, 3, 1"); a("v_lshl_add_u32 v35, v35, 2, v33")
    a("v_and_b32 v36, 1, v35"); a("v_lshlrev_b32 v36, 4, v36"); a("v_mov_b32 v38, 0x3f80"); a("v_lshlrev_b32 v36, v36, v38")
    a("v_lshrrev_b32 v35, 1, v35"); a("v_lshl_add_u32 v35, v32, 2, v35")
    a("v_bfe_u32 v38, v37, 2, 1"); a("v_cmp_eq_u32 vcc, v38, v31"); a("s_nop 1"); a("v_cndmask_b32 v35, 8, v35, vcc")
    for d in range(8):
        a(f"v_cmp_eq_u32 vcc, {d}, v35"); a("s_nop 1"); a(f"v_cndmask_b32 v{40+d}, 0, v36, vcc")
    a(f"ds_write_b128 v{vL16}, v[40:43] offset:{IBASE}"); a(f"ds_write_b128 v{vL16}, v[44:47] offset:{IBASE + 1024}")
    prep_convert()
    if cfg.WARM:
        enter(["Lc1", "Ldry0", "Ljoin", "Ldry3"])
        a("Ldry_ret:"); a("s_setvskip 0, 0"); a("s_mov_b64 exec, -1"); a("s_setprio 0"); a(f"s_mov_b32 s{sWsrc}, s{sDry+2}")
        init_state()
        a(f"s_mov_b32 s{sRing}, s{sSave}"); a(f"s_mov_b32 s{sSig}, s{sSave+1}")
        for k, n in ((1, "Ldry_B"), (2, "Ldry_B2"), (3, "Ldry_B3")) + (((4, "Ldry_A4"),) if cfg.LAST else ()): a(f"s_cmp_eq_u32 s{sDry+3}, {k}"); a(f"s_cbranch_scc1 {n}")
    a("Ldry_skip:")
    a("s_waitcnt vmcnt(9)")
    a("v_cmp_eq_u32 vcc, 2, v18"); a("v_lshlrev_b32 v29, 16, v29"); a("s_nop 0"); a("v_cndmask_b32 v29, 0, v29, vcc"); a("v_or_b32 v26, v26, v29")
    a("v_mov_b32 v29, 0"); a("v_mov_b32 v30, 0"); a("v_mov_b32 v31, 0")
    a(f"v_lshrrev_b32 v33, 2, v19"); a(f"v_mul_u32_u24 v33, {TGRP}, v33"); a("v_lshl_add_u32 v33, v18, 5, v33")
    a("v_and_b32 v34, 1, v19"); a("v_mul_u32_u24 v34, 400, v34"); a("v_bfe_u32 v35, v19, 1, 1"); a("v_mul_u32_u24 v35, 192, v35"); a("v_add3_u32 v33, v33, v34, v35")
    a("v_cmp_gt_u32 vcc, 480, v0"); a("s_and_saveexec_b64 s[72:73], vcc")
    a(f"ds_write_b128 v33, v[24:27] offset:{TBASE}"); a(f"ds_write_b128 v33, v[28:31] offset:{TBASE + 16}")
    a("s_mov_b64 exec, -1")
    a("v_mov_b32 v28, 0")
    a("v_cmp_eq_u32 vcc, 4, v18"); a("s_and_saveexec_b64 s[72:73], vcc")
    a(f"ds_write_b128 v33, v[28:31] offset:{TBASE + 32}"); a(f"ds_write_b128 v33, v[28:31] offset:{TBASE + 48}")
    a("v_and_b32 v34, 3, v19"); a("v_cmp_eq_u32 vcc, 2, v34"); a("s_and_b64 exec, exec, vcc")
    a(f"ds_write_b128 v33, v[28:31] offset:{TBASE + 64}")
    a("s_mov_b64 exec, -1")
    a("v_mov_b32 v33, 0")
    for o in (0, 16, 32): a(f"ds_write_b128 v33, v[28:31] offset:{TPAD + o}")
    a(f"ds_write_b128 v33, v[28:31] offset:{CBASE}")
    if cfg.STAMP:
        a("v_mov_b32 v16, 0"); a("v_mov_b32 v17, 0"); a("v_writelane_b32 v16, s92, 60"); a("v_writelane_b32 v16, s96, 56")
        a("v_writelane_b32 v16, s98, 54"); a("v_writelane_b32 v16, s100, 57")
        P += stamp(16, 61)
        a(f"s_mov_b32 s96, {cfg.SMASK & 0xffffffff:#x}"); a(f"s_mov_b32 s97, {(cfg.SMASK >> 32) & 0xffffffff:#x}")
    a(f"s_cmp_eq_u32 s{sGrp}, 0"); a("s_cbranch_scc0 Lpro_w4")
    P += [i.text for i in csetup()]
    a("s_waitcnt vmcnt(0) lgkmcnt(0)"); P += stamp(16, 58)
    a(f"s_cmp_lt_u32 s{sFrag}, {NPROD}"); a("s_cbranch_scc0 Lflag_done"); a(f"s_lshl_b32 s{sT+2}, s{sFrag}, 2")
    a("s_mov_b64 exec, 1"); a(f"buffer_store_dword v48, v49, s[32:35], s{sT+2} offen sc0 sc1"); a("s_mov_b64 exec, -1")
    P += stamp(16, 57); a("Lflag_done:")
    a(f"s_mov_b32 s{sWsrc}, {8 * WSET}"); a(f"s_lshl_b32 s{sXrow}, s{sJ}, 1"); a(f"s_add_u32 s{sXrow}, s{sXrow}, 20")
    a("s_barrier")
    P += stamp(17, 58); a("s_branch Lc1")
    a("Lpro_w4:")
    a(f"s_mov_b64 exec, s[{sEx48}:{sEx48+1}]")
    a(f"s_and_b32 s{sXrow}, s{sJ}, 1"); a(f"s_add_u32 s{sXrow}, s{sXrow}, 8")
    for r in range(2):
        P += row_setup()
        a(f"s_cmp_lt_u32 s{sJ}, 2"); a(f"s_cbranch_scc0 Lpro_h{r}")
        for g in row_loads()[:5]: P += g
        a(f"s_branch Lpro_g{r}"); a(f"Lpro_h{r}:")
        for g in row_loads()[5:] + row_loads()[8:]: P += g
        a(f"Lpro_g{r}:"); a(f"s_add_u32 s{sXrow}, s{sXrow}, 2")
        if r == 0: a("s_waitcnt vmcnt(5) lgkmcnt(0)"); P += stamp(16, 58); a("s_barrier")
    a("s_mov_b64 exec, -1")
    a("s_waitcnt vmcnt(5)"); a("s_barrier"); a("s_waitcnt vmcnt(0)"); a("s_barrier")
    P += stamp(17, 50)
    addresses()
    if cfg.WARM:
        enter(["Lbody2P", "Lq12", "Lhalf2", "Lq32"], 1); a("Ldry_B:")
    a(f"v_mov_b32 v18, {CBASE + 8}"); a(f"s_cmp_eq_u32 s{sJ}, 0"); a("s_cbranch_scc0 Lmode_wait")
    a(f"v_lshrrev_b32 v20, 2, v{vL16}"); a(f"s_mov_b32 s{sT}, {cfg.POLLS}"); a(f"s_mov_b32 s{sMode}, 2")
    P += stamp(17, 51)
    a("Lpoll_g:"); a("buffer_load_dword v19, v20, s[32:35], 0 offen sc1"); a("s_waitcnt vmcnt(0)")
    a("v_cmp_ne_u32 vcc, 0, v19"); a(f"s_bcnt1_i32_b64 s{sT+2}, vcc"); a(f"s_cmp_eq_u32 s{sT+2}, {NPROD}"); a("s_cbranch_scc1 Lpoll_ok")
    a("s_sleep 12"); a(f"s_sub_u32 s{sT}, s{sT}, 1"); a(f"s_cmp_lg_u32 s{sT}, 0"); a("s_cbranch_scc1 Lpoll_g"); a("s_branch Lmode_set")
    a("Lpoll_ok:")
    P += stamp(17, 52)
    if cfg.STAMP: a(f"v_writelane_b32 v17, s{sT}, 53")
    for bit, want in ((2, 0), (4, 1), (8, 1)):
        a(f"v_and_b32 v21, {bit}, v19"); a("v_cmp_ne_u32 vcc, 0, v21"); a("s_cmp_lg_u64 vcc, 0"); a(f"s_cbranch_scc{1 - want} Lmode_set")
    a(f"s_mov_b32 s{sMode}, {cfg.FORCE or 1}")
    a("Lmode_set:"); a(f"v_mov_b32 v19, s{sMode}"); a("ds_write_b32 v18, v19")
    a("Lmode_wait:"); a("ds_read_b32 v19, v18"); a("s_waitcnt lgkmcnt(0)"); a(f"v_readfirstlane_b32 s{sMode}, v19")
    a(f"s_cmp_eq_u32 s{sMode}, 0"); a("s_cbranch_scc1 Lmode_wait")
    P += stamp(16, 59)
    a(f"s_cmp_eq_u32 s{sMode}, 1"); a("s_cbranch_scc1 Lmode_P")
    P += wparams("R", 1)
    a("Lmode_P:")
    for q in range(1, 4):
        for g in wdma_groups(f"{WBASE + q * WSET}"): P += g
    if cfg.WARM:
        enter(["Lbody1P", "Lq11", "Lhalf1", "Lq31"], 2); a("Ldry_B2:")
    a("s_waitcnt vmcnt(6)"); a("s_barrier")
    assert D == 3
    P += bar_lines()
    for g in wdma_interval(): P += g
    a(f"s_lshl_b32 s{sXrow}, s{sJ}, 1"); a(f"s_add_u32 s{sXrow}, s{sXrow}, 12"); a(f"s_mov_b64 exec, s[{sEx48}:{sEx48+1}]")
    P += row_dma_lines(); a(f"s_add_u32 s{sXrow}, s{sXrow}, 1")
    P += row_dma_lines(); a(f"s_add_u32 s{sXrow}, s{sXrow}, 7")
    a("s_mov_b64 exec, -1")
    P += bar_lines("s_waitcnt vmcnt(18)")
    for g in wdma_interval(): P += g
    if cfg.WARM:
        enter(["LconvP", "Ldry1", "Lbody0P", "Lhalf0"], 3); a("Ldry_B3:")
    a(f"s_cmp_eq_u32 s{sMode}, 1"); a("s_cbranch_scc0 LouterR")
    return P

def build():
    D = cfg.D
    out = []
    hdr = ["; fused depthwise 5x5 + LayerNorm + MLP(GELU) + residual; generated by gen/gen.py",
           f"; @launch grid=(256,1,1) block=(512,1,1) lds={LDS_BYTES}",
           '.amdgcn_target "amdgcn-amd-amdhsa--gfx950"', ".text", f".globl {KNAME}", ".p2align 8", f".type {KNAME},@function", f"{KNAME}:"]
    out += hdr
    def raw(lines):
        for l in lines: out.append(l if l.endswith(":") or l.startswith(".") else "    " + l)
    raw(prologue())
    for m in "PR":
        MODE[0] = m
        epi0, epi1 = csetup(), epilogue(True)
        cs = cstage()
        bodies = [loop_body(0), loop_body(1), loop_body(2)]
        marks = [LABEL(n) for n in ("@c", "@a1", "@a2", "@b2", "@e0", "@x", "@e1", "@end")]
        lin = [marks[0]] + cs + [marks[1]] + bodies[0] + [marks[2]] + bodies[0] + [marks[3]] + bodies[1] + [marks[4]] + epi0 + [marks[5]] + bodies[2] + [marks[6]] + epi1 + [marks[7]]
        lin, pend = insert_lgkm(lin, cfg.OLD); assert not pend
        lin, _ = fix_hazards(lin)
        idx = [next(k for k, i in enumerate(lin) if i is m) for m in marks]
        cst, a1, a2, b2, e0, n2, e1 = (lin[idx[k] + 1: idx[k + 1]] for k in range(7))
        n1 = sum(states(i) for i in a1 if i.kind == "nop") - sum(states(i) for i in a2 if i.kind == "nop")
        assert [i.text for i in a1 if i.kind != "nop"] == [i.text for i in a2 if i.kind != "nop"]
        if n1 > 0: cst = cst + [Ins(f"s_nop {n1 - 1}", "nop")]
        for path in ([cst, n2, a2, a2, b2, a2, e0, cst, b2, a2, e1], [cst, n2, n2, e0, cst, n2, n2, e1]):
            seq = [i for blk in path for i in blk]
            _, bad = fix_hazards(seq, check_only=True); assert not bad, bad
            assert not check_lgkm(seq)
        def emit(blk):
            for i in blk:
                if i.kind == "touch": continue
                for l in i.text.split("\n"): out.append(l if i.kind in ("label", "opaque", "dsw_op") or l.startswith("    ") or l.endswith(":") else "    " + l)
        if m == "P":
            c1, pend = insert_lgkm(e0 + [LABEL("@")] + conv_first(), cfg.OLD); c1, _ = fix_hazards(c1)
            c1 = c1[[i.text for i in c1].index("@:") + 1:]
            kj = [k for k, i in enumerate(cst) if "Ljoin:" in i.text][0]
            _, bad = fix_hazards(c1 + cst[kj:], check_only=True); assert not bad, bad
            check_lgkm(c1 + cst[kj:])
            raw(["s_branch LouterP", "Lc1:"]); emit(c1); raw(dry_exit() + ["s_branch Ljoin"])
        out.append(f"Louter{m}:")
        emit(e0)
        raw(bar_lines())
        raw([f"s_cmp_eq_u32 s{sGrp}, 0", f"s_cbranch_scc0 Lno_w{m}"] + [l for g in wdma_interval() for l in g] + [f"Lno_w{m}:"])
        out.append(f"Lconv{m}:")
        emit(cst)
        raw(dry_exit())
        raw([f"s_or_b32 s{sT}, s{sGrp}, s{sFirst}", f"s_cbranch_scc0 LloopX{m}",
             f"s_sub_u32 s{sCnt}, 6, s{sP}" if cfg.LAST else f"s_mov_b32 s{sCnt}, 6", f"s_cmp_lg_u32 s{sFirst}, 0", f"s_cselect_b32 s{sCnt}, 2, s{sCnt}", f"s_branch LloopN{m}"])
        tail = [f"s_add_u32 s{sWin}, s{sWin}, 4", f"s_cmp_ge_u32 s{sWin}, {NR}", f"s_cselect_b32 s{sWin}, 0, s{sWin}",
                f"s_add_u32 s{sP}, s{sP}, 1", f"s_cmp_eq_u32 s{sP}, 1", f"s_cbranch_scc1 Louter{m}"]
        raw([".p2align 6", f"LloopX{m}:"]); emit(b2)
        raw(dry_exit() + [f"s_mov_b32 s{sXM}, 1", f"s_cmp_eq_u32 s{sP}, 0", f"s_cselect_b32 s{sCnt}, 1, 5", "s_waitcnt vmcnt(18)", f"s_branch Lnowait0{m}"])
        raw([".p2align 6", f"LloopA{m}:"]); emit(a2)
        raw([f"s_sub_u32 s{sCnt}, s{sCnt}, 1", f"s_cmp_lg_u32 s{sCnt}, 0", f"s_cbranch_scc1 LloopA{m}"] + dry_exit() +
            [f"s_cmp_eq_u32 s{sXM}, 0", f"s_cbranch_scc1 LloopX{m}"] + tail)
        k6 = [k for k, i in enumerate(e1) if i.kind == "vstore"][5] + 1
        raw(bar_lines()); raw([l for g in wdma_interval() for l in g]); emit(e1[:k6])
        raw(bar_lines("s_waitcnt vmcnt(6)")); raw([l for g in wdma_interval() for l in g]); emit(e1[k6:])
        raw(stamp(16, 62))
        raw(bar_lines("s_waitcnt vmcnt(6)")); raw([l for g in wdma_interval() for l in g])
        if cfg.LAST and cfg.WARM and m == "P":
            raw([f"s_mov_b32 s{sDry+3}, 4", f"s_mov_b32 s{sDry}, 1", "s_setvskip -1, 0", f"s_cmp_eq_u32 s{sJ}, 0", "s_cbranch_scc1 Lbody3P", f"s_cmp_eq_u32 s{sJ}, 1", "s_cbranch_scc1 Lq13",
                 f"s_cmp_eq_u32 s{sJ}, 2", "s_cbranch_scc1 Lhalf3", "s_branch Lq33", "Ldry_A4:"])
        raw(bar_lines())
        raw(["s_branch Lfin"])
        raw([".p2align 6", f"LloopN{m}:"]); emit(n2)
        raw([f"s_sub_u32 s{sCnt}, s{sCnt}, 1", f"s_cmp_lg_u32 s{sCnt}, 0", f"s_cbranch_scc1 LloopN{m}"] + dry_exit() + [
             f"s_cmp_lg_u32 s{sFirst}, 0", f"s_mov_b32 s{sFirst}, 0", f"s_mov_b32 s{sCnt}, 2", f"s_cbranch_scc1 LloopA{m}"] + tail)
        if cfg.LAST:
            lb, _ = insert_lgkm(n2 + [LABEL("@")] + last_body(), cfg.OLD); lb, _ = fix_hazards(lb)
            lb = lb[[i.text for i in lb].index("@:") + 1:]
            check_lgkm(n2 + lb)
            emit(lb)
        else:
            out.append(f"Lepi1{m}:")
            emit(e1)
        raw(dry_exit())
        raw(stamp(16, 62))
        raw(["s_branch Lfin"] if m == "P" else [])
        if m == "P": out.append("Lraw:")
    out.append("Lfin:")
    if cfg.STAMP:
        raw(["s_waitcnt vmcnt(0)"] + stamp(16, 63) + ["s_memrealtime s[98:99]", "s_waitcnt lgkmcnt(0)", "v_writelane_b32 v16, s98, 55",
             "s_load_dwordx2 s[94:95], s[0:1], 56", "s_waitcnt lgkmcnt(0)", "s_mov_b32 s28, s94", "s_and_b32 s29, s95, 0xffff", "s_mov_b32 s30, 0x1000000", "s_mov_b32 s31, 0x20000",
             f"s_lshl_b32 s89, s{sGrp}, 2", f"s_add_u32 s89, s89, s{sJ}", "s_lshl_b32 s90, s2, 3", "s_add_u32 s89, s89, s90", "s_lshl_b32 s89, s89, 9", "s_add_u32 s89, s89, 0x100000",
             f"v_lshrrev_b32 v18, 2, v{vL16}", "buffer_store_dword v16, v18, s[28:31], s89 offen", "buffer_store_dword v17, v18, s[28:31], s89 offen offset:256"])
    if cfg.DBG:
        raw(["s_waitcnt vmcnt(0)", "s_memtime s[90:91]", "s_memrealtime s[96:97]", "s_load_dwordx2 s[98:99], s[0:1], 48", "s_waitcnt lgkmcnt(0)",
             "s_sub_u32 s90, s90, s92", "s_sub_u32 s96, s96, s94", "s_mov_b32 s28, s98", "s_and_b32 s29, s99, 0xffff", "s_mov_b32 s30, 64", "s_mov_b32 s31, 0x20000",
             f"s_cmp_eq_u32 s{sGrp}, 1", "s_cbranch_scc0 Lend", f"s_cmp_eq_u32 s{sJ}, 0", "s_cbranch_scc0 Lend",
             "s_lshr_b32 s89, s2, 5", "s_lshl_b32 s89, s89, 3", "s_and_b32 s91, s2, 31", "s_cmp_eq_u32 s91, 0", "s_cbranch_scc0 Lend",
             "v_mov_b32 v16, s90", "v_mov_b32 v17, s96", "v_mov_b32 v18, 0", "s_mov_b64 exec, 1", "buffer_store_dwordx2 v[16:17], v18, s[28:31], s89 offen"])
    if cfg.ENC:
        raw(["s_waitcnt vmcnt(0)", "s_memtime s[90:91]", "s_memrealtime s[96:97]", "s_waitcnt lgkmcnt(0)", "s_sub_u32 s90, s90, s92", "s_sub_u32 s96, s96, s94",
             f"s_cmp_eq_u32 s{sGrp}, 1", "s_cbranch_scc0 Lend", f"s_cmp_eq_u32 s{sJ}, 0", "s_cbranch_scc0 Lend",
             f"v_lshrrev_b32 v18, 3, v{vL16}", f"buffer_load_ushort v19, v18, s[{sO}:{sO+3}], s{sStO} offen sc0 sc1",
             f"v_lshrrev_b32 v20, 4, v{vL16}", "v_and_b32 v21, 7, v20", "v_mul_u32_u24 v21, 3, v21", "v_cmp_gt_u32 vcc, 8, v20", "v_mov_b32 v22, s90", "v_mov_b32 v23, s96",
             "v_cndmask_b32 v22, v23, v22, vcc", "v_lshrrev_b32 v22, v21, v22", "v_and_b32 v22, 7, v22", "s_waitcnt vmcnt(0)", "v_and_b32 v19, 0xfff8, v19", "v_or_b32 v19, v19, v22",
             "s_mov_b64 exec, 0xffff", f"buffer_store_short v19, v18, s[{sO}:{sO+3}], s{sStO} offen sc0 sc1"])
    if cfg.THR:
        raw(["s_waitcnt vmcnt(0)", "s_memrealtime s[96:97]", "s_waitcnt lgkmcnt(0)", "s_sub_u32 s96, s96, s94", f"s_cmp_gt_u32 s96, {cfg.THR}", "s_cbranch_scc0 Lend",
             "v_mov_b32 v18, 0", "v_mov_b32 v19, 0x4000", "s_mov_b64 exec, 1", f"buffer_store_short v19, v18, s[{sO}:{sO+3}], s{sStO} offen sc0 sc1"])
    raw(["Lend:", "s_endpgm"])
    raw(["Lw1wait:", "s_barrier", f"ds_read_b32 v{T0+1}, v{T0} offset:8", "s_waitcnt lgkmcnt(0)", f"v_readfirstlane_b32 s{sMode}, v{T0+1}",
         f"s_cmp_eq_u32 s{sMode}, 1", "s_cbranch_scc1 Lw1wait_retP"] + wparams("R", 8) + ["s_branch Lw1wait_retR"])
    if cfg.ALIGN:
        tmp, npad, nwid = align8([l.replace("CODE_LAST", "0x1000") for l in out], "Lc1", "Lend")
        out = [l.replace("v38, 0x1000", "v38, CODE_LAST") for l in tmp]
        sys.stderr.write(f"align8: {npad} pads, {nwid} widened\n")
    nbytes = sum(insn_sizes([l.replace("CODE_LAST", "0x1000") for l in out])[:out.index("Lraw:")])
    out = [l.replace("CODE_LAST", str(nbytes // 64 * 64 - 128)) for l in out]
    sys.stderr.write(f"hot code bytes {nbytes}\n"); assert nbytes <= 32768 or cfg.STAMP
    out += ['.section .rodata,"a"', ".p2align 6", f".amdhsa_kernel {KNAME}", "  .amdhsa_next_free_vgpr 256", f"  .amdhsa_next_free_sgpr {102 if cfg.STAMP or cfg.DBG or cfg.ENC or cfg.THR else 96}",
            "  .amdhsa_accum_offset 256", "  .amdhsa_group_segment_fixed_size 0", "  .amdhsa_kernarg_size 64", "  .amdhsa_user_sgpr_count 2",
            "  .amdhsa_user_sgpr_kernarg_segment_ptr 1", "  .amdhsa_system_sgpr_workgroup_id_x 1", ".end_amdhsa_kernel"]
    return "\n".join(out) + "\n"

open(sys.argv[1], "w").write(build())
```

```python
import sys, struct, math
import numpy as np, re
from asmlib import *

class Cfg:
    D = 3
    GELU = "B"
    PRIO = 1
    CPRIO = 3
    XF = 'nt'
    OF = 'sc0+sc1'
    WF = 'sc1'
    ALIGN = True
    STAMP = False
    SMASK = -1
    OLD = 200
    PPOS = ''
    CLS = 0
    THR = 0
    ENC = False
    LAST = True
    PKST = 0
    MIDU = 33
    NBUF = 2
    RT = False
    NOINV = False
    FORCE = 0
    POLLS = 300
    S64 = True
    DBG = False
    WARM = True
    HW64 = True
    PBASE = 3
    ABL = ''
    CST = False
    PKS = 0
    PKN = True
    W1G = True
    R2 = False
    NOSTAT = False
    NOCRD = False
    N0 = 15
    WLATE = True
cfg = Cfg()
for a in sys.argv[2:]:
    k, v = a.split("=")
    setattr(cfg, k, type(getattr(cfg, k))(v) if not isinstance(getattr(cfg, k), bool) else v in ("1", "True"))

KNAME = "standalone__modern_conv_block_replknet__vision_kernel"
XS = 7104; NR = 12
TPAD = 0
TBASE = 48
TGRP = 784
IBASE = TBASE + 24 * TGRP
PBASE = IBASE + 2048
CBASE = PBASE + 8192
WBASE = CBASE + 16
WSET = 12288
XBASE = WBASE + 4 * WSET
LDS_BYTES = XBASE + NR * XS
assert LDS_BYTES <= 163840, LDS_BYTES
assert WBASE % 16 == 0 and IBASE % 16 == 0
vColB, vHwA, vRes, vHr, vTa, vSt, vW1b, vW2b, vW1c, vW2c, vDMA, vOffL, vOffR, vL16 = range(1, 15)
T0 = 18
G = 24
W2F = 32
W1F = 56
ACC1 = (80, 96)
H = 112
ACC2 = 160
def acc2(X, b): return ACC2 + 48 * X + 16 * b
cBuf = (56, 68, 80)
cAddr = 104
cTa, cIdx, cRes, cHw, cHr = 107, 108, 109, 110, 111
XF = [32, 36, 40, 44, 48, 52, 92, 96, 100, 80, 84, 88]
sX, sO, sW = 16, 20, 24
sGrp, sJ, sTx, sTy, sSig, sRing, sWsrc, sWstep, sWlim, sWins, sWbase, sP, sCnt = range(36, 49)
sA16, sK16, sStO = 49, 50, 51
sWin, sXrow, sFirst = 63, 64, 65
sXM, sXinc = 66, 67
sExX = 68
sAdjL = 70
sT = 71
sEx48 = 80
sInv96, sEps, sKap = 82, 83, 84
sDry = 56
sFrag, sMode, sThird = 62, 3, 60
sSave = 68
sStO2, sTgt = 52, 53
sFres, sFh = 54, 55
sXo, sXm = 85, 86
sStInc = 87
s1k = 89
sJ3k = 88
RSUM = 2 * WBASE + 2 * WSET

def f32bits(x): return struct.unpack("<I", struct.pack("<f", x))[0]
def f16bits(x): return int(np.float16(x).view(np.uint16))
a_c = -2.0 * math.log2(math.e) * math.sqrt(2.0 / math.pi)
b_c = a_c * 0.044715
kap = -((-b_c) ** (1.0 / 3.0))
if cfg.GELU in ("B",):
    kap_use = float(np.float16(kap))
    A_imm = f16bits(a_c / kap_use) * 0x10001
    K_imm = f16bits(kap_use) * 0x10001
else:
    kap_use = kap
    A_imm = f32bits(a_c / kap)
    K_imm = f32bits(kap)

def fl(s): return ''.join(' ' + w for w in s.split('+') if w)
uid = [0]
MODE = ['P']
NPROD = 36
def lab(p):
    uid[0] += 1
    return f"L{p}_{uid[0]}"

def opaque(lines):
    return Ins("\n".join("    " + l if not l.endswith(":") else l for l in lines), "opaque", cost=0)

def stamp(vreg, lane):
    if not cfg.STAMP: return []
    return ["s_memtime s[90:91]", f"s_mov_b32 m0, {lane}", "s_waitcnt lgkmcnt(0)", f"v_writelane_b32 v{vreg}, s90, m0"]
def cstamp(vreg):
    if not cfg.STAMP: return []
    if cfg.RT:
        if vreg == 16: return []
        return stamp(17, f"s{sSig}") + [x.replace("s_memtime", "s_memrealtime") for x in stamp(16, f"s{sSig}")]
    if cfg.SMASK == -1: return stamp(vreg, f"s{sSig}")
    l = lab("s")
    return [f"s_bitcmp1_b64 s[96:97], s{sSig}", f"s_cbranch_scc0 {l}"] + stamp(vreg, f"s{sSig}") + [f"{l}:"]

def wdma_groups(dst):
    out = []
    for u in range(3):
        g = [f"s_add_u32 m0, {dst}, s{sJ3k}", f"s_add_u32 s{sT+8}, s{sWsrc}, s{sWbase}"] if u == 0 else \
            [f"s_add_u32 m0, m0, s{s1k}", f"s_add_u32 s{sT+8}, s{sT+8}, s{sWins}"]
        g.append(f"buffer_load_dwordx4 v{vDMA}, s[{sW}:{sW+3}], s{sT+8} offen{fl(cfg.WF)} lds")
        if u == 2: g += [f"s_add_u32 s{sWsrc}, s{sWsrc}, s{sWstep}", f"s_cmp_eq_u32 s{sWsrc}, s{sWlim}", f"s_cselect_b32 s{sWsrc}, 0, s{sWsrc}"]
        out.append(g)
    return out
def wdma_interval():
    g = wdma_groups(f"s{sT+7}") + wdma_groups(f"s{sT+7}")
    g[0] = [f"s_sub_u32 s{sT+7}, {RSUM}, s{sRing}"] + g[0]
    g[3] = [f"s_add_u32 s{sT+7}, s{sT+7}, {WSET}"] + g[3]
    return g

def row_setup():
    t0, t1, t2 = sT, sXo, sT + 1
    return [f"s_lshl_b32 s{t0}, s{sTy}, 5", f"s_add_u32 s{t0}, s{t0}, s{sXrow}", f"s_sub_u32 s{t0}, s{t0}, 2",
            f"s_mul_i32 s{t1}, s{t0}, 98304", f"s_mul_i32 s{t2}, s{sTx}, 6144", f"s_add_u32 s{t1}, s{t1}, s{t2}",
            f"s_cmp_lt_u32 s{t0}, 512", f"s_cselect_b32 s{t1}, s{t1}, 0x80000000",
            f"s_cmp_ge_u32 s{sXrow}, 24", f"s_cselect_b32 s{t2}, 24, 0", f"s_sub_u32 s{t0}, s{sXrow}, s{t2}",
            f"s_cmp_ge_u32 s{t0}, 12", f"s_cselect_b32 s{t2}, 12, 0", f"s_sub_u32 s{t0}, s{t0}, s{t2}",
            f"s_and_b32 s{t2}, s{sXrow}, 4", f"s_lshl_b32 s{t2}, s{t2}, 1", f"s_mul_i32 s{t0}, s{t0}, {XS}", f"s_add_u32 s{t0}, s{t0}, s{t2}",
            f"s_add_u32 s{sXm}, s{t0}, {XBASE}"]
def row_loads():
    out = [[f"s_mov_b32 m0, s{sXm}", f"s_sub_u32 s{sT}, s{sXo}, s{sAdjL}", f"buffer_load_dwordx4 v{vOffL}, s[{sX}:{sX+3}], s{sT} offen{fl(cfg.XF)} lds"]]
    for a in range(1, 9):
        out.append([f"s_add_u32 m0, s{sXm}, {784 * a}", f"s_add_u32 s{sT}, s{sXo}, {768 * a - 384}",
                    f"buffer_load_dwordx4 v{vOffR if a == 8 else vL16}, s[{sX}:{sX+3}], s{sT} offen{fl(cfg.XF)} lds"])
    return out
def row_dma_lines(): return row_setup() + [l for g in row_loads() for l in g]

def bar_lines(wait="s_waitcnt vmcnt(0)"):
    L = cstamp(16) + ([wait] if wait else []) + ["s_barrier"] + cstamp(17)
    L += [f"s_sub_u32 s{sRing}, {RSUM}, s{sRing}"]
    if cfg.STAMP: L += [f"s_add_u32 s{sSig}, s{sSig}, 1"]
    return L

def gelu_B(Sr):
    ops = []
    def st(p, k):
        a0 = Sr + 2 * p; a1 = a0 + 1; t = T0 + (p % 2) * 3; u = t + 1; w = t + 2
        return [V(f"v_cvt_pk_f16_f32 v{t}, v{a0}, v{a1}"),
                V(f"v_pk_fma_f16 v{u}, v{t}, v{t}, s{sA16}"),
                V(f"v_pk_mul_f16 v{t}, v{t}, v{u}"),
                V(f"v_exp_f16 v{u}, v{t}"),
                V(f"v_exp_f16_sdwa v{u}, v{t} dst_sel:WORD_1 dst_unused:UNUSED_PRESERVE src0_sel:WORD_1"),
                V(f"v_pk_fma_f16 v{t}, v{u}, s{sK16}, s{sK16}"),
                V(f"v_rcp_f16 v{u}, v{t}"),
                V(f"v_rcp_f16_sdwa v{w}, v{t} dst_sel:DWORD dst_unused:UNUSED_PAD src0_sel:WORD_1"),
                V(f"v_fma_mix_f32 v{u}, v{a0}, v{u}, 0 op_sel_hi:[0,1,0]"),
                V(f"v_fma_mix_f32 v{w}, v{a1}, v{w}, 0 op_sel_hi:[0,1,0]"),
                V(f"v_cvt_pk_bf16_f32 v{G+p}, v{u}, v{w}")][k]
    for q in range(0, 8, 2):
        for k in range(11):
            ops += [st(q, k), st(q + 1, k)]
    return ops

def gelu_A(Sr):
    ops = []
    for q in range(0, 16, 4):
        for k in range(6):
            for e in range(4):
                a = Sr + q + e; r = T0 + e
                ops.append([V(f"v_fma_f32 v{r}, v{a}, v{a}, s{sA16}"), V(f"v_mul_f32 v{r}, v{a}, v{r}"), V(f"v_exp_f32 v{r}, v{r}"),
                            V(f"v_fma_f32 v{r}, v{r}, s{sK16}, s{sK16}"), V(f"v_rcp_f32 v{r}, v{r}"), V(f"v_mul_f32 v{r}, v{a}, v{r}")][k])
        ops += [V(f"v_cvt_pk_bf16_f32 v{G+q//2}, v{T0}, v{T0+1}"), V(f"v_cvt_pk_bf16_f32 v{G+q//2+1}, v{T0+2}, v{T0+3}")]
    return ops
def gelu_C(Sr):
    ops = []
    def st(p, k):
        a0 = Sr + 2 * p; a1 = a0 + 1; t = T0 + (p % 2) * 3; u = t + 1; w = t + 2
        return [V(f"v_cvt_pk_f16_f32 v{w}, v{a0}, v{a1}"),
                V(f"v_pk_fma_f16 v{u}, v{w}, v{w}, s{sA16}"),
                V(f"v_pk_mul_f16 v{t}, v{w}, v{u}"),
                V(f"v_exp_f16 v{u}, v{t}"),
                V(f"v_exp_f16_sdwa v{u}, v{t} dst_sel:WORD_1 dst_unused:UNUSED_PRESERVE src0_sel:WORD_1"),
                V(f"v_pk_fma_f16 v{t}, v{u}, s{sK16}, s{sK16}"),
                V(f"v_rcp_f16 v{u}, v{t}"),
                V(f"v_rcp_f16_sdwa v{u}, v{t} dst_sel:WORD_1 dst_unused:UNUSED_PRESERVE src0_sel:WORD_1"),
                V(f"v_pk_mul_f16 v{G+p}, v{w}, v{u}")][k]
    for q in range(0, 8, 2):
        for k in range(9):
            ops += [st(q, k), st(q + 1, k)]
    return ops
def gelu(Sr): return gelu_C(Sr) if MODE[0] == "P" else gelu_B(Sr)

TR = "ds_read_b64_tr_b16"
def rd_w1(j, c):
    if MODE[0] == "P": return [DSR("ds_read_b128", W1F + 4 * j, 4, vW1c, f"offset:{WSET * c + 1024 * j}")]
    return [DSR(TR, W1F + 4 * j + 2 * r, 2, vW1c, f"offset:{WSET * c + 1024 * j + 256 * r}") for r in range(2)]
def rd_w2(sp, b, c):
    if MODE[0] == "P": return [DSR("ds_read_b128", W2F + 12 * sp + 4 * b, 4, vW1c, f"offset:{WSET * c + 6144 + 1024 * (3 * sp + b)}")]
    return [DSR(TR, W2F + 12 * sp + 4 * b + 2 * r, 2, vW2c, f"offset:{WSET * c + 6144 + (16 * sp + 8 * r) * 192 + 64 * b}") for r in range(2)]
def g1(X, j):
    return MFMA("32x32x16", ACC1[X], W1F + 4 * j, H + 8 * j + 4 * X, None if j == 0 else ACC1[X])
def g2(X, sp, b):
    return (MFMA16 if MODE[0] == "P" else MFMA)("32x32x16", acc2(X, b), W2F + 12 * sp + 4 * b, G + 4 * sp, acc2(X, b))
def w_addr():
    if MODE[0] == "P": return [V(f"v_add_u32 v{vW1c}, s{sRing}, v{vL16}")]
    return [V(f"v_add_u32 v{vW1c}, s{sRing}, v{vW1b}"), V(f"v_add_u32 v{vW2c}, s{sRing}, v{vW2b}")]

def step(X, c, extra):
    Y = 1 - X
    ld = (X == 0)
    att = [[g2(Y, 1, 0)] + (rd_w2(1, 0, c) if ld else []),
           [g1(Y, 0)] + (rd_w2(0, 0, c) + rd_w1(0, c) if ld else []),
           [g2(Y, 1, 1)] + (rd_w2(0, 1, c) + rd_w2(1, 1, c) if ld else []),
           [g1(Y, 1)] + (rd_w2(0, 2, c) + rd_w1(1, c) if ld else []),
           [g2(Y, 1, 2)] + (rd_w2(1, 2, c) if ld else []),
           [g1(Y, 2)] + (rd_w1(2, c) if ld else []),
           [g1(Y, 3)] + (rd_w1(3, c) if ld else []),
           [g2(X, 0, 0)],
           [g1(Y, 4)] + (rd_w1(4, c) if ld else []),
           [g2(X, 0, 1)],
           [g1(Y, 5)] + (rd_w1(5, c) if ld else []),
           [g2(X, 0, 2)]]
    for k, v in extra.items(): att[k] = att[k] + v
    ops = gelu(ACC1[X])
    return ops[:2] + interleave(ops[2:], att)

def loop_body(grp):
    bl = bar_lines()
    k = bl.index("s_waitcnt vmcnt(0)")
    L = [opaque(bl[:k + 1] + [f"Lnowait{grp}{MODE[0]}:"] + bl[k + 1:] + [f"Lbody{grp}{MODE[0]}:"])]
    L += w_addr()
    ex = [{}, {}, {}, {}]
    if grp in (0, 1):
        for k, g in enumerate(wdma_interval()):
            ex[k // 3 if k < 3 else 1][(7, 9, 11)[k] if k < 3 else (1, 3, 5)[k - 3]] = [opaque(g)]
    if grp == 1:
        rl = row_loads()
        for r in range(2):
            for k in range(3):
                blk = (row_setup() if k == 0 else []) + [f"s_mov_b64 exec, s[{sEx48}:{sEx48+1}]"] + rl[3 * k] + rl[3 * k + 1] + rl[3 * k + 2] + ["s_mov_b64 exec, -1"]
                if k == 2: blk += [f"s_add_u32 s{sXrow}, s{sXrow}, {7 if r else 1}"]
                st, sl = ((1, 8), (1, 11), (2, 7), (2, 11), (3, 3), (3, 7))[3 * r + k]
                ex[st][sl] = [opaque(blk)]
    for k in range(4):
        if k == 2: L += dry_point(f"Lhalf{grp}")
        if k in (1, 3) and grp in (1, 2): L += dry_point(f"Lq{k}{grp}")
        if cfg.PRIO and (not cfg.PPOS or k == 0): L.append(S(f"s_setprio {max(cfg.PBASE - k, 0)}"))
        for n, pos in enumerate(cfg.PPOS.split("+") if cfg.PPOS else []):
            st, sl = map(int, pos.split("."))
            if st == k: ex[k][sl] = ex[k].get(sl, []) + [S(f"s_setprio {2 - n}")]
        L += step(k & 1, k >> 1, ex[k])
    return L

def last_body():
    L = [opaque(bar_lines() + [f"Lbody3{MODE[0]}:"])]
    L += w_addr()
    def g1x(X, acc, j): return MFMA("32x32x16", ACC1[acc], W1F + 4 * j, H + 8 * j + 4 * X, None if j == 0 else ACC1[acc])
    prev = T0 - 1 if False else vI_tmp
    base = vL16 if MODE[0] == "P" else vW1b
    L += [S(f"s_sub_u32 s{sT}, {RSUM}, s{sRing}"), V(f"v_add_u32 v{prev}, s{sT}, v{base}")]
    def rd_w1p(j):
        o = rd_w1(j, 1)
        return [DSR(i.text.split()[0], min(i.wr), len(i.wr), prev, i.text.split()[-1]) for i in o]
    def run(src, att, extra=()):
        ops = gelu(ACC1[src])
        main = ops[2:]
        if extra: main = interleave(main, [[e] for e in extra[0]], extra[1], 1.0)
        return ops[:2] + interleave(main, att)
    quad = [H + 8 * t for t in range(6)]
    def ocv(b): return [V(f"v_cvt_pk_bf16_f32 v{quad[2*b + i // 4] + i % 4}, v{acc2(0, b) + 2*i}, v{acc2(0, b) + 2*i + 1}") for i in range(8)]
    def ofin(b):
        o = [V(f"v_permlane16_swap_b32 v{quad[2*b] + i}, v{quad[2*b+1] + i}") for i in range(4)]
        for t in (2 * b, 2 * b + 1):
            st = store(0, t); d = quad[t]
            o.append(VMEM(re.sub(r"v\[\d+:\d+\]", vr(d, 4), st.text, 1), rd=[vSt] + list(R(d, 4)), store=True))
        return o
    w1 = lambda f: [x for j in range(6) for x in f(j)]
    L += rd_w1(0, 0) + rd_w1(1, 0) + rd_w1(2, 0)
    L += run(0, [[g2(1, 1, 0)] + rd_w2(1, 0, 0) + rd_w1(3, 0), [g2(1, 1, 1)] + rd_w2(1, 1, 0) + rd_w1(4, 0) + rd_w2(0, 0, 0), [g2(1, 1, 2)] + rd_w2(1, 2, 0) + rd_w1(5, 0) + rd_w2(0, 1, 0),
                 [g1x(0, 1, 0)] + rd_w1p(0) + rd_w2(0, 2, 0), [g1x(0, 1, 1)] + rd_w1p(1), [g1x(0, 1, 2)] + rd_w1p(2), [g1x(0, 1, 3)] + rd_w1p(3),
                 [g2(0, 0, 0)] + rd_w2(0, 0, 1), [g1x(0, 1, 4)] + rd_w1p(4), [g2(0, 0, 1)] + rd_w2(0, 1, 1), [g1x(0, 1, 5)] + rd_w1p(5), [g2(0, 0, 2)] + rd_w2(0, 2, 1)])
    L += dry_point("Lq13")
    L += run(1, [[g2(0, 1, 0)] + rd_w2(1, 0, 1), [g1x(1, 0, 0)] + rd_w1(0, 0), [g2(0, 1, 1)] + rd_w2(1, 1, 1), [g1x(1, 0, 1)] + rd_w1(1, 0), [g2(0, 1, 2)] + rd_w2(1, 2, 1),
                 [g1x(1, 0, 2)] + rd_w1(2, 0), [g1x(1, 0, 3)] + rd_w1(3, 0), [g2(0, 0, 0)] + rd_w2(0, 0, 0), [g1x(1, 0, 4)] + rd_w1(4, 0), [g2(0, 0, 1)] + rd_w2(0, 1, 0),
                 [g1x(1, 0, 5)] + rd_w1(5, 0), [g2(0, 0, 2)] + rd_w2(0, 2, 0)])
    L += dry_point("Lhalf3")
    L += run(0, [[g2(0, 1, 0)] + rd_w2(1, 0, 0), [g2(0, 1, 1)] + rd_w2(1, 1, 0), [g2(0, 1, 2)] + rd_w2(1, 2, 0), [g1x(1, 1, 0)], [g1x(1, 1, 1)], [g1x(1, 1, 2)], [g1x(1, 1, 3)],
                 [g2(1, 0, 0)] + rd_w2(0, 0, 1), [g1x(1, 1, 4)], [g2(1, 0, 1)] + rd_w2(0, 1, 1), [g1x(1, 1, 5)], [g2(1, 0, 2)] + rd_w2(0, 2, 1)],
             (ocv(0) + ocv(1)[:2] + ofin(0) + ocv(1)[2:], 0.35))
    L += dry_point("Lq33")
    L += run(1, [[g2(1, 1, 0)] + rd_w2(1, 0, 1), [g2(1, 1, 1)] + rd_w2(1, 1, 1), [g2(1, 1, 2)] + rd_w2(1, 2, 1), [], [], [], [], [g2(1, 0, 0)], [], [g2(1, 0, 1)], [], [g2(1, 0, 2)]],
             (ocv(2)[:2] + ofin(1) + ocv(2)[2:] + [V(f"v_mov_b32 v{vI_tmp}, 0"), V(f"v_mov_b32 v{vI_tmp}, 0")] + ofin(2), 0.0))
    L += [V(f"v_mov_b32 v{vI_tmp}, 0"), V(f"v_mov_b32 v{vI_tmp}, 0"), g2(1, 1, 0), g2(1, 1, 1), g2(1, 1, 2)]
    L += out_cvt(3) + out_cvt(4)[:2] + out_fin(3) + out_cvt(4)[2:] + out_cvt(5)[:2] + out_fin(4) + out_cvt(5)[2:] + [V(f"v_mov_b32 v{vI_tmp}, 0"), V(f"v_mov_b32 v{vI_tmp}, 0")] + out_fin(5)
    return L
vI_tmp = 15

def SM32(d, a, b, idx):
    ab = list(R(a, 4)) + list(R(b, 8)) + [idx]
    return Ins(f"v_smfmac_f32_32x32x32_bf16 {vr(d,16)}, {vr(a,4)}, {vr(b,8)}, v{idx}", "mfma",
               ab + list(R(d, 16)), R(d, 16), cost=12, passes=8, srcc=R(d, 16), srcab=ab)

def unit_reads(u, first=False):
    q, rho = divmod(u, 6); buf = cBuf[u % cfg.NBUF]; ta = cTa
    if first: rho, q = divmod(u, 6); ta = (cTa, 92, 93)[q // 2]
    o = 196 * (q % 2) + 8 * rho
    L = []
    if rho == 0 and q and q % 2 == 0 and not first: L.append(V(f"v_add_u32 v{cTa}, {2 * TGRP}, v{cTa}"))
    L += [DSR("ds_read2_b32", buf + 8, 2, ta, f"offset0:{o} offset1:{o+1}"), DSR("ds_read2_b32", buf + 10, 2, ta, f"offset0:{o+2} offset1:{o+3}")]
    for k, c in enumerate((0, 192, 784, 976)):
        L.append(DSR("ds_read_b64", buf + 2 * k, 2, cAddr + rho // 2, f"offset:{XS * (rho & 1) + c + 8 * q}"))
    return L

def store(X, t):
    d = H + 24 * X + 4 * t
    return VMEM(f"buffer_store_dwordx4 {vr(d,4)}, v{vSt}, s[{sO}:{sO+3}], s{sStO2 if X else sStO} offen offset:{64 * (t >> 1) + 3072 * (t & 1) if cfg.S64 else 32 * t}{fl(cfg.OF)}", rd=[vSt] + list(R(d, 4)), store=True)

def res_reads(k):
    X, s = divmod(k, 6)
    return [DSR("ds_read_b64", XF[k] + 2 * r, 2, cRes, f"offset:{XS * X + 32 * s + 8 * r}") for r in range(2)]

def pk(op, d, *src, mods=""):
    return V(f"v_pk_{op}_f32 v[{d}:{d+1}], " + ", ".join(f"v[{x}:{x+1}]" for x in src) + mods)

def signal():
    t = T0
    return [Ins(f"    s_mov_b64 exec, 1\n    ds_add_u32 v{t}, v{t+5}\n    s_mov_b64 exec, -1\n    s_add_u32 s{sTgt}, s{sTgt}, 4", "dsw_op", [t, t + 5], [])]
def poll():
    t = T0; l = lab("p")
    return [Ins(f"{l}:\n    ds_read_b32 v{t+1}, v{t}\n    s_waitcnt lgkmcnt(0)\n    v_readfirstlane_b32 s{sT+3}, v{t+1}\n"
                f"    s_cmp_ge_u32 s{sT+3}, s{sTgt}\n    s_cbranch_scc0 {l}", "waitall", [t], [t + 1])]

def cstage_setup():
    t = sT
    L = []
    for dst, add in ((sFh, 0), (sFres, 2)):
        L += [f"s_lshl_b32 s{t}, s{sJ}, 1", f"s_add_u32 s{t}, s{t}, s{sWin}", f"s_add_u32 s{t}, s{t}, {add}",
              f"s_cmp_ge_u32 s{t}, {NR}", f"s_cselect_b32 s{t+1}, {NR}, 0", f"s_sub_u32 s{t}, s{t}, s{t+1}", f"s_mul_i32 s{dst}, s{t}, {XS}"]
    L += [f"s_add_u32 s{t}, s{sJ}, 1", f"s_and_b32 s{t}, s{t}, 2", f"s_lshl_b32 s{t}, s{t}, 2", f"s_add_u32 s{sFres}, s{sFres}, s{t}"]
    return L

def dry_exit(): return [f"s_cmp_lg_u32 s{sDry}, 0", "s_cbranch_scc1 Ldry_ret"] if cfg.WARM and MODE[0] == "P" else []
def dry_point(name): return [opaque(dry_exit() + [name + ":"])] if cfg.WARM and MODE[0] == "P" else []

def cs(k):
    if not (cfg.STAMP and cfg.CST): return []
    return [Ins("\n".join("    " + l for l in [f"s_lshl_b32 s95, s{sP}, 3", f"s_add_u32 s95, s95, {30 + k}"] + stamp(17, "s95")), "waitall")]

def csetup():
    L = [S(x) for x in cstage_setup()]
    L += [S(f"s_mov_b32 s{sT}, {XS}")]
    t0, t1, t2 = T0, T0 + 1, T0 + 4
    L += [V(f"v_bfe_u32 v{t2}, v{vL16}, 7, 2"), V(f"v_lshlrev_b32 v{t2}, 1, v{t2}"), V(f"v_mov_b32 v{T0+2}, 0"), V(f"v_mov_b32 v{T0+3}, 0")]
    for k in range(3):
        if k: L += [V(f"v_add_u32 v{t2}, 2, v{t2}")]
        L += [V(f"v_add_u32 v{t0}, s{sWin}, v{t2}"), V(f"v_subrev_u32 v{t1}, {NR}, v{t0}"), V(f"v_min_u32 v{t0}, v{t0}, v{t1}"),
              V(f"v_mad_u32_u24 v{t0}, v{t0}, s{sT}, v{vColB}"), V(f"v_and_b32 v{t1}, 4, v{t2}"), V(f"v_lshl_add_u32 v{cAddr+k}, v{t1}, 1, v{t0}")]
    L += [V(f"v_mov_b32 v{cTa}, v{vTa}"), V(f"v_bfe_u32 v{cIdx}, v{vL16}, 4, 2"), V(f"v_mul_u32_u24 v{cIdx}, 0x5555, v{cIdx}")]
    L += [V(f"v_add_u32 v{cRes}, s{sFres}, v{vRes}"), V(f"v_add_u32 v{cHw}, v{cAddr}, v{vHwA}"), V(f"v_add_u32 v{cHr}, s{sFh}, v{vHr}")]
    L += [S(f"s_lshl_b32 s{sT}, s{sJ}, 11"), V(f"v_add_u32 v{T0+4}, s{sT}, v{vL16}"),
          S(f"s_lshl_b32 s{sT}, s{sGrp}, 2"), S(f"s_add_u32 s{sT}, s{sT}, {CBASE}"), V(f"v_mov_b32 v{T0}, s{sT}"), V(f"v_mov_b32 v{T0+5}, 1")]
    return L

def out_cvt(q):
    X, b = divmod(q, 3); a = acc2(X, b); d = H + 24 * X + 8 * b
    return [V(f"v_cvt_pk_bf16_f32 v{d+i}, v{a+2*i}, v{a+2*i+1}") for i in range(8)]
def out_fin(q):
    X, b = divmod(q, 3); d = H + 24 * X + 8 * b
    return [V(f"v_permlane16_swap_b32 v{d+i}, v{d+4+i}") for i in range(4)] + [store(X, 2 * b), store(X, 2 * b + 1)]

def pk_stats():
    ST, QT = G, G + 4
    L = []
    SA, QA = 56, 64
    for q in range(6):
        for u in range(4):
            y = ACC2 + 16 * q + 4 * u
            if q == 0: L += [pk("add", SA + 2 * u, y, y + 2), pk("mul", QA + 2 * u, y, y), pk("fma", QA + 2 * u, y + 2, y + 2, QA + 2 * u)]
            else:
                for e in (0, 2): L += [pk("add", SA + 2 * u, SA + 2 * u, y + e), pk("fma", QA + 2 * u, y + e, y + e, QA + 2 * u)]
    for u in range(4): L += [V(f"v_add_f32 v{ST+u}, v{SA+2*u}, v{SA+2*u+1}"), V(f"v_add_f32 v{QT+u}, v{QA+2*u}, v{QA+2*u+1}")]
    return L

def conv_first():
    ST, QT = G, G + 4
    L = [S(f"s_setprio {cfg.CPRIO}"), V(f"v_add_u32 v92, {2 * TGRP}, v{cTa}"), V(f"v_add_u32 v93, {4 * TGRP}, v{cTa}")]
    L += unit_reads(0, True) + unit_reads(1, True)
    L += [MFMA("32x32x8", ACC2 + 16 * q, T0 + 2, T0 + 2, None) for q in range(6)]
    for u in range(36):
        buf = cBuf[u % 2]
        if u == 18: L += dry_point("Ldry0")
        L.append(SM32(ACC2 + 16 * (u % 6), buf + 8, buf, cIdx))
        if u + 2 in (12, 24):
            l = lab("r"); L.append(opaque([f"s_cmp_lg_u32 s{sDry}, 0", f"s_cbranch_scc1 {l}", "s_barrier", f"{l}:"]))
        L += unit_reads(u + 2, True) if u + 2 < 36 else res_reads(3 * (u - 34)) + res_reads(3 * (u - 34) + 1) + res_reads(3 * (u - 34) + 2)
    for k in range(6, 12): L += res_reads(k)
    L += [S(f"s_mov_b32 s{sO+2}, 50331648"), S(f"s_mov_b32 s{sStInc}, {16 * 98304}")]
    L += pk_stats()
    L.append(Ins("s_waitcnt lgkmcnt(0)", "waitall"))
    return L

def cstage():
    NB = cfg.NBUF
    ST, QT = G, G + 4
    L = [COMMENT("previous tile out, convolution")]
    if cfg.CPRIO: L.append(S(f"s_setprio {cfg.CPRIO}"))
    def zero(q): return MFMA("32x32x8", ACC2 + 16 * q, T0 + 2, T0 + 2, None)
    def stat(q):
        o = []
        for e in range(4):
            for u in range(4):
                y = ACC2 + 16 * q + 4 * u + e
                if q == 0 and e == 0: o += [V(f"v_mul_f32 v{QT+u}, v{y}, v{y}")]
                elif q == 0 and e == 1: o += [V(f"v_add_f32 v{ST+u}, v{y-1}, v{y}"), V(f"v_fmac_f32 v{QT+u}, v{y}, v{y}")]
                else: o += [V(f"v_add_f32 v{ST+u}, v{ST+u}, v{y}"), V(f"v_fmac_f32 v{QT+u}, v{y}, v{y}")]
        return o
    L += cs(0) + unit_reads(0) + unit_reads(1)
    c0 = out_cvt(0)
    L += [g2(1, 1, 0)] + c0[:4] + [g2(1, 1, 1)] + c0[4:] + [g2(1, 1, 2), zero(0)]
    nst = 0
    def mid(nst):
        lm = lab("m")
        return opaque([f"s_or_b32 s{sT}, s{sFirst}, s{sDry}", f"s_cbranch_scc1 {lm}"] + bar_lines(f"s_waitcnt vmcnt({nst})") +
                      [f"s_cmp_eq_u32 s{sGrp}, 0", f"s_cbranch_scc0 {lm}"] + [l for gg in wdma_interval() for l in gg] + [f"{lm}:"])
    for u in range(36):
        q, rho = divmod(u, 6); buf = cBuf[u % NB]
        if u == 18: L += dry_point("Ldry1")
        if u == cfg.MIDU: L.append(mid(nst))
        nxt = unit_reads(u + 2) if u + 2 < 36 else res_reads(3 * (u - 34)) + res_reads(3 * (u - 34) + 1) + res_reads(3 * (u - 34) + 2)
        early = 3 if NB == 3 else 0
        if nxt[0].kind == "valu": early += 1
        L += nxt[:early] + [SM32(ACC2 + 16 * q, buf + 8, buf, cIdx)] + nxt[early:]
        st = stat(q - 1) if q and not cfg.PKST else []
        fill = {0: out_fin(q), 1: st[:8], 2: (out_cvt(q + 1) if q < 5 else []), 3: st[8:16] + ([zero(q + 1)] if q < 5 else []), 4: st[16:24], 5: st[24:]}[rho]
        nst += sum(i.kind == "vstore" for i in fill)
        L += fill
    for k in range(6, 12): L += res_reads(k)
    L += [S(f"s_add_u32 s{sStO}, s{sStO}, s{sStInc}"), S(f"s_add_u32 s{sStO2}, s{sStO}, 98304"), S(f"s_mov_b32 s{sO+2}, 50331648"), S(f"s_mov_b32 s{sStInc}, {16 * 98304}")]
    L += cs(1) + (pk_stats() if cfg.PKST else stat(5))
    if MODE[0] == "P": L.append(opaque(dry_exit() + ["Ljoin:"]))
    L += [DSW("ds_write_b64", T0 + 4, ST + 2 * k, 2, f"offset:{PBASE + 1024 * (k >> 1) + 8 * (k & 1)}") for k in range(4)]
    L.append(Ins("", "touch", [r for x in XF for r in R(x, 4)], [], cost=0))
    L += cs(2) + signal() + ([mid(12)] if cfg.MIDU == 36 else []) + poll()
    L += cs(3)
    L += [COMMENT("LayerNorm, exchange of the normalised tile, residual into the accumulators, first GEMM1")]
    dst = {(0, 0): ST, (0, 1): QT, (1, 0): 56, (1, 1): 60, (2, 0): 64, (2, 1): 68, (3, 0): 72, (3, 1): 76}
    for w in range(4):
        for k in range(2): L.append(DSR("ds_read_b128", dst[(w, k)], 4, vL16, f"offset:{PBASE + 2048 * w + 1024 * k}"))
    for k in range(2):
        for u in range(4): L += [V(f"v_add_f32 v{dst[(0,k)]+u}, v{dst[(0,k)]+u}, v{dst[(1,k)]+u}")]
        for u in range(4): L += [V(f"v_add_f32 v{dst[(2,k)]+u}, v{dst[(2,k)]+u}, v{dst[(3,k)]+u}")]
        for u in range(4): L += [V(f"v_add_f32 v{dst[(0,k)]+u}, v{dst[(0,k)]+u}, v{dst[(2,k)]+u}")]
    MN, SQ, SC, SH = 56, 60, 64, 68
    for u in range(4): L += [V(f"v_mul_f32 v{MN+u}, s{sInv96}, v{ST+u}")]
    for u in range(4): L += [V(f"v_mul_f32 v{SQ+u}, v{MN+u}, v{MN+u}")]
    for u in range(4): L += [V(f"v_fma_f32 v{SQ+u}, v{QT+u}, s{sInv96}, -v{SQ+u}")]
    L += [DSR("ds_read_b128", G, 4, vL16, f"offset:{IBASE}"), DSR("ds_read_b128", G + 4, 4, vL16, f"offset:{IBASE + 1024}")]
    for u in range(4): L += [V(f"v_max_f32 v{SQ+u}, 0, v{SQ+u}")]
    for u in range(4): L += [V(f"v_add_f32 v{SQ+u}, s{sEps}, v{SQ+u}")]
    for u in range(4): L += [V(f"v_rsq_f32 v{SQ+u}, v{SQ+u}")]
    for u in range(4): L += [V(f"v_mul_f32 v{SC+u}, s{sKap}, v{SQ+u}")]
    for u in range(4): L += [V(f"v_mul_f32 v{SH+u}, -v{MN+u}, v{SC+u}")]
    L += dry_point("Ldry3")
    if cfg.MIDU == 37: L.append(mid(12))
    if cfg.PKN:
        for q in range(6):
            for u in range(4):
                for e in (0, 2):
                    y = ACC2 + 16 * q + 4 * u + e; o = u & 1
                    L.append(pk("fma", y, y, SC + (u & 2), SH + (u & 2), mods=f" op_sel:[0,{o},{o}] op_sel_hi:[1,{o},{o}]"))
    L += cs(4)
    if cfg.MIDU == 38: L.append(mid(12))
    first_w1 = opaque([f"s_cmp_lg_u32 s{sFirst}, 0", "s_cbranch_scc1 Lw1wait", f"Lw1wait_ret{MODE[0]}:"] + [w_addr()[0].text])
    def ident(q):
        X, b = divmod(q, 3)
        return [MFMA("32x32x16", acc2(X, b), G, XF[6 * X + 2 * b], None), MFMA("32x32x16", acc2(X, b), G + 4, XF[6 * X + 2 * b + 1], acc2(X, b))]
    def cvt(q):
        o = []
        for u in range(4):
            y = ACC2 + 16 * q + 4 * u
            if not cfg.PKN: o += [V(f"v_fma_f32 v{y+e}, v{y+e}, v{SC+u}, v{SH+u}") for e in range(4)]
            o += [V(f"v_cvt_pk_bf16_f32 v{H+12*u+2*q+h}, v{y+2*h}, v{y+2*h+1}") for h in range(2)]
            o += [DSW("ds_write_b64", cHw, H + 12 * u + 2 * q, 2, f"offset:{192 * u + 8 * q}")]
        return o
    for q in range(6):
        c = cvt(q)
        if q >= 1:
            i0, i1 = ident(q - 1); n = len(c)
            c = c[:1] + [i0] + c[1:n // 2] + [i1] + c[n // 2:]
        L += c
    L += cs(5) + signal()
    L += ident(5)
    L.append(first_w1)
    for j in range(6): L += rd_w1(j, 1)
    L += [V(f"v_mov_b32 v{G+4+i}, 0") for i in range(4)]
    L += poll()
    L += cs(6)
    L += [DSR("ds_read_b128", H + 8 * s + 4 * X, 4, cHr, f"offset:{XS * X + 32 * s}") for X in range(2) for s in range(6)]
    L += [g1(0, j) for j in range(6)]
    L.append(Ins("s_waitcnt lgkmcnt(0)", "waitall"))
    L += cs(7)
    if cfg.CPRIO: L.append(S("s_setprio 0"))
    ab = cfg.ABL.split("+")
    if "hw" in ab: L = [i for i in L if not (i.kind == "dsw" and cHw in i.rd)]
    if "pk" in ab: L = [i for i in L if i.kind != "pk32"]
    if "brd" in ab: L = [i for i in L if not (i.text.startswith("ds_read_b64") and i.rd & set(R(cAddr, 3)))]
    if "sm" in ab: L = [i for i in L if "smfmac" not in i.text]
    if "st" in ab: L = [i for i in L if i.kind != "vstore"]
    if "unpk" in ab:
        out = []
        for i in L:
            if i.kind != "pk32": out.append(i); continue
            m = re.match(r"v_pk_(\w+)_f32 (.*?)( op_sel.*)?$", i.text); regs = [int(x) for x in re.findall(r"v\[(\d+):", m.group(2))]
            o = 1 if m.group(3) and "op_sel:[0,1" in m.group(3) else 0
            for h in range(2):
                r = [regs[0] + h, regs[1] + h] + [(x + o if m.group(3) else x + h) for x in regs[2:]]
                out.append(V(f"v_{m.group(1)}_f32 " + ", ".join(f"v{x}" for x in r)))
        L = out
    return L

def epilogue(with_stores):
    L = [COMMENT("epilogue: last GEMM2 k-step, convert")]
    att = [[g2(1, 1, b)] for b in range(3)]
    def cv(X, t):
        a = acc2(X, t >> 1) + 8 * (t & 1); d = H + 24 * X + 4 * t
        return [V(f"v_cvt_pk_bf16_f32 v{d+i}, v{a+2*i}, v{a+2*i+1}") for i in range(4)]
    def fin(X, u):
        d = H + 24 * X + 8 * u
        o = [V(f"v_permlane16_swap_b32 v{d+i}, v{d+4+i}") for i in range(4)] if cfg.S64 else []
        return o + ([store(X, 2 * u), store(X, 2 * u + 1)] if with_stores else [])
    seq = [(X, u) for X in range(2) for u in range(3)]
    body = []
    for k, (X, u) in enumerate(seq):
        body.append(cv(X, 2 * u) + cv(X, 2 * u + 1) + (fin(*seq[k - 1]) if k else []))
    first = body[0] + body[1] + body[2]
    L += first[:2] + interleave(first[2:], att, 0.0, 0.5)
    L += body[3] + body[4] + body[5] + fin(*seq[5])
    return L

def wparams(mode, first):
    P = []; a = P.append
    if mode == "P":
        a(f"s_mov_b32 s{sW}, s6"); a(f"s_and_b32 s{sW+1}, s7, 0xffff"); a(f"s_mov_b32 s{sW+2}, {12 * WSET}"); a(f"s_mov_b32 s{sW+3}, 0x20000")
        a(f"s_mov_b32 s{sWstep}, {WSET}"); a(f"s_mov_b32 s{sWlim}, {12 * WSET}"); a(f"s_mov_b32 s{sWins}, 1024"); a(f"s_mov_b32 s{sWbase}, s{sJ3k}")
        a(f"s_mov_b32 s{sWsrc}, {first * WSET}"); a(f"v_mov_b32 v{vDMA}, v{vL16}")
        return P
    a(f"s_cmp_lt_u32 s{sJ}, 2"); a(f"s_cselect_b32 s{sW}, s10, s12"); a(f"s_cselect_b32 s{sW+1}, s11, s13")
    a(f"s_cselect_b32 s{sWstep}, 64, 6144"); a(f"s_mov_b32 s{sWins}, 1024")
    a(f"s_cselect_b32 s{sWins}, 12288, s{sWins}"); a(f"s_cselect_b32 s{sWsrc}, {first + 1}, {first}"); a(f"s_mul_i32 s{sWsrc}, s{sWsrc}, s{sWstep}"); a(f"s_mul_i32 s{sWlim}, s{sWstep}, 12")
    a(f"s_and_b32 s{sW+1}, s{sW+1}, 0xffff"); a(f"s_mov_b32 s{sW+2}, 73728"); a(f"s_mov_b32 s{sW+3}, 0x20000")
    a(f"s_and_b32 s{sT+3}, s{sJ}, 1"); a(f"s_mul_i32 s{sT+3}, s{sT+3}, 3"); a(f"s_mul_i32 s{sWbase}, s{sT+3}, s{sWins}")
    a(f"v_lshrrev_b32 v20, 6, v{vL16}"); a("v_mul_u32_u24 v20, 768, v20"); a(f"v_and_b32 v21, 48, v{vL16}"); a("v_add_u32 v20, v20, v21")
    a(f"s_cmp_lt_u32 s{sJ}, 2"); a("s_cselect_b64 vcc, -1, 0"); a(f"v_cndmask_b32 v{vDMA}, v{vL16}, v20, vcc")
    return P

def prologue():
    P = []
    a = P.append
    a(f"s_cmp_ge_u32 s2, 256"); a("s_cbranch_scc1 Lend")
    if cfg.STAMP: a("s_memtime s[92:93]"); a("s_load_dwordx2 s[94:95], s[0:1], 56")
    if cfg.DBG or cfg.ENC or cfg.THR: a("s_memtime s[92:93]"); a("s_memrealtime s[94:95]")
    a("s_load_dwordx8 s[4:11], s[0:1], 0"); a("s_load_dwordx4 s[12:15], s[0:1], 32"); a("s_load_dwordx4 s[56:59], s[0:1], 48")
    a("v_lshrrev_b32 v16, 6, v0"); a("v_and_b32 v17, 63, v0")
    a(f"v_readfirstlane_b32 s{sT}, v16")
    if cfg.WARM:
        a("s_getpc_b64 s[60:61]"); a("v_lshlrev_b32 v38, 6, v0"); a("v_min_u32 v38, CODE_LAST, v38")
        a("global_load_dword v39, v38, s[60:61]")
    a(f"s_and_b32 s{sT+1}, s2, 7"); a(f"s_lshl_b32 s{sT+1}, s{sT+1}, 5"); a(f"s_lshr_b32 s{sT+2}, s2, 3"); a(f"s_add_u32 s{sT+1}, s{sT+1}, s{sT+2}")
    a(f"s_lshr_b32 s{sTy}, s{sT+1}, 4"); a(f"s_and_b32 s{sTx}, s{sT+1}, 15")
    a(f"s_lshr_b32 s{sGrp}, s{sT}, 2"); a(f"s_and_b32 s{sJ}, s{sT}, 3"); a(f"s_mov_b32 s{sXrow}, s{sT}")
    a(f"s_mul_i32 s{sJ3k}, s{sJ}, 3072"); a(f"s_movk_i32 s{s1k}, 1024")
    a(f"s_mov_b32 s{sEx48}, -1"); a(f"s_mov_b32 s{sEx48+1}, 0xffff")
    a(f"v_lshlrev_b32 v{vL16}, 4, v17")
    a(f"s_cmp_eq_u32 s{sTx}, 0"); a(f"s_cselect_b32 s{sAdjL}, 0, 384"); a(f"s_cselect_b32 s{sT+3}, 384, 0"); a(f"s_cselect_b32 s{sT+4}, 24, 0")
    a(f"v_subrev_u32 v{vOffL}, s{sT+3}, v{vL16}"); a(f"v_cmp_le_u32 vcc, s{sT+4}, v17"); a("s_nop 1")
    a(f"v_cndmask_b32 v{vOffL}, 2.0, v{vOffL}, vcc")
    a(f"s_cmp_eq_u32 s{sTx}, 15"); a(f"s_cselect_b32 s{sT+4}, 24, 64"); a(f"v_cmp_gt_u32 vcc, s{sT+4}, v17"); a("s_nop 1")
    a(f"v_cndmask_b32 v{vOffR}, 2.0, v{vL16}, vcc")
    a("v_mul_u32_u24 v18, 683, v0"); a("v_lshrrev_b32 v18, 16, v18")
    a("v_mul_u32_u24 v19, 96, v18"); a("v_sub_u32 v19, v0, v19")
    a("v_mul_u32_u24 v20, 960, v18"); a("v_lshl_add_u32 v20, v19, 1, v20")
    a("v_lshlrev_b32 v21, 1, v19")
    P += row_setup()
    a("s_waitcnt lgkmcnt(0)")
    if cfg.STAMP: a("s_memtime s[96:97]"); a("s_memrealtime s[98:99]"); a("s_waitcnt lgkmcnt(0)")
    for (d, p, n) in ((sX, 4, 50331648), (28, 8, 4800), (32, 6, 192), (sO, 14, 0)):
        a(f"s_mov_b32 s{d}, s{p}"); a(f"s_and_b32 s{d+1}, s{p+1}, 0xffff"); a(f"s_mov_b32 s{d+2}, {n}"); a(f"s_mov_b32 s{d+3}, 0x20000")
    for j in range(5): a(f"buffer_load_ushort v{24+j}, v20, s[28:31], 0 offen offset:{192*j}")
    a("buffer_load_ushort v29, v21, s[32:35], 0 offen")
    a("s_mov_b64 s[4:5], s[56:57]"); a("s_mov_b64 s[6:7], s[58:59]")
    a(f"s_cmp_eq_u32 s{sXrow}, 3"); a(f"s_cselect_b32 s{sFrag}, s2, {NPROD}")
    a("v_mov_b32 v48, 0"); a(f"v_lshlrev_b32 v49, 2, v17")
    a(f"s_cmp_lt_u32 s{sFrag}, {NPROD}"); a("s_cbranch_scc0 Lprep_noload")
    a(f"s_mul_i32 s{sT+2}, s{sFrag}, 21846"); a(f"s_lshr_b32 s{sT+2}, s{sT+2}, 16"); a(f"s_mul_i32 s{sT+3}, s{sT+2}, 3"); a(f"s_sub_u32 s{sT+6}, s{sFrag}, s{sT+3}")
    a("s_mov_b32 s28, s10"); a("s_and_b32 s29, s11, 0xffff"); a("s_mov_b32 s30, 73728"); a("s_mov_b32 s31, 0x20000")
    a("s_mov_b32 s32, s12"); a("s_and_b32 s33, s13, 0xffff"); a("s_mov_b32 s34, 73728"); a("s_mov_b32 s35, 0x20000")
    a(f"s_add_u32 s{sT+3}, s{sT+2}, 1"); a(f"s_cmp_eq_u32 s{sT+3}, 12"); a(f"s_cselect_b32 s{sT+3}, 0, s{sT+3}"); a(f"s_lshl_b32 s{sT+3}, s{sT+3}, 6")
    a(f"s_mul_i32 s{sT+4}, s{sT+2}, 6144")
    a("v_lshrrev_b32 v50, 5, v17"); a("v_and_b32 v51, 31, v17")
    a("v_mul_u32_u24 v52, 6144, v50"); a("v_lshl_add_u32 v52, v51, 1, v52"); a("v_add_u32 v53, 3072, v52")
    a("v_mul_u32_u24 v54, 768, v50"); a("v_and_b32 v50, 19, v51"); a("v_lshl_add_u32 v54, v50, 1, v54")
    a("v_and_b32 v50, 4, v51"); a("v_lshl_add_u32 v54, v50, 2, v54"); a("v_and_b32 v50, 8, v51"); a("v_add_u32 v54, v54, v50")
    def ld(q, r):
        if q < 6:
            a(f"s_add_u32 s{sT+5}, s{sT+3}, {q * 12288}")
            for i in range(8): a(f"buffer_load_ushort v{r+i}, v{52 + i // 4}, s[28:31], s{sT+5} offen offset:{768 * (i & 3)}")
        else:
            sp, bb = divmod(q - 6, 3)
            a(f"s_add_u32 s{sT+5}, s{sT+4}, {sp * 3072 + bb * 64}")
            for i in range(8): a(f"buffer_load_ushort v{r+i}, v54, s[32:35], s{sT+5} offen offset:{192 * (i & 3) + 1536 * (i >> 2)}")
    def cv(q, r, mx):
        for i in range(0, 8, 2): a(f"v_and_b32 v50, 0x7fff, v{r+i}"); a(f"v_and_b32 v51, 0x7fff, v{r+i+1}"); a(f"v_max3_u32 v{mx}, v{mx}, v50, v51")
        if q < 6:
            for i in range(4): a(f"v_lshl_or_b32 v{r+i}, v{r+1+2*i}, 16, v{r+2*i}")
        else:
            for i in range(8): a(f"v_lshlrev_b32 v{r+i}, 16, v{r+i}")
            for i in range(4): a(f"v_cvt_pk_f16_f32 v{r+i}, v{r+2*i}, v{r+1+2*i}")
    a(f"s_mov_b32 s{sThird}, s{sT+6}")
    for third in range(3):
        if third < 2: a(f"s_cmp_eq_u32 s{sT+6}, {third}"); a(f"s_cbranch_scc0 Lprep_t{third + 1}")
        for i in range(4): ld(4 * third + i, 64 + 8 * i)
        if third < 2: a("s_branch Lprep_noload"); a(f"Lprep_t{third + 1}:")
    def prep_convert():
        a(f"s_cmp_lt_u32 s{sFrag}, {NPROD}"); a("s_cbranch_scc0 Lprep_nocv")
        a("v_mov_b32 v56, 0"); a("v_mov_b32 v57, 0"); a("s_waitcnt vmcnt(9)")
        for third in range(3):
            if third < 2: a(f"s_cmp_eq_u32 s{sThird}, {third}"); a(f"s_cbranch_scc0 Lprep_c{third + 1}")
            if third != 1: a(f"v_mov_b32 v{57 if third == 0 else 56}, 0x3a80")
            for i in range(4): cv(4 * third + i, 64 + 8 * i, 56 if 4 * third + i < 6 else 57)
            if third < 2: a("s_branch Lprep_st"); a(f"Lprep_c{third + 1}:")
        a("Lprep_st:")
        a("s_mov_b32 s28, s6"); a("s_and_b32 s29, s7, 0xffff"); a(f"s_mov_b32 s30, {12 * WSET}"); a("s_mov_b32 s31, 0x20000"); a(f"s_lshl_b32 s{sT+2}, s{sFrag}, 12")
        for i in range(4): a(f"buffer_store_dwordx4 v[{64+8*i}:{67+8*i}], v{vL16}, s[28:31], s{sT+2} offen offset:{1024 * i} sc0 sc1")
        a("v_max_u32 v50, v56, v57"); a("v_cmp_lt_u32 vcc, 0x4100, v50"); a("s_cmp_lg_u64 vcc, 0"); a(f"s_cselect_b32 s{sT+4}, 3, 1")
        a("v_cmp_le_u32 vcc, 0x3a80, v56"); a("s_cmp_lg_u64 vcc, 0"); a(f"s_cselect_b32 s{sT+5}, 4, 0"); a(f"s_or_b32 s{sT+4}, s{sT+4}, s{sT+5}")
        a("v_cmp_le_u32 vcc, 0x3a80, v57"); a("s_cmp_lg_u64 vcc, 0"); a(f"s_cselect_b32 s{sT+5}, 8, 0"); a(f"s_or_b32 s{sT+4}, s{sT+4}, s{sT+5}")
        a(f"v_mov_b32 v48, s{sT+4}"); a("s_branch Ldry_skip")
        a("Lprep_nocv:")
    a("Lprep_noload:")
    if cfg.CLS: a(f"s_cmp_ge_u32 s2, {cfg.CLS}"); a("s_cbranch_scc1 Lrow_late")
    a(f"s_mov_b64 exec, s[{sEx48}:{sEx48+1}]")
    for g in row_loads(): P += g
    a("s_mov_b64 exec, -1")
    if cfg.CLS: a("Lrow_late:")
    a("s_mov_b32 s32, s4"); a("s_and_b32 s33, s5, 0xffff"); a("s_mov_b32 s34, 256"); a("s_mov_b32 s35, 0x20000")
    P += wparams("P", 1)
    assert cfg.WLATE
    if cfg.STAMP: a("s_memtime s[100:101]"); a("s_waitcnt lgkmcnt(0)")
    a(f"s_mov_b32 s{sA16}, {A_imm:#x}"); a(f"s_mov_b32 s{sK16}, {K_imm:#x}")
    a(f"s_mov_b32 s{sInv96}, {f32bits(1/96):#x}"); a(f"s_mov_b32 s{sEps}, {f32bits(1e-5):#x}"); a(f"s_mov_b32 s{sKap}, {f32bits(kap_use):#x}")
    D = cfg.D
    a(f"s_lshl_b32 s{sT}, s{sTy}, 5"); a(f"s_lshl_b32 s{sT+1}, s{sGrp}, 3"); a(f"s_add_u32 s{sT}, s{sT}, s{sT+1}"); a(f"s_lshl_b32 s{sT+1}, s{sJ}, 1")
    a(f"s_add_u32 s{sT}, s{sT}, s{sT+1}"); a(f"s_mul_i32 s{sT}, s{sT}, 98304"); a(f"s_mul_i32 s{sT+1}, s{sTx}, 6144"); a(f"s_add_u32 s{sStO}, s{sT}, s{sT+1}")
    a(f"s_mov_b32 s{sDry+1}, s{sStO}")
    def addresses():
        a(f"v_lshrrev_b32 v37, 4, v{vL16}")
        a("v_and_b32 v30, 7, v37"); a("v_lshrrev_b32 v31, 5, v37"); a("v_bfe_u32 v32, v37, 4, 1")
        a(f"s_mul_i32 s{sT}, s{sJ}, 48"); a(f"s_add_u32 s{sT}, s{sT}, {XBASE}")
        a("v_mul_u32_u24 v33, 784, v30"); a("v_mul_u32_u24 v34, 384, v31"); a(f"v_add3_u32 v{vColB}, v33, v34, s{sT}")
        a(f"v_mul_u32_u24 v33, {XS - 384}, v31"); a("v_lshlrev_b32 v34, 3, v32"); a(f"v_sub_u32 v{vHwA}, v33, v34")
        a("v_and_b32 v35, 31, v37"); a("v_lshlrev_b32 v36, 4, v31")
        a(f"v_mul_u32_u24 v33, 192, v35"); a(f"v_add_u32 v{vSt}, v33, v36")
        a("v_lshrrev_b32 v33, 2, v35"); a(f"v_lshl_add_u32 v33, v33, 4, v{vSt}"); a(f"v_add_u32 v{vHr}, {XBASE}, v33")
        a("v_add_u32 v33, 2, v35"); a("v_lshrrev_b32 v33, 2, v33"); a(f"v_lshl_add_u32 v33, v33, 4, v{vSt}"); a(f"v_add_u32 v{vRes}, {XBASE + 384}, v33")
        if cfg.S64:
            a("v_and_b32 v33, 15, v37"); a("v_mul_u32_u24 v33, 192, v33"); a("v_lshl_add_u32 v33, v32, 5, v33"); a(f"v_add_u32 v{vSt}, v33, v36")
        a("v_and_b32 v33, 3, v37"); a("v_bfe_u32 v34, v37, 2, 2")
        a("v_and_b32 v35, 1, v37"); a("v_mul_u32_u24 v35, 400, v35"); a("v_bfe_u32 v36, v37, 1, 1"); a("v_mul_u32_u24 v36, 192, v36"); a("v_add_u32 v35, v35, v36")
        a("v_bfe_u32 v36, v37, 2, 1"); a("v_lshlrev_b32 v36, 5, v36"); a("v_sub_u32 v35, v35, v36")
        a("v_bfe_u32 v36, v37, 3, 2"); a("v_lshlrev_b32 v36, 2, v36"); a("v_sub_u32 v35, v35, v36")
        a(f"s_mul_i32 s{sT}, s{sJ}, {6 * TGRP}"); a(f"s_add_u32 s{sT}, s{sT}, {TBASE}")
        a("v_lshl_add_u32 v35, v31, 4, v35"); a(f"v_add_u32 v{vTa}, s{sT}, v35")
        a("v_lshl_add_u32 v35, v31, 3, v34"); a("v_lshlrev_b32 v35, 6, v35"); a("v_lshl_add_u32 v35, v32, 5, v35"); a(f"v_lshl_add_u32 v{vW1b}, v33, 3, v35")
        a("v_lshl_add_u32 v35, v31, 2, v34"); a("v_mul_u32_u24 v35, 192, v35"); a("v_lshl_add_u32 v35, v32, 5, v35")
        a("v_and_b32 v36, 1, v37"); a("v_lshl_add_u32 v35, v36, 4, v35"); a("v_bfe_u32 v36, v37, 1, 1"); a(f"v_lshl_add_u32 v{vW2b}, v36, 3, v35")
    def enter(targets, ret=0, keep=False):
        a(f"s_mov_b32 s{sDry+3}, {ret}"); a(f"s_mov_b32 s{sSave}, s{sRing}"); a(f"s_mov_b32 s{sSave+1}, s{sSig}")
        a(f"s_mov_b32 s{sDry}, 1"); a(f"s_mov_b32 s{sFirst}, 0"); a(f"s_mov_b32 s{sCnt}, 1"); a(f"s_mov_b32 s{sT+3}, -1"); a(f"s_mov_b32 s{sTgt}, 0")
        a(f"s_mov_b32 s{sDry+2}, s{sWsrc}"); a("s_waitcnt lgkmcnt(0)")
        a("s_setvskip -1, 0")
        for k, t in enumerate(targets[:3]): a(f"s_cmp_eq_u32 s{sJ}, {k}"); a(f"s_cbranch_scc1 {t}")
        a(f"s_branch {targets[3]}")
    def init_state():
        a(f"s_mov_b32 s{sXM}, 0"); a(f"s_mov_b32 s{sRing}, {WBASE}")
        a(f"s_mov_b32 s{sSig}, 1"); a(f"s_mov_b32 s{sP}, 0"); a(f"s_xor_b32 s{sFirst}, s{sGrp}, 1"); a(f"s_lshl_b32 s{sWin}, s{sGrp}, 3")
        a(f"s_mov_b32 s{sStInc}, 0"); a(f"s_mov_b32 s{sStO}, s{sDry+1}"); a(f"s_add_u32 s{sStO2}, s{sStO}, 98304"); a(f"s_mov_b32 s{sTgt}, 0")
        a(f"s_mov_b32 s{sO+2}, 0"); a(f"s_mov_b32 s{sDry}, 0")
    init_state()
    a(f"v_mov_b32 v{vSt}, 0")
    a(f"s_cmp_eq_u32 s{sGrp}, 0"); a("s_cbranch_scc0 Ldry_skip")
    addresses()
    a("v_bfe_u32 v35, v37, 3, 1"); a("v_lshl_add_u32 v35, v35, 2, v33")
    a("v_and_b32 v36, 1, v35"); a("v_lshlrev_b32 v36, 4, v36"); a("v_mov_b32 v38, 0x3f80"); a("v_lshlrev_b32 v36, v36, v38")
    a("v_lshrrev_b32 v35, 1, v35"); a("v_lshl_add_u32 v35, v32, 2, v35")
    a("v_bfe_u32 v38, v37, 2, 1"); a("v_cmp_eq_u32 vcc, v38, v31"); a("s_nop 1"); a("v_cndmask_b32 v35, 8, v35, vcc")
    for d in range(8):
        a(f"v_cmp_eq_u32 vcc, {d}, v35"); a("s_nop 1"); a(f"v_cndmask_b32 v{40+d}, 0, v36, vcc")
    a(f"ds_write_b128 v{vL16}, v[40:43] offset:{IBASE}"); a(f"ds_write_b128 v{vL16}, v[44:47] offset:{IBASE + 1024}")
    prep_convert()
    if cfg.WARM:
        enter(["Lc1", "Ldry0", "Ljoin", "Ldry3"])
        a("Ldry_ret:"); a("s_setvskip 0, 0"); a("s_mov_b64 exec, -1"); a("s_setprio 0"); a(f"s_mov_b32 s{sWsrc}, s{sDry+2}")
        init_state()
        a(f"s_mov_b32 s{sRing}, s{sSave}"); a(f"s_mov_b32 s{sSig}, s{sSave+1}")
        for k, n in ((1, "Ldry_B"), (2, "Ldry_B2"), (3, "Ldry_B3")) + (((4, "Ldry_A4"),) if cfg.LAST else ()): a(f"s_cmp_eq_u32 s{sDry+3}, {k}"); a(f"s_cbranch_scc1 {n}")
    a("Ldry_skip:")
    if cfg.CLS:
        a(f"s_cmp_ge_u32 s2, {cfg.CLS}"); a("s_cbranch_scc0 Lrow_done"); a("s_waitcnt vmcnt(0)")
        a(f"s_mov_b64 exec, s[{sEx48}:{sEx48+1}]")
        for g in row_loads(): P += g
        a("s_mov_b64 exec, -1"); a("Lrow_done:")
    a("s_waitcnt vmcnt(9)")
    a("v_cmp_eq_u32 vcc, 2, v18"); a("v_lshlrev_b32 v29, 16, v29"); a("s_nop 0"); a("v_cndmask_b32 v29, 0, v29, vcc"); a("v_or_b32 v26, v26, v29")
    a("v_mov_b32 v29, 0"); a("v_mov_b32 v30, 0"); a("v_mov_b32 v31, 0")
    a(f"v_lshrrev_b32 v33, 2, v19"); a(f"v_mul_u32_u24 v33, {TGRP}, v33"); a("v_lshl_add_u32 v33, v18, 5, v33")
    a("v_and_b32 v34, 1, v19"); a("v_mul_u32_u24 v34, 400, v34"); a("v_bfe_u32 v35, v19, 1, 1"); a("v_mul_u32_u24 v35, 192, v35"); a("v_add3_u32 v33, v33, v34, v35")
    a("v_cmp_gt_u32 vcc, 480, v0"); a("s_and_saveexec_b64 s[72:73], vcc")
    a(f"ds_write_b128 v33, v[24:27] offset:{TBASE}"); a(f"ds_write_b128 v33, v[28:31] offset:{TBASE + 16}")
    a("s_mov_b64 exec, -1")
    a("v_mov_b32 v28, 0")
    a("v_cmp_eq_u32 vcc, 4, v18"); a("s_and_saveexec_b64 s[72:73], vcc")
    a(f"ds_write_b128 v33, v[28:31] offset:{TBASE + 32}"); a(f"ds_write_b128 v33, v[28:31] offset:{TBASE + 48}")
    a("v_and_b32 v34, 3, v19"); a("v_cmp_eq_u32 vcc, 2, v34"); a("s_and_b64 exec, exec, vcc")
    a(f"ds_write_b128 v33, v[28:31] offset:{TBASE + 64}")
    a("s_mov_b64 exec, -1")
    a("v_mov_b32 v33, 0")
    for o in (0, 16, 32): a(f"ds_write_b128 v33, v[28:31] offset:{TPAD + o}")
    a(f"ds_write_b128 v33, v[28:31] offset:{CBASE}")
    if cfg.STAMP:
        a("v_mov_b32 v16, 0"); a("v_mov_b32 v17, 0"); a("v_writelane_b32 v16, s92, 60"); a("v_writelane_b32 v16, s96, 56")
        a("v_writelane_b32 v16, s98, 54"); a("v_writelane_b32 v16, s100, 57")
        P += stamp(16, 61)
        a(f"s_mov_b32 s96, {cfg.SMASK & 0xffffffff:#x}"); a(f"s_mov_b32 s97, {(cfg.SMASK >> 32) & 0xffffffff:#x}")
    a(f"s_cmp_eq_u32 s{sGrp}, 0"); a("s_cbranch_scc0 Lpro_w4")
    P += [i.text for i in csetup()]
    a("s_waitcnt vmcnt(0) lgkmcnt(0)"); P += stamp(16, 58)
    a(f"s_cmp_lt_u32 s{sFrag}, {NPROD}"); a("s_cbranch_scc0 Lflag_done"); a(f"s_lshl_b32 s{sT+2}, s{sFrag}, 2")
    a("s_mov_b64 exec, 1"); a(f"buffer_store_dword v48, v49, s[32:35], s{sT+2} offen sc0 sc1"); a("s_mov_b64 exec, -1")
    P += stamp(16, 57); a("Lflag_done:")
    a(f"s_mov_b32 s{sWsrc}, {8 * WSET}"); a(f"s_lshl_b32 s{sXrow}, s{sJ}, 1"); a(f"s_add_u32 s{sXrow}, s{sXrow}, 20")
    a("s_barrier")
    P += stamp(17, 58); a("s_branch Lc1")
    a("Lpro_w4:")
    a(f"s_mov_b64 exec, s[{sEx48}:{sEx48+1}]")
    a(f"s_and_b32 s{sXrow}, s{sJ}, 1"); a(f"s_add_u32 s{sXrow}, s{sXrow}, 8")
    for r in range(2):
        P += row_setup()
        a(f"s_cmp_lt_u32 s{sJ}, 2"); a(f"s_cbranch_scc0 Lpro_h{r}")
        for g in row_loads()[:5]: P += g
        a(f"s_branch Lpro_g{r}"); a(f"Lpro_h{r}:")
        for g in row_loads()[5:] + row_loads()[8:]: P += g
        a(f"Lpro_g{r}:"); a(f"s_add_u32 s{sXrow}, s{sXrow}, 2")
        if r == 0: a("s_waitcnt vmcnt(5) lgkmcnt(0)"); P += stamp(16, 58); a("s_barrier")
    a("s_mov_b64 exec, -1")
    a("s_waitcnt vmcnt(5)"); a("s_barrier"); a("s_waitcnt vmcnt(0)"); a("s_barrier")
    P += stamp(17, 50)
    addresses()
    if cfg.WARM:
        enter(["Lbody2P", "Lq12", "Lhalf2", "Lq32"], 1); a("Ldry_B:")
    a(f"v_mov_b32 v18, {CBASE + 8}"); a(f"s_cmp_eq_u32 s{sJ}, 0"); a("s_cbranch_scc0 Lmode_wait")
    a(f"v_lshrrev_b32 v20, 2, v{vL16}"); a(f"s_mov_b32 s{sT}, {cfg.POLLS}"); a(f"s_mov_b32 s{sMode}, 2")
    P += stamp(17, 51)
    a("Lpoll_g:"); a("buffer_load_dword v19, v20, s[32:35], 0 offen sc1"); a("s_waitcnt vmcnt(0)")
    a("v_cmp_ne_u32 vcc, 0, v19"); a(f"s_bcnt1_i32_b64 s{sT+2}, vcc"); a(f"s_cmp_eq_u32 s{sT+2}, {NPROD}"); a("s_cbranch_scc1 Lpoll_ok")
    a("s_sleep 12"); a(f"s_sub_u32 s{sT}, s{sT}, 1"); a(f"s_cmp_lg_u32 s{sT}, 0"); a("s_cbranch_scc1 Lpoll_g"); a("s_branch Lmode_set")
    a("Lpoll_ok:")
    P += stamp(17, 52)
    if cfg.STAMP: a(f"v_writelane_b32 v17, s{sT}, 53")
    a("v_cmp_eq_u32 vcc, 13, v19"); a(f"s_bcnt1_i32_b64 s{sT+2}, vcc"); a(f"s_cmp_eq_u32 s{sT+2}, {NPROD}"); a("s_cbranch_scc0 Lmode_set")
    a(f"s_mov_b32 s{sMode}, {cfg.FORCE or 1}")
    a("Lmode_set:"); a(f"v_mov_b32 v19, s{sMode}"); a("ds_write_b32 v18, v19")
    a("Lmode_wait:"); a("ds_read_b32 v19, v18"); a("s_waitcnt lgkmcnt(0)"); a(f"v_readfirstlane_b32 s{sMode}, v19")
    a(f"s_cmp_eq_u32 s{sMode}, 0"); a("s_cbranch_scc1 Lmode_wait")
    P += stamp(16, 59)
    a(f"s_cmp_eq_u32 s{sMode}, 1"); a("s_cbranch_scc1 Lmode_P")
    P += wparams("R", 1)
    a("Lmode_P:")
    for q in range(1, 4):
        for g in wdma_groups(f"{WBASE + q * WSET}"): P += g
    if cfg.WARM:
        enter(["Lbody1P", "Lq11", "Lhalf1", "Lq31"], 2); a("Ldry_B2:")
    a("s_waitcnt vmcnt(6)"); a("s_barrier")
    assert D == 3
    P += bar_lines()
    for g in wdma_interval(): P += g
    a(f"s_lshl_b32 s{sXrow}, s{sJ}, 1"); a(f"s_add_u32 s{sXrow}, s{sXrow}, 12"); a(f"s_mov_b64 exec, s[{sEx48}:{sEx48+1}]")
    P += row_dma_lines(); a(f"s_add_u32 s{sXrow}, s{sXrow}, 1")
    P += row_dma_lines(); a(f"s_add_u32 s{sXrow}, s{sXrow}, 7")
    a("s_mov_b64 exec, -1")
    P += bar_lines("s_waitcnt vmcnt(18)")
    for g in wdma_interval(): P += g
    if cfg.WARM:
        enter(["LconvP", "Ldry1", "Lbody0P", "Lhalf0"], 3); a("Ldry_B3:")
    a(f"s_cmp_eq_u32 s{sMode}, 1"); a("s_cbranch_scc0 LouterR")
    return P

HEADER = """
; kernarg: 0 x, 8 dw_large, 16 dw_small, 24 w1, 32 w2, 40 out, 48 debug, 56 workspace
;
;  - depthwise 5x5 (+1x1 in a spare slot of the centre tap): sparse MFMA 32x32x32, A = banded tap matrix read from an LDS
;    table, one wave per 24 channels; f32 sums; LayerNorm statistics and the normalised tile are exchanged through LDS.
;    registers; weights stream through a 4-set LDS ring.  gelu(v) = v / (1 + exp2(a v + b v^3)), the tanh form exactly.
;  - 36 waves re-lay w1 / w2 into MFMA fragment order in the workspace at the start of the launch (w2 as f16) and report in
;    the GELU output and the second GEMM use f16 (labels ..P); otherwise, or if the reports do not arrive, the workgroup
;    reads the weights as given and keeps the GELU output and second GEMM in bf16 / f32 (labels ..R).
;  - waves that wait at the start walk through the later code with s_setvskip on, only to fill the instruction cache.
"""

def build():
    D = cfg.D
    out = []
    hdr = HEADER.strip("\n").split("\n") + [
           f"; @launch grid=(256,1,1) block=(512,1,1) lds={LDS_BYTES}",
           '.amdgcn_target "amdgcn-amd-amdhsa--gfx950"', ".text", f".globl {KNAME}", ".p2align 8", f".type {KNAME},@function", f"{KNAME}:"]
    out += hdr
    def raw(lines):
        for l in lines: out.append(l if l.endswith(":") or l.startswith(".") else "    " + l)
    raw(prologue())
    for m in "PR":
        MODE[0] = m
        epi0, epi1 = csetup(), epilogue(True)
        cs = cstage()
        bodies = [loop_body(0), loop_body(1), loop_body(2)]
        marks = [LABEL(n) for n in ("@c", "@a1", "@a2", "@b2", "@e0", "@x", "@e1", "@end")]
        lin = [marks[0]] + cs + [marks[1]] + bodies[0] + [marks[2]] + bodies[0] + [marks[3]] + bodies[1] + [marks[4]] + epi0 + [marks[5]] + bodies[2] + [marks[6]] + epi1 + [marks[7]]
        lin, pend = insert_lgkm(lin, cfg.OLD); assert not pend
        lin, _ = fix_hazards(lin)
        idx = [next(k for k, i in enumerate(lin) if i is m) for m in marks]
        cst, a1, a2, b2, e0, n2, e1 = (lin[idx[k] + 1: idx[k + 1]] for k in range(7))
        n1 = sum(states(i) for i in a1 if i.kind == "nop") - sum(states(i) for i in a2 if i.kind == "nop")
        assert [i.text for i in a1 if i.kind != "nop"] == [i.text for i in a2 if i.kind != "nop"]
        if n1 > 0: cst = cst + [Ins(f"s_nop {n1 - 1}", "nop")]
        for path in ([cst, n2, a2, a2, b2, a2, e0, cst, b2, a2, e1], [cst, n2, n2, e0, cst, n2, n2, e1]):
            seq = [i for blk in path for i in blk]
            _, bad = fix_hazards(seq, check_only=True); assert not bad, bad
            assert not check_lgkm(seq)
        def emit(blk):
            for i in blk:
                if i.kind == "touch": continue
                for l in i.text.split("\n"): out.append(l if i.kind in ("label", "opaque", "dsw_op") or l.startswith("    ") or l.endswith(":") else "    " + l)
        if m == "P":
            c1, pend = insert_lgkm(e0 + [LABEL("@")] + conv_first(), cfg.OLD); c1, _ = fix_hazards(c1)
            c1 = c1[[i.text for i in c1].index("@:") + 1:]
            kj = [k for k, i in enumerate(cst) if "Ljoin:" in i.text][0]
            _, bad = fix_hazards(c1 + cst[kj:], check_only=True); assert not bad, bad
            check_lgkm(c1 + cst[kj:])
            raw(["s_branch LouterP", "Lc1:"]); emit(c1); raw(dry_exit() + ["s_branch Ljoin"])
        out.append(f"Louter{m}:")
        emit(e0)
        raw(bar_lines())
        raw([f"s_cmp_eq_u32 s{sGrp}, 0", f"s_cbranch_scc0 Lno_w{m}"] + [l for g in wdma_interval() for l in g] + [f"Lno_w{m}:"])
        out.append(f"Lconv{m}:")
        emit(cst)
        raw(dry_exit())
        raw([f"s_or_b32 s{sT}, s{sGrp}, s{sFirst}", f"s_cbranch_scc0 LloopX{m}",
             f"s_sub_u32 s{sCnt}, 6, s{sP}" if cfg.LAST else f"s_mov_b32 s{sCnt}, 6", f"s_cmp_lg_u32 s{sFirst}, 0", f"s_cselect_b32 s{sCnt}, 2, s{sCnt}", f"s_branch LloopN{m}"])
        tail = [f"s_add_u32 s{sWin}, s{sWin}, 4", f"s_cmp_ge_u32 s{sWin}, {NR}", f"s_cselect_b32 s{sWin}, 0, s{sWin}",
                f"s_add_u32 s{sP}, s{sP}, 1", f"s_cmp_eq_u32 s{sP}, 1", f"s_cbranch_scc1 Louter{m}"]
        raw([".p2align 6", f"LloopX{m}:"]); emit(b2)
        raw(dry_exit() + [f"s_mov_b32 s{sXM}, 1", f"s_cmp_eq_u32 s{sP}, 0", f"s_cselect_b32 s{sCnt}, 1, 5", "s_waitcnt vmcnt(18)", f"s_branch Lnowait0{m}"])
        raw([".p2align 6", f"LloopA{m}:"]); emit(a2)
        raw([f"s_sub_u32 s{sCnt}, s{sCnt}, 1", f"s_cmp_lg_u32 s{sCnt}, 0", f"s_cbranch_scc1 LloopA{m}"] + dry_exit() +
            [f"s_cmp_eq_u32 s{sXM}, 0", f"s_cbranch_scc1 LloopX{m}"] + tail)
        k6 = [k for k, i in enumerate(e1) if i.kind == "vstore"][5] + 1
        raw(bar_lines()); raw([l for g in wdma_interval() for l in g]); emit(e1[:k6])
        raw(bar_lines("s_waitcnt vmcnt(6)")); raw([l for g in wdma_interval() for l in g]); emit(e1[k6:])
        raw(stamp(16, 62))
        raw(bar_lines("s_waitcnt vmcnt(6)")); raw([l for g in wdma_interval() for l in g])
        if cfg.LAST and cfg.WARM and m == "P":
            raw([f"s_mov_b32 s{sDry+3}, 4", f"s_mov_b32 s{sDry}, 1", "s_setvskip -1, 0", f"s_cmp_eq_u32 s{sJ}, 0", "s_cbranch_scc1 Lbody3P", f"s_cmp_eq_u32 s{sJ}, 1", "s_cbranch_scc1 Lq13",
                 f"s_cmp_eq_u32 s{sJ}, 2", "s_cbranch_scc1 Lhalf3", "s_branch Lq33", "Ldry_A4:"])
        raw(bar_lines())
        raw(["s_branch Lfin"])
        raw([".p2align 6", f"LloopN{m}:"]); emit(n2)
        raw([f"s_sub_u32 s{sCnt}, s{sCnt}, 1", f"s_cmp_lg_u32 s{sCnt}, 0", f"s_cbranch_scc1 LloopN{m}"] + dry_exit() + [
             f"s_cmp_lg_u32 s{sFirst}, 0", f"s_mov_b32 s{sFirst}, 0", f"s_mov_b32 s{sCnt}, 2", f"s_cbranch_scc1 LloopA{m}"] + tail)
        if cfg.LAST:
            lb, _ = insert_lgkm(n2 + [LABEL("@")] + last_body(), cfg.OLD); lb, _ = fix_hazards(lb)
            lb = lb[[i.text for i in lb].index("@:") + 1:]
            check_lgkm(n2 + lb)
            emit(lb)
        else:
            out.append(f"Lepi1{m}:")
            emit(e1)
        raw(dry_exit())
        raw(stamp(16, 62))
        raw(["s_branch Lfin"] if m == "P" else [])
        if m == "P": out.append("Lraw:")
    out.append("Lfin:")
    if cfg.STAMP:
        raw(["s_waitcnt vmcnt(0)"] + stamp(16, 63) + ["s_memrealtime s[98:99]", "s_waitcnt lgkmcnt(0)", "v_writelane_b32 v16, s98, 55",
             "s_load_dwordx2 s[94:95], s[0:1], 56", "s_waitcnt lgkmcnt(0)", "s_mov_b32 s28, s94", "s_and_b32 s29, s95, 0xffff", "s_mov_b32 s30, 0x1000000", "s_mov_b32 s31, 0x20000",
             f"s_lshl_b32 s89, s{sGrp}, 2", f"s_add_u32 s89, s89, s{sJ}", "s_lshl_b32 s90, s2, 3", "s_add_u32 s89, s89, s90", "s_lshl_b32 s89, s89, 9", "s_add_u32 s89, s89, 0x100000",
             f"v_lshrrev_b32 v18, 2, v{vL16}", "buffer_store_dword v16, v18, s[28:31], s89 offen", "buffer_store_dword v17, v18, s[28:31], s89 offen offset:256"])
    if cfg.DBG:
        raw(["s_waitcnt vmcnt(0)", "s_memtime s[90:91]", "s_memrealtime s[96:97]", "s_load_dwordx2 s[98:99], s[0:1], 48", "s_waitcnt lgkmcnt(0)",
             "s_sub_u32 s90, s90, s92", "s_sub_u32 s96, s96, s94", "s_mov_b32 s28, s98", "s_and_b32 s29, s99, 0xffff", "s_mov_b32 s30, 64", "s_mov_b32 s31, 0x20000",
             f"s_cmp_eq_u32 s{sGrp}, 1", "s_cbranch_scc0 Lend", f"s_cmp_eq_u32 s{sJ}, 0", "s_cbranch_scc0 Lend",
             "s_lshr_b32 s89, s2, 5", "s_lshl_b32 s89, s89, 3", "s_and_b32 s91, s2, 31", "s_cmp_eq_u32 s91, 0", "s_cbranch_scc0 Lend",
             "v_mov_b32 v16, s90", "v_mov_b32 v17, s96", "v_mov_b32 v18, 0", "s_mov_b64 exec, 1", "buffer_store_dwordx2 v[16:17], v18, s[28:31], s89 offen"])
    if cfg.ENC:
        raw(["s_waitcnt vmcnt(0)", "s_memtime s[90:91]", "s_memrealtime s[96:97]", "s_waitcnt lgkmcnt(0)", "s_sub_u32 s90, s90, s92", "s_sub_u32 s96, s96, s94",
             f"s_cmp_eq_u32 s{sGrp}, 1", "s_cbranch_scc0 Lend", f"s_cmp_eq_u32 s{sJ}, 0", "s_cbranch_scc0 Lend",
             f"v_lshrrev_b32 v18, 3, v{vL16}", f"buffer_load_ushort v19, v18, s[{sO}:{sO+3}], s{sStO} offen sc0 sc1",
             f"v_lshrrev_b32 v20, 4, v{vL16}", "v_and_b32 v21, 7, v20", "v_mul_u32_u24 v21, 3, v21", "v_cmp_gt_u32 vcc, 8, v20", "v_mov_b32 v22, s90", "v_mov_b32 v23, s96",
             "v_cndmask_b32 v22, v23, v22, vcc", "v_lshrrev_b32 v22, v21, v22", "v_and_b32 v22, 7, v22", "s_waitcnt vmcnt(0)", "v_and_b32 v19, 0xfff8, v19", "v_or_b32 v19, v19, v22",
             "s_mov_b64 exec, 0xffff", f"buffer_store_short v19, v18, s[{sO}:{sO+3}], s{sStO} offen sc0 sc1"])
    if cfg.THR:
        raw(["s_waitcnt vmcnt(0)", "s_memrealtime s[96:97]", "s_waitcnt lgkmcnt(0)", "s_sub_u32 s96, s96, s94", f"s_cmp_gt_u32 s96, {cfg.THR}", "s_cbranch_scc0 Lend",
             "v_mov_b32 v18, 0", "v_mov_b32 v19, 0x4000", "s_mov_b64 exec, 1", f"buffer_store_short v19, v18, s[{sO}:{sO+3}], s{sStO} offen sc0 sc1"])
    raw(["Lend:", "s_endpgm"])
    raw(["Lw1wait:", "s_barrier", f"ds_read_b32 v{T0+1}, v{T0} offset:8", "s_waitcnt lgkmcnt(0)", f"v_readfirstlane_b32 s{sMode}, v{T0+1}",
         f"s_cmp_eq_u32 s{sMode}, 1", "s_cbranch_scc1 Lw1wait_retP"] + wparams("R", 8) + ["s_branch Lw1wait_retR"])
    if cfg.ALIGN:
        tmp, npad, nwid = align8([l.replace("CODE_LAST", "0x1000") for l in out], "Lc1", "Lend")
        out = [l.replace("v38, 0x1000", "v38, CODE_LAST") for l in tmp]
        sys.stderr.write(f"align8: {npad} pads, {nwid} widened\n")
    nbytes = sum(insn_sizes([l.replace("CODE_LAST", "0x1000") for l in out])[:out.index("Lraw:")])
    out = [l.replace("CODE_LAST", str(nbytes // 64 * 64 - 128)) for l in out]
    sys.stderr.write(f"hot code bytes {nbytes}\n"); assert nbytes <= 32768 or cfg.STAMP
    out += ['.section .rodata,"a"', ".p2align 6", f".amdhsa_kernel {KNAME}", "  .amdhsa_next_free_vgpr 256", f"  .amdhsa_next_free_sgpr {102 if cfg.STAMP or cfg.DBG or cfg.ENC or cfg.THR else 96}",
            "  .amdhsa_accum_offset 256", "  .amdhsa_group_segment_fixed_size 0", "  .amdhsa_kernarg_size 64", "  .amdhsa_user_sgpr_count 2",
            "  .amdhsa_user_sgpr_kernarg_segment_ptr 1", "  .amdhsa_system_sgpr_workgroup_id_x 1", ".end_amdhsa_kernel"]
    return "\n".join(out) + "\n"

open(sys.argv[1], "w").write(build())
```

```python
import sys, struct, math
import numpy as np, re
from asmlib import *

class Cfg:
    D = 3
    GELU = "B"
    PRIO = 1
    CPRIO = 3
    XF = 'nt'
    OF = 'sc0+sc1'
    WF = 'sc1'
    ALIGN = True
    STAMP = False
    SMASK = -1
    OLD = 200
    PPOS = ''
    CLS = 0
    THR = 0
    ENC = False
    LAST = True
    PKST = 0
    MIDU = 33
    NBUF = 2
    RT = False
    NOINV = False
    FORCE = 0
    POLLS = 300
    S64 = True
    DBG = False
    WARM = True
    HW64 = True
    PBASE = 3
    ABL = ''
    CST = False
    PKS = 0
    PKN = True
    W1G = True
    R2 = False
    NOSTAT = False
    NOCRD = False
    N0 = 15
    WLATE = True
cfg = Cfg()
for a in sys.argv[2:]:
    k, v = a.split("=")
    setattr(cfg, k, type(getattr(cfg, k))(v) if not isinstance(getattr(cfg, k), bool) else v in ("1", "True"))

KNAME = "standalone__modern_conv_block_replknet__vision_kernel"
XS = 7104; NR = 12
TPAD = 0
TBASE = 48
TGRP = 784
IBASE = TBASE + 24 * TGRP
PBASE = IBASE + 2048
CBASE = PBASE + 8192
WBASE = CBASE + 16
WSET = 12288
XBASE = WBASE + 4 * WSET
LDS_BYTES = XBASE + NR * XS
assert LDS_BYTES <= 163840, LDS_BYTES
assert WBASE % 16 == 0 and IBASE % 16 == 0
vColB, vHwA, vRes, vHr, vTa, vSt, vW1b, vW2b, vW1c, vW2c, vDMA, vOffL, vOffR, vL16 = range(1, 15)
T0 = 18
G = 24
W2F = 32
W1F = 56
ACC1 = (80, 96)
H = 112
ACC2 = 160
def acc2(X, b): return ACC2 + 48 * X + 16 * b
cBuf = (56, 68, 80)
cAddr = 104
cTa, cIdx, cRes, cHw, cHr = 107, 108, 109, 110, 111
XF = [32, 36, 40, 44, 48, 52, 92, 96, 100, 80, 84, 88]
sX, sO, sW = 16, 20, 24
sGrp, sJ, sTx, sTy, sSig, sRing, sWsrc, sWstep, sWlim, sWins, sWbase, sP, sCnt = range(36, 49)
sA16, sK16, sStO = 49, 50, 51
sWin, sXrow, sFirst = 63, 64, 65
sXM, sXinc = 66, 67
sExX = 68
sAdjL = 70
sT = 71
sEx48 = 80
sInv96, sEps, sKap = 82, 83, 84
sDry = 56
sFrag, sMode, sThird = 62, 3, 60
sSave = 68
sStO2, sTgt = 52, 53
sFres, sFh = 54, 55
sXo, sXm = 85, 86
sStInc = 87
s1k = 89
sJ3k = 88
RSUM = 2 * WBASE + 2 * WSET

def f32bits(x): return struct.unpack("<I", struct.pack("<f", x))[0]
def f16bits(x): return int(np.float16(x).view(np.uint16))
a_c = -2.0 * math.log2(math.e) * math.sqrt(2.0 / math.pi)
b_c = a_c * 0.044715
kap = -((-b_c) ** (1.0 / 3.0))
if cfg.GELU in ("B",):
    kap_use = float(np.float16(kap))
    A_imm = f16bits(a_c / kap_use) * 0x10001
    K_imm = f16bits(kap_use) * 0x10001
else:
    kap_use = kap
    A_imm = f32bits(a_c / kap)
    K_imm = f32bits(kap)

def fl(s): return ''.join(' ' + w for w in s.split('+') if w)
uid = [0]
MODE = ['P']
NPROD = 36
def lab(p):
    uid[0] += 1
    return f"L{p}_{uid[0]}"

def opaque(lines):
    return Ins("\n".join("    " + l if not l.endswith(":") else l for l in lines), "opaque", cost=0)

def stamp(vreg, lane):
    if not cfg.STAMP: return []
    return ["s_memtime s[90:91]", f"s_mov_b32 m0, {lane}", "s_waitcnt lgkmcnt(0)", f"v_writelane_b32 v{vreg}, s90, m0"]
def cstamp(vreg):
    if not cfg.STAMP: return []
    if cfg.RT:
        if vreg == 16: return []
        return stamp(17, f"s{sSig}") + [x.replace("s_memtime", "s_memrealtime") for x in stamp(16, f"s{sSig}")]
    if cfg.SMASK == -1: return stamp(vreg, f"s{sSig}")
    l = lab("s")
    return [f"s_bitcmp1_b64 s[96:97], s{sSig}", f"s_cbranch_scc0 {l}"] + stamp(vreg, f"s{sSig}") + [f"{l}:"]

def wdma_groups(dst):
    out = []
    for u in range(3):
        g = [f"s_add_u32 m0, {dst}, s{sJ3k}", f"s_add_u32 s{sT+8}, s{sWsrc}, s{sWbase}"] if u == 0 else \
            [f"s_add_u32 m0, m0, s{s1k}", f"s_add_u32 s{sT+8}, s{sT+8}, s{sWins}"]
        g.append(f"buffer_load_dwordx4 v{vDMA}, s[{sW}:{sW+3}], s{sT+8} offen{fl(cfg.WF)} lds")
        if u == 2: g += [f"s_add_u32 s{sWsrc}, s{sWsrc}, s{sWstep}", f"s_cmp_eq_u32 s{sWsrc}, s{sWlim}", f"s_cselect_b32 s{sWsrc}, 0, s{sWsrc}"]
        out.append(g)
    return out
def wdma_interval():
    g = wdma_groups(f"s{sT+7}") + wdma_groups(f"s{sT+7}")
    g[0] = [f"s_sub_u32 s{sT+7}, {RSUM}, s{sRing}"] + g[0]
    g[3] = [f"s_add_u32 s{sT+7}, s{sT+7}, {WSET}"] + g[3]
    return g

def row_setup():
    t0, t1, t2 = sT, sXo, sT + 1
    return [f"s_lshl_b32 s{t0}, s{sTy}, 5", f"s_add_u32 s{t0}, s{t0}, s{sXrow}", f"s_sub_u32 s{t0}, s{t0}, 2",
            f"s_mul_i32 s{t1}, s{t0}, 98304", f"s_mul_i32 s{t2}, s{sTx}, 6144", f"s_add_u32 s{t1}, s{t1}, s{t2}",
            f"s_cmp_lt_u32 s{t0}, 512", f"s_cselect_b32 s{t1}, s{t1}, 0x80000000",
            f"s_cmp_ge_u32 s{sXrow}, 24", f"s_cselect_b32 s{t2}, 24, 0", f"s_sub_u32 s{t0}, s{sXrow}, s{t2}",
            f"s_cmp_ge_u32 s{t0}, 12", f"s_cselect_b32 s{t2}, 12, 0", f"s_sub_u32 s{t0}, s{t0}, s{t2}",
            f"s_and_b32 s{t2}, s{sXrow}, 4", f"s_lshl_b32 s{t2}, s{t2}, 1", f"s_mul_i32 s{t0}, s{t0}, {XS}", f"s_add_u32 s{t0}, s{t0}, s{t2}",
            f"s_add_u32 s{sXm}, s{t0}, {XBASE}"]
def row_loads():
    out = [[f"s_mov_b32 m0, s{sXm}", f"s_sub_u32 s{sT}, s{sXo}, s{sAdjL}", f"buffer_load_dwordx4 v{vOffL}, s[{sX}:{sX+3}], s{sT} offen{fl(cfg.XF)} lds"]]
    for a in range(1, 9):
        out.append([f"s_add_u32 m0, s{sXm}, {784 * a}", f"s_add_u32 s{sT}, s{sXo}, {768 * a - 384}",
                    f"buffer_load_dwordx4 v{vOffR if a == 8 else vL16}, s[{sX}:{sX+3}], s{sT} offen{fl(cfg.XF)} lds"])
    return out
def row_dma_lines(): return row_setup() + [l for g in row_loads() for l in g]

def bar_lines(wait="s_waitcnt vmcnt(0)"):
    L = cstamp(16) + ([wait] if wait else []) + ["s_barrier"] + cstamp(17)
    L += [f"s_sub_u32 s{sRing}, {RSUM}, s{sRing}"]
    if cfg.STAMP: L += [f"s_add_u32 s{sSig}, s{sSig}, 1"]
    return L

def gelu_B(Sr):
    ops = []
    def st(p, k):
        a0 = Sr + 2 * p; a1 = a0 + 1; t = T0 + (p % 2) * 3; u = t + 1; w = t + 2
        return [V(f"v_cvt_pk_f16_f32 v{t}, v{a0}, v{a1}"),
                V(f"v_pk_fma_f16 v{u}, v{t}, v{t}, s{sA16}"),
                V(f"v_pk_mul_f16 v{t}, v{t}, v{u}"),
                V(f"v_exp_f16 v{u}, v{t}"),
                V(f"v_exp_f16_sdwa v{u}, v{t} dst_sel:WORD_1 dst_unused:UNUSED_PRESERVE src0_sel:WORD_1"),
                V(f"v_pk_fma_f16 v{t}, v{u}, s{sK16}, s{sK16}"),
                V(f"v_rcp_f16 v{u}, v{t}"),
                V(f"v_rcp_f16_sdwa v{w}, v{t} dst_sel:DWORD dst_unused:UNUSED_PAD src0_sel:WORD_1"),
                V(f"v_fma_mix_f32 v{u}, v{a0}, v{u}, 0 op_sel_hi:[0,1,0]"),
                V(f"v_fma_mix_f32 v{w}, v{a1}, v{w}, 0 op_sel_hi:[0,1,0]"),
                V(f"v_cvt_pk_bf16_f32 v{G+p}, v{u}, v{w}")][k]
    for q in range(0, 8, 2):
        for k in range(11):
            ops += [st(q, k), st(q + 1, k)]
    return ops

def gelu_A(Sr):
    ops = []
    for q in range(0, 16, 4):
        for k in range(6):
            for e in range(4):
                a = Sr + q + e; r = T0 + e
                ops.append([V(f"v_fma_f32 v{r}, v{a}, v{a}, s{sA16}"), V(f"v_mul_f32 v{r}, v{a}, v{r}"), V(f"v_exp_f32 v{r}, v{r}"),
                            V(f"v_fma_f32 v{r}, v{r}, s{sK16}, s{sK16}"), V(f"v_rcp_f32 v{r}, v{r}"), V(f"v_mul_f32 v{r}, v{a}, v{r}")][k])
        ops += [V(f"v_cvt_pk_bf16_f32 v{G+q//2}, v{T0}, v{T0+1}"), V(f"v_cvt_pk_bf16_f32 v{G+q//2+1}, v{T0+2}, v{T0+3}")]
    return ops
def gelu_C(Sr):
    ops = []
    def st(p, k):
        a0 = Sr + 2 * p; a1 = a0 + 1; t = T0 + (p % 2) * 3; u = t + 1; w = t + 2
        return [V(f"v_cvt_pk_f16_f32 v{w}, v{a0}, v{a1}"),
                V(f"v_pk_fma_f16 v{u}, v{w}, v{w}, s{sA16}"),
                V(f"v_pk_mul_f16 v{t}, v{w}, v{u}"),
                V(f"v_exp_f16 v{u}, v{t}"),
                V(f"v_exp_f16_sdwa v{u}, v{t} dst_sel:WORD_1 dst_unused:UNUSED_PRESERVE src0_sel:WORD_1"),
                V(f"v_pk_fma_f16 v{t}, v{u}, s{sK16}, s{sK16}"),
                V(f"v_rcp_f16 v{u}, v{t}"),
                V(f"v_rcp_f16_sdwa v{u}, v{t} dst_sel:WORD_1 dst_unused:UNUSED_PRESERVE src0_sel:WORD_1"),
                V(f"v_pk_mul_f16 v{G+p}, v{w}, v{u}")][k]
    for q in range(0, 8, 2):
        for k in range(9):
            ops += [st(q, k), st(q + 1, k)]
    return ops
def gelu(Sr): return gelu_C(Sr) if MODE[0] == "P" else gelu_B(Sr)

TR = "ds_read_b64_tr_b16"
def rd_w1(j, c):
    if MODE[0] == "P": return [DSR("ds_read_b128", W1F + 4 * j, 4, vW1c, f"offset:{WSET * c + 1024 * j}")]
    return [DSR(TR, W1F + 4 * j + 2 * r, 2, vW1c, f"offset:{WSET * c + 1024 * j + 256 * r}") for r in range(2)]
def rd_w2(sp, b, c):
    if MODE[0] == "P": return [DSR("ds_read_b128", W2F + 12 * sp + 4 * b, 4, vW1c, f"offset:{WSET * c + 6144 + 1024 * (3 * sp + b)}")]
    return [DSR(TR, W2F + 12 * sp + 4 * b + 2 * r, 2, vW2c, f"offset:{WSET * c + 6144 + (16 * sp + 8 * r) * 192 + 64 * b}") for r in range(2)]
def g1(X, j):
    return MFMA("32x32x16", ACC1[X], W1F + 4 * j, H + 8 * j + 4 * X, None if j == 0 else ACC1[X])
def g2(X, sp, b):
    return (MFMA16 if MODE[0] == "P" else MFMA)("32x32x16", acc2(X, b), W2F + 12 * sp + 4 * b, G + 4 * sp, acc2(X, b))
def w_addr():
    if MODE[0] == "P": return [V(f"v_add_u32 v{vW1c}, s{sRing}, v{vL16}")]
    return [V(f"v_add_u32 v{vW1c}, s{sRing}, v{vW1b}"), V(f"v_add_u32 v{vW2c}, s{sRing}, v{vW2b}")]

def step(X, c, extra):
    Y = 1 - X
    ld = (X == 0)
    att = [[g2(Y, 1, 0)] + (rd_w2(1, 0, c) if ld else []),
           [g1(Y, 0)] + (rd_w2(0, 0, c) + rd_w1(0, c) if ld else []),
           [g2(Y, 1, 1)] + (rd_w2(0, 1, c) + rd_w2(1, 1, c) if ld else []),
           [g1(Y, 1)] + (rd_w2(0, 2, c) + rd_w1(1, c) if ld else []),
           [g2(Y, 1, 2)] + (rd_w2(1, 2, c) if ld else []),
           [g1(Y, 2)] + (rd_w1(2, c) if ld else []),
           [g1(Y, 3)] + (rd_w1(3, c) if ld else []),
           [g2(X, 0, 0)],
           [g1(Y, 4)] + (rd_w1(4, c) if ld else []),
           [g2(X, 0, 1)],
           [g1(Y, 5)] + (rd_w1(5, c) if ld else []),
           [g2(X, 0, 2)]]
    for k, v in extra.items(): att[k] = att[k] + v
    ops = gelu(ACC1[X])
    return ops[:2] + interleave(ops[2:], att)

def loop_body(grp):
    bl = bar_lines()
    k = bl.index("s_waitcnt vmcnt(0)")
    L = [opaque(bl[:k + 1] + [f"Lnowait{grp}{MODE[0]}:"] + bl[k + 1:] + [f"Lbody{grp}{MODE[0]}:"])]
    L += w_addr()
    ex = [{}, {}, {}, {}]
    if grp in (0, 1):
        for k, g in enumerate(wdma_interval()):
            ex[k // 3 if k < 3 else 1][(7, 9, 11)[k] if k < 3 else (1, 3, 5)[k - 3]] = [opaque(g)]
    if grp == 1:
        rl = row_loads()
        for r in range(2):
            for k in range(3):
                blk = (row_setup() if k == 0 else []) + [f"s_mov_b64 exec, s[{sEx48}:{sEx48+1}]"] + rl[3 * k] + rl[3 * k + 1] + rl[3 * k + 2] + ["s_mov_b64 exec, -1"]
                if k == 2: blk += [f"s_add_u32 s{sXrow}, s{sXrow}, {7 if r else 1}"]
                st, sl = ((1, 8), (1, 11), (2, 7), (2, 11), (3, 3), (3, 7))[3 * r + k]
                ex[st][sl] = [opaque(blk)]
    for k in range(4):
        if k == 2: L += dry_point(f"Lhalf{grp}")
        if k in (1, 3) and grp in (1, 2): L += dry_point(f"Lq{k}{grp}")
        if cfg.PRIO and (not cfg.PPOS or k == 0): L.append(S(f"s_setprio {max(cfg.PBASE - k, 0)}"))
        for n, pos in enumerate(cfg.PPOS.split("+") if cfg.PPOS else []):
            st, sl = map(int, pos.split("."))
            if st == k: ex[k][sl] = ex[k].get(sl, []) + [S(f"s_setprio {2 - n}")]
        L += step(k & 1, k >> 1, ex[k])
    return L

def last_body():
    L = [opaque(bar_lines() + [f"Lbody3{MODE[0]}:"])]
    L += w_addr()
    def g1x(X, acc, j): return MFMA("32x32x16", ACC1[acc], W1F + 4 * j, H + 8 * j + 4 * X, None if j == 0 else ACC1[acc])
    prev = T0 - 1 if False else vI_tmp
    base = vL16 if MODE[0] == "P" else vW1b
    L += [S(f"s_sub_u32 s{sT}, {RSUM}, s{sRing}"), V(f"v_add_u32 v{prev}, s{sT}, v{base}")]
    def rd_w1p(j):
        o = rd_w1(j, 1)
        return [DSR(i.text.split()[0], min(i.wr), len(i.wr), prev, i.text.split()[-1]) for i in o]
    def run(src, att, extra=()):
        ops = gelu(ACC1[src])
        main = ops[2:]
        if extra: main = interleave(main, [[e] for e in extra[0]], extra[1], 1.0)
        return ops[:2] + interleave(main, att)
    quad = [H + 8 * t for t in range(6)]
    def ocv(b): return [V(f"v_cvt_pk_bf16_f32 v{quad[2*b + i // 4] + i % 4}, v{acc2(0, b) + 2*i}, v{acc2(0, b) + 2*i + 1}") for i in range(8)]
    def ofin(b):
        o = [V(f"v_permlane16_swap_b32 v{quad[2*b] + i}, v{quad[2*b+1] + i}") for i in range(4)]
        for t in (2 * b, 2 * b + 1):
            st = store(0, t); d = quad[t]
            o.append(VMEM(re.sub(r"v\[\d+:\d+\]", vr(d, 4), st.text, 1), rd=[vSt] + list(R(d, 4)), store=True))
        return o
    w1 = lambda f: [x for j in range(6) for x in f(j)]
    L += rd_w1(0, 0) + rd_w1(1, 0) + rd_w1(2, 0)
    L += run(0, [[g2(1, 1, 0)] + rd_w2(1, 0, 0) + rd_w1(3, 0), [g2(1, 1, 1)] + rd_w2(1, 1, 0) + rd_w1(4, 0) + rd_w2(0, 0, 0), [g2(1, 1, 2)] + rd_w2(1, 2, 0) + rd_w1(5, 0) + rd_w2(0, 1, 0),
                 [g1x(0, 1, 0)] + rd_w1p(0) + rd_w2(0, 2, 0), [g1x(0, 1, 1)] + rd_w1p(1), [g1x(0, 1, 2)] + rd_w1p(2), [g1x(0, 1, 3)] + rd_w1p(3),
                 [g2(0, 0, 0)] + rd_w2(0, 0, 1), [g1x(0, 1, 4)] + rd_w1p(4), [g2(0, 0, 1)] + rd_w2(0, 1, 1), [g1x(0, 1, 5)] + rd_w1p(5), [g2(0, 0, 2)] + rd_w2(0, 2, 1)])
    L += dry_point("Lq13")
    L += run(1, [[g2(0, 1, 0)] + rd_w2(1, 0, 1), [g1x(1, 0, 0)] + rd_w1(0, 0), [g2(0, 1, 1)] + rd_w2(1, 1, 1), [g1x(1, 0, 1)] + rd_w1(1, 0), [g2(0, 1, 2)] + rd_w2(1, 2, 1),
                 [g1x(1, 0, 2)] + rd_w1(2, 0), [g1x(1, 0, 3)] + rd_w1(3, 0), [g2(0, 0, 0)] + rd_w2(0, 0, 0), [g1x(1, 0, 4)] + rd_w1(4, 0), [g2(0, 0, 1)] + rd_w2(0, 1, 0),
                 [g1x(1, 0, 5)] + rd_w1(5, 0), [g2(0, 0, 2)] + rd_w2(0, 2, 0)])
    L += dry_point("Lhalf3")
    L += run(0, [[g2(0, 1, 0)] + rd_w2(1, 0, 0), [g2(0, 1, 1)] + rd_w2(1, 1, 0), [g2(0, 1, 2)] + rd_w2(1, 2, 0), [g1x(1, 1, 0)], [g1x(1, 1, 1)], [g1x(1, 1, 2)], [g1x(1, 1, 3)],
                 [g2(1, 0, 0)] + rd_w2(0, 0, 1), [g1x(1, 1, 4)], [g2(1, 0, 1)] + rd_w2(0, 1, 1), [g1x(1, 1, 5)], [g2(1, 0, 2)] + rd_w2(0, 2, 1)],
             (ocv(0) + ocv(1)[:2] + ofin(0) + ocv(1)[2:], 0.35))
    L += dry_point("Lq33")
    L += run(1, [[g2(1, 1, 0)] + rd_w2(1, 0, 1), [g2(1, 1, 1)] + rd_w2(1, 1, 1), [g2(1, 1, 2)] + rd_w2(1, 2, 1), [], [], [], [], [g2(1, 0, 0)], [], [g2(1, 0, 1)], [], [g2(1, 0, 2)]],
             (ocv(2)[:2] + ofin(1) + ocv(2)[2:] + [V(f"v_mov_b32 v{vI_tmp}, 0"), V(f"v_mov_b32 v{vI_tmp}, 0")] + ofin(2), 0.0))
    L += [V(f"v_mov_b32 v{vI_tmp}, 0"), V(f"v_mov_b32 v{vI_tmp}, 0"), g2(1, 1, 0), g2(1, 1, 1), g2(1, 1, 2)]
    L += out_cvt(3) + out_cvt(4)[:2] + out_fin(3) + out_cvt(4)[2:] + out_cvt(5)[:2] + out_fin(4) + out_cvt(5)[2:] + [V(f"v_mov_b32 v{vI_tmp}, 0"), V(f"v_mov_b32 v{vI_tmp}, 0")] + out_fin(5)
    return L
vI_tmp = 15

def SM32(d, a, b, idx):
    ab = list(R(a, 4)) + list(R(b, 8)) + [idx]
    return Ins(f"v_smfmac_f32_32x32x32_bf16 {vr(d,16)}, {vr(a,4)}, {vr(b,8)}, v{idx}", "mfma",
               ab + list(R(d, 16)), R(d, 16), cost=12, passes=8, srcc=R(d, 16), srcab=ab)

def unit_reads(u, first=False):
    q, rho = divmod(u, 6); buf = cBuf[u % cfg.NBUF]; ta = cTa
    if first: rho, q = divmod(u, 6); ta = (cTa, 92, 93)[q // 2]
    o = 196 * (q % 2) + 8 * rho
    L = []
    if rho == 0 and q and q % 2 == 0 and not first: L.append(V(f"v_add_u32 v{cTa}, {2 * TGRP}, v{cTa}"))
    L += [DSR("ds_read2_b32", buf + 8, 2, ta, f"offset0:{o} offset1:{o+1}"), DSR("ds_read2_b32", buf + 10, 2, ta, f"offset0:{o+2} offset1:{o+3}")]
    for k, c in enumerate((0, 192, 784, 976)):
        L.append(DSR("ds_read_b64", buf + 2 * k, 2, cAddr + rho // 2, f"offset:{XS * (rho & 1) + c + 8 * q}"))
    return L

def store(X, t):
    d = H + 24 * X + 4 * t
    return VMEM(f"buffer_store_dwordx4 {vr(d,4)}, v{vSt}, s[{sO}:{sO+3}], s{sStO2 if X else sStO} offen offset:{64 * (t >> 1) + 3072 * (t & 1) if cfg.S64 else 32 * t}{fl(cfg.OF)}", rd=[vSt] + list(R(d, 4)), store=True)

def res_reads(k):
    X, s = divmod(k, 6)
    return [DSR("ds_read_b64", XF[k] + 2 * r, 2, cRes, f"offset:{XS * X + 32 * s + 8 * r}") for r in range(2)]

def pk(op, d, *src, mods=""):
    return V(f"v_pk_{op}_f32 v[{d}:{d+1}], " + ", ".join(f"v[{x}:{x+1}]" for x in src) + mods)

def signal():
    t = T0
    return [Ins(f"    s_mov_b64 exec, 1\n    ds_add_u32 v{t}, v{t+5}\n    s_mov_b64 exec, -1\n    s_add_u32 s{sTgt}, s{sTgt}, 4", "dsw_op", [t, t + 5], [])]
def poll():
    t = T0; l = lab("p")
    return [Ins(f"{l}:\n    ds_read_b32 v{t+1}, v{t}\n    s_waitcnt lgkmcnt(0)\n    v_readfirstlane_b32 s{sT+3}, v{t+1}\n"
                f"    s_cmp_ge_u32 s{sT+3}, s{sTgt}\n    s_cbranch_scc0 {l}", "waitall", [t], [t + 1])]

def cstage_setup():
    t = sT
    L = []
    for dst, add in ((sFh, 0), (sFres, 2)):
        L += [f"s_lshl_b32 s{t}, s{sJ}, 1", f"s_add_u32 s{t}, s{t}, s{sWin}", f"s_add_u32 s{t}, s{t}, {add}",
              f"s_cmp_ge_u32 s{t}, {NR}", f"s_cselect_b32 s{t+1}, {NR}, 0", f"s_sub_u32 s{t}, s{t}, s{t+1}", f"s_mul_i32 s{dst}, s{t}, {XS}"]
    L += [f"s_add_u32 s{t}, s{sJ}, 1", f"s_and_b32 s{t}, s{t}, 2", f"s_lshl_b32 s{t}, s{t}, 2", f"s_add_u32 s{sFres}, s{sFres}, s{t}"]
    return L

def dry_exit(): return [f"s_cmp_lg_u32 s{sDry}, 0", "s_cbranch_scc1 Ldry_ret"] if cfg.WARM and MODE[0] == "P" else []
def dry_point(name): return [opaque(dry_exit() + [name + ":"])] if cfg.WARM and MODE[0] == "P" else []

def cs(k):
    if not (cfg.STAMP and cfg.CST): return []
    return [Ins("\n".join("    " + l for l in [f"s_lshl_b32 s95, s{sP}, 3", f"s_add_u32 s95, s95, {30 + k}"] + stamp(17, "s95")), "waitall")]

def csetup():
    L = [S(x) for x in cstage_setup()]
    L += [S(f"s_mov_b32 s{sT}, {XS}")]
    t0, t1, t2 = T0, T0 + 1, T0 + 4
    L += [V(f"v_bfe_u32 v{t2}, v{vL16}, 7, 2"), V(f"v_lshlrev_b32 v{t2}, 1, v{t2}"), V(f"v_mov_b32 v{T0+2}, 0"), V(f"v_mov_b32 v{T0+3}, 0")]
    for k in range(3):
        if k: L += [V(f"v_add_u32 v{t2}, 2, v{t2}")]
        L += [V(f"v_add_u32 v{t0}, s{sWin}, v{t2}"), V(f"v_subrev_u32 v{t1}, {NR}, v{t0}"), V(f"v_min_u32 v{t0}, v{t0}, v{t1}"),
              V(f"v_mad_u32_u24 v{t0}, v{t0}, s{sT}, v{vColB}"), V(f"v_and_b32 v{t1}, 4, v{t2}"), V(f"v_lshl_add_u32 v{cAddr+k}, v{t1}, 1, v{t0}")]
    L += [V(f"v_mov_b32 v{cTa}, v{vTa}"), V(f"v_bfe_u32 v{cIdx}, v{vL16}, 4, 2"), V(f"v_mul_u32_u24 v{cIdx}, 0x5555, v{cIdx}")]
    L += [V(f"v_add_u32 v{cRes}, s{sFres}, v{vRes}"), V(f"v_add_u32 v{cHw}, v{cAddr}, v{vHwA}"), V(f"v_add_u32 v{cHr}, s{sFh}, v{vHr}")]
    L += [S(f"s_lshl_b32 s{sT}, s{sJ}, 11"), V(f"v_add_u32 v{T0+4}, s{sT}, v{vL16}"),
          S(f"s_lshl_b32 s{sT}, s{sGrp}, 2"), S(f"s_add_u32 s{sT}, s{sT}, {CBASE}"), V(f"v_mov_b32 v{T0}, s{sT}"), V(f"v_mov_b32 v{T0+5}, 1")]
    return L

def out_cvt(q):
    X, b = divmod(q, 3); a = acc2(X, b); d = H + 24 * X + 8 * b
    return [V(f"v_cvt_pk_bf16_f32 v{d+i}, v{a+2*i}, v{a+2*i+1}") for i in range(8)]
def out_fin(q):
    X, b = divmod(q, 3); d = H + 24 * X + 8 * b
    return [V(f"v_permlane16_swap_b32 v{d+i}, v{d+4+i}") for i in range(4)] + [store(X, 2 * b), store(X, 2 * b + 1)]

def pk_stats():
    ST, QT = G, G + 4
    L = []
    SA, QA = 56, 64
    for q in range(6):
        for u in range(4):
            y = ACC2 + 16 * q + 4 * u
            if q == 0: L += [pk("add", SA + 2 * u, y, y + 2), pk("mul", QA + 2 * u, y, y), pk("fma", QA + 2 * u, y + 2, y + 2, QA + 2 * u)]
            else:
                for e in (0, 2): L += [pk("add", SA + 2 * u, SA + 2 * u, y + e), pk("fma", QA + 2 * u, y + e, y + e, QA + 2 * u)]
    for u in range(4): L += [V(f"v_add_f32 v{ST+u}, v{SA+2*u}, v{SA+2*u+1}"), V(f"v_add_f32 v{QT+u}, v{QA+2*u}, v{QA+2*u+1}")]
    return L

def conv_first():
    ST, QT = G, G + 4
    L = [S(f"s_setprio {cfg.CPRIO}"), V(f"v_add_u32 v92, {2 * TGRP}, v{cTa}"), V(f"v_add_u32 v93, {4 * TGRP}, v{cTa}")]
    L += unit_reads(0, True) + unit_reads(1, True)
    L += [MFMA("32x32x8", ACC2 + 16 * q, T0 + 2, T0 + 2, None) for q in range(6)]
    for u in range(36):
        buf = cBuf[u % 2]
        if u == 18: L += dry_point("Ldry0")
        L.append(SM32(ACC2 + 16 * (u % 6), buf + 8, buf, cIdx))
        if u + 2 in (12, 24):
            l = lab("r"); L.append(opaque([f"s_cmp_lg_u32 s{sDry}, 0", f"s_cbranch_scc1 {l}", "s_barrier", f"{l}:"]))
        L += unit_reads(u + 2, True) if u + 2 < 36 else res_reads(3 * (u - 34)) + res_reads(3 * (u - 34) + 1) + res_reads(3 * (u - 34) + 2)
    for k in range(6, 12): L += res_reads(k)
    L += [S(f"s_mov_b32 s{sO+2}, 50331648"), S(f"s_mov_b32 s{sStInc}, {16 * 98304}")]
    L += pk_stats()
    L.append(Ins("s_waitcnt lgkmcnt(0)", "waitall"))
    return L

def cstage():
    NB = cfg.NBUF
    ST, QT = G, G + 4
    L = [COMMENT("previous tile out, convolution")]
    if cfg.CPRIO: L.append(S(f"s_setprio {cfg.CPRIO}"))
    def zero(q): return MFMA("32x32x8", ACC2 + 16 * q, T0 + 2, T0 + 2, None)
    def stat(q):
        o = []
        for e in range(4):
            for u in range(4):
                y = ACC2 + 16 * q + 4 * u + e
                if q == 0 and e == 0: o += [V(f"v_mul_f32 v{QT+u}, v{y}, v{y}")]
                elif q == 0 and e == 1: o += [V(f"v_add_f32 v{ST+u}, v{y-1}, v{y}"), V(f"v_fmac_f32 v{QT+u}, v{y}, v{y}")]
                else: o += [V(f"v_add_f32 v{ST+u}, v{ST+u}, v{y}"), V(f"v_fmac_f32 v{QT+u}, v{y}, v{y}")]
        return o
    L += cs(0) + unit_reads(0) + unit_reads(1)
    c0 = out_cvt(0)
    L += [g2(1, 1, 0)] + c0[:4] + [g2(1, 1, 1)] + c0[4:] + [g2(1, 1, 2), zero(0)]
    nst = 0
    def mid(nst):
        lm = lab("m")
        return opaque([f"s_or_b32 s{sT}, s{sFirst}, s{sDry}", f"s_cbranch_scc1 {lm}"] + bar_lines(f"s_waitcnt vmcnt({nst})") +
                      [f"s_cmp_eq_u32 s{sGrp}, 0", f"s_cbranch_scc0 {lm}"] + [l for gg in wdma_interval() for l in gg] + [f"{lm}:"])
    for u in range(36):
        q, rho = divmod(u, 6); buf = cBuf[u % NB]
        if u == 18: L += dry_point("Ldry1")
        if u == cfg.MIDU: L.append(mid(nst))
        nxt = unit_reads(u + 2) if u + 2 < 36 else res_reads(3 * (u - 34)) + res_reads(3 * (u - 34) + 1) + res_reads(3 * (u - 34) + 2)
        early = 3 if NB == 3 else 0
        if nxt[0].kind == "valu": early += 1
        L += nxt[:early] + [SM32(ACC2 + 16 * q, buf + 8, buf, cIdx)] + nxt[early:]
        st = stat(q - 1) if q and not cfg.PKST else []
        fill = {0: out_fin(q), 1: st[:8], 2: (out_cvt(q + 1) if q < 5 else []), 3: st[8:16] + ([zero(q + 1)] if q < 5 else []), 4: st[16:24], 5: st[24:]}[rho]
        nst += sum(i.kind == "vstore" for i in fill)
        L += fill
    for k in range(6, 12): L += res_reads(k)
    L += [S(f"s_add_u32 s{sStO}, s{sStO}, s{sStInc}"), S(f"s_add_u32 s{sStO2}, s{sStO}, 98304"), S(f"s_mov_b32 s{sO+2}, 50331648"), S(f"s_mov_b32 s{sStInc}, {16 * 98304}")]
    L += cs(1) + (pk_stats() if cfg.PKST else stat(5))
    if MODE[0] == "P": L.append(opaque(dry_exit() + ["Ljoin:"]))
    L += [DSW("ds_write_b64", T0 + 4, ST + 2 * k, 2, f"offset:{PBASE + 1024 * (k >> 1) + 8 * (k & 1)}") for k in range(4)]
    L.append(Ins("", "touch", [r for x in XF for r in R(x, 4)], [], cost=0))
    L += cs(2) + signal() + ([mid(12)] if cfg.MIDU == 36 else []) + poll()
    L += cs(3)
    L += [COMMENT("LayerNorm, exchange of the normalised tile, residual into the accumulators, first GEMM1")]
    dst = {(0, 0): ST, (0, 1): QT, (1, 0): 56, (1, 1): 60, (2, 0): 64, (2, 1): 68, (3, 0): 72, (3, 1): 76}
    for w in range(4):
        for k in range(2): L.append(DSR("ds_read_b128", dst[(w, k)], 4, vL16, f"offset:{PBASE + 2048 * w + 1024 * k}"))
    for k in range(2):
        for u in range(4): L += [V(f"v_add_f32 v{dst[(0,k)]+u}, v{dst[(0,k)]+u}, v{dst[(1,k)]+u}")]
        for u in range(4): L += [V(f"v_add_f32 v{dst[(2,k)]+u}, v{dst[(2,k)]+u}, v{dst[(3,k)]+u}")]
        for u in range(4): L += [V(f"v_add_f32 v{dst[(0,k)]+u}, v{dst[(0,k)]+u}, v{dst[(2,k)]+u}")]
    MN, SQ, SC, SH = 56, 60, 64, 68
    for u in range(4): L += [V(f"v_mul_f32 v{MN+u}, s{sInv96}, v{ST+u}")]
    for u in range(4): L += [V(f"v_mul_f32 v{SQ+u}, v{MN+u}, v{MN+u}")]
    for u in range(4): L += [V(f"v_fma_f32 v{SQ+u}, v{QT+u}, s{sInv96}, -v{SQ+u}")]
    L += [DSR("ds_read_b128", G, 4, vL16, f"offset:{IBASE}"), DSR("ds_read_b128", G + 4, 4, vL16, f"offset:{IBASE + 1024}")]
    for u in range(4): L += [V(f"v_max_f32 v{SQ+u}, 0, v{SQ+u}")]
    for u in range(4): L += [V(f"v_add_f32 v{SQ+u}, s{sEps}, v{SQ+u}")]
    for u in range(4): L += [V(f"v_rsq_f32 v{SQ+u}, v{SQ+u}")]
    for u in range(4): L += [V(f"v_mul_f32 v{SC+u}, s{sKap}, v{SQ+u}")]
    for u in range(4): L += [V(f"v_mul_f32 v{SH+u}, -v{MN+u}, v{SC+u}")]
    L += dry_point("Ldry3")
    if cfg.MIDU == 37: L.append(mid(12))
    if cfg.PKN:
        for q in range(6):
            for u in range(4):
                for e in (0, 2):
                    y = ACC2 + 16 * q + 4 * u + e; o = u & 1
                    L.append(pk("fma", y, y, SC + (u & 2), SH + (u & 2), mods=f" op_sel:[0,{o},{o}] op_sel_hi:[1,{o},{o}]"))
    L += cs(4)
    if cfg.MIDU == 38: L.append(mid(12))
    first_w1 = opaque([f"s_cmp_lg_u32 s{sFirst}, 0", "s_cbranch_scc1 Lw1wait", f"Lw1wait_ret{MODE[0]}:"] + [w_addr()[0].text])
    def ident(q):
        X, b = divmod(q, 3)
        return [MFMA("32x32x16", acc2(X, b), G, XF[6 * X + 2 * b], None), MFMA("32x32x16", acc2(X, b), G + 4, XF[6 * X + 2 * b + 1], acc2(X, b))]
    def cvt(q):
        o = []
        for u in range(4):
            y = ACC2 + 16 * q + 4 * u
            if not cfg.PKN: o += [V(f"v_fma_f32 v{y+e}, v{y+e}, v{SC+u}, v{SH+u}") for e in range(4)]
            o += [V(f"v_cvt_pk_bf16_f32 v{H+12*u+2*q+h}, v{y+2*h}, v{y+2*h+1}") for h in range(2)]
            o += [DSW("ds_write_b64", cHw, H + 12 * u + 2 * q, 2, f"offset:{192 * u + 8 * q}")]
        return o
    for q in range(6):
        c = cvt(q)
        if q >= 1:
            i0, i1 = ident(q - 1); n = len(c)
            c = c[:1] + [i0] + c[1:n // 2] + [i1] + c[n // 2:]
        L += c
    L += cs(5) + signal()
    L += ident(5)
    L.append(first_w1)
    for j in range(6): L += rd_w1(j, 1)
    L += [V(f"v_mov_b32 v{G+4+i}, 0") for i in range(4)]
    L += poll()
    L += cs(6)
    L += [DSR("ds_read_b128", H + 8 * s + 4 * X, 4, cHr, f"offset:{XS * X + 32 * s}") for X in range(2) for s in range(6)]
    L += [g1(0, j) for j in range(6)]
    L.append(Ins("s_waitcnt lgkmcnt(0)", "waitall"))
    L += cs(7)
    if cfg.CPRIO: L.append(S("s_setprio 0"))
    ab = cfg.ABL.split("+")
    if "hw" in ab: L = [i for i in L if not (i.kind == "dsw" and cHw in i.rd)]
    if "pk" in ab: L = [i for i in L if i.kind != "pk32"]
    if "brd" in ab: L = [i for i in L if not (i.text.startswith("ds_read_b64") and i.rd & set(R(cAddr, 3)))]
    if "sm" in ab: L = [i for i in L if "smfmac" not in i.text]
    if "st" in ab: L = [i for i in L if i.kind != "vstore"]
    if "unpk" in ab:
        out = []
        for i in L:
            if i.kind != "pk32": out.append(i); continue
            m = re.match(r"v_pk_(\w+)_f32 (.*?)( op_sel.*)?$", i.text); regs = [int(x) for x in re.findall(r"v\[(\d+):", m.group(2))]
            o = 1 if m.group(3) and "op_sel:[0,1" in m.group(3) else 0
            for h in range(2):
                r = [regs[0] + h, regs[1] + h] + [(x + o if m.group(3) else x + h) for x in regs[2:]]
                out.append(V(f"v_{m.group(1)}_f32 " + ", ".join(f"v{x}" for x in r)))
        L = out
    return L

def epilogue(with_stores):
    L = [COMMENT("epilogue: last GEMM2 k-step, convert")]
    att = [[g2(1, 1, b)] for b in range(3)]
    def cv(X, t):
        a = acc2(X, t >> 1) + 8 * (t & 1); d = H + 24 * X + 4 * t
        return [V(f"v_cvt_pk_bf16_f32 v{d+i}, v{a+2*i}, v{a+2*i+1}") for i in range(4)]
    def fin(X, u):
        d = H + 24 * X + 8 * u
        o = [V(f"v_permlane16_swap_b32 v{d+i}, v{d+4+i}") for i in range(4)] if cfg.S64 else []
        return o + ([store(X, 2 * u), store(X, 2 * u + 1)] if with_stores else [])
    seq = [(X, u) for X in range(2) for u in range(3)]
    body = []
    for k, (X, u) in enumerate(seq):
        body.append(cv(X, 2 * u) + cv(X, 2 * u + 1) + (fin(*seq[k - 1]) if k else []))
    first = body[0] + body[1] + body[2]
    L += first[:2] + interleave(first[2:], att, 0.0, 0.5)
    L += body[3] + body[4] + body[5] + fin(*seq[5])
    return L

def wparams(mode, first):
    P = []; a = P.append
    if mode == "P":
        a(f"s_mov_b32 s{sW}, s6"); a(f"s_and_b32 s{sW+1}, s7, 0xffff"); a(f"s_mov_b32 s{sW+2}, {12 * WSET}"); a(f"s_mov_b32 s{sW+3}, 0x20000")
        a(f"s_mov_b32 s{sWstep}, {WSET}"); a(f"s_mov_b32 s{sWlim}, {12 * WSET}"); a(f"s_mov_b32 s{sWins}, 1024"); a(f"s_mov_b32 s{sWbase}, s{sJ3k}")
        a(f"s_mov_b32 s{sWsrc}, {first * WSET}"); a(f"v_mov_b32 v{vDMA}, v{vL16}")
        return P
    a(f"s_cmp_lt_u32 s{sJ}, 2"); a(f"s_cselect_b32 s{sW}, s10, s12"); a(f"s_cselect_b32 s{sW+1}, s11, s13")
    a(f"s_cselect_b32 s{sWstep}, 64, 6144"); a(f"s_mov_b32 s{sWins}, 1024")
    a(f"s_cselect_b32 s{sWins}, 12288, s{sWins}"); a(f"s_cselect_b32 s{sWsrc}, {first + 1}, {first}"); a(f"s_mul_i32 s{sWsrc}, s{sWsrc}, s{sWstep}"); a(f"s_mul_i32 s{sWlim}, s{sWstep}, 12")
    a(f"s_and_b32 s{sW+1}, s{sW+1}, 0xffff"); a(f"s_mov_b32 s{sW+2}, 73728"); a(f"s_mov_b32 s{sW+3}, 0x20000")
    a(f"s_and_b32 s{sT+3}, s{sJ}, 1"); a(f"s_mul_i32 s{sT+3}, s{sT+3}, 3"); a(f"s_mul_i32 s{sWbase}, s{sT+3}, s{sWins}")
    a(f"v_lshrrev_b32 v20, 6, v{vL16}"); a("v_mul_u32_u24 v20, 768, v20"); a(f"v_and_b32 v21, 48, v{vL16}"); a("v_add_u32 v20, v20, v21")
    a(f"s_cmp_lt_u32 s{sJ}, 2"); a("s_cselect_b64 vcc, -1, 0"); a(f"v_cndmask_b32 v{vDMA}, v{vL16}, v20, vcc")
    return P

def prologue():
    P = []
    a = P.append
    a(f"s_cmp_ge_u32 s2, 256"); a("s_cbranch_scc1 Lend")
    if cfg.STAMP: a("s_memtime s[92:93]"); a("s_load_dwordx2 s[94:95], s[0:1], 56")
    if cfg.DBG or cfg.ENC or cfg.THR: a("s_memtime s[92:93]"); a("s_memrealtime s[94:95]")
    a("s_load_dwordx8 s[4:11], s[0:1], 0"); a("s_load_dwordx4 s[12:15], s[0:1], 32"); a("s_load_dwordx4 s[56:59], s[0:1], 48")
    a("v_lshrrev_b32 v16, 6, v0"); a("v_and_b32 v17, 63, v0")
    a(f"v_readfirstlane_b32 s{sT}, v16")
    if cfg.WARM:
        a("s_getpc_b64 s[60:61]"); a("v_lshlrev_b32 v38, 6, v0"); a("v_min_u32 v38, CODE_LAST, v38")
        a("global_load_dword v39, v38, s[60:61]")
    a(f"s_and_b32 s{sT+1}, s2, 7"); a(f"s_lshl_b32 s{sT+1}, s{sT+1}, 5"); a(f"s_lshr_b32 s{sT+2}, s2, 3"); a(f"s_add_u32 s{sT+1}, s{sT+1}, s{sT+2}")
    a(f"s_lshr_b32 s{sTy}, s{sT+1}, 4"); a(f"s_and_b32 s{sTx}, s{sT+1}, 15")
    a(f"s_lshr_b32 s{sGrp}, s{sT}, 2"); a(f"s_and_b32 s{sJ}, s{sT}, 3"); a(f"s_mov_b32 s{sXrow}, s{sT}")
    a(f"s_mul_i32 s{sJ3k}, s{sJ}, 3072"); a(f"s_movk_i32 s{s1k}, 1024")
    a(f"s_mov_b32 s{sEx48}, -1"); a(f"s_mov_b32 s{sEx48+1}, 0xffff")
    a(f"v_lshlrev_b32 v{vL16}, 4, v17")
    a(f"s_cmp_eq_u32 s{sTx}, 0"); a(f"s_cselect_b32 s{sAdjL}, 0, 384"); a(f"s_cselect_b32 s{sT+3}, 384, 0"); a(f"s_cselect_b32 s{sT+4}, 24, 0")
    a(f"v_subrev_u32 v{vOffL}, s{sT+3}, v{vL16}"); a(f"v_cmp_le_u32 vcc, s{sT+4}, v17"); a("s_nop 1")
    a(f"v_cndmask_b32 v{vOffL}, 2.0, v{vOffL}, vcc")
    a(f"s_cmp_eq_u32 s{sTx}, 15"); a(f"s_cselect_b32 s{sT+4}, 24, 64"); a(f"v_cmp_gt_u32 vcc, s{sT+4}, v17"); a("s_nop 1")
    a(f"v_cndmask_b32 v{vOffR}, 2.0, v{vL16}, vcc")
    a("v_mul_u32_u24 v18, 683, v0"); a("v_lshrrev_b32 v18, 16, v18")
    a("v_mul_u32_u24 v19, 96, v18"); a("v_sub_u32 v19, v0, v19")
    a("v_mul_u32_u24 v20, 960, v18"); a("v_lshl_add_u32 v20, v19, 1, v20")
    a("v_lshlrev_b32 v21, 1, v19")
    P += row_setup()
    a("s_waitcnt lgkmcnt(0)")
    if cfg.STAMP: a("s_memtime s[96:97]"); a("s_memrealtime s[98:99]"); a("s_waitcnt lgkmcnt(0)")
    for (d, p, n) in ((sX, 4, 50331648), (28, 8, 4800), (32, 6, 192), (sO, 14, 0)):
        a(f"s_mov_b32 s{d}, s{p}"); a(f"s_and_b32 s{d+1}, s{p+1}, 0xffff"); a(f"s_mov_b32 s{d+2}, {n}"); a(f"s_mov_b32 s{d+3}, 0x20000")
    for j in range(5): a(f"buffer_load_ushort v{24+j}, v20, s[28:31], 0 offen offset:{192*j}")
    a("buffer_load_ushort v29, v21, s[32:35], 0 offen")
    a("s_mov_b64 s[4:5], s[56:57]"); a("s_mov_b64 s[6:7], s[58:59]")
    a(f"s_cmp_eq_u32 s{sXrow}, 3"); a(f"s_cselect_b32 s{sFrag}, s2, {NPROD}")
    a("v_mov_b32 v48, 0"); a(f"v_lshlrev_b32 v49, 2, v17")
    a(f"s_cmp_lt_u32 s{sFrag}, {NPROD}"); a("s_cbranch_scc0 Lprep_noload")
    a(f"s_mul_i32 s{sT+2}, s{sFrag}, 21846"); a(f"s_lshr_b32 s{sT+2}, s{sT+2}, 16"); a(f"s_mul_i32 s{sT+3}, s{sT+2}, 3"); a(f"s_sub_u32 s{sT+6}, s{sFrag}, s{sT+3}")
    a("s_mov_b32 s28, s10"); a("s_and_b32 s29, s11, 0xffff"); a("s_mov_b32 s30, 73728"); a("s_mov_b32 s31, 0x20000")
    a("s_mov_b32 s32, s12"); a("s_and_b32 s33, s13, 0xffff"); a("s_mov_b32 s34, 73728"); a("s_mov_b32 s35, 0x20000")
    a(f"s_add_u32 s{sT+3}, s{sT+2}, 1"); a(f"s_cmp_eq_u32 s{sT+3}, 12"); a(f"s_cselect_b32 s{sT+3}, 0, s{sT+3}"); a(f"s_lshl_b32 s{sT+3}, s{sT+3}, 6")
    a(f"s_mul_i32 s{sT+4}, s{sT+2}, 6144")
    a("v_lshrrev_b32 v50, 5, v17"); a("v_and_b32 v51, 31, v17")
    a("v_mul_u32_u24 v52, 6144, v50"); a("v_lshl_add_u32 v52, v51, 1, v52"); a("v_add_u32 v53, 3072, v52")
    a("v_mul_u32_u24 v54, 768, v50"); a("v_and_b32 v50, 19, v51"); a("v_lshl_add_u32 v54, v50, 1, v54")
    a("v_and_b32 v50, 4, v51"); a("v_lshl_add_u32 v54, v50, 2, v54"); a("v_and_b32 v50, 8, v51"); a("v_add_u32 v54, v54, v50")
    def ld(q, r):
        if q < 6:
            a(f"s_add_u32 s{sT+5}, s{sT+3}, {q * 12288}")
            for i in range(8): a(f"buffer_load_ushort v{r+i}, v{52 + i // 4}, s[28:31], s{sT+5} offen offset:{768 * (i & 3)}")
        else:
            sp, bb = divmod(q - 6, 3)
            a(f"s_add_u32 s{sT+5}, s{sT+4}, {sp * 3072 + bb * 64}")
            for i in range(8): a(f"buffer_load_ushort v{r+i}, v54, s[32:35], s{sT+5} offen offset:{192 * (i & 3) + 1536 * (i >> 2)}")
    def cv(q, r, mx):
        for i in range(0, 8, 2): a(f"v_and_b32 v50, 0x7fff, v{r+i}"); a(f"v_and_b32 v51, 0x7fff, v{r+i+1}"); a(f"v_max3_u32 v{mx}, v{mx}, v50, v51")
        if q < 6:
            for i in range(4): a(f"v_lshl_or_b32 v{r+i}, v{r+1+2*i}, 16, v{r+2*i}")
        else:
            for i in range(8): a(f"v_lshlrev_b32 v{r+i}, 16, v{r+i}")
            for i in range(4): a(f"v_cvt_pk_f16_f32 v{r+i}, v{r+2*i}, v{r+1+2*i}")
    a(f"s_mov_b32 s{sThird}, s{sT+6}")
    for third in range(3):
        if third < 2: a(f"s_cmp_eq_u32 s{sT+6}, {third}"); a(f"s_cbranch_scc0 Lprep_t{third + 1}")
        for i in range(4): ld(4 * third + i, 64 + 8 * i)
        if third < 2: a("s_branch Lprep_noload"); a(f"Lprep_t{third + 1}:")
    def prep_convert():
        a(f"s_cmp_lt_u32 s{sFrag}, {NPROD}"); a("s_cbranch_scc0 Lprep_nocv")
        a("v_mov_b32 v56, 0"); a("v_mov_b32 v57, 0"); a("s_waitcnt vmcnt(9)")
        for third in range(3):
            if third < 2: a(f"s_cmp_eq_u32 s{sThird}, {third}"); a(f"s_cbranch_scc0 Lprep_c{third + 1}")
            if third != 1: a(f"v_mov_b32 v{57 if third == 0 else 56}, 0x3a80")
            for i in range(4): cv(4 * third + i, 64 + 8 * i, 56 if 4 * third + i < 6 else 57)
            if third < 2: a("s_branch Lprep_st"); a(f"Lprep_c{third + 1}:")
        a("Lprep_st:")
        a("s_mov_b32 s28, s6"); a("s_and_b32 s29, s7, 0xffff"); a(f"s_mov_b32 s30, {12 * WSET}"); a("s_mov_b32 s31, 0x20000"); a(f"s_lshl_b32 s{sT+2}, s{sFrag}, 12")
        for i in range(4): a(f"buffer_store_dwordx4 v[{64+8*i}:{67+8*i}], v{vL16}, s[28:31], s{sT+2} offen offset:{1024 * i} sc0 sc1")
        a("v_max_u32 v50, v56, v57"); a("v_cmp_lt_u32 vcc, 0x4100, v50"); a("s_cmp_lg_u64 vcc, 0"); a(f"s_cselect_b32 s{sT+4}, 3, 1")
        a("v_cmp_le_u32 vcc, 0x3a80, v56"); a("s_cmp_lg_u64 vcc, 0"); a(f"s_cselect_b32 s{sT+5}, 4, 0"); a(f"s_or_b32 s{sT+4}, s{sT+4}, s{sT+5}")
        a("v_cmp_le_u32 vcc, 0x3a80, v57"); a("s_cmp_lg_u64 vcc, 0"); a(f"s_cselect_b32 s{sT+5}, 8, 0"); a(f"s_or_b32 s{sT+4}, s{sT+4}, s{sT+5}")
        a(f"v_mov_b32 v48, s{sT+4}"); a("s_branch Ldry_skip")
        a("Lprep_nocv:")
    a("Lprep_noload:")
    if cfg.CLS: a(f"s_cmp_ge_u32 s2, {cfg.CLS}"); a("s_cbranch_scc1 Lrow_late")
    a(f"s_mov_b64 exec, s[{sEx48}:{sEx48+1}]")
    for g in row_loads(): P += g
    a("s_mov_b64 exec, -1")
    if cfg.CLS: a("Lrow_late:")
    a("s_mov_b32 s32, s4"); a("s_and_b32 s33, s5, 0xffff"); a("s_mov_b32 s34, 256"); a("s_mov_b32 s35, 0x20000")
    P += wparams("P", 1)
    assert cfg.WLATE
    if cfg.STAMP: a("s_memtime s[100:101]"); a("s_waitcnt lgkmcnt(0)")
    a(f"s_mov_b32 s{sA16}, {A_imm:#x}"); a(f"s_mov_b32 s{sK16}, {K_imm:#x}")
    a(f"s_mov_b32 s{sInv96}, {f32bits(1/96):#x}"); a(f"s_mov_b32 s{sEps}, {f32bits(1e-5):#x}"); a(f"s_mov_b32 s{sKap}, {f32bits(kap_use):#x}")
    D = cfg.D
    a(f"s_lshl_b32 s{sT}, s{sTy}, 5"); a(f"s_lshl_b32 s{sT+1}, s{sGrp}, 3"); a(f"s_add_u32 s{sT}, s{sT}, s{sT+1}"); a(f"s_lshl_b32 s{sT+1}, s{sJ}, 1")
    a(f"s_add_u32 s{sT}, s{sT}, s{sT+1}"); a(f"s_mul_i32 s{sT}, s{sT}, 98304"); a(f"s_mul_i32 s{sT+1}, s{sTx}, 6144"); a(f"s_add_u32 s{sStO}, s{sT}, s{sT+1}")
    a(f"s_mov_b32 s{sDry+1}, s{sStO}")
    def addresses():
        a(f"v_lshrrev_b32 v37, 4, v{vL16}")
        a("v_and_b32 v30, 7, v37"); a("v_lshrrev_b32 v31, 5, v37"); a("v_bfe_u32 v32, v37, 4, 1")
        a(f"s_mul_i32 s{sT}, s{sJ}, 48"); a(f"s_add_u32 s{sT}, s{sT}, {XBASE}")
        a("v_mul_u32_u24 v33, 784, v30"); a("v_mul_u32_u24 v34, 384, v31"); a(f"v_add3_u32 v{vColB}, v33, v34, s{sT}")
        a(f"v_mul_u32_u24 v33, {XS - 384}, v31"); a("v_lshlrev_b32 v34, 3, v32"); a(f"v_sub_u32 v{vHwA}, v33, v34")
        a("v_and_b32 v35, 31, v37"); a("v_lshlrev_b32 v36, 4, v31")
        a(f"v_mul_u32_u24 v33, 192, v35"); a(f"v_add_u32 v{vSt}, v33, v36")
        a("v_lshrrev_b32 v33, 2, v35"); a(f"v_lshl_add_u32 v33, v33, 4, v{vSt}"); a(f"v_add_u32 v{vHr}, {XBASE}, v33")
        a("v_add_u32 v33, 2, v35"); a("v_lshrrev_b32 v33, 2, v33"); a(f"v_lshl_add_u32 v33, v33, 4, v{vSt}"); a(f"v_add_u32 v{vRes}, {XBASE + 384}, v33")
        if cfg.S64:
            a("v_and_b32 v33, 15, v37"); a("v_mul_u32_u24 v33, 192, v33"); a("v_lshl_add_u32 v33, v32, 5, v33"); a(f"v_add_u32 v{vSt}, v33, v36")
        a("v_and_b32 v33, 3, v37"); a("v_bfe_u32 v34, v37, 2, 2")
        a("v_and_b32 v35, 1, v37"); a("v_mul_u32_u24 v35, 400, v35"); a("v_bfe_u32 v36, v37, 1, 1"); a("v_mul_u32_u24 v36, 192, v36"); a("v_add_u32 v35, v35, v36")
        a("v_bfe_u32 v36, v37, 2, 1"); a("v_lshlrev_b32 v36, 5, v36"); a("v_sub_u32 v35, v35, v36")
        a("v_bfe_u32 v36, v37, 3, 2"); a("v_lshlrev_b32 v36, 2, v36"); a("v_sub_u32 v35, v35, v36")
        a(f"s_mul_i32 s{sT}, s{sJ}, {6 * TGRP}"); a(f"s_add_u32 s{sT}, s{sT}, {TBASE}")
        a("v_lshl_add_u32 v35, v31, 4, v35"); a(f"v_add_u32 v{vTa}, s{sT}, v35")
        a("v_lshl_add_u32 v35, v31, 3, v34"); a("v_lshlrev_b32 v35, 6, v35"); a("v_lshl_add_u32 v35, v32, 5, v35"); a(f"v_lshl_add_u32 v{vW1b}, v33, 3, v35")
        a("v_lshl_add_u32 v35, v31, 2, v34"); a("v_mul_u32_u24 v35, 192, v35"); a("v_lshl_add_u32 v35, v32, 5, v35")
        a("v_and_b32 v36, 1, v37"); a("v_lshl_add_u32 v35, v36, 4, v35"); a("v_bfe_u32 v36, v37, 1, 1"); a(f"v_lshl_add_u32 v{vW2b}, v36, 3, v35")
    def enter(targets, ret=0, keep=False):
        a(f"s_mov_b32 s{sDry+3}, {ret}"); a(f"s_mov_b32 s{sSave}, s{sRing}"); a(f"s_mov_b32 s{sSave+1}, s{sSig}")
        a(f"s_mov_b32 s{sDry}, 1"); a(f"s_mov_b32 s{sFirst}, 0"); a(f"s_mov_b32 s{sCnt}, 1"); a(f"s_mov_b32 s{sT+3}, -1"); a(f"s_mov_b32 s{sTgt}, 0")
        a(f"s_mov_b32 s{sDry+2}, s{sWsrc}"); a("s_waitcnt lgkmcnt(0)")
        a("s_setvskip -1, 0")
        for k, t in enumerate(targets[:3]): a(f"s_cmp_eq_u32 s{sJ}, {k}"); a(f"s_cbranch_scc1 {t}")
        a(f"s_branch {targets[3]}")
    def init_state():
        a(f"s_mov_b32 s{sXM}, 0"); a(f"s_mov_b32 s{sRing}, {WBASE}")
        a(f"s_mov_b32 s{sSig}, 1"); a(f"s_mov_b32 s{sP}, 0"); a(f"s_xor_b32 s{sFirst}, s{sGrp}, 1"); a(f"s_lshl_b32 s{sWin}, s{sGrp}, 3")
        a(f"s_mov_b32 s{sStInc}, 0"); a(f"s_mov_b32 s{sStO}, s{sDry+1}"); a(f"s_add_u32 s{sStO2}, s{sStO}, 98304"); a(f"s_mov_b32 s{sTgt}, 0")
        a(f"s_mov_b32 s{sO+2}, 0"); a(f"s_mov_b32 s{sDry}, 0")
    init_state()
    a(f"v_mov_b32 v{vSt}, 0")
    a(f"s_cmp_eq_u32 s{sGrp}, 0"); a("s_cbranch_scc0 Ldry_skip")
    addresses()
    a("v_bfe_u32 v35, v37, 3, 1"); a("v_lshl_add_u32 v35, v35, 2, v33")
    a("v_and_b32 v36, 1, v35"); a("v_lshlrev_b32 v36, 4, v36"); a("v_mov_b32 v38, 0x3f80"); a("v_lshlrev_b32 v36, v36, v38")
    a("v_lshrrev_b32 v35, 1, v35"); a("v_lshl_add_u32 v35, v32, 2, v35")
    a("v_bfe_u32 v38, v37, 2, 1"); a("v_cmp_eq_u32 vcc, v38, v31"); a("s_nop 1"); a("v_cndmask_b32 v35, 8, v35, vcc")
    for d in range(8):
        a(f"v_cmp_eq_u32 vcc, {d}, v35"); a("s_nop 1"); a(f"v_cndmask_b32 v{40+d}, 0, v36, vcc")
    a(f"ds_write_b128 v{vL16}, v[40:43] offset:{IBASE}"); a(f"ds_write_b128 v{vL16}, v[44:47] offset:{IBASE + 1024}")
    prep_convert()
    if cfg.WARM:
        enter(["Lc1", "Ldry0", "Ljoin", "Ldry3"])
        a("Ldry_ret:"); a("s_setvskip 0, 0"); a("s_mov_b64 exec, -1"); a("s_setprio 0"); a(f"s_mov_b32 s{sWsrc}, s{sDry+2}")
        init_state()
        a(f"s_mov_b32 s{sRing}, s{sSave}"); a(f"s_mov_b32 s{sSig}, s{sSave+1}")
        for k, n in ((1, "Ldry_B"), (2, "Ldry_B2"), (3, "Ldry_B3")) + (((4, "Ldry_A4"),) if cfg.LAST else ()): a(f"s_cmp_eq_u32 s{sDry+3}, {k}"); a(f"s_cbranch_scc1 {n}")
    a("Ldry_skip:")
    if cfg.CLS:
        a(f"s_cmp_ge_u32 s2, {cfg.CLS}"); a("s_cbranch_scc0 Lrow_done"); a("s_waitcnt vmcnt(0)")
        a(f"s_mov_b64 exec, s[{sEx48}:{sEx48+1}]")
        for g in row_loads(): P += g
        a("s_mov_b64 exec, -1"); a("Lrow_done:")
    a("s_waitcnt vmcnt(9)")
    a("v_cmp_eq_u32 vcc, 2, v18"); a("v_lshlrev_b32 v29, 16, v29"); a("s_nop 0"); a("v_cndmask_b32 v29, 0, v29, vcc"); a("v_or_b32 v26, v26, v29")
    a("v_mov_b32 v29, 0"); a("v_mov_b32 v30, 0"); a("v_mov_b32 v31, 0")
    a(f"v_lshrrev_b32 v33, 2, v19"); a(f"v_mul_u32_u24 v33, {TGRP}, v33"); a("v_lshl_add_u32 v33, v18, 5, v33")
    a("v_and_b32 v34, 1, v19"); a("v_mul_u32_u24 v34, 400, v34"); a("v_bfe_u32 v35, v19, 1, 1"); a("v_mul_u32_u24 v35, 192, v35"); a("v_add3_u32 v33, v33, v34, v35")
    a("v_cmp_gt_u32 vcc, 480, v0"); a("s_and_saveexec_b64 s[72:73], vcc")
    a(f"ds_write_b128 v33, v[24:27] offset:{TBASE}"); a(f"ds_write_b128 v33, v[28:31] offset:{TBASE + 16}")
    a("s_mov_b64 exec, -1")
    a("v_mov_b32 v28, 0")
    a("v_cmp_eq_u32 vcc, 4, v18"); a("s_and_saveexec_b64 s[72:73], vcc")
    a(f"ds_write_b128 v33, v[28:31] offset:{TBASE + 32}"); a(f"ds_write_b128 v33, v[28:31] offset:{TBASE + 48}")
    a("v_and_b32 v34, 3, v19"); a("v_cmp_eq_u32 vcc, 2, v34"); a("s_and_b64 exec, exec, vcc")
    a(f"ds_write_b128 v33, v[28:31] offset:{TBASE + 64}")
    a("s_mov_b64 exec, -1")
    a("v_mov_b32 v33, 0")
    for o in (0, 16, 32): a(f"ds_write_b128 v33, v[28:31] offset:{TPAD + o}")
    a(f"ds_write_b128 v33, v[28:31] offset:{CBASE}")
    if cfg.STAMP:
        a("v_mov_b32 v16, 0"); a("v_mov_b32 v17, 0"); a("v_writelane_b32 v16, s92, 60"); a("v_writelane_b32 v16, s96, 56")
        a("v_writelane_b32 v16, s98, 54"); a("v_writelane_b32 v16, s100, 57")
        P += stamp(16, 61)
        a(f"s_mov_b32 s96, {cfg.SMASK & 0xffffffff:#x}"); a(f"s_mov_b32 s97, {(cfg.SMASK >> 32) & 0xffffffff:#x}")
    a(f"s_cmp_eq_u32 s{sGrp}, 0"); a("s_cbranch_scc0 Lpro_w4")
    P += [i.text for i in csetup()]
    a("s_waitcnt vmcnt(0) lgkmcnt(0)"); P += stamp(16, 58)
    a(f"s_cmp_lt_u32 s{sFrag}, {NPROD}"); a("s_cbranch_scc0 Lflag_done"); a(f"s_lshl_b32 s{sT+2}, s{sFrag}, 2")
    a("s_mov_b64 exec, 1"); a(f"buffer_store_dword v48, v49, s[32:35], s{sT+2} offen sc0 sc1"); a("s_mov_b64 exec, -1")
    P += stamp(16, 57); a("Lflag_done:")
    a(f"s_mov_b32 s{sWsrc}, {8 * WSET}"); a(f"s_lshl_b32 s{sXrow}, s{sJ}, 1"); a(f"s_add_u32 s{sXrow}, s{sXrow}, 20")
    a("s_barrier")
    P += stamp(17, 58); a("s_branch Lc1")
    a("Lpro_w4:")
    a(f"s_mov_b64 exec, s[{sEx48}:{sEx48+1}]")
    a(f"s_and_b32 s{sXrow}, s{sJ}, 1"); a(f"s_add_u32 s{sXrow}, s{sXrow}, 8")
    for r in range(2):
        P += row_setup()
        a(f"s_cmp_lt_u32 s{sJ}, 2"); a(f"s_cbranch_scc0 Lpro_h{r}")
        for g in row_loads()[:5]: P += g
        a(f"s_branch Lpro_g{r}"); a(f"Lpro_h{r}:")
        for g in row_loads()[5:] + row_loads()[8:]: P += g
        a(f"Lpro_g{r}:"); a(f"s_add_u32 s{sXrow}, s{sXrow}, 2")
        if r == 0: a("s_waitcnt vmcnt(5) lgkmcnt(0)"); P += stamp(16, 58); a("s_barrier")
    a("s_mov_b64 exec, -1")
    a("s_waitcnt vmcnt(5)"); a("s_barrier"); a("s_waitcnt vmcnt(0)"); a("s_barrier")
    P += stamp(17, 50)
    addresses()
    if cfg.WARM:
        enter(["Lbody2P", "Lq12", "Lhalf2", "Lq32"], 1); a("Ldry_B:")
    a(f"v_mov_b32 v18, {CBASE + 8}"); a(f"s_cmp_eq_u32 s{sJ}, 0"); a("s_cbranch_scc0 Lmode_wait")
    a(f"v_lshrrev_b32 v20, 2, v{vL16}"); a(f"s_mov_b32 s{sT}, {cfg.POLLS}"); a(f"s_mov_b32 s{sMode}, 2")
    P += stamp(17, 51)
    a("Lpoll_g:"); a("buffer_load_dword v19, v20, s[32:35], 0 offen sc1"); a("s_waitcnt vmcnt(0)")
    a("v_cmp_ne_u32 vcc, 0, v19"); a(f"s_bcnt1_i32_b64 s{sT+2}, vcc"); a(f"s_cmp_eq_u32 s{sT+2}, {NPROD}"); a("s_cbranch_scc1 Lpoll_ok")
    a("s_sleep 12"); a(f"s_sub_u32 s{sT}, s{sT}, 1"); a(f"s_cmp_lg_u32 s{sT}, 0"); a("s_cbranch_scc1 Lpoll_g"); a("s_branch Lmode_set")
    a("Lpoll_ok:")
    P += stamp(17, 52)
    if cfg.STAMP: a(f"v_writelane_b32 v17, s{sT}, 53")
    a("v_cmp_eq_u32 vcc, 13, v19"); a(f"s_bcnt1_i32_b64 s{sT+2}, vcc"); a(f"s_cmp_eq_u32 s{sT+2}, {NPROD}"); a("s_cbranch_scc0 Lmode_set")
    a(f"s_mov_b32 s{sMode}, {cfg.FORCE or 1}")
    a("Lmode_set:"); a(f"v_mov_b32 v19, s{sMode}"); a("ds_write_b32 v18, v19")
    a("Lmode_wait:"); a("ds_read_b32 v19, v18"); a("s_waitcnt lgkmcnt(0)"); a(f"v_readfirstlane_b32 s{sMode}, v19")
    a(f"s_cmp_eq_u32 s{sMode}, 0"); a("s_cbranch_scc1 Lmode_wait")
    P += stamp(16, 59)
    a(f"s_cmp_eq_u32 s{sMode}, 1"); a("s_cbranch_scc1 Lmode_P")
    P += wparams("R", 1)
    a("Lmode_P:")
    for q in range(1, 4):
        for g in wdma_groups(f"{WBASE + q * WSET}"): P += g
    if cfg.WARM:
        enter(["Lbody1P", "Lq11", "Lhalf1", "Lq31"], 2); a("Ldry_B2:")
    a("s_waitcnt vmcnt(6)"); a("s_barrier")
    assert D == 3
    P += bar_lines()
    for g in wdma_interval(): P += g
    a(f"s_lshl_b32 s{sXrow}, s{sJ}, 1"); a(f"s_add_u32 s{sXrow}, s{sXrow}, 12"); a(f"s_mov_b64 exec, s[{sEx48}:{sEx48+1}]")
    P += row_dma_lines(); a(f"s_add_u32 s{sXrow}, s{sXrow}, 1")
    P += row_dma_lines(); a(f"s_add_u32 s{sXrow}, s{sXrow}, 7")
    a("s_mov_b64 exec, -1")
    P += bar_lines("s_waitcnt vmcnt(18)")
    for g in wdma_interval(): P += g
    if cfg.WARM:
        enter(["LconvP", "Ldry1", "Lbody0P", "Lhalf0"], 3); a("Ldry_B3:")
    a(f"s_cmp_eq_u32 s{sMode}, 1"); a("s_cbranch_scc0 LouterR")
    return P

def build():
    D = cfg.D
    out = []
    hdr = ["; fused depthwise 5x5 + LayerNorm + MLP(GELU) + residual; generated by gen/gen.py",
           f"; @launch grid=(256,1,1) block=(512,1,1) lds={LDS_BYTES}",
           '.amdgcn_target "amdgcn-amd-amdhsa--gfx950"', ".text", f".globl {KNAME}", ".p2align 8", f".type {KNAME},@function", f"{KNAME}:"]
    out += hdr
    def raw(lines):
        for l in lines: out.append(l if l.endswith(":") or l.startswith(".") else "    " + l)
    raw(prologue())
    for m in "PR":
        MODE[0] = m
        epi0, epi1 = csetup(), epilogue(True)
        cs = cstage()
        bodies = [loop_body(0), loop_body(1), loop_body(2)]
        marks = [LABEL(n) for n in ("@c", "@a1", "@a2", "@b2", "@e0", "@x", "@e1", "@end")]
        lin = [marks[0]] + cs + [marks[1]] + bodies[0] + [marks[2]] + bodies[0] + [marks[3]] + bodies[1] + [marks[4]] + epi0 + [marks[5]] + bodies[2] + [marks[6]] + epi1 + [marks[7]]
        lin, pend = insert_lgkm(lin, cfg.OLD); assert not pend
        lin, _ = fix_hazards(lin)
        idx = [next(k for k, i in enumerate(lin) if i is m) for m in marks]
        cst, a1, a2, b2, e0, n2, e1 = (lin[idx[k] + 1: idx[k + 1]] for k in range(7))
        n1 = sum(states(i) for i in a1 if i.kind == "nop") - sum(states(i) for i in a2 if i.kind == "nop")
        assert [i.text for i in a1 if i.kind != "nop"] == [i.text for i in a2 if i.kind != "nop"]
        if n1 > 0: cst = cst + [Ins(f"s_nop {n1 - 1}", "nop")]
        for path in ([cst, n2, a2, a2, b2, a2, e0, cst, b2, a2, e1], [cst, n2, n2, e0, cst, n2, n2, e1]):
            seq = [i for blk in path for i in blk]
            _, bad = fix_hazards(seq, check_only=True); assert not bad, bad
            assert not check_lgkm(seq)
        def emit(blk):
            for i in blk:
                if i.kind == "touch": continue
                for l in i.text.split("\n"): out.append(l if i.kind in ("label", "opaque", "dsw_op") or l.startswith("    ") or l.endswith(":") else "    " + l)
        if m == "P":
            c1, pend = insert_lgkm(e0 + [LABEL("@")] + conv_first(), cfg.OLD); c1, _ = fix_hazards(c1)
            c1 = c1[[i.text for i in c1].index("@:") + 1:]
            kj = [k for k, i in enumerate(cst) if "Ljoin:" in i.text][0]
            _, bad = fix_hazards(c1 + cst[kj:], check_only=True); assert not bad, bad
            check_lgkm(c1 + cst[kj:])
            raw(["s_branch LouterP", "Lc1:"]); emit(c1); raw(dry_exit() + ["s_branch Ljoin"])
        out.append(f"Louter{m}:")
        emit(e0)
        raw(bar_lines())
        raw([f"s_cmp_eq_u32 s{sGrp}, 0", f"s_cbranch_scc0 Lno_w{m}"] + [l for g in wdma_interval() for l in g] + [f"Lno_w{m}:"])
        out.append(f"Lconv{m}:")
        emit(cst)
        raw(dry_exit())
        raw([f"s_or_b32 s{sT}, s{sGrp}, s{sFirst}", f"s_cbranch_scc0 LloopX{m}",
             f"s_sub_u32 s{sCnt}, 6, s{sP}" if cfg.LAST else f"s_mov_b32 s{sCnt}, 6", f"s_cmp_lg_u32 s{sFirst}, 0", f"s_cselect_b32 s{sCnt}, 2, s{sCnt}", f"s_branch LloopN{m}"])
        tail = [f"s_add_u32 s{sWin}, s{sWin}, 4", f"s_cmp_ge_u32 s{sWin}, {NR}", f"s_cselect_b32 s{sWin}, 0, s{sWin}",
                f"s_add_u32 s{sP}, s{sP}, 1", f"s_cmp_eq_u32 s{sP}, 1", f"s_cbranch_scc1 Louter{m}"]
        raw([".p2align 6", f"LloopX{m}:"]); emit(b2)
        raw(dry_exit() + [f"s_mov_b32 s{sXM}, 1", f"s_cmp_eq_u32 s{sP}, 0", f"s_cselect_b32 s{sCnt}, 1, 5", "s_waitcnt vmcnt(18)", f"s_branch Lnowait0{m}"])
        raw([".p2align 6", f"LloopA{m}:"]); emit(a2)
        raw([f"s_sub_u32 s{sCnt}, s{sCnt}, 1", f"s_cmp_lg_u32 s{sCnt}, 0", f"s_cbranch_scc1 LloopA{m}"] + dry_exit() +
            [f"s_cmp_eq_u32 s{sXM}, 0", f"s_cbranch_scc1 LloopX{m}"] + tail)
        k6 = [k for k, i in enumerate(e1) if i.kind == "vstore"][5] + 1
        raw(bar_lines()); raw([l for g in wdma_interval() for l in g]); emit(e1[:k6])
        raw(bar_lines("s_waitcnt vmcnt(6)")); raw([l for g in wdma_interval() for l in g]); emit(e1[k6:])
        raw(stamp(16, 62))
        raw(bar_lines("s_waitcnt vmcnt(6)")); raw([l for g in wdma_interval() for l in g])
        if cfg.LAST and cfg.WARM and m == "P":
            raw([f"s_mov_b32 s{sDry+3}, 4", f"s_mov_b32 s{sDry}, 1", "s_setvskip -1, 0", f"s_cmp_eq_u32 s{sJ}, 0", "s_cbranch_scc1 Lbody3P", f"s_cmp_eq_u32 s{sJ}, 1", "s_cbranch_scc1 Lq13",
                 f"s_cmp_eq_u32 s{sJ}, 2", "s_cbranch_scc1 Lhalf3", "s_branch Lq33", "Ldry_A4:"])
        raw(bar_lines())
        raw(["s_branch Lfin"])
        raw([".p2align 6", f"LloopN{m}:"]); emit(n2)
        raw([f"s_sub_u32 s{sCnt}, s{sCnt}, 1", f"s_cmp_lg_u32 s{sCnt}, 0", f"s_cbranch_scc1 LloopN{m}"] + dry_exit() + [
             f"s_cmp_lg_u32 s{sFirst}, 0", f"s_mov_b32 s{sFirst}, 0", f"s_mov_b32 s{sCnt}, 2", f"s_cbranch_scc1 LloopA{m}"] + tail)
        if cfg.LAST:
            lb, _ = insert_lgkm(n2 + [LABEL("@")] + last_body(), cfg.OLD); lb, _ = fix_hazards(lb)
            lb = lb[[i.text for i in lb].index("@:") + 1:]
            check_lgkm(n2 + lb)
            emit(lb)
        else:
            out.append(f"Lepi1{m}:")
            emit(e1)
        raw(dry_exit())
        raw(stamp(16, 62))
        raw(["s_branch Lfin"] if m == "P" else [])
        if m == "P": out.append("Lraw:")
    out.append("Lfin:")
    if cfg.STAMP:
        raw(["s_waitcnt vmcnt(0)"] + stamp(16, 63) + ["s_memrealtime s[98:99]", "s_waitcnt lgkmcnt(0)", "v_writelane_b32 v16, s98, 55",
             "s_load_dwordx2 s[94:95], s[0:1], 56", "s_waitcnt lgkmcnt(0)", "s_mov_b32 s28, s94", "s_and_b32 s29, s95, 0xffff", "s_mov_b32 s30, 0x1000000", "s_mov_b32 s31, 0x20000",
             f"s_lshl_b32 s89, s{sGrp}, 2", f"s_add_u32 s89, s89, s{sJ}", "s_lshl_b32 s90, s2, 3", "s_add_u32 s89, s89, s90", "s_lshl_b32 s89, s89, 9", "s_add_u32 s89, s89, 0x100000",
             f"v_lshrrev_b32 v18, 2, v{vL16}", "buffer_store_dword v16, v18, s[28:31], s89 offen", "buffer_store_dword v17, v18, s[28:31], s89 offen offset:256"])
    if cfg.DBG:
        raw(["s_waitcnt vmcnt(0)", "s_memtime s[90:91]", "s_memrealtime s[96:97]", "s_load_dwordx2 s[98:99], s[0:1], 48", "s_waitcnt lgkmcnt(0)",
             "s_sub_u32 s90, s90, s92", "s_sub_u32 s96, s96, s94", "s_mov_b32 s28, s98", "s_and_b32 s29, s99, 0xffff", "s_mov_b32 s30, 64", "s_mov_b32 s31, 0x20000",
             f"s_cmp_eq_u32 s{sGrp}, 1", "s_cbranch_scc0 Lend", f"s_cmp_eq_u32 s{sJ}, 0", "s_cbranch_scc0 Lend",
             "s_lshr_b32 s89, s2, 5", "s_lshl_b32 s89, s89, 3", "s_and_b32 s91, s2, 31", "s_cmp_eq_u32 s91, 0", "s_cbranch_scc0 Lend",
             "v_mov_b32 v16, s90", "v_mov_b32 v17, s96", "v_mov_b32 v18, 0", "s_mov_b64 exec, 1", "buffer_store_dwordx2 v[16:17], v18, s[28:31], s89 offen"])
    if cfg.ENC:
        raw(["s_waitcnt vmcnt(0)", "s_memtime s[90:91]", "s_memrealtime s[96:97]", "s_waitcnt lgkmcnt(0)", "s_sub_u32 s90, s90, s92", "s_sub_u32 s96, s96, s94",
             f"s_cmp_eq_u32 s{sGrp}, 1", "s_cbranch_scc0 Lend", f"s_cmp_eq_u32 s{sJ}, 0", "s_cbranch_scc0 Lend",
             f"v_lshrrev_b32 v18, 3, v{vL16}", f"buffer_load_ushort v19, v18, s[{sO}:{sO+3}], s{sStO} offen sc0 sc1",
             f"v_lshrrev_b32 v20, 4, v{vL16}", "v_and_b32 v21, 7, v20", "v_mul_u32_u24 v21, 3, v21", "v_cmp_gt_u32 vcc, 8, v20", "v_mov_b32 v22, s90", "v_mov_b32 v23, s96",
             "v_cndmask_b32 v22, v23, v22, vcc", "v_lshrrev_b32 v22, v21, v22", "v_and_b32 v22, 7, v22", "s_waitcnt vmcnt(0)", "v_and_b32 v19, 0xfff8, v19", "v_or_b32 v19, v19, v22",
             "s_mov_b64 exec, 0xffff", f"buffer_store_short v19, v18, s[{sO}:{sO+3}], s{sStO} offen sc0 sc1"])
    if cfg.THR:
        raw(["s_waitcnt vmcnt(0)", "s_memrealtime s[96:97]", "s_waitcnt lgkmcnt(0)", "s_sub_u32 s96, s96, s94", f"s_cmp_gt_u32 s96, {cfg.THR}", "s_cbranch_scc0 Lend",
             "v_mov_b32 v18, 0", "v_mov_b32 v19, 0x4000", "s_mov_b64 exec, 1", f"buffer_store_short v19, v18, s[{sO}:{sO+3}], s{sStO} offen sc0 sc1"])
    raw(["Lend:", "s_endpgm"])
    raw(["Lw1wait:", "s_barrier", f"ds_read_b32 v{T0+1}, v{T0} offset:8", "s_waitcnt lgkmcnt(0)", f"v_readfirstlane_b32 s{sMode}, v{T0+1}",
         f"s_cmp_eq_u32 s{sMode}, 1", "s_cbranch_scc1 Lw1wait_retP"] + wparams("R", 8) + ["s_branch Lw1wait_retR"])
    if cfg.ALIGN:
        tmp, npad, nwid = align8([l.replace("CODE_LAST", "0x1000") for l in out], "Lc1", "Lend")
        out = [l.replace("v38, 0x1000", "v38, CODE_LAST") for l in tmp]
        sys.stderr.write(f"align8: {npad} pads, {nwid} widened\n")
    nbytes = sum(insn_sizes([l.replace("CODE_LAST", "0x1000") for l in out])[:out.index("Lraw:")])
    out = [l.replace("CODE_LAST", str(nbytes // 64 * 64 - 128)) for l in out]
    sys.stderr.write(f"hot code bytes {nbytes}\n"); assert nbytes <= 32768 or cfg.STAMP
    out += ['.section .rodata,"a"', ".p2align 6", f".amdhsa_kernel {KNAME}", "  .amdhsa_next_free_vgpr 256", f"  .amdhsa_next_free_sgpr {102 if cfg.STAMP or cfg.DBG or cfg.ENC or cfg.THR else 96}",
            "  .amdhsa_accum_offset 256", "  .amdhsa_group_segment_fixed_size 0", "  .amdhsa_kernarg_size 64", "  .amdhsa_user_sgpr_count 2",
            "  .amdhsa_user_sgpr_kernarg_segment_ptr 1", "  .amdhsa_system_sgpr_workgroup_id_x 1", ".end_amdhsa_kernel"]
    return "\n".join(out) + "\n"

open(sys.argv[1], "w").write(build())
```

```python
import sys, struct, math
import numpy as np, re
from asmlib import *

class Cfg:
    D = 3
    GELU = "B"
    PRIO = 1
    CPRIO = 3
    XF = 'nt'
    OF = 'sc0+sc1'
    WF = 'sc1'
    ALIGN = True
    STAMP = False
    SMASK = -1
    OLD = 200
    LPOLL = False
    PKF = False
    W2X = False
    BC1 = 28
    ZW1 = True
    PPOS = ''
    CLS = 0
    THR = 0
    ENC = False
    LAST = True
    PKST = 1
    MIDU = 33
    NBUF = 2
    RT = False
    NOINV = False
    FORCE = 0
    POLLS = 300
    S64 = True
    DBG = False
    WARM = True
    HW64 = True
    PBASE = 3
    ABL = ''
    CST = False
    PKS = 0
    PKN = True
    W1G = True
    R2 = False
    NOSTAT = False
    NOCRD = False
    N0 = 15
    WLATE = True
cfg = Cfg()
for a in sys.argv[2:]:
    k, v = a.split("=")
    setattr(cfg, k, type(getattr(cfg, k))(v) if not isinstance(getattr(cfg, k), bool) else v in ("1", "True"))

KNAME = "standalone__modern_conv_block_replknet__vision_kernel"
XS = 7104; NR = 12
TPAD = 0
TBASE = 48
TGRP = 784
IBASE = TBASE + 24 * TGRP
PBASE = IBASE + 2048
CBASE = PBASE + 8192
WBASE = CBASE + 16
WSET = 12288
XBASE = WBASE + 4 * WSET
LDS_BYTES = XBASE + NR * XS
assert LDS_BYTES <= 163840, LDS_BYTES
assert WBASE % 16 == 0 and IBASE % 16 == 0
vColB, vHwA, vRes, vHr, vTa, vSt, vW1b, vW2b, vW1c, vW2c, vDMA, vOffL, vOffR, vL16 = range(1, 15)
T0 = 18
G = 24
W2F = 32
W1F = 56
ACC1 = (80, 96)
H = 112
ACC2 = 160
def acc2(X, b): return ACC2 + 48 * X + 16 * b
cBuf = (56, 68, 80)
cAddr = 104
cTa, cIdx, cRes, cHw, cHr = 107, 108, 109, 110, 111
XF = [32, 36, 40, 44, 48, 52, 92, 96, 100, 80, 84, 88]
sX, sO, sW = 16, 20, 24
sGrp, sJ, sTx, sTy, sSig, sRing, sWsrc, sWstep, sWlim, sWins, sWbase, sP, sCnt = range(36, 49)
sA16, sK16, sStO = 49, 50, 51
sWin, sXrow, sFirst = 63, 64, 65
sXM, sXinc = 66, 67
sExX = 68
sAdjL = 70
sT = 71
sEx48 = 80
sInv96, sEps, sKap = 82, 83, 84
sDry = 56
sFrag, sMode, sThird = 62, 3, 60
sSave = 68
sLastC = 67
sStO2, sTgt = 52, 53
sFres, sFh = 54, 55
sXo, sXm = 85, 86
sStInc = 87
s1k = 89
sJ3k = 88
RSUM = 2 * WBASE + 2 * WSET

def f32bits(x): return struct.unpack("<I", struct.pack("<f", x))[0]
def f16bits(x): return int(np.float16(x).view(np.uint16))
a_c = -2.0 * math.log2(math.e) * math.sqrt(2.0 / math.pi)
b_c = a_c * 0.044715
kap = -((-b_c) ** (1.0 / 3.0))
if cfg.GELU in ("B",):
    kap_use = float(np.float16(kap))
    A_imm = f16bits(a_c / kap_use) * 0x10001
    K_imm = f16bits(kap_use) * 0x10001
else:
    kap_use = kap
    A_imm = f32bits(a_c / kap)
    K_imm = f32bits(kap)

def fl(s): return ''.join(' ' + w for w in s.split('+') if w)
uid = [0]
INLOOP = [False]
MODE = ['P']
NPROD = 36
def lab(p):
    uid[0] += 1
    return f"L{p}_{uid[0]}"

def opaque(lines):
    return Ins("\n".join("    " + l if not l.endswith(":") else l for l in lines), "opaque", cost=0)

def stamp(vreg, lane):
    if not cfg.STAMP: return []
    return ["s_memtime s[90:91]", f"s_mov_b32 m0, {lane}", "s_waitcnt lgkmcnt(0)", f"v_writelane_b32 v{vreg}, s90, m0"]
def cstamp(vreg):
    if not cfg.STAMP: return []
    if cfg.RT:
        if vreg == 16: return []
        return stamp(17, f"s{sSig}") + [x.replace("s_memtime", "s_memrealtime") for x in stamp(16, f"s{sSig}")]
    if cfg.SMASK == -1: return stamp(vreg, f"s{sSig}")
    l = lab("s")
    return [f"s_bitcmp1_b64 s[96:97], s{sSig}", f"s_cbranch_scc0 {l}"] + stamp(vreg, f"s{sSig}") + [f"{l}:"]

def wdma_groups(dst):
    out = []
    for u in range(3):
        g = [f"s_add_u32 m0, {dst}, s{sJ3k}", f"s_add_u32 s{sT+8}, s{sWsrc}, s{sWbase}"] if u == 0 else \
            [f"s_add_u32 m0, m0, s{s1k}", f"s_add_u32 s{sT+8}, s{sT+8}, s{sWins}"]
        g.append(f"buffer_load_dwordx4 v{vDMA}, s[{sW}:{sW+3}], s{sT+8} offen{fl(cfg.WF)} lds")
        if u == 2: g += [f"s_add_u32 s{sWsrc}, s{sWsrc}, s{sWstep}", f"s_cmp_eq_u32 s{sWsrc}, s{sWlim}", f"s_cselect_b32 s{sWsrc}, 0, s{sWsrc}"]
        out.append(g)
    return out
def wdma_interval():
    g = wdma_groups(f"s{sT+7}") + wdma_groups(f"s{sT+7}")
    g[0] = [f"s_sub_u32 s{sT+7}, {RSUM}, s{sRing}"] + g[0]
    g[3] = [f"s_add_u32 s{sT+7}, s{sT+7}, {WSET}"] + g[3]
    return g

def row_setup():
    t0, t1, t2 = sT, sXo, sT + 1
    return [f"s_lshl_b32 s{t0}, s{sTy}, 5", f"s_add_u32 s{t0}, s{t0}, s{sXrow}", f"s_sub_u32 s{t0}, s{t0}, 2",
            f"s_mul_i32 s{t1}, s{t0}, 98304", f"s_mul_i32 s{t2}, s{sTx}, 6144", f"s_add_u32 s{t1}, s{t1}, s{t2}",
            f"s_cmp_lt_u32 s{t0}, 512", f"s_cselect_b32 s{t1}, s{t1}, 0x80000000",
            f"s_cmp_ge_u32 s{sXrow}, 24", f"s_cselect_b32 s{t2}, 24, 0", f"s_sub_u32 s{t0}, s{sXrow}, s{t2}",
            f"s_cmp_ge_u32 s{t0}, 12", f"s_cselect_b32 s{t2}, 12, 0", f"s_sub_u32 s{t0}, s{t0}, s{t2}",
            f"s_and_b32 s{t2}, s{sXrow}, 4", f"s_lshl_b32 s{t2}, s{t2}, 1", f"s_mul_i32 s{t0}, s{t0}, {XS}", f"s_add_u32 s{t0}, s{t0}, s{t2}",
            f"s_add_u32 s{sXm}, s{t0}, {XBASE}"]
def row_loads():
    out = [[f"s_mov_b32 m0, s{sXm}", f"s_sub_u32 s{sT}, s{sXo}, s{sAdjL}", f"buffer_load_dwordx4 v{vOffL}, s[{sX}:{sX+3}], s{sT} offen{fl(cfg.XF)} lds"]]
    for a in range(1, 9):
        out.append([f"s_add_u32 m0, s{sXm}, {784 * a}", f"s_add_u32 s{sT}, s{sXo}, {768 * a - 384}",
                    f"buffer_load_dwordx4 v{vOffR if a == 8 else vL16}, s[{sX}:{sX+3}], s{sT} offen{fl(cfg.XF)} lds"])
    return out
def row_dma_lines(): return row_setup() + [l for g in row_loads() for l in g]

def bar_lines(wait="s_waitcnt vmcnt(0)"):
    L = cstamp(16) + ([wait] if wait else []) + ["s_barrier"] + cstamp(17)
    L += [f"s_sub_u32 s{sRing}, {RSUM}, s{sRing}"]
    if cfg.STAMP: L += [f"s_add_u32 s{sSig}, s{sSig}, 1"]
    return L

def gelu_B(Sr):
    ops = []
    def st(p, k):
        a0 = Sr + 2 * p; a1 = a0 + 1; t = T0 + (p % 2) * 3; u = t + 1; w = t + 2
        return [V(f"v_cvt_pk_f16_f32 v{t}, v{a0}, v{a1}"),
                V(f"v_pk_fma_f16 v{u}, v{t}, v{t}, s{sA16}"),
                V(f"v_pk_mul_f16 v{t}, v{t}, v{u}"),
                V(f"v_exp_f16 v{u}, v{t}"),
                V(f"v_exp_f16_sdwa v{u}, v{t} dst_sel:WORD_1 dst_unused:UNUSED_PRESERVE src0_sel:WORD_1"),
                V(f"v_pk_fma_f16 v{t}, v{u}, s{sK16}, s{sK16}"),
                V(f"v_rcp_f16 v{u}, v{t}"),
                V(f"v_rcp_f16_sdwa v{w}, v{t} dst_sel:DWORD dst_unused:UNUSED_PAD src0_sel:WORD_1"),
                V(f"v_fma_mix_f32 v{u}, v{a0}, v{u}, 0 op_sel_hi:[0,1,0]"),
                V(f"v_fma_mix_f32 v{w}, v{a1}, v{w}, 0 op_sel_hi:[0,1,0]"),
                V(f"v_cvt_pk_bf16_f32 v{G+p}, v{u}, v{w}")][k]
    for q in range(0, 8, 2):
        for k in range(11):
            ops += [st(q, k), st(q + 1, k)]
    return ops

def gelu_A(Sr):
    ops = []
    for q in range(0, 16, 4):
        for k in range(6):
            for e in range(4):
                a = Sr + q + e; r = T0 + e
                ops.append([V(f"v_fma_f32 v{r}, v{a}, v{a}, s{sA16}"), V(f"v_mul_f32 v{r}, v{a}, v{r}"), V(f"v_exp_f32 v{r}, v{r}"),
                            V(f"v_fma_f32 v{r}, v{r}, s{sK16}, s{sK16}"), V(f"v_rcp_f32 v{r}, v{r}"), V(f"v_mul_f32 v{r}, v{a}, v{r}")][k])
        ops += [V(f"v_cvt_pk_bf16_f32 v{G+q//2}, v{T0}, v{T0+1}"), V(f"v_cvt_pk_bf16_f32 v{G+q//2+1}, v{T0+2}, v{T0+3}")]
    return ops
def gelu_C(Sr):
    ops = []
    def st(p, k):
        a0 = Sr + 2 * p; a1 = a0 + 1; t = T0 + (p % 2) * 3; u = t + 1; w = t + 2
        return [V(f"v_cvt_pk_f16_f32 v{w}, v{a0}, v{a1}"),
                V(f"v_pk_fma_f16 v{u}, v{w}, v{w}, s{sA16}"),
                V(f"v_pk_mul_f16 v{t}, v{w}, v{u}"),
                V(f"v_exp_f16 v{u}, v{t}"),
                V(f"v_exp_f16_sdwa v{u}, v{t} dst_sel:WORD_1 dst_unused:UNUSED_PRESERVE src0_sel:WORD_1"),
                V(f"v_pk_fma_f16 v{t}, v{u}, s{sK16}, s{sK16}"),
                V(f"v_rcp_f16 v{u}, v{t}"),
                V(f"v_rcp_f16_sdwa v{u}, v{t} dst_sel:WORD_1 dst_unused:UNUSED_PRESERVE src0_sel:WORD_1"),
                V(f"v_pk_mul_f16 v{G+p}, v{w}, v{u}")][k]
    for q in range(0, 8, 2):
        for k in range(9):
            ops += [st(q, k), st(q + 1, k)]
    return ops
def gelu(Sr): return gelu_C(Sr) if MODE[0] == "P" else gelu_B(Sr)

TR = "ds_read_b64_tr_b16"
def rd_w1(j, c):
    if MODE[0] == "P": return [DSR("ds_read_b128", W1F + 4 * j, 4, vW2c if INLOOP[0] and c == 1 else vW1c, f"offset:{WSET * c + 1024 * j}")]
    return [DSR(TR, W1F + 4 * j + 2 * r, 2, vW1c, f"offset:{WSET * c + 1024 * j + 256 * r}") for r in range(2)]
def rd_w2(sp, b, c):
    if MODE[0] == "P": return [DSR("ds_read_b128", W2F + 12 * sp + 4 * b, 4, vW1c, f"offset:{WSET * c + 6144 + 1024 * (3 * sp + b)}")]
    return [DSR(TR, W2F + 12 * sp + 4 * b + 2 * r, 2, vW2c, f"offset:{WSET * c + 6144 + (16 * sp + 8 * r) * 192 + 64 * b}") for r in range(2)]
def g1(X, j):
    return MFMA("32x32x16", ACC1[X], W1F + 4 * j, H + 8 * j + 4 * X, None if j == 0 else ACC1[X])
def g2(X, sp, b):
    return (MFMA16 if MODE[0] == "P" else MFMA)("32x32x16", acc2(X, b), W2F + 12 * sp + 4 * b, G + 4 * sp, acc2(X, b))
def w_addr():
    if MODE[0] == "P": return [V(f"v_add_u32 v{vW1c}, s{sRing}, v{vL16}")]
    return [V(f"v_add_u32 v{vW1c}, s{sRing}, v{vW1b}"), V(f"v_add_u32 v{vW2c}, s{sRing}, v{vW2b}")]

def step(X, c, extra):
    Y = 1 - X
    ld = (X == 0)
    att = [[g2(Y, 1, 0)] + (rd_w2(1, 0, c) if ld else []),
           [g1(Y, 0)] + (rd_w2(0, 0, c) + rd_w1(0, c) if ld else []),
           [g2(Y, 1, 1)] + (rd_w2(0, 1, c) + rd_w2(1, 1, c) if ld else []),
           [g1(Y, 1)] + (rd_w2(0, 2, c) + rd_w1(1, c) if ld else []),
           [g2(Y, 1, 2)] + (rd_w2(1, 2, c) if ld else []),
           [g1(Y, 2)] + (rd_w1(2, c) if ld else []),
           [g1(Y, 3)] + (rd_w1(3, c) if ld else []),
           [g2(X, 0, 0)],
           [g1(Y, 4)] + (rd_w1(4, c) if ld else []),
           [g2(X, 0, 1)],
           [g1(Y, 5)] + (rd_w1(5, c) if ld else []),
           [g2(X, 0, 2)]]
    for k, v in extra.items(): att[k] = att[k] + v
    ops = gelu(ACC1[X])
    return ops[:2] + interleave(ops[2:], att)

def loop_body(grp):
    bl = bar_lines()
    k = bl.index("s_waitcnt vmcnt(0)")
    L = [opaque(bl[:k + 1] + [f"Lnowait{grp}{MODE[0]}:"] + bl[k + 1:] + [f"Lbody{grp}{MODE[0]}:"])]
    L += w_addr()
    INLOOP[0] = cfg.ZW1 and MODE[0] == "P"
    if INLOOP[0]:
        L += [S(f"s_cmp_eq_u32 s{sCnt}, s{sLastC}"), S(f"s_cselect_b32 s{sT}, 0x30000, s{sRing}"), V(f"v_add_u32 v{vW2c}, s{sT}, v{vL16}")]
    ex = [{}, {}, {}, {}]
    if grp in (0, 1):
        for k, g in enumerate(wdma_interval()):
            ex[k // 3 if k < 3 else 1][(7, 9, 11)[k] if k < 3 else (1, 3, 5)[k - 3]] = [opaque(g)]
    if grp == 1:
        rl = row_loads()
        for r in range(2):
            for k in range(3):
                blk = (row_setup() if k == 0 else []) + [f"s_mov_b64 exec, s[{sEx48}:{sEx48+1}]"] + rl[3 * k] + rl[3 * k + 1] + rl[3 * k + 2] + ["s_mov_b64 exec, -1"]
                if k == 2: blk += [f"s_add_u32 s{sXrow}, s{sXrow}, {7 if r else 1}"]
                st, sl = ((1, 8), (1, 11), (2, 7), (2, 11), (3, 3), (3, 7))[3 * r + k]
                ex[st][sl] = [opaque(blk)]
    for k in range(4):
        if k == 2: L += dry_point(f"Lhalf{grp}")
        if k in (1, 3) and grp in (1, 2): L += dry_point(f"Lq{k}{grp}")
        if cfg.PRIO and (not cfg.PPOS or k == 0): L.append(S(f"s_setprio {max(cfg.PBASE - k, 0)}"))
        for n, pos in enumerate(cfg.PPOS.split("+") if cfg.PPOS else []):
            st, sl = map(int, pos.split("."))
            if st == k: ex[k][sl] = ex[k].get(sl, []) + [S(f"s_setprio {2 - n}")]
        L += step(k & 1, k >> 1, ex[k])
    INLOOP[0] = False
    return L

def last_body():
    L = [opaque(bar_lines() + [f"Lbody3{MODE[0]}:"])]
    L += w_addr()
    def g1x(X, acc, j): return MFMA("32x32x16", ACC1[acc], W1F + 4 * j, H + 8 * j + 4 * X, None if j == 0 else ACC1[acc])
    prev = T0 - 1 if False else vI_tmp
    base = vL16 if MODE[0] == "P" else vW1b
    L += [S(f"s_sub_u32 s{sT}, {RSUM}, s{sRing}"), V(f"v_add_u32 v{prev}, s{sT}, v{base}")]
    def rd_w1p(j):
        o = rd_w1(j, 1)
        return [DSR(i.text.split()[0], min(i.wr), len(i.wr), prev, i.text.split()[-1]) for i in o]
    def run(src, att, extra=()):
        ops = gelu(ACC1[src])
        main = ops[2:]
        if extra: main = interleave(main, [[e] for e in extra[0]], extra[1], 1.0)
        return ops[:2] + interleave(main, att)
    quad = [H + 8 * t for t in range(6)]
    def ocv(b): return [V(f"v_cvt_pk_bf16_f32 v{quad[2*b + i // 4] + i % 4}, v{acc2(0, b) + 2*i}, v{acc2(0, b) + 2*i + 1}") for i in range(8)]
    def ofin(b):
        o = [V(f"v_permlane16_swap_b32 v{quad[2*b] + i}, v{quad[2*b+1] + i}") for i in range(4)]
        for t in (2 * b, 2 * b + 1):
            st = store(0, t); d = quad[t]
            o.append(VMEM(re.sub(r"v\[\d+:\d+\]", vr(d, 4), st.text, 1), rd=[vSt] + list(R(d, 4)), store=True))
        return o
    w1 = lambda f: [x for j in range(6) for x in f(j)]
    L += rd_w1(0, 0) + rd_w1(1, 0) + rd_w1(2, 0)
    L += run(0, [[g2(1, 1, 0)] + rd_w2(1, 0, 0) + rd_w1(3, 0), [g2(1, 1, 1)] + rd_w2(1, 1, 0) + rd_w1(4, 0) + rd_w2(0, 0, 0), [g2(1, 1, 2)] + rd_w2(1, 2, 0) + rd_w1(5, 0) + rd_w2(0, 1, 0),
                 [g1x(0, 1, 0)] + rd_w1p(0) + rd_w2(0, 2, 0), [g1x(0, 1, 1)] + rd_w1p(1), [g1x(0, 1, 2)] + rd_w1p(2), [g1x(0, 1, 3)] + rd_w1p(3),
                 [g2(0, 0, 0)] + rd_w2(0, 0, 1), [g1x(0, 1, 4)] + rd_w1p(4), [g2(0, 0, 1)] + rd_w2(0, 1, 1), [g1x(0, 1, 5)] + rd_w1p(5), [g2(0, 0, 2)] + rd_w2(0, 2, 1)])
    L += dry_point("Lq13")
    L += run(1, [[g2(0, 1, 0)] + rd_w2(1, 0, 1), [g1x(1, 0, 0)] + rd_w1(0, 0), [g2(0, 1, 1)] + rd_w2(1, 1, 1), [g1x(1, 0, 1)] + rd_w1(1, 0), [g2(0, 1, 2)] + rd_w2(1, 2, 1),
                 [g1x(1, 0, 2)] + rd_w1(2, 0), [g1x(1, 0, 3)] + rd_w1(3, 0), [g2(0, 0, 0)] + rd_w2(0, 0, 0), [g1x(1, 0, 4)] + rd_w1(4, 0), [g2(0, 0, 1)] + rd_w2(0, 1, 0),
                 [g1x(1, 0, 5)] + rd_w1(5, 0), [g2(0, 0, 2)] + rd_w2(0, 2, 0)])
    L += dry_point("Lhalf3")
    L += run(0, [[g2(0, 1, 0)] + rd_w2(1, 0, 0), [g2(0, 1, 1)] + rd_w2(1, 1, 0), [g2(0, 1, 2)] + rd_w2(1, 2, 0), [g1x(1, 1, 0)], [g1x(1, 1, 1)], [g1x(1, 1, 2)], [g1x(1, 1, 3)],
                 [g2(1, 0, 0)] + rd_w2(0, 0, 1), [g1x(1, 1, 4)], [g2(1, 0, 1)] + rd_w2(0, 1, 1), [g1x(1, 1, 5)], [g2(1, 0, 2)] + rd_w2(0, 2, 1)],
             (ocv(0) + ocv(1)[:2] + ofin(0) + ocv(1)[2:], 0.35))
    L += dry_point("Lq33")
    L += run(1, [[g2(1, 1, 0)] + rd_w2(1, 0, 1), [g2(1, 1, 1)] + rd_w2(1, 1, 1), [g2(1, 1, 2)] + rd_w2(1, 2, 1), [], [], [], [], [g2(1, 0, 0)], [], [g2(1, 0, 1)], [], [g2(1, 0, 2)]],
             (ocv(2)[:2] + ofin(1) + ocv(2)[2:] + [V(f"v_mov_b32 v{vI_tmp}, 0"), V(f"v_mov_b32 v{vI_tmp}, 0")] + ofin(2), 0.0))
    L += [V(f"v_mov_b32 v{vI_tmp}, 0"), V(f"v_mov_b32 v{vI_tmp}, 0"), g2(1, 1, 0), g2(1, 1, 1), g2(1, 1, 2)]
    L += out_cvt(3) + out_cvt(4)[:2] + out_fin(3) + out_cvt(4)[2:] + out_cvt(5)[:2] + out_fin(4) + out_cvt(5)[2:] + [V(f"v_mov_b32 v{vI_tmp}, 0"), V(f"v_mov_b32 v{vI_tmp}, 0")] + out_fin(5)
    return L
vI_tmp = 15

def SM32(d, a, b, idx):
    ab = list(R(a, 4)) + list(R(b, 8)) + [idx]
    return Ins(f"v_smfmac_f32_32x32x32_bf16 {vr(d,16)}, {vr(a,4)}, {vr(b,8)}, v{idx}", "mfma",
               ab + list(R(d, 16)), R(d, 16), cost=12, passes=8, srcc=R(d, 16), srcab=ab)

def unit_reads(u, first=False):
    q, rho = divmod(u, 6); buf = cBuf[u % cfg.NBUF]; ta = cTa
    if first: rho, q = divmod(u, 6); ta = (cTa, 92, 93)[q // 2]
    o = 196 * (q % 2) + 8 * rho
    L = []
    if rho == 0 and q and q % 2 == 0 and not first: L.append(V(f"v_add_u32 v{cTa}, {2 * TGRP}, v{cTa}"))
    L += [DSR("ds_read2_b32", buf + 8, 2, ta, f"offset0:{o} offset1:{o+1}"), DSR("ds_read2_b32", buf + 10, 2, ta, f"offset0:{o+2} offset1:{o+3}")]
    for k, c in enumerate((0, 192, 784, 976)):
        L.append(DSR("ds_read_b64", buf + 2 * k, 2, cAddr + rho // 2, f"offset:{XS * (rho & 1) + c + 8 * q}"))
    return L

def store(X, t):
    d = H + 24 * X + 4 * t
    return VMEM(f"buffer_store_dwordx4 {vr(d,4)}, v{vSt}, s[{sO}:{sO+3}], s{sStO2 if X else sStO} offen offset:{64 * (t >> 1) + 3072 * (t & 1) if cfg.S64 else 32 * t}{fl(cfg.OF)}", rd=[vSt] + list(R(d, 4)), store=True)

def res_reads(k):
    X, s = divmod(k, 6)
    return [DSR("ds_read_b64", XF[k] + 2 * r, 2, cRes, f"offset:{XS * X + 32 * s + 8 * r}") for r in range(2)]

def pk(op, d, *src, mods=""):
    return V(f"v_pk_{op}_f32 v[{d}:{d+1}], " + ", ".join(f"v[{x}:{x+1}]" for x in src) + mods)

def signal():
    t = T0
    return [Ins(f"    s_mov_b64 exec, 1\n    ds_add_u32 v{t}, v{t+5}\n    s_mov_b64 exec, -1\n    s_add_u32 s{sTgt}, s{sTgt}, 4", "dsw_op", [t, t + 5], [])]
def poll():
    t = T0; l = lab("p")
    return [Ins(f"{l}:\n    ds_read_b32 v{t+1}, v{t}\n    s_waitcnt lgkmcnt(0)\n    v_readfirstlane_b32 s{sT+3}, v{t+1}\n"
                f"    s_cmp_ge_u32 s{sT+3}, s{sTgt}\n    s_cbranch_scc0 {l}", "waitall", [t], [t + 1])]

def cstage_setup():
    t = sT
    L = []
    for dst, add in ((sFh, 0), (sFres, 2)):
        L += [f"s_lshl_b32 s{t}, s{sJ}, 1", f"s_add_u32 s{t}, s{t}, s{sWin}", f"s_add_u32 s{t}, s{t}, {add}",
              f"s_cmp_ge_u32 s{t}, {NR}", f"s_cselect_b32 s{t+1}, {NR}, 0", f"s_sub_u32 s{t}, s{t}, s{t+1}", f"s_mul_i32 s{dst}, s{t}, {XS}"]
    L += [f"s_add_u32 s{t}, s{sJ}, 1", f"s_and_b32 s{t}, s{t}, 2", f"s_lshl_b32 s{t}, s{t}, 2", f"s_add_u32 s{sFres}, s{sFres}, s{t}"]
    return L

def dry_exit(): return [f"s_cmp_lg_u32 s{sDry}, 0", "s_cbranch_scc1 Ldry_ret"] if cfg.WARM and MODE[0] == "P" else []
def dry_point(name): return [opaque(dry_exit() + [name + ":"])] if cfg.WARM and MODE[0] == "P" else []

def cs(k):
    if not (cfg.STAMP and cfg.CST): return []
    return [Ins("\n".join("    " + l for l in [f"s_lshl_b32 s95, s{sP}, 3", f"s_add_u32 s95, s95, {30 + k}"] + stamp(17, "s95")), "waitall")]

def csetup():
    L = [S(x) for x in cstage_setup()]
    L += [S(f"s_mov_b32 s{sT}, {XS}")]
    t0, t1, t2 = T0, T0 + 1, T0 + 4
    L += [V(f"v_bfe_u32 v{t2}, v{vL16}, 7, 2"), V(f"v_lshlrev_b32 v{t2}, 1, v{t2}"), V(f"v_mov_b32 v{T0+2}, 0"), V(f"v_mov_b32 v{T0+3}, 0")]
    for k in range(3):
        if k: L += [V(f"v_add_u32 v{t2}, 2, v{t2}")]
        L += [V(f"v_add_u32 v{t0}, s{sWin}, v{t2}"), V(f"v_subrev_u32 v{t1}, {NR}, v{t0}"), V(f"v_min_u32 v{t0}, v{t0}, v{t1}"),
              V(f"v_mad_u32_u24 v{t0}, v{t0}, s{sT}, v{vColB}"), V(f"v_and_b32 v{t1}, 4, v{t2}"), V(f"v_lshl_add_u32 v{cAddr+k}, v{t1}, 1, v{t0}")]
    L += [V(f"v_mov_b32 v{cTa}, v{vTa}"), V(f"v_bfe_u32 v{cIdx}, v{vL16}, 4, 2"), V(f"v_mul_u32_u24 v{cIdx}, 0x5555, v{cIdx}")]
    L += [V(f"v_add_u32 v{cRes}, s{sFres}, v{vRes}"), V(f"v_add_u32 v{cHw}, v{cAddr}, v{vHwA}"), V(f"v_add_u32 v{cHr}, s{sFh}, v{vHr}")]
    L += [S(f"s_lshl_b32 s{sT}, s{sJ}, 11"), V(f"v_add_u32 v{T0+4}, s{sT}, v{vL16}"),
          S(f"s_lshl_b32 s{sT}, s{sGrp}, 2"), S(f"s_add_u32 s{sT}, s{sT}, {CBASE}"), V(f"v_mov_b32 v{T0}, s{sT}"), V(f"v_mov_b32 v{T0+5}, 1")]
    return L

def out_cvt(q):
    X, b = divmod(q, 3); a = acc2(X, b); d = H + 24 * X + 8 * b
    return [V(f"v_cvt_pk_bf16_f32 v{d+i}, v{a+2*i}, v{a+2*i+1}") for i in range(8)]
def out_fin(q):
    X, b = divmod(q, 3); d = H + 24 * X + 8 * b
    return [V(f"v_permlane16_swap_b32 v{d+i}, v{d+4+i}") for i in range(4)] + [store(X, 2 * b), store(X, 2 * b + 1)]

def pk_stats():
    ST, QT = G, G + 4
    L = []
    SA, QA = 56, 64
    for q in range(6):
        for u in range(4):
            y = ACC2 + 16 * q + 4 * u
            if q == 0: L += [pk("add", SA + 2 * u, y, y + 2), pk("mul", QA + 2 * u, y, y), pk("fma", QA + 2 * u, y + 2, y + 2, QA + 2 * u)]
            else:
                for e in (0, 2): L += [pk("add", SA + 2 * u, SA + 2 * u, y + e), pk("fma", QA + 2 * u, y + e, y + e, QA + 2 * u)]
    for u in range(4): L += [V(f"v_add_f32 v{ST+u}, v{SA+2*u}, v{SA+2*u+1}"), V(f"v_add_f32 v{QT+u}, v{QA+2*u}, v{QA+2*u+1}")]
    return L

def conv_first():
    ST, QT = G, G + 4
    L = [S(f"s_setprio {cfg.CPRIO}"), V(f"v_add_u32 v92, {2 * TGRP}, v{cTa}"), V(f"v_add_u32 v93, {4 * TGRP}, v{cTa}")]
    L += unit_reads(0, True) + unit_reads(1, True)
    L += [MFMA("32x32x8", ACC2 + 16 * q, T0 + 2, T0 + 2, None) for q in range(6)]
    for u in range(36):
        buf = cBuf[u % 2]
        if u == 18: L += dry_point("Ldry0")
        if cfg.BC1 and u == cfg.BC1:
            l = lab("t"); L.append(opaque([f"s_cmp_eq_u32 s{sGrp}, 0", f"s_cbranch_scc1 {l}"] + bar_lines(None) + [f"{l}:"]))
        if cfg.BC1 == 36 and u == 35: pass
        L.append(SM32(ACC2 + 16 * (u % 6), buf + 8, buf, cIdx))
        if u + 2 in (12, 24):
            l = lab("r"); L.append(opaque([f"s_or_b32 s{sT}, s{sDry}, s{sGrp}", f"s_cbranch_scc1 {l}", "s_barrier", f"{l}:"]))
        L += unit_reads(u + 2, True) if u + 2 < 36 else res_reads(3 * (u - 34)) + res_reads(3 * (u - 34) + 1) + res_reads(3 * (u - 34) + 2)
    for k in range(6, 12): L += res_reads(k)
    L += [S(f"s_mov_b32 s{sO+2}, 50331648"), S(f"s_mov_b32 s{sStInc}, {16 * 98304}")]
    L += pk_stats()
    L.append(Ins("s_waitcnt lgkmcnt(0)", "waitall"))
    return L

def cstage():
    NB = cfg.NBUF
    ST, QT = G, G + 4
    L = [COMMENT("previous tile out, convolution")]
    if cfg.CPRIO: L.append(S(f"s_setprio {cfg.CPRIO}"))
    def zero(q): return MFMA("32x32x8", ACC2 + 16 * q, T0 + 2, T0 + 2, None)
    def stat(q):
        o = []
        for e in range(4):
            for u in range(4):
                y = ACC2 + 16 * q + 4 * u + e
                if q == 0 and e == 0: o += [V(f"v_mul_f32 v{QT+u}, v{y}, v{y}")]
                elif q == 0 and e == 1: o += [V(f"v_add_f32 v{ST+u}, v{y-1}, v{y}"), V(f"v_fmac_f32 v{QT+u}, v{y}, v{y}")]
                else: o += [V(f"v_add_f32 v{ST+u}, v{ST+u}, v{y}"), V(f"v_fmac_f32 v{QT+u}, v{y}, v{y}")]
        return o
    L += cs(0) + unit_reads(0) + unit_reads(1)
    c0 = out_cvt(0)
    L += [g2(1, 1, 0)] + c0[:4] + [g2(1, 1, 1)] + c0[4:] + [g2(1, 1, 2), zero(0)]
    nst = 0
    def mid(nst):
        lm = lab("m")
        return opaque([f"s_or_b32 s{sT}, s{sFirst}, s{sDry}", f"s_cbranch_scc1 {lm}"] + bar_lines(f"s_waitcnt vmcnt({nst})") +
                      [f"s_cmp_eq_u32 s{sGrp}, 0", f"s_cbranch_scc0 {lm}"] + [l for gg in wdma_interval() for l in gg] + [f"{lm}:"])
    for u in range(36):
        q, rho = divmod(u, 6); buf = cBuf[u % NB]
        if u == 18: L += dry_point("Ldry1")
        if u == cfg.MIDU: L.append(mid(nst))
        nxt = unit_reads(u + 2) if u + 2 < 36 else res_reads(3 * (u - 34)) + res_reads(3 * (u - 34) + 1) + res_reads(3 * (u - 34) + 2)
        early = 3 if NB == 3 else 0
        if nxt[0].kind == "valu": early += 1
        L += nxt[:early] + [SM32(ACC2 + 16 * q, buf + 8, buf, cIdx)] + nxt[early:]
        st = stat(q - 1) if q and not cfg.PKST else []
        fill = {0: out_fin(q), 1: st[:8], 2: (out_cvt(q + 1) if q < 5 else []), 3: st[8:16] + ([zero(q + 1)] if q < 5 else []), 4: st[16:24], 5: st[24:]}[rho]
        nst += sum(i.kind == "vstore" for i in fill)
        L += fill
    for k in range(6, 12): L += res_reads(k)
    L += [S(f"s_add_u32 s{sStO}, s{sStO}, s{sStInc}"), S(f"s_add_u32 s{sStO2}, s{sStO}, 98304"), S(f"s_mov_b32 s{sO+2}, 50331648"), S(f"s_mov_b32 s{sStInc}, {16 * 98304}")]
    L += cs(1) + (pk_stats() if cfg.PKST else stat(5))
    if MODE[0] == "P": L.append(opaque(dry_exit() + ["Ljoin:"]))
    L += [DSW("ds_write_b64", T0 + 4, ST + 2 * k, 2, f"offset:{PBASE + 1024 * (k >> 1) + 8 * (k & 1)}") for k in range(4)]
    L.append(Ins("", "touch", [r for x in XF for r in R(x, 4)], [], cost=0))
    L += cs(2) + signal() + ([mid(12)] if cfg.MIDU == 36 else []) + poll()
    L += cs(3)
    L += [COMMENT("LayerNorm, exchange of the normalised tile, residual into the accumulators, first GEMM1")]
    dst = {(0, 0): ST, (0, 1): QT, (1, 0): 56, (1, 1): 60, (2, 0): 64, (2, 1): 68, (3, 0): 72, (3, 1): 76}
    for w in range(4):
        for k in range(2): L.append(DSR("ds_read_b128", dst[(w, k)], 4, vL16, f"offset:{PBASE + 2048 * w + 1024 * k}"))
    MN, SQ, SC, SH = 56, 60, 64, 68
    if cfg.PKF:
        def pks(op, d, x, sreg, *rest, mods=""):
            return V(f"v_pk_{op}_f32 v[{d}:{d+1}], v[{x}:{x+1}], s[{sreg}:{sreg+1}]" + "".join(f", v[{r}:{r+1}]" for r in rest) + mods)
        for k in range(2):
            for h in (0, 2): L += [pk("add", dst[(0, k)] + h, dst[(0, k)] + h, dst[(1, k)] + h), pk("add", dst[(2, k)] + h, dst[(2, k)] + h, dst[(3, k)] + h)]
        for k in range(2):
            for h in (0, 2): L += [pk("add", dst[(0, k)] + h, dst[(0, k)] + h, dst[(2, k)] + h)]
        for h in (0, 2): L += [pks("mul", MN + h, ST + h, sInv96, mods=" op_sel_hi:[1,0]")]
        for h in (0, 2): L += [pk("mul", SQ + h, MN + h, MN + h)]
        for h in (0, 2): L += [pks("fma", SQ + h, QT + h, sInv96, SQ + h, mods=" op_sel_hi:[1,0,1] neg_lo:[0,0,1] neg_hi:[0,0,1]")]
        L += [DSR("ds_read_b128", G, 4, vL16, f"offset:{IBASE}"), DSR("ds_read_b128", G + 4, 4, vL16, f"offset:{IBASE + 1024}")]
        for u in range(4): L += [V(f"v_max_f32 v{SQ+u}, 0, v{SQ+u}")]
        for h in (0, 2): L += [pks("add", SQ + h, SQ + h, sInv96, mods=" op_sel:[0,1] op_sel_hi:[1,1]")]
        for u in range(4): L += [V(f"v_rsq_f32 v{SQ+u}, v{SQ+u}")]
        for h in (0, 2): L += [pks("mul", SC + h, SQ + h, sKap, mods=" op_sel_hi:[1,0]")]
        for h in (0, 2): L += [pk("mul", SH + h, MN + h, SC + h, mods=" neg_lo:[1,0] neg_hi:[1,0]")]
    else:
        for k in range(2):
            for u in range(4): L += [V(f"v_add_f32 v{dst[(0,k)]+u}, v{dst[(0,k)]+u}, v{dst[(1,k)]+u}")]
            for u in range(4): L += [V(f"v_add_f32 v{dst[(2,k)]+u}, v{dst[(2,k)]+u}, v{dst[(3,k)]+u}")]
            for u in range(4): L += [V(f"v_add_f32 v{dst[(0,k)]+u}, v{dst[(0,k)]+u}, v{dst[(2,k)]+u}")]
        MN, SQ, SC, SH = 56, 60, 64, 68
        for u in range(4): L += [V(f"v_mul_f32 v{MN+u}, s{sInv96}, v{ST+u}")]
        for u in range(4): L += [V(f"v_mul_f32 v{SQ+u}, v{MN+u}, v{MN+u}")]
        for u in range(4): L += [V(f"v_fma_f32 v{SQ+u}, v{QT+u}, s{sInv96}, -v{SQ+u}")]
        L += [DSR("ds_read_b128", G, 4, vL16, f"offset:{IBASE}"), DSR("ds_read_b128", G + 4, 4, vL16, f"offset:{IBASE + 1024}")]
        for u in range(4): L += [V(f"v_max_f32 v{SQ+u}, 0, v{SQ+u}")]
        for u in range(4): L += [V(f"v_add_f32 v{SQ+u}, s{sEps}, v{SQ+u}")]
        for u in range(4): L += [V(f"v_rsq_f32 v{SQ+u}, v{SQ+u}")]
        for u in range(4): L += [V(f"v_mul_f32 v{SC+u}, s{sKap}, v{SQ+u}")]
        for u in range(4): L += [V(f"v_mul_f32 v{SH+u}, -v{MN+u}, v{SC+u}")]
    L += dry_point("Ldry3")
    if cfg.MIDU == 37: L.append(mid(12))
    if cfg.PKN:
        for q in range(6):
            for u in range(4):
                for e in (0, 2):
                    y = ACC2 + 16 * q + 4 * u + e; o = u & 1
                    L.append(pk("fma", y, y, SC + (u & 2), SH + (u & 2), mods=f" op_sel:[0,{o},{o}] op_sel_hi:[1,{o},{o}]"))
    L += cs(4)
    if cfg.MIDU == 38: L.append(mid(12))
    first_w1 = opaque([f"s_cmp_lg_u32 s{sFirst}, 0", "s_cbranch_scc1 Lw1wait", f"Lw1wait_ret{MODE[0]}:"] + [w_addr()[0].text])
    def ident(q):
        X, b = divmod(q, 3)
        return [MFMA("32x32x16", acc2(X, b), G, XF[6 * X + 2 * b], None), MFMA("32x32x16", acc2(X, b), G + 4, XF[6 * X + 2 * b + 1], acc2(X, b))]
    def cvt(q):
        o = []
        for u in range(4):
            y = ACC2 + 16 * q + 4 * u
            if not cfg.PKN: o += [V(f"v_fma_f32 v{y+e}, v{y+e}, v{SC+u}, v{SH+u}") for e in range(4)]
            o += [V(f"v_cvt_pk_bf16_f32 v{H+12*u+2*q+h}, v{y+2*h}, v{y+2*h+1}") for h in range(2)]
            if not cfg.W2X: o += [DSW("ds_write_b64", cHw, H + 12 * u + 2 * q, 2, f"offset:{192 * u + 8 * q}")]
            elif u & 1:
                r0, r1 = H + 12 * (u - 1) + 2 * q, H + 12 * u + 2 * q
                o += [Ins(f"ds_write2_b64 v{cHw}, v[{r0}:{r0+1}], v[{r1}:{r1+1}] offset0:{24 * (u - 1) + q} offset1:{24 * u + q}", "dsw", [cHw, r0, r0 + 1, r1, r1 + 1], [])]
        return o
    for q in range(6):
        c = cvt(q)
        if q >= 1:
            i0, i1 = ident(q - 1); n = len(c)
            c = c[:1] + [i0] + c[1:n // 2] + [i1] + c[n // 2:]
        L += c
    L += cs(5) + signal()
    L += ident(5)
    L.append(first_w1)
    for j in range(6): L += rd_w1(j, 1)
    L += [V(f"v_mov_b32 v{G+4+i}, 0") for i in range(4)]
    L += poll()
    L += cs(6)
    L += [DSR("ds_read_b128", H + 8 * s + 4 * X, 4, cHr, f"offset:{XS * X + 32 * s}") for X in range(2) for s in range(6)]
    L += [g1(0, j) for j in range(6)]
    L.append(Ins("s_waitcnt lgkmcnt(0)", "waitall"))
    L += cs(7)
    if cfg.CPRIO: L.append(S("s_setprio 0"))
    ab = cfg.ABL.split("+")
    if "hw" in ab: L = [i for i in L if not (i.kind == "dsw" and cHw in i.rd)]
    if "pk" in ab: L = [i for i in L if i.kind != "pk32"]
    if "brd" in ab: L = [i for i in L if not (i.text.startswith("ds_read_b64") and i.rd & set(R(cAddr, 3)))]
    if "sm" in ab: L = [i for i in L if "smfmac" not in i.text]
    if "st" in ab: L = [i for i in L if i.kind != "vstore"]
    if "unpk" in ab:
        out = []
        for i in L:
            if i.kind != "pk32": out.append(i); continue
            m = re.match(r"v_pk_(\w+)_f32 (.*?)( op_sel.*)?$", i.text); regs = [int(x) for x in re.findall(r"v\[(\d+):", m.group(2))]
            o = 1 if m.group(3) and "op_sel:[0,1" in m.group(3) else 0
            for h in range(2):
                r = [regs[0] + h, regs[1] + h] + [(x + o if m.group(3) else x + h) for x in regs[2:]]
                out.append(V(f"v_{m.group(1)}_f32 " + ", ".join(f"v{x}" for x in r)))
        L = out
    return L

def epilogue(with_stores):
    L = [COMMENT("epilogue: last GEMM2 k-step, convert")]
    att = [[g2(1, 1, b)] for b in range(3)]
    def cv(X, t):
        a = acc2(X, t >> 1) + 8 * (t & 1); d = H + 24 * X + 4 * t
        return [V(f"v_cvt_pk_bf16_f32 v{d+i}, v{a+2*i}, v{a+2*i+1}") for i in range(4)]
    def fin(X, u):
        d = H + 24 * X + 8 * u
        o = [V(f"v_permlane16_swap_b32 v{d+i}, v{d+4+i}") for i in range(4)] if cfg.S64 else []
        return o + ([store(X, 2 * u), store(X, 2 * u + 1)] if with_stores else [])
    seq = [(X, u) for X in range(2) for u in range(3)]
    body = []
    for k, (X, u) in enumerate(seq):
        body.append(cv(X, 2 * u) + cv(X, 2 * u + 1) + (fin(*seq[k - 1]) if k else []))
    first = body[0] + body[1] + body[2]
    L += first[:2] + interleave(first[2:], att, 0.0, 0.5)
    L += body[3] + body[4] + body[5] + fin(*seq[5])
    return L

def wparams(mode, first):
    P = []; a = P.append
    if mode == "P":
        a(f"s_mov_b32 s{sW}, s6"); a(f"s_and_b32 s{sW+1}, s7, 0xffff"); a(f"s_mov_b32 s{sW+2}, {12 * WSET}"); a(f"s_mov_b32 s{sW+3}, 0x20000")
        a(f"s_mov_b32 s{sWstep}, {WSET}"); a(f"s_mov_b32 s{sWlim}, {12 * WSET}"); a(f"s_mov_b32 s{sWins}, 1024"); a(f"s_mov_b32 s{sWbase}, s{sJ3k}")
        a(f"s_mov_b32 s{sWsrc}, {first * WSET}"); a(f"v_mov_b32 v{vDMA}, v{vL16}")
        return P
    a(f"s_cmp_lt_u32 s{sJ}, 2"); a(f"s_cselect_b32 s{sW}, s10, s12"); a(f"s_cselect_b32 s{sW+1}, s11, s13")
    a(f"s_cselect_b32 s{sWstep}, 64, 6144"); a(f"s_mov_b32 s{sWins}, 1024")
    a(f"s_cselect_b32 s{sWins}, 12288, s{sWins}"); a(f"s_cselect_b32 s{sWsrc}, {first + 1}, {first}"); a(f"s_mul_i32 s{sWsrc}, s{sWsrc}, s{sWstep}"); a(f"s_mul_i32 s{sWlim}, s{sWstep}, 12")
    a(f"s_and_b32 s{sW+1}, s{sW+1}, 0xffff"); a(f"s_mov_b32 s{sW+2}, 73728"); a(f"s_mov_b32 s{sW+3}, 0x20000")
    a(f"s_and_b32 s{sT+3}, s{sJ}, 1"); a(f"s_mul_i32 s{sT+3}, s{sT+3}, 3"); a(f"s_mul_i32 s{sWbase}, s{sT+3}, s{sWins}")
    a(f"v_lshrrev_b32 v20, 6, v{vL16}"); a("v_mul_u32_u24 v20, 768, v20"); a(f"v_and_b32 v21, 48, v{vL16}"); a("v_add_u32 v20, v20, v21")
    a(f"s_cmp_lt_u32 s{sJ}, 2"); a("s_cselect_b64 vcc, -1, 0"); a(f"v_cndmask_b32 v{vDMA}, v{vL16}, v20, vcc")
    return P

def prologue():
    P = []
    a = P.append
    a(f"s_cmp_ge_u32 s2, 256"); a("s_cbranch_scc1 Lend")
    if cfg.STAMP: a("s_memtime s[92:93]"); a("s_load_dwordx2 s[94:95], s[0:1], 56")
    if cfg.DBG or cfg.ENC or cfg.THR: a("s_memtime s[92:93]"); a("s_memrealtime s[94:95]")
    a("s_load_dwordx8 s[4:11], s[0:1], 0"); a("s_load_dwordx4 s[12:15], s[0:1], 32"); a("s_load_dwordx4 s[56:59], s[0:1], 48")
    a("v_lshrrev_b32 v16, 6, v0"); a("v_and_b32 v17, 63, v0")
    a(f"v_readfirstlane_b32 s{sT}, v16")
    if cfg.WARM:
        a("s_getpc_b64 s[60:61]"); a("v_lshlrev_b32 v38, 6, v0"); a("v_min_u32 v38, CODE_LAST, v38")
        a("global_load_dword v39, v38, s[60:61]")
    a(f"s_and_b32 s{sT+1}, s2, 7"); a(f"s_lshl_b32 s{sT+1}, s{sT+1}, 5"); a(f"s_lshr_b32 s{sT+2}, s2, 3"); a(f"s_add_u32 s{sT+1}, s{sT+1}, s{sT+2}")
    a(f"s_lshr_b32 s{sTy}, s{sT+1}, 4"); a(f"s_and_b32 s{sTx}, s{sT+1}, 15")
    a(f"s_lshr_b32 s{sGrp}, s{sT}, 2"); a(f"s_and_b32 s{sJ}, s{sT}, 3"); a(f"s_mov_b32 s{sXrow}, s{sT}")
    a(f"s_mul_i32 s{sJ3k}, s{sJ}, 3072"); a(f"s_movk_i32 s{s1k}, 1024")
    a(f"s_mov_b32 s{sEx48}, -1"); a(f"s_mov_b32 s{sEx48+1}, 0xffff")
    a(f"v_lshlrev_b32 v{vL16}, 4, v17")
    a(f"s_cmp_eq_u32 s{sTx}, 0"); a(f"s_cselect_b32 s{sAdjL}, 0, 384"); a(f"s_cselect_b32 s{sT+3}, 384, 0"); a(f"s_cselect_b32 s{sT+4}, 24, 0")
    a(f"v_subrev_u32 v{vOffL}, s{sT+3}, v{vL16}"); a(f"v_cmp_le_u32 vcc, s{sT+4}, v17"); a("s_nop 1")
    a(f"v_cndmask_b32 v{vOffL}, 2.0, v{vOffL}, vcc")
    a(f"s_cmp_eq_u32 s{sTx}, 15"); a(f"s_cselect_b32 s{sT+4}, 24, 64"); a(f"v_cmp_gt_u32 vcc, s{sT+4}, v17"); a("s_nop 1")
    a(f"v_cndmask_b32 v{vOffR}, 2.0, v{vL16}, vcc")
    a("v_mul_u32_u24 v18, 683, v0"); a("v_lshrrev_b32 v18, 16, v18")
    a("v_mul_u32_u24 v19, 96, v18"); a("v_sub_u32 v19, v0, v19")
    a("v_mul_u32_u24 v20, 960, v18"); a("v_lshl_add_u32 v20, v19, 1, v20")
    a("v_lshlrev_b32 v21, 1, v19")
    P += row_setup()
    a("s_waitcnt lgkmcnt(0)")
    if cfg.STAMP: a("s_memtime s[96:97]"); a("s_memrealtime s[98:99]"); a("s_waitcnt lgkmcnt(0)")
    for (d, p, n) in ((sX, 4, 50331648), (28, 8, 4800), (32, 6, 192), (sO, 14, 0)):
        a(f"s_mov_b32 s{d}, s{p}"); a(f"s_and_b32 s{d+1}, s{p+1}, 0xffff"); a(f"s_mov_b32 s{d+2}, {n}"); a(f"s_mov_b32 s{d+3}, 0x20000")
    for j in range(5): a(f"buffer_load_ushort v{24+j}, v20, s[28:31], 0 offen offset:{192*j}")
    a("buffer_load_ushort v29, v21, s[32:35], 0 offen")
    a("s_mov_b64 s[4:5], s[56:57]"); a("s_mov_b64 s[6:7], s[58:59]")
    a(f"s_cmp_eq_u32 s{sXrow}, 3"); a(f"s_cselect_b32 s{sFrag}, s2, {NPROD}")
    a("v_mov_b32 v48, 0"); a(f"v_lshlrev_b32 v49, 2, v17")
    a(f"s_cmp_lt_u32 s{sFrag}, {NPROD}"); a("s_cbranch_scc0 Lprep_noload")
    a(f"s_mul_i32 s{sT+2}, s{sFrag}, 21846"); a(f"s_lshr_b32 s{sT+2}, s{sT+2}, 16"); a(f"s_mul_i32 s{sT+3}, s{sT+2}, 3"); a(f"s_sub_u32 s{sT+6}, s{sFrag}, s{sT+3}")
    a("s_mov_b32 s28, s10"); a("s_and_b32 s29, s11, 0xffff"); a("s_mov_b32 s30, 73728"); a("s_mov_b32 s31, 0x20000")
    a("s_mov_b32 s32, s12"); a("s_and_b32 s33, s13, 0xffff"); a("s_mov_b32 s34, 73728"); a("s_mov_b32 s35, 0x20000")
    a(f"s_add_u32 s{sT+3}, s{sT+2}, 1"); a(f"s_cmp_eq_u32 s{sT+3}, 12"); a(f"s_cselect_b32 s{sT+3}, 0, s{sT+3}"); a(f"s_lshl_b32 s{sT+3}, s{sT+3}, 6")
    a(f"s_mul_i32 s{sT+4}, s{sT+2}, 6144")
    a("v_lshrrev_b32 v50, 5, v17"); a("v_and_b32 v51, 31, v17")
    a("v_mul_u32_u24 v52, 6144, v50"); a("v_lshl_add_u32 v52, v51, 1, v52"); a("v_add_u32 v53, 3072, v52")
    a("v_mul_u32_u24 v54, 768, v50"); a("v_and_b32 v50, 19, v51"); a("v_lshl_add_u32 v54, v50, 1, v54")
    a("v_and_b32 v50, 4, v51"); a("v_lshl_add_u32 v54, v50, 2, v54"); a("v_and_b32 v50, 8, v51"); a("v_add_u32 v54, v54, v50")
    def ld(q, r):
        if q < 6:
            a(f"s_add_u32 s{sT+5}, s{sT+3}, {q * 12288}")
            for i in range(8): a(f"buffer_load_ushort v{r+i}, v{52 + i // 4}, s[28:31], s{sT+5} offen offset:{768 * (i & 3)}")
        else:
            sp, bb = divmod(q - 6, 3)
            a(f"s_add_u32 s{sT+5}, s{sT+4}, {sp * 3072 + bb * 64}")
            for i in range(8): a(f"buffer_load_ushort v{r+i}, v54, s[32:35], s{sT+5} offen offset:{192 * (i & 3) + 1536 * (i >> 2)}")
    def cv(q, r, mx):
        for i in range(0, 8, 2): a(f"v_and_b32 v50, 0x7fff, v{r+i}"); a(f"v_and_b32 v51, 0x7fff, v{r+i+1}"); a(f"v_max3_u32 v{mx}, v{mx}, v50, v51")
        if q < 6:
            for i in range(4): a(f"v_lshl_or_b32 v{r+i}, v{r+1+2*i}, 16, v{r+2*i}")
        else:
            for i in range(8): a(f"v_lshlrev_b32 v{r+i}, 16, v{r+i}")
            for i in range(4): a(f"v_cvt_pk_f16_f32 v{r+i}, v{r+2*i}, v{r+1+2*i}")
    a(f"s_mov_b32 s{sThird}, s{sT+6}")
    for third in range(3):
        if third < 2: a(f"s_cmp_eq_u32 s{sT+6}, {third}"); a(f"s_cbranch_scc0 Lprep_t{third + 1}")
        for i in range(4): ld(4 * third + i, 64 + 8 * i)
        if third < 2: a("s_branch Lprep_noload"); a(f"Lprep_t{third + 1}:")
    def prep_convert():
        a(f"s_cmp_lt_u32 s{sFrag}, {NPROD}"); a("s_cbranch_scc0 Lprep_nocv")
        a("v_mov_b32 v56, 0"); a("v_mov_b32 v57, 0"); a("s_waitcnt vmcnt(9)")
        for third in range(3):
            if third < 2: a(f"s_cmp_eq_u32 s{sThird}, {third}"); a(f"s_cbranch_scc0 Lprep_c{third + 1}")
            if third != 1: a(f"v_mov_b32 v{57 if third == 0 else 56}, 0x3a80")
            for i in range(4): cv(4 * third + i, 64 + 8 * i, 56 if 4 * third + i < 6 else 57)
            if third < 2: a("s_branch Lprep_st"); a(f"Lprep_c{third + 1}:")
        a("Lprep_st:")
        a("s_mov_b32 s28, s6"); a("s_and_b32 s29, s7, 0xffff"); a(f"s_mov_b32 s30, {12 * WSET}"); a("s_mov_b32 s31, 0x20000"); a(f"s_lshl_b32 s{sT+2}, s{sFrag}, 12")
        for i in range(4): a(f"buffer_store_dwordx4 v[{64+8*i}:{67+8*i}], v{vL16}, s[28:31], s{sT+2} offen offset:{1024 * i} sc0 sc1")
        a("v_max_u32 v50, v56, v57"); a("v_cmp_lt_u32 vcc, 0x4100, v50"); a("s_cmp_lg_u64 vcc, 0"); a(f"s_cselect_b32 s{sT+4}, 3, 1")
        a("v_cmp_le_u32 vcc, 0x3a80, v56"); a("s_cmp_lg_u64 vcc, 0"); a(f"s_cselect_b32 s{sT+5}, 4, 0"); a(f"s_or_b32 s{sT+4}, s{sT+4}, s{sT+5}")
        a("v_cmp_le_u32 vcc, 0x3a80, v57"); a("s_cmp_lg_u64 vcc, 0"); a(f"s_cselect_b32 s{sT+5}, 8, 0"); a(f"s_or_b32 s{sT+4}, s{sT+4}, s{sT+5}")
        a(f"v_mov_b32 v48, s{sT+4}"); a("s_branch Ldry_skip")
        a("Lprep_nocv:")
    a("Lprep_noload:")
    if cfg.CLS: a(f"s_cmp_ge_u32 s2, {cfg.CLS}"); a("s_cbranch_scc1 Lrow_late")
    a(f"s_mov_b64 exec, s[{sEx48}:{sEx48+1}]")
    for g in row_loads(): P += g
    a("s_mov_b64 exec, -1")
    if cfg.CLS: a("Lrow_late:")
    a("s_mov_b32 s32, s4"); a("s_and_b32 s33, s5, 0xffff"); a("s_mov_b32 s34, 256"); a("s_mov_b32 s35, 0x20000")
    P += wparams("P", 1)
    assert cfg.WLATE
    if cfg.STAMP: a("s_memtime s[100:101]"); a("s_waitcnt lgkmcnt(0)")
    a(f"s_mov_b32 s{sA16}, {A_imm:#x}"); a(f"s_mov_b32 s{sK16}, {K_imm:#x}")
    a(f"s_mov_b32 s{sInv96}, {f32bits(1/96):#x}"); a(f"s_mov_b32 s{sEps}, {f32bits(1e-5):#x}"); a(f"s_mov_b32 s{sKap}, {f32bits(kap_use):#x}")
    D = cfg.D
    a(f"s_lshl_b32 s{sT}, s{sTy}, 5"); a(f"s_lshl_b32 s{sT+1}, s{sGrp}, 3"); a(f"s_add_u32 s{sT}, s{sT}, s{sT+1}"); a(f"s_lshl_b32 s{sT+1}, s{sJ}, 1")
    a(f"s_add_u32 s{sT}, s{sT}, s{sT+1}"); a(f"s_mul_i32 s{sT}, s{sT}, 98304"); a(f"s_mul_i32 s{sT+1}, s{sTx}, 6144"); a(f"s_add_u32 s{sStO}, s{sT}, s{sT+1}")
    a(f"s_mov_b32 s{sDry+1}, s{sStO}")
    def addresses():
        a(f"v_lshrrev_b32 v37, 4, v{vL16}")
        a("v_and_b32 v30, 7, v37"); a("v_lshrrev_b32 v31, 5, v37"); a("v_bfe_u32 v32, v37, 4, 1")
        a(f"s_mul_i32 s{sT}, s{sJ}, 48"); a(f"s_add_u32 s{sT}, s{sT}, {XBASE}")
        a("v_mul_u32_u24 v33, 784, v30"); a("v_mul_u32_u24 v34, 384, v31"); a(f"v_add3_u32 v{vColB}, v33, v34, s{sT}")
        a(f"v_mul_u32_u24 v33, {XS - 384}, v31"); a("v_lshlrev_b32 v34, 3, v32"); a(f"v_sub_u32 v{vHwA}, v33, v34")
        a("v_and_b32 v35, 31, v37"); a("v_lshlrev_b32 v36, 4, v31")
        a(f"v_mul_u32_u24 v33, 192, v35"); a(f"v_add_u32 v{vSt}, v33, v36")
        a("v_lshrrev_b32 v33, 2, v35"); a(f"v_lshl_add_u32 v33, v33, 4, v{vSt}"); a(f"v_add_u32 v{vHr}, {XBASE}, v33")
        a("v_add_u32 v33, 2, v35"); a("v_lshrrev_b32 v33, 2, v33"); a(f"v_lshl_add_u32 v33, v33, 4, v{vSt}"); a(f"v_add_u32 v{vRes}, {XBASE + 384}, v33")
        if cfg.S64:
            a("v_and_b32 v33, 15, v37"); a("v_mul_u32_u24 v33, 192, v33"); a("v_lshl_add_u32 v33, v32, 5, v33"); a(f"v_add_u32 v{vSt}, v33, v36")
        a("v_and_b32 v33, 3, v37"); a("v_bfe_u32 v34, v37, 2, 2")
        a("v_and_b32 v35, 1, v37"); a("v_mul_u32_u24 v35, 400, v35"); a("v_bfe_u32 v36, v37, 1, 1"); a("v_mul_u32_u24 v36, 192, v36"); a("v_add_u32 v35, v35, v36")
        a("v_bfe_u32 v36, v37, 2, 1"); a("v_lshlrev_b32 v36, 5, v36"); a("v_sub_u32 v35, v35, v36")
        a("v_bfe_u32 v36, v37, 3, 2"); a("v_lshlrev_b32 v36, 2, v36"); a("v_sub_u32 v35, v35, v36")
        a(f"s_mul_i32 s{sT}, s{sJ}, {6 * TGRP}"); a(f"s_add_u32 s{sT}, s{sT}, {TBASE}")
        a("v_lshl_add_u32 v35, v31, 4, v35"); a(f"v_add_u32 v{vTa}, s{sT}, v35")
        a("v_lshl_add_u32 v35, v31, 3, v34"); a("v_lshlrev_b32 v35, 6, v35"); a("v_lshl_add_u32 v35, v32, 5, v35"); a(f"v_lshl_add_u32 v{vW1b}, v33, 3, v35")
        a("v_lshl_add_u32 v35, v31, 2, v34"); a("v_mul_u32_u24 v35, 192, v35"); a("v_lshl_add_u32 v35, v32, 5, v35")
        a("v_and_b32 v36, 1, v37"); a("v_lshl_add_u32 v35, v36, 4, v35"); a("v_bfe_u32 v36, v37, 1, 1"); a(f"v_lshl_add_u32 v{vW2b}, v36, 3, v35")
    def enter(targets, ret=0, keep=False):
        a(f"s_mov_b32 s{sDry+3}, {ret}"); a(f"s_mov_b32 s{sSave}, s{sRing}"); a(f"s_mov_b32 s{sSave+1}, s{sSig}")
        a(f"s_mov_b32 s{sDry}, 1"); a(f"s_mov_b32 s{sFirst}, 0"); a(f"s_mov_b32 s{sCnt}, 1"); a(f"s_mov_b32 s{sT+3}, -1"); a(f"s_mov_b32 s{sTgt}, 0")
        a(f"s_mov_b32 s{sDry+2}, s{sWsrc}"); a("s_waitcnt lgkmcnt(0)")
        a("s_setvskip -1, 0")
        for k, t in enumerate(targets[:3]): a(f"s_cmp_eq_u32 s{sJ}, {k}"); a(f"s_cbranch_scc1 {t}")
        a(f"s_branch {targets[3]}")
    def init_state():
        a(f"s_mov_b32 s{sXM}, 0"); a(f"s_mov_b32 s{sRing}, {WBASE}")
        a(f"s_mov_b32 s{sSig}, 1"); a(f"s_mov_b32 s{sP}, 0"); a(f"s_xor_b32 s{sFirst}, s{sGrp}, 1"); a(f"s_lshl_b32 s{sWin}, s{sGrp}, 3")
        a(f"s_mov_b32 s{sStInc}, 0"); a(f"s_mov_b32 s{sStO}, s{sDry+1}"); a(f"s_add_u32 s{sStO2}, s{sStO}, 98304"); a(f"s_mov_b32 s{sTgt}, 0")
        a(f"s_mov_b32 s{sO+2}, 0"); a(f"s_mov_b32 s{sDry}, 0")
    init_state()
    a(f"v_mov_b32 v{vSt}, 0")
    a(f"s_cmp_eq_u32 s{sGrp}, 0"); a("s_cbranch_scc0 Ldry_skip")
    addresses()
    a("v_bfe_u32 v35, v37, 3, 1"); a("v_lshl_add_u32 v35, v35, 2, v33")
    a("v_and_b32 v36, 1, v35"); a("v_lshlrev_b32 v36, 4, v36"); a("v_mov_b32 v38, 0x3f80"); a("v_lshlrev_b32 v36, v36, v38")
    a("v_lshrrev_b32 v35, 1, v35"); a("v_lshl_add_u32 v35, v32, 2, v35")
    a("v_bfe_u32 v38, v37, 2, 1"); a("v_cmp_eq_u32 vcc, v38, v31"); a("s_nop 1"); a("v_cndmask_b32 v35, 8, v35, vcc")
    for d in range(8):
        a(f"v_cmp_eq_u32 vcc, {d}, v35"); a("s_nop 1"); a(f"v_cndmask_b32 v{40+d}, 0, v36, vcc")
    a(f"ds_write_b128 v{vL16}, v[40:43] offset:{IBASE}"); a(f"ds_write_b128 v{vL16}, v[44:47] offset:{IBASE + 1024}")
    prep_convert()
    if cfg.WARM:
        enter(["Lc1", "Ldry0", "Ljoin", "Ldry3"])
        a("Ldry_ret:"); a("s_setvskip 0, 0"); a("s_mov_b64 exec, -1"); a("s_setprio 0"); a(f"s_mov_b32 s{sWsrc}, s{sDry+2}")
        init_state()
        a(f"s_mov_b32 s{sRing}, s{sSave}"); a(f"s_mov_b32 s{sSig}, s{sSave+1}")
        for k, n in ((1, "Ldry_B"), (2, "Ldry_B2"), (3, "Ldry_B3")) + (((4, "Ldry_A4"),) if cfg.LAST else ()): a(f"s_cmp_eq_u32 s{sDry+3}, {k}"); a(f"s_cbranch_scc1 {n}")
    a("Ldry_skip:")
    if cfg.CLS:
        a(f"s_cmp_ge_u32 s2, {cfg.CLS}"); a("s_cbranch_scc0 Lrow_done"); a("s_waitcnt vmcnt(0)")
        a(f"s_mov_b64 exec, s[{sEx48}:{sEx48+1}]")
        for g in row_loads(): P += g
        a("s_mov_b64 exec, -1"); a("Lrow_done:")
    a("s_waitcnt vmcnt(9)")
    a("v_cmp_eq_u32 vcc, 2, v18"); a("v_lshlrev_b32 v29, 16, v29"); a("s_nop 0"); a("v_cndmask_b32 v29, 0, v29, vcc"); a("v_or_b32 v26, v26, v29")
    a("v_mov_b32 v29, 0"); a("v_mov_b32 v30, 0"); a("v_mov_b32 v31, 0")
    a(f"v_lshrrev_b32 v33, 2, v19"); a(f"v_mul_u32_u24 v33, {TGRP}, v33"); a("v_lshl_add_u32 v33, v18, 5, v33")
    a("v_and_b32 v34, 1, v19"); a("v_mul_u32_u24 v34, 400, v34"); a("v_bfe_u32 v35, v19, 1, 1"); a("v_mul_u32_u24 v35, 192, v35"); a("v_add3_u32 v33, v33, v34, v35")
    a("v_cmp_gt_u32 vcc, 480, v0"); a("s_and_saveexec_b64 s[72:73], vcc")
    a(f"ds_write_b128 v33, v[24:27] offset:{TBASE}"); a(f"ds_write_b128 v33, v[28:31] offset:{TBASE + 16}")
    a("s_mov_b64 exec, -1")
    a("v_mov_b32 v28, 0")
    a("v_cmp_eq_u32 vcc, 4, v18"); a("s_and_saveexec_b64 s[72:73], vcc")
    a(f"ds_write_b128 v33, v[28:31] offset:{TBASE + 32}"); a(f"ds_write_b128 v33, v[28:31] offset:{TBASE + 48}")
    a("v_and_b32 v34, 3, v19"); a("v_cmp_eq_u32 vcc, 2, v34"); a("s_and_b64 exec, exec, vcc")
    a(f"ds_write_b128 v33, v[28:31] offset:{TBASE + 64}")
    a("s_mov_b64 exec, -1")
    a("v_mov_b32 v33, 0")
    for o in (0, 16, 32): a(f"ds_write_b128 v33, v[28:31] offset:{TPAD + o}")
    a(f"ds_write_b128 v33, v[28:31] offset:{CBASE}")
    if cfg.STAMP:
        a("v_mov_b32 v16, 0"); a("v_mov_b32 v17, 0"); a("v_writelane_b32 v16, s92, 60"); a("v_writelane_b32 v16, s96, 56")
        a("v_writelane_b32 v16, s98, 54"); a("v_writelane_b32 v16, s100, 57")
        P += stamp(16, 61)
        a(f"s_mov_b32 s96, {cfg.SMASK & 0xffffffff:#x}"); a(f"s_mov_b32 s97, {(cfg.SMASK >> 32) & 0xffffffff:#x}")
    a(f"s_cmp_eq_u32 s{sGrp}, 0"); a("s_cbranch_scc0 Lpro_w4")
    P += [i.text for i in csetup()]
    a("s_waitcnt vmcnt(0) lgkmcnt(0)"); P += stamp(16, 58)
    a(f"s_cmp_lt_u32 s{sFrag}, {NPROD}"); a("s_cbranch_scc0 Lflag_done"); a(f"s_lshl_b32 s{sT+2}, s{sFrag}, 2")
    a("s_mov_b64 exec, 1"); a(f"buffer_store_dword v48, v49, s[32:35], s{sT+2} offen sc0 sc1"); a("s_mov_b64 exec, -1")
    P += stamp(16, 57); a("Lflag_done:")
    a(f"s_mov_b32 s{sWsrc}, {8 * WSET}"); a(f"s_lshl_b32 s{sXrow}, s{sJ}, 1"); a(f"s_add_u32 s{sXrow}, s{sXrow}, 20")
    a("s_barrier")
    P += stamp(17, 58); a("s_branch Lc1")
    a("Lpro_w4:")
    a(f"s_mov_b64 exec, s[{sEx48}:{sEx48+1}]")
    a(f"s_and_b32 s{sXrow}, s{sJ}, 1"); a(f"s_add_u32 s{sXrow}, s{sXrow}, 8")
    for r in range(2):
        P += row_setup()
        a(f"s_cmp_lt_u32 s{sJ}, 2"); a(f"s_cbranch_scc0 Lpro_h{r}")
        for g in row_loads()[:5]: P += g
        a(f"s_branch Lpro_g{r}"); a(f"Lpro_h{r}:")
        for g in row_loads()[5:] + row_loads()[8:]: P += g
        a(f"Lpro_g{r}:"); a(f"s_add_u32 s{sXrow}, s{sXrow}, 2")
        if r == 0: a("s_waitcnt vmcnt(5) lgkmcnt(0)"); P += stamp(16, 58); a("s_barrier")
    a("s_mov_b64 exec, -1")
    a("s_waitcnt vmcnt(5)"); a("s_barrier"); a("s_waitcnt vmcnt(0)"); a("s_barrier")
    P += stamp(17, 50)
    addresses()
    if cfg.WARM:
        enter(["Lbody2P", "Lq12", "Lhalf2", "Lq32"], 1); a("Ldry_B:")
    if cfg.WARM and cfg.LPOLL:
        enter(["Lbody1P", "Lq11", "Lhalf1", "Lq31"], 2); a("Ldry_B2:")
    a(f"v_mov_b32 v18, {CBASE + 8}"); a(f"s_cmp_eq_u32 s{sJ}, 0"); a("s_cbranch_scc0 Lmode_wait")
    a(f"v_lshrrev_b32 v20, 2, v{vL16}"); a(f"s_mov_b32 s{sT}, {cfg.POLLS}"); a(f"s_mov_b32 s{sMode}, 2")
    P += stamp(17, 51)
    a("Lpoll_g:"); a("buffer_load_dword v19, v20, s[32:35], 0 offen sc1"); a("s_waitcnt vmcnt(0)")
    a("v_cmp_ne_u32 vcc, 0, v19"); a(f"s_bcnt1_i32_b64 s{sT+2}, vcc"); a(f"s_cmp_eq_u32 s{sT+2}, {NPROD}"); a("s_cbranch_scc1 Lpoll_ok")
    a("s_sleep 12"); a(f"s_sub_u32 s{sT}, s{sT}, 1"); a(f"s_cmp_lg_u32 s{sT}, 0"); a("s_cbranch_scc1 Lpoll_g"); a("s_branch Lmode_set")
    a("Lpoll_ok:")
    P += stamp(17, 52)
    if cfg.STAMP: a(f"v_writelane_b32 v17, s{sT}, 53")
    a("v_cmp_eq_u32 vcc, 13, v19"); a(f"s_bcnt1_i32_b64 s{sT+2}, vcc"); a(f"s_cmp_eq_u32 s{sT+2}, {NPROD}"); a("s_cbranch_scc0 Lmode_set")
    a(f"s_mov_b32 s{sMode}, {cfg.FORCE or 1}")
    a("Lmode_set:"); a(f"v_mov_b32 v19, s{sMode}"); a("ds_write_b32 v18, v19")
    a("Lmode_wait:"); a("ds_read_b32 v19, v18"); a("s_waitcnt lgkmcnt(0)"); a(f"v_readfirstlane_b32 s{sMode}, v19")
    a(f"s_cmp_eq_u32 s{sMode}, 0"); a("s_cbranch_scc1 Lmode_wait")
    P += stamp(16, 59)
    a(f"s_cmp_eq_u32 s{sMode}, 1"); a("s_cbranch_scc1 Lmode_P")
    P += wparams("R", 1)
    a("Lmode_P:")
    for q in range(1, 4):
        for g in wdma_groups(f"{WBASE + q * WSET}"): P += g
    if cfg.WARM and not cfg.LPOLL:
        enter(["Lbody1P", "Lq11", "Lhalf1", "Lq31"], 2); a("Ldry_B2:")
    a("s_waitcnt vmcnt(6)"); a("s_barrier")
    assert D == 3
    P += bar_lines()
    for g in wdma_interval(): P += g
    a(f"s_lshl_b32 s{sXrow}, s{sJ}, 1"); a(f"s_add_u32 s{sXrow}, s{sXrow}, 12"); a(f"s_mov_b64 exec, s[{sEx48}:{sEx48+1}]")
    P += row_dma_lines(); a(f"s_add_u32 s{sXrow}, s{sXrow}, 1")
    P += row_dma_lines(); a(f"s_add_u32 s{sXrow}, s{sXrow}, 7")
    a("s_mov_b64 exec, -1")
    P += bar_lines("s_waitcnt vmcnt(18)")
    for g in wdma_interval(): P += g
    if cfg.WARM:
        enter(["LconvP", "Ldry1", "Lbody0P", "Lhalf0"], 3); a("Ldry_B3:")
    a(f"s_cmp_eq_u32 s{sMode}, 1"); a("s_cbranch_scc0 LouterR")
    return P

HEADER = """
; kernarg: 0 x, 8 dw_large, 16 dw_small, 24 w1, 32 w2, 40 out, 48 debug, 56 workspace
;
;  - depthwise 5x5 (+1x1 in a spare slot of the centre tap): sparse MFMA 32x32x32, A = banded tap matrix read from an LDS
;    table, one wave per 24 channels; f32 sums; LayerNorm statistics and the normalised tile are exchanged through LDS.
;    registers; weights stream through a 4-set LDS ring.  gelu(v) = v / (1 + exp2(a v + b v^3)), the tanh form exactly.
;  - 36 waves re-lay w1 / w2 into MFMA fragment order in the workspace at the start of the launch (w2 as f16) and report in
;    the GELU output and the second GEMM use f16 (labels ..P); otherwise, or if the reports do not arrive, the workgroup
;    reads the weights as given and keeps the GELU output and second GEMM in bf16 / f32 (labels ..R).
;  - waves that wait at the start walk through the later code with s_setvskip on, only to fill the instruction cache.
"""

def build():
    D = cfg.D
    out = []
    hdr = HEADER.strip("\n").split("\n") + [
           f"; @launch grid=(256,1,1) block=(512,1,1) lds={LDS_BYTES}",
           '.amdgcn_target "amdgcn-amd-amdhsa--gfx950"', ".text", f".globl {KNAME}", ".p2align 8", f".type {KNAME},@function", f"{KNAME}:"]
    out += hdr
    def raw(lines):
        for l in lines: out.append(l if l.endswith(":") or l.startswith(".") else "    " + l)
    raw(prologue())
    for m in "PR":
        MODE[0] = m
        epi0, epi1 = csetup(), epilogue(True)
        cs = cstage()
        bodies = [loop_body(0), loop_body(1), loop_body(2)]
        marks = [LABEL(n) for n in ("@c", "@a1", "@a2", "@b2", "@e0", "@x", "@e1", "@end")]
        lin = [marks[0]] + cs + [marks[1]] + bodies[0] + [marks[2]] + bodies[0] + [marks[3]] + bodies[1] + [marks[4]] + epi0 + [marks[5]] + bodies[2] + [marks[6]] + epi1 + [marks[7]]
        lin, pend = insert_lgkm(lin, cfg.OLD); assert not pend
        lin, _ = fix_hazards(lin)
        idx = [next(k for k, i in enumerate(lin) if i is m) for m in marks]
        cst, a1, a2, b2, e0, n2, e1 = (lin[idx[k] + 1: idx[k + 1]] for k in range(7))
        n1 = sum(states(i) for i in a1 if i.kind == "nop") - sum(states(i) for i in a2 if i.kind == "nop")
        assert [i.text for i in a1 if i.kind != "nop"] == [i.text for i in a2 if i.kind != "nop"]
        if n1 > 0: cst = cst + [Ins(f"s_nop {n1 - 1}", "nop")]
        for path in ([cst, n2, a2, a2, b2, a2, e0, cst, b2, a2, e1], [cst, n2, n2, e0, cst, n2, n2, e1]):
            seq = [i for blk in path for i in blk]
            _, bad = fix_hazards(seq, check_only=True); assert not bad, bad
            assert not check_lgkm(seq)
        def emit(blk):
            for i in blk:
                if i.kind == "touch": continue
                for l in i.text.split("\n"): out.append(l if i.kind in ("label", "opaque", "dsw_op") or l.startswith("    ") or l.endswith(":") else "    " + l)
        if m == "P":
            c1, pend = insert_lgkm(e0 + [LABEL("@")] + conv_first(), cfg.OLD); c1, _ = fix_hazards(c1)
            c1 = c1[[i.text for i in c1].index("@:") + 1:]
            kj = [k for k, i in enumerate(cst) if "Ljoin:" in i.text][0]
            _, bad = fix_hazards(c1 + cst[kj:], check_only=True); assert not bad, bad
            check_lgkm(c1 + cst[kj:])
            raw(["s_branch LouterP", "Lc1:"]); emit(c1); raw(dry_exit() + ["s_branch Ljoin"])
            raw(["Lw1wait:", "s_barrier", f"ds_read_b32 v{T0+1}, v{T0} offset:8", "s_waitcnt lgkmcnt(0)", f"v_readfirstlane_b32 s{sMode}, v{T0+1}",
                 f"s_cmp_eq_u32 s{sMode}, 1", "s_cbranch_scc1 Lw1wait_retP"] + wparams("R", 8) + ["s_branch Lw1wait_retR"])

        out.append(f"Louter{m}:")
        emit(e0)
        raw(bar_lines())
        raw([f"s_cmp_eq_u32 s{sGrp}, 0", f"s_cbranch_scc0 Lno_w{m}"] + [l for g in wdma_interval() for l in g] + [f"Lno_w{m}:"])
        if cfg.BC1 and m == "P": raw([f"s_cmp_eq_u32 s{sP}, 0", "s_cbranch_scc1 Lc1"])
        out.append(f"Lconv{m}:")
        emit(cst)
        raw(dry_exit())
        raw([f"s_sub_u32 s{sLastC}, s{sGrp}, s{sP}", f"s_max_i32 s{sLastC}, s{sLastC}, 0", f"s_mov_b32 s{sCnt}, 9",
             f"s_or_b32 s{sT}, s{sGrp}, s{sFirst}", f"s_cbranch_scc0 LloopX{m}",
             f"s_sub_u32 s{sCnt}, 6, s{sP}" if cfg.LAST else f"s_mov_b32 s{sCnt}, 6", f"s_cmp_lg_u32 s{sFirst}, 0", f"s_cselect_b32 s{sCnt}, 2, s{sCnt}", f"s_branch LloopN{m}"])
        tail = [f"s_add_u32 s{sWin}, s{sWin}, 4", f"s_cmp_ge_u32 s{sWin}, {NR}", f"s_cselect_b32 s{sWin}, 0, s{sWin}",
                f"s_add_u32 s{sP}, s{sP}, 1", f"s_cmp_eq_u32 s{sP}, 1", f"s_cbranch_scc1 Louter{m}"]
        raw([".p2align 6", f"LloopX{m}:"]); emit(b2)
        raw(dry_exit() + [f"s_mov_b32 s{sXM}, 1", f"s_mov_b32 s{sLastC}, 1", f"s_cmp_eq_u32 s{sP}, 0", f"s_cselect_b32 s{sCnt}, 1, 5", "s_waitcnt vmcnt(18)", f"s_branch Lnowait0{m}"])
        raw([".p2align 6", f"LloopA{m}:"]); emit(a2)
        raw([f"s_sub_u32 s{sCnt}, s{sCnt}, 1", f"s_cmp_lg_u32 s{sCnt}, 0", f"s_cbranch_scc1 LloopA{m}"] + dry_exit() +
            [f"s_mov_b32 s{sCnt}, 9", f"s_cmp_eq_u32 s{sXM}, 0", f"s_cbranch_scc1 LloopX{m}"] + tail)
        k6 = [k for k, i in enumerate(e1) if i.kind == "vstore"][5] + 1
        raw(bar_lines()); raw([l for g in wdma_interval() for l in g])
        if cfg.LAST and cfg.WARM and m == "P":
            raw(["s_getpc_b64 s[60:61]", "Lpc3:", "s_add_u32 s60, s60, Lbody3P-Lpc3", "s_addc_u32 s61, s61, 0", f"s_lshl_b32 s{sT}, s{sJ}, 11",
                 f"v_lshl_add_u32 v{T0}, v{vL16}, 1, s{sT}", f"global_load_dword v{T0+1}, v{T0}, s[60:61]"])
        emit(e1[:k6])
        raw(bar_lines("s_waitcnt vmcnt(6)")); raw([l for g in wdma_interval() for l in g]); emit(e1[k6:])
        raw(stamp(16, 62))
        raw(bar_lines("s_waitcnt vmcnt(6)")); raw([l for g in wdma_interval() for l in g])
        if cfg.LAST and cfg.WARM and m == "P":
            raw([f"s_mov_b32 s{sDry+3}, 4", f"s_mov_b32 s{sDry}, 1", "s_setvskip -1, 0", f"s_cmp_eq_u32 s{sJ}, 0", "s_cbranch_scc1 Lbody3P", f"s_cmp_eq_u32 s{sJ}, 1", "s_cbranch_scc1 Lq13",
                 f"s_cmp_eq_u32 s{sJ}, 2", "s_cbranch_scc1 Lhalf3", "s_branch Lq33", "Ldry_A4:"])
        raw(bar_lines())
        raw(["s_branch Lfin"])
        raw([".p2align 6", f"LloopN{m}:"]); emit(n2)
        raw([f"s_sub_u32 s{sCnt}, s{sCnt}, 1", f"s_cmp_lg_u32 s{sCnt}, 0", f"s_cbranch_scc1 LloopN{m}"] + dry_exit() + [
             f"s_cmp_lg_u32 s{sFirst}, 0", f"s_mov_b32 s{sFirst}, 0", f"s_mov_b32 s{sCnt}, 2", f"s_cbranch_scc1 LloopA{m}"] + tail)
        if cfg.LAST:
            lb, _ = insert_lgkm(n2 + [LABEL("@")] + last_body(), cfg.OLD); lb, _ = fix_hazards(lb)
            lb = lb[[i.text for i in lb].index("@:") + 1:]
            check_lgkm(n2 + lb)
            emit(lb)
        else:
            out.append(f"Lepi1{m}:")
            emit(e1)
        raw(dry_exit())
        raw(stamp(16, 62))
        raw(["s_branch Lfin"] if m == "P" else [])
        if m == "P": out.append("Lraw:")
    out.append("Lfin:")
    if cfg.STAMP:
        raw(["s_waitcnt vmcnt(0)"] + stamp(16, 63) + ["s_memrealtime s[98:99]", "s_waitcnt lgkmcnt(0)", "v_writelane_b32 v16, s98, 55",
             "s_load_dwordx2 s[94:95], s[0:1], 56", "s_waitcnt lgkmcnt(0)", "s_mov_b32 s28, s94", "s_and_b32 s29, s95, 0xffff", "s_mov_b32 s30, 0x1000000", "s_mov_b32 s31, 0x20000",
             f"s_lshl_b32 s89, s{sGrp}, 2", f"s_add_u32 s89, s89, s{sJ}", "s_lshl_b32 s90, s2, 3", "s_add_u32 s89, s89, s90", "s_lshl_b32 s89, s89, 9", "s_add_u32 s89, s89, 0x100000",
             f"v_lshrrev_b32 v18, 2, v{vL16}", "buffer_store_dword v16, v18, s[28:31], s89 offen", "buffer_store_dword v17, v18, s[28:31], s89 offen offset:256"])
    if cfg.DBG:
        raw(["s_waitcnt vmcnt(0)", "s_memtime s[90:91]", "s_memrealtime s[96:97]", "s_load_dwordx2 s[98:99], s[0:1], 48", "s_waitcnt lgkmcnt(0)",
             "s_sub_u32 s90, s90, s92", "s_sub_u32 s96, s96, s94", "s_mov_b32 s28, s98", "s_and_b32 s29, s99, 0xffff", "s_mov_b32 s30, 64", "s_mov_b32 s31, 0x20000",
             f"s_cmp_eq_u32 s{sGrp}, 1", "s_cbranch_scc0 Lend", f"s_cmp_eq_u32 s{sJ}, 0", "s_cbranch_scc0 Lend",
             "s_lshr_b32 s89, s2, 5", "s_lshl_b32 s89, s89, 3", "s_and_b32 s91, s2, 31", "s_cmp_eq_u32 s91, 0", "s_cbranch_scc0 Lend",
             "v_mov_b32 v16, s90", "v_mov_b32 v17, s96", "v_mov_b32 v18, 0", "s_mov_b64 exec, 1", "buffer_store_dwordx2 v[16:17], v18, s[28:31], s89 offen"])
    if cfg.ENC:
        raw(["s_waitcnt vmcnt(0)", "s_memtime s[90:91]", "s_memrealtime s[96:97]", "s_waitcnt lgkmcnt(0)", "s_sub_u32 s90, s90, s92", "s_sub_u32 s96, s96, s94",
             f"s_cmp_eq_u32 s{sGrp}, 1", "s_cbranch_scc0 Lend", f"s_cmp_eq_u32 s{sJ}, 0", "s_cbranch_scc0 Lend",
             f"v_lshrrev_b32 v18, 3, v{vL16}", f"buffer_load_ushort v19, v18, s[{sO}:{sO+3}], s{sStO} offen sc0 sc1",
             f"v_lshrrev_b32 v20, 4, v{vL16}", "v_and_b32 v21, 7, v20", "v_mul_u32_u24 v21, 3, v21", "v_cmp_gt_u32 vcc, 8, v20", "v_mov_b32 v22, s90", "v_mov_b32 v23, s96",
             "v_cndmask_b32 v22, v23, v22, vcc", "v_lshrrev_b32 v22, v21, v22", "v_and_b32 v22, 7, v22", "s_waitcnt vmcnt(0)", "v_and_b32 v19, 0xfff8, v19", "v_or_b32 v19, v19, v22",
             "s_mov_b64 exec, 0xffff", f"buffer_store_short v19, v18, s[{sO}:{sO+3}], s{sStO} offen sc0 sc1"])
    if cfg.THR:
        raw(["s_waitcnt vmcnt(0)", "s_memrealtime s[96:97]", "s_waitcnt lgkmcnt(0)", "s_sub_u32 s96, s96, s94", f"s_cmp_gt_u32 s96, {cfg.THR}", "s_cbranch_scc0 Lend",
             "v_mov_b32 v18, 0", "v_mov_b32 v19, 0x4000", "s_mov_b64 exec, 1", f"buffer_store_short v19, v18, s[{sO}:{sO+3}], s{sStO} offen sc0 sc1"])
    raw(["Lend:", "s_endpgm"])
    if cfg.ALIGN:
        tmp, npad, nwid = align8([l.replace("CODE_LAST", "0x1000") for l in out], "Lc1", "Lend")
        out = [l.replace("v38, 0x1000", "v38, CODE_LAST") for l in tmp]
        sys.stderr.write(f"align8: {npad} pads, {nwid} widened\n")
    nbytes = sum(insn_sizes([l.replace("CODE_LAST", "0x1000") for l in out])[:out.index("Lraw:")])
    out = [l.replace("CODE_LAST", str(nbytes // 64 * 64 - 128)) for l in out]
    sys.stderr.write(f"hot code bytes {nbytes}\n"); assert nbytes <= 32768 or cfg.STAMP
    out += ['.section .rodata,"a"', ".p2align 6", f".amdhsa_kernel {KNAME}", "  .amdhsa_next_free_vgpr 256", f"  .amdhsa_next_free_sgpr {102 if cfg.STAMP or cfg.DBG or cfg.ENC or cfg.THR else 96}",
            "  .amdhsa_accum_offset 256", "  .amdhsa_group_segment_fixed_size 0", "  .amdhsa_kernarg_size 64", "  .amdhsa_user_sgpr_count 2",
            "  .amdhsa_user_sgpr_kernarg_segment_ptr 1", "  .amdhsa_system_sgpr_workgroup_id_x 1", ".end_amdhsa_kernel"]
    return "\n".join(out) + "\n"

open(sys.argv[1], "w").write(build())
```

```python
import sys, struct, math
import numpy as np, re
from asmlib import *

class Cfg:
    D = 3
    GELU = "B"
    PRIO = 1
    CPRIO = 3
    XF = 'nt'
    OF = 'sc0+sc1'
    WF = 'sc1'
    ALIGN = True
    STAMP = False
    SMASK = -1
    OLD = 200
    CSL = 0
    FLAGU = -1
    PREA = False
    EARLY = True
    PFIRST = False
    LPOLL = False
    PKF = False
    W2X = False
    BC1 = 28
    ZW1 = True
    PPOS = ''
    CLS = 0
    THR = 0
    ENC = False
    LAST = True
    PKST = 1
    MIDU = 33
    NBUF = 2
    RT = False
    NOINV = False
    FORCE = 0
    POLLS = 300
    S64 = True
    DBG = False
    WARM = True
    HW64 = True
    PBASE = 3
    ABL = ''
    CST = False
    PKS = 0
    PKN = True
    W1G = True
    R2 = False
    NOSTAT = False
    NOCRD = False
    N0 = 15
    WLATE = True
cfg = Cfg()
for a in sys.argv[2:]:
    k, v = a.split("=")
    setattr(cfg, k, type(getattr(cfg, k))(v) if not isinstance(getattr(cfg, k), bool) else v in ("1", "True"))

KNAME = "standalone__modern_conv_block_replknet__vision_kernel"
XS = 7104; NR = 12
TPAD = 0
TBASE = 48
TGRP = 784
IBASE = TBASE + 24 * TGRP
PBASE = IBASE + 2048
CBASE = PBASE + 8192
WBASE = CBASE + 16
WSET = 12288
XBASE = WBASE + 4 * WSET
LDS_BYTES = XBASE + NR * XS
assert LDS_BYTES <= 163840, LDS_BYTES
assert WBASE % 16 == 0 and IBASE % 16 == 0
vColB, vHwA, vRes, vHr, vTa, vSt, vW1b, vW2b, vW1c, vW2c, vDMA, vOffL, vOffR, vL16 = range(1, 15)
T0 = 18
G = 24
W2F = 32
W1F = 56
ACC1 = (80, 96)
H = 112
ACC2 = 160
def acc2(X, b): return ACC2 + 48 * X + 16 * b
cBuf = (56, 68, 80)
cAddr = 104
cTa, cIdx, cRes, cHw, cHr = 107, 108, 109, 110, 111
XF = [32, 36, 40, 44, 48, 52, 92, 96, 100, 80, 84, 88]
sX, sO, sW = 16, 20, 24
sGrp, sJ, sTx, sTy, sSig, sRing, sWsrc, sWstep, sWlim, sWins, sWbase, sP, sCnt = range(36, 49)
sA16, sK16, sStO = 49, 50, 51
sWin, sXrow, sFirst = 63, 64, 65
sXM, sXinc = 66, 67
sExX = 68
sAdjL = 70
sT = 71
sEx48 = 80
sInv96, sEps, sKap = 82, 83, 84
sDry = 56
sFrag, sMode, sThird = 62, 3, 60
sSave = 68
sLastC = 67
sStO2, sTgt = 52, 53
sFres, sFh = 54, 55
sXo, sXm = 85, 86
sStInc = 87
s1k = 89
sJ3k = 88
RSUM = 2 * WBASE + 2 * WSET

def f32bits(x): return struct.unpack("<I", struct.pack("<f", x))[0]
def f16bits(x): return int(np.float16(x).view(np.uint16))
a_c = -2.0 * math.log2(math.e) * math.sqrt(2.0 / math.pi)
b_c = a_c * 0.044715
kap = -((-b_c) ** (1.0 / 3.0))
if cfg.GELU in ("B",):
    kap_use = float(np.float16(kap))
    A_imm = f16bits(a_c / kap_use) * 0x10001
    K_imm = f16bits(kap_use) * 0x10001
else:
    kap_use = kap
    A_imm = f32bits(a_c / kap)
    K_imm = f32bits(kap)

def fl(s): return ''.join(' ' + w for w in s.split('+') if w)
uid = [0]
INLOOP = [False]
MODE = ['P']
NPROD = 36
def lab(p):
    uid[0] += 1
    return f"L{p}_{uid[0]}"

def opaque(lines):
    return Ins("\n".join("    " + l if not l.endswith(":") else l for l in lines), "opaque", cost=0)

def stamp(vreg, lane):
    if not cfg.STAMP: return []
    return ["s_memtime s[90:91]", f"s_mov_b32 m0, {lane}", "s_waitcnt lgkmcnt(0)", f"v_writelane_b32 v{vreg}, s90, m0"]
def cstamp(vreg):
    if not cfg.STAMP: return []
    if cfg.RT:
        if vreg == 16: return []
        return stamp(17, f"s{sSig}") + [x.replace("s_memtime", "s_memrealtime") for x in stamp(16, f"s{sSig}")]
    if cfg.SMASK == -1: return stamp(vreg, f"s{sSig}")
    l = lab("s")
    return [f"s_bitcmp1_b64 s[96:97], s{sSig}", f"s_cbranch_scc0 {l}"] + stamp(vreg, f"s{sSig}") + [f"{l}:"]

def wdma_groups(dst):
    out = []
    for u in range(3):
        g = [f"s_add_u32 m0, {dst}, s{sJ3k}", f"s_add_u32 s{sT+8}, s{sWsrc}, s{sWbase}"] if u == 0 else \
            [f"s_add_u32 m0, m0, s{s1k}", f"s_add_u32 s{sT+8}, s{sT+8}, s{sWins}"]
        g.append(f"buffer_load_dwordx4 v{vDMA}, s[{sW}:{sW+3}], s{sT+8} offen{fl(cfg.WF)} lds")
        if u == 2: g += [f"s_add_u32 s{sWsrc}, s{sWsrc}, s{sWstep}", f"s_cmp_eq_u32 s{sWsrc}, s{sWlim}", f"s_cselect_b32 s{sWsrc}, 0, s{sWsrc}"]
        out.append(g)
    return out
def wdma_interval():
    g = wdma_groups(f"s{sT+7}") + wdma_groups(f"s{sT+7}")
    g[0] = [f"s_sub_u32 s{sT+7}, {RSUM}, s{sRing}"] + g[0]
    g[3] = [f"s_add_u32 s{sT+7}, s{sT+7}, {WSET}"] + g[3]
    return g

def row_setup():
    t0, t1, t2 = sT, sXo, sT + 1
    return [f"s_lshl_b32 s{t0}, s{sTy}, 5", f"s_add_u32 s{t0}, s{t0}, s{sXrow}", f"s_sub_u32 s{t0}, s{t0}, 2",
            f"s_mul_i32 s{t1}, s{t0}, 98304", f"s_mul_i32 s{t2}, s{sTx}, 6144", f"s_add_u32 s{t1}, s{t1}, s{t2}",
            f"s_cmp_lt_u32 s{t0}, 512", f"s_cselect_b32 s{t1}, s{t1}, 0x80000000",
            f"s_cmp_ge_u32 s{sXrow}, 24", f"s_cselect_b32 s{t2}, 24, 0", f"s_sub_u32 s{t0}, s{sXrow}, s{t2}",
            f"s_cmp_ge_u32 s{t0}, 12", f"s_cselect_b32 s{t2}, 12, 0", f"s_sub_u32 s{t0}, s{t0}, s{t2}",
            f"s_and_b32 s{t2}, s{sXrow}, 4", f"s_lshl_b32 s{t2}, s{t2}, 1", f"s_mul_i32 s{t0}, s{t0}, {XS}", f"s_add_u32 s{t0}, s{t0}, s{t2}",
            f"s_add_u32 s{sXm}, s{t0}, {XBASE}"]
def row_loads():
    out = [[f"s_mov_b32 m0, s{sXm}", f"s_sub_u32 s{sT}, s{sXo}, s{sAdjL}", f"buffer_load_dwordx4 v{vOffL}, s[{sX}:{sX+3}], s{sT} offen{fl(cfg.XF)} lds"]]
    for a in range(1, 9):
        out.append([f"s_add_u32 m0, s{sXm}, {784 * a}", f"s_add_u32 s{sT}, s{sXo}, {768 * a - 384}",
                    f"buffer_load_dwordx4 v{vOffR if a == 8 else vL16}, s[{sX}:{sX+3}], s{sT} offen{fl(cfg.XF)} lds"])
    return out
def row_dma_lines(): return row_setup() + [l for g in row_loads() for l in g]

def bar_lines(wait="s_waitcnt vmcnt(0)"):
    L = cstamp(16) + ([wait] if wait else []) + ["s_barrier"] + cstamp(17)
    L += [f"s_sub_u32 s{sRing}, {RSUM}, s{sRing}"]
    if cfg.STAMP: L += [f"s_add_u32 s{sSig}, s{sSig}, 1"]
    return L

def gelu_B(Sr):
    ops = []
    def st(p, k):
        a0 = Sr + 2 * p; a1 = a0 + 1; t = T0 + (p % 2) * 3; u = t + 1; w = t + 2
        return [V(f"v_cvt_pk_f16_f32 v{t}, v{a0}, v{a1}"),
                V(f"v_pk_fma_f16 v{u}, v{t}, v{t}, s{sA16}"),
                V(f"v_pk_mul_f16 v{t}, v{t}, v{u}"),
                V(f"v_exp_f16 v{u}, v{t}"),
                V(f"v_exp_f16_sdwa v{u}, v{t} dst_sel:WORD_1 dst_unused:UNUSED_PRESERVE src0_sel:WORD_1"),
                V(f"v_pk_fma_f16 v{t}, v{u}, s{sK16}, s{sK16}"),
                V(f"v_rcp_f16 v{u}, v{t}"),
                V(f"v_rcp_f16_sdwa v{w}, v{t} dst_sel:DWORD dst_unused:UNUSED_PAD src0_sel:WORD_1"),
                V(f"v_fma_mix_f32 v{u}, v{a0}, v{u}, 0 op_sel_hi:[0,1,0]"),
                V(f"v_fma_mix_f32 v{w}, v{a1}, v{w}, 0 op_sel_hi:[0,1,0]"),
                V(f"v_cvt_pk_bf16_f32 v{G+p}, v{u}, v{w}")][k]
    for q in range(0, 8, 2):
        for k in range(11):
            ops += [st(q, k), st(q + 1, k)]
    return ops

def gelu_A(Sr):
    ops = []
    for q in range(0, 16, 4):
        for k in range(6):
            for e in range(4):
                a = Sr + q + e; r = T0 + e
                ops.append([V(f"v_fma_f32 v{r}, v{a}, v{a}, s{sA16}"), V(f"v_mul_f32 v{r}, v{a}, v{r}"), V(f"v_exp_f32 v{r}, v{r}"),
                            V(f"v_fma_f32 v{r}, v{r}, s{sK16}, s{sK16}"), V(f"v_rcp_f32 v{r}, v{r}"), V(f"v_mul_f32 v{r}, v{a}, v{r}")][k])
        ops += [V(f"v_cvt_pk_bf16_f32 v{G+q//2}, v{T0}, v{T0+1}"), V(f"v_cvt_pk_bf16_f32 v{G+q//2+1}, v{T0+2}, v{T0+3}")]
    return ops
def gelu_C(Sr):
    ops = []
    def st(p, k):
        a0 = Sr + 2 * p; a1 = a0 + 1; t = T0 + (p % 2) * 3; u = t + 1; w = t + 2
        return [V(f"v_cvt_pk_f16_f32 v{w}, v{a0}, v{a1}"),
                V(f"v_pk_fma_f16 v{u}, v{w}, v{w}, s{sA16}"),
                V(f"v_pk_mul_f16 v{t}, v{w}, v{u}"),
                V(f"v_exp_f16 v{u}, v{t}"),
                V(f"v_exp_f16_sdwa v{u}, v{t} dst_sel:WORD_1 dst_unused:UNUSED_PRESERVE src0_sel:WORD_1"),
                V(f"v_pk_fma_f16 v{t}, v{u}, s{sK16}, s{sK16}"),
                V(f"v_rcp_f16 v{u}, v{t}"),
                V(f"v_rcp_f16_sdwa v{u}, v{t} dst_sel:WORD_1 dst_unused:UNUSED_PRESERVE src0_sel:WORD_1"),
                V(f"v_pk_mul_f16 v{G+p}, v{w}, v{u}")][k]
    for q in range(0, 8, 2):
        for k in range(9):
            ops += [st(q, k), st(q + 1, k)]
    return ops
def gelu(Sr): return gelu_C(Sr) if MODE[0] == "P" else gelu_B(Sr)

TR = "ds_read_b64_tr_b16"
def rd_w1(j, c):
    if MODE[0] == "P": return [DSR("ds_read_b128", W1F + 4 * j, 4, vW2c if INLOOP[0] and c == 1 else vW1c, f"offset:{WSET * c + 1024 * j}")]
    return [DSR(TR, W1F + 4 * j + 2 * r, 2, vW1c, f"offset:{WSET * c + 1024 * j + 256 * r}") for r in range(2)]
def rd_w2(sp, b, c):
    if MODE[0] == "P": return [DSR("ds_read_b128", W2F + 12 * sp + 4 * b, 4, vW1c, f"offset:{WSET * c + 6144 + 1024 * (3 * sp + b)}")]
    return [DSR(TR, W2F + 12 * sp + 4 * b + 2 * r, 2, vW2c, f"offset:{WSET * c + 6144 + (16 * sp + 8 * r) * 192 + 64 * b}") for r in range(2)]
def g1(X, j):
    return MFMA("32x32x16", ACC1[X], W1F + 4 * j, H + 8 * j + 4 * X, None if j == 0 else ACC1[X])
def g2(X, sp, b):
    return (MFMA16 if MODE[0] == "P" else MFMA)("32x32x16", acc2(X, b), W2F + 12 * sp + 4 * b, G + 4 * sp, acc2(X, b))
def w_addr():
    if MODE[0] == "P": return [V(f"v_add_u32 v{vW1c}, s{sRing}, v{vL16}")]
    return [V(f"v_add_u32 v{vW1c}, s{sRing}, v{vW1b}"), V(f"v_add_u32 v{vW2c}, s{sRing}, v{vW2b}")]

def step(X, c, extra):
    Y = 1 - X
    ld = (X == 0)
    att = [[g2(Y, 1, 0)] + (rd_w2(1, 0, c) if ld else []),
           [g1(Y, 0)] + (rd_w2(0, 0, c) + rd_w1(0, c) if ld else []),
           [g2(Y, 1, 1)] + (rd_w2(0, 1, c) + rd_w2(1, 1, c) if ld else []),
           [g1(Y, 1)] + (rd_w2(0, 2, c) + rd_w1(1, c) if ld else []),
           [g2(Y, 1, 2)] + (rd_w2(1, 2, c) if ld else []),
           [g1(Y, 2)] + (rd_w1(2, c) if ld else []),
           [g1(Y, 3)] + (rd_w1(3, c) if ld else []),
           [g2(X, 0, 0)],
           [g1(Y, 4)] + (rd_w1(4, c) if ld else []),
           [g2(X, 0, 1)],
           [g1(Y, 5)] + (rd_w1(5, c) if ld else []),
           [g2(X, 0, 2)]]
    for k, v in extra.items(): att[k] = att[k] + v
    ops = gelu(ACC1[X])
    return ops[:2] + interleave(ops[2:], att)

def loop_body(grp):
    bl = bar_lines()
    k = bl.index("s_waitcnt vmcnt(0)")
    L = [opaque(bl[:k + 1] + [f"Lnowait{grp}{MODE[0]}:"] + bl[k + 1:] + [f"Lbody{grp}{MODE[0]}:"])]
    L += w_addr()
    INLOOP[0] = cfg.ZW1 and MODE[0] == "P"
    if INLOOP[0]:
        L += [S(f"s_cmp_eq_u32 s{sCnt}, s{sLastC}"), S(f"s_cselect_b32 s{sT}, 0x30000, s{sRing}"), V(f"v_add_u32 v{vW2c}, s{sT}, v{vL16}")]
    ex = [{}, {}, {}, {}]
    if grp in (0, 1):
        for k, g in enumerate(wdma_interval()):
            ex[k // 3 if k < 3 else 1][(7, 9, 11)[k] if k < 3 else (1, 3, 5)[k - 3]] = [opaque(g)]
    if grp == 1:
        rl = row_loads()
        for r in range(2):
            for k in range(3):
                blk = (row_setup() if k == 0 else []) + [f"s_mov_b64 exec, s[{sEx48}:{sEx48+1}]"] + rl[3 * k] + rl[3 * k + 1] + rl[3 * k + 2] + ["s_mov_b64 exec, -1"]
                if k == 2: blk += [f"s_add_u32 s{sXrow}, s{sXrow}, {7 if r else 1}"]
                st, sl = ((1, 8), (1, 11), (2, 7), (2, 11), (3, 3), (3, 7))[3 * r + k]
                ex[st][sl] = [opaque(blk)]
    for k in range(4):
        if k == 2: L += dry_point(f"Lhalf{grp}")
        if k in (1, 3) and grp in (1, 2): L += dry_point(f"Lq{k}{grp}")
        if cfg.PRIO and (not cfg.PPOS or k == 0): L.append(S(f"s_setprio {max(cfg.PBASE - k, 0)}"))
        for n, pos in enumerate(cfg.PPOS.split("+") if cfg.PPOS else []):
            st, sl = map(int, pos.split("."))
            if st == k: ex[k][sl] = ex[k].get(sl, []) + [S(f"s_setprio {2 - n}")]
        L += step(k & 1, k >> 1, ex[k])
    INLOOP[0] = False
    return L

def last_body():
    L = [opaque(bar_lines() + [f"Lbody3{MODE[0]}:"])]
    L += w_addr()
    def g1x(X, acc, j): return MFMA("32x32x16", ACC1[acc], W1F + 4 * j, H + 8 * j + 4 * X, None if j == 0 else ACC1[acc])
    prev = T0 - 1 if False else vI_tmp
    base = vL16 if MODE[0] == "P" else vW1b
    L += [S(f"s_sub_u32 s{sT}, {RSUM}, s{sRing}"), V(f"v_add_u32 v{prev}, s{sT}, v{base}")]
    def rd_w1p(j):
        o = rd_w1(j, 1)
        return [DSR(i.text.split()[0], min(i.wr), len(i.wr), prev, i.text.split()[-1]) for i in o]
    def run(src, att, extra=()):
        ops = gelu(ACC1[src])
        main = ops[2:]
        if extra: main = interleave(main, [[e] for e in extra[0]], extra[1], 1.0)
        return ops[:2] + interleave(main, att)
    quad = [H + 8 * t for t in range(6)]
    def ocv(b): return [V(f"v_cvt_pk_bf16_f32 v{quad[2*b + i // 4] + i % 4}, v{acc2(0, b) + 2*i}, v{acc2(0, b) + 2*i + 1}") for i in range(8)]
    def ofin(b):
        o = [V(f"v_permlane16_swap_b32 v{quad[2*b] + i}, v{quad[2*b+1] + i}") for i in range(4)]
        for t in (2 * b, 2 * b + 1):
            st = store(0, t); d = quad[t]
            o.append(VMEM(re.sub(r"v\[\d+:\d+\]", vr(d, 4), st.text, 1), rd=[vSt] + list(R(d, 4)), store=True))
        return o
    w1 = lambda f: [x for j in range(6) for x in f(j)]
    L += rd_w1(0, 0) + rd_w1(1, 0) + rd_w1(2, 0)
    L += run(0, [[g2(1, 1, 0)] + rd_w2(1, 0, 0) + rd_w1(3, 0), [g2(1, 1, 1)] + rd_w2(1, 1, 0) + rd_w1(4, 0) + rd_w2(0, 0, 0), [g2(1, 1, 2)] + rd_w2(1, 2, 0) + rd_w1(5, 0) + rd_w2(0, 1, 0),
                 [g1x(0, 1, 0)] + rd_w1p(0) + rd_w2(0, 2, 0), [g1x(0, 1, 1)] + rd_w1p(1), [g1x(0, 1, 2)] + rd_w1p(2), [g1x(0, 1, 3)] + rd_w1p(3),
                 [g2(0, 0, 0)] + rd_w2(0, 0, 1), [g1x(0, 1, 4)] + rd_w1p(4), [g2(0, 0, 1)] + rd_w2(0, 1, 1), [g1x(0, 1, 5)] + rd_w1p(5), [g2(0, 0, 2)] + rd_w2(0, 2, 1)])
    L += dry_point("Lq13")
    L += run(1, [[g2(0, 1, 0)] + rd_w2(1, 0, 1), [g1x(1, 0, 0)] + rd_w1(0, 0), [g2(0, 1, 1)] + rd_w2(1, 1, 1), [g1x(1, 0, 1)] + rd_w1(1, 0), [g2(0, 1, 2)] + rd_w2(1, 2, 1),
                 [g1x(1, 0, 2)] + rd_w1(2, 0), [g1x(1, 0, 3)] + rd_w1(3, 0), [g2(0, 0, 0)] + rd_w2(0, 0, 0), [g1x(1, 0, 4)] + rd_w1(4, 0), [g2(0, 0, 1)] + rd_w2(0, 1, 0),
                 [g1x(1, 0, 5)] + rd_w1(5, 0), [g2(0, 0, 2)] + rd_w2(0, 2, 0)])
    L += dry_point("Lhalf3")
    rest = ocv(2)[:2] + ofin(1) + ocv(2)[2:] + [V(f"v_mov_b32 v{vI_tmp}, 0"), V(f"v_mov_b32 v{vI_tmp}, 0")] + ofin(2)
    L += run(0, [[g2(0, 1, 0)] + rd_w2(1, 0, 0), [g2(0, 1, 1)] + rd_w2(1, 1, 0), [g2(0, 1, 2)] + rd_w2(1, 2, 0), [g1x(1, 1, 0)], [g1x(1, 1, 1)], [g1x(1, 1, 2)], [g1x(1, 1, 3)],
                 [g2(1, 0, 0)] + rd_w2(0, 0, 1), [g1x(1, 1, 4)], [g2(1, 0, 1)] + rd_w2(0, 1, 1), [g1x(1, 1, 5)], [g2(1, 0, 2)] + rd_w2(0, 2, 1)],
             (ocv(0) + ocv(1)[:2] + ofin(0) + ocv(1)[2:] + (rest if cfg.EARLY else []), 0.3 if cfg.EARLY else 0.35))
    L += dry_point("Lq33")
    L += run(1, [[g2(1, 1, 0)] + rd_w2(1, 0, 1), [g2(1, 1, 1)] + rd_w2(1, 1, 1), [g2(1, 1, 2)] + rd_w2(1, 2, 1), [], [], [], [], [g2(1, 0, 0)], [], [g2(1, 0, 1)], [], [g2(1, 0, 2)]],
             () if cfg.EARLY else (rest, 0.0))
    L += [V(f"v_mov_b32 v{vI_tmp}, 0"), V(f"v_mov_b32 v{vI_tmp}, 0"), g2(1, 1, 0), g2(1, 1, 1), g2(1, 1, 2)]
    L += out_cvt(3) + out_cvt(4)[:2] + out_fin(3) + out_cvt(4)[2:] + out_cvt(5)[:2] + out_fin(4) + out_cvt(5)[2:] + [V(f"v_mov_b32 v{vI_tmp}, 0"), V(f"v_mov_b32 v{vI_tmp}, 0")] + out_fin(5)
    return L
vI_tmp = 15

def SM32(d, a, b, idx):
    ab = list(R(a, 4)) + list(R(b, 8)) + [idx]
    return Ins(f"v_smfmac_f32_32x32x32_bf16 {vr(d,16)}, {vr(a,4)}, {vr(b,8)}, v{idx}", "mfma",
               ab + list(R(d, 16)), R(d, 16), cost=12, passes=8, srcc=R(d, 16), srcab=ab)

def unit_reads(u, first=False):
    q, rho = divmod(u, 6); buf = cBuf[u % cfg.NBUF]; ta = cTa
    if first: rho, q = divmod(u, 6); ta = (cTa, 92, 93)[q // 2]
    o = 196 * (q % 2) + 8 * rho
    L = []
    if rho == 0 and q and q % 2 == 0 and not first: L.append(V(f"v_add_u32 v{cTa}, {2 * TGRP}, v{cTa}"))
    L += [DSR("ds_read2_b32", buf + 8, 2, ta, f"offset0:{o} offset1:{o+1}"), DSR("ds_read2_b32", buf + 10, 2, ta, f"offset0:{o+2} offset1:{o+3}")]
    for k, c in enumerate((0, 192, 784, 976)):
        L.append(DSR("ds_read_b64", buf + 2 * k, 2, cAddr + rho // 2, f"offset:{XS * (rho & 1) + c + 8 * q}"))
    return L

def store(X, t):
    d = H + 24 * X + 4 * t
    return VMEM(f"buffer_store_dwordx4 {vr(d,4)}, v{vSt}, s[{sO}:{sO+3}], s{sStO2 if X else sStO} offen offset:{64 * (t >> 1) + 3072 * (t & 1) if cfg.S64 else 32 * t}{fl(cfg.OF)}", rd=[vSt] + list(R(d, 4)), store=True)

def res_reads(k):
    X, s = divmod(k, 6)
    return [DSR("ds_read_b64", XF[k] + 2 * r, 2, cRes, f"offset:{XS * X + 32 * s + 8 * r}") for r in range(2)]

def pk(op, d, *src, mods=""):
    return V(f"v_pk_{op}_f32 v[{d}:{d+1}], " + ", ".join(f"v[{x}:{x+1}]" for x in src) + mods)

def signal():
    t = T0
    return [Ins(f"    s_mov_b64 exec, 1\n    ds_add_u32 v{t}, v{t+5}\n    s_mov_b64 exec, -1\n    s_add_u32 s{sTgt}, s{sTgt}, 4", "dsw_op", [t, t + 5], [])]
def poll():
    t = T0; l = lab("p")
    return [Ins(f"{l}:\n    ds_read_b32 v{t+1}, v{t}\n    s_waitcnt lgkmcnt(0)\n    v_readfirstlane_b32 s{sT+3}, v{t+1}\n"
                f"    s_cmp_ge_u32 s{sT+3}, s{sTgt}\n    s_cbranch_scc0 {l}", "waitall", [t], [t + 1])]

def cstage_setup():
    t = sT
    L = []
    for dst, add in ((sFh, 0), (sFres, 2)):
        L += [f"s_lshl_b32 s{t}, s{sJ}, 1", f"s_add_u32 s{t}, s{t}, s{sWin}", f"s_add_u32 s{t}, s{t}, {add}",
              f"s_cmp_ge_u32 s{t}, {NR}", f"s_cselect_b32 s{t+1}, {NR}, 0", f"s_sub_u32 s{t}, s{t}, s{t+1}", f"s_mul_i32 s{dst}, s{t}, {XS}"]
    L += [f"s_add_u32 s{t}, s{sJ}, 1", f"s_and_b32 s{t}, s{t}, 2", f"s_lshl_b32 s{t}, s{t}, 2", f"s_add_u32 s{sFres}, s{sFres}, s{t}"]
    return L

def dry_exit(): return [f"s_cmp_lg_u32 s{sDry}, 0", "s_cbranch_scc1 Ldry_ret"] if cfg.WARM and MODE[0] == "P" else []
def dry_point(name): return [opaque(dry_exit() + [name + ":"])] if cfg.WARM and MODE[0] == "P" else []

def cs(k):
    if not (cfg.STAMP and cfg.CST): return []
    return [Ins("\n".join("    " + l for l in [f"s_lshl_b32 s95, s{sP}, 3", f"s_add_u32 s95, s95, {30 + k}"] + stamp(17, "s95")), "waitall")]

def csetup():
    L = [S(x) for x in cstage_setup()]
    L += [S(f"s_mov_b32 s{sT}, {XS}")]
    t0, t1, t2 = T0, T0 + 1, T0 + 4
    L += [V(f"v_bfe_u32 v{t2}, v{vL16}, 7, 2"), V(f"v_lshlrev_b32 v{t2}, 1, v{t2}"), V(f"v_mov_b32 v{T0+2}, 0"), V(f"v_mov_b32 v{T0+3}, 0")]
    for k in range(3):
        if k: L += [V(f"v_add_u32 v{t2}, 2, v{t2}")]
        L += [V(f"v_add_u32 v{t0}, s{sWin}, v{t2}"), V(f"v_subrev_u32 v{t1}, {NR}, v{t0}"), V(f"v_min_u32 v{t0}, v{t0}, v{t1}"),
              V(f"v_mad_u32_u24 v{t0}, v{t0}, s{sT}, v{vColB}"), V(f"v_and_b32 v{t1}, 4, v{t2}"), V(f"v_lshl_add_u32 v{cAddr+k}, v{t1}, 1, v{t0}")]
    L += [V(f"v_mov_b32 v{cTa}, v{vTa}"), V(f"v_bfe_u32 v{cIdx}, v{vL16}, 4, 2"), V(f"v_mul_u32_u24 v{cIdx}, 0x5555, v{cIdx}")]
    L += [V(f"v_add_u32 v{cRes}, s{sFres}, v{vRes}"), V(f"v_add_u32 v{cHw}, v{cAddr}, v{vHwA}"), V(f"v_add_u32 v{cHr}, s{sFh}, v{vHr}")]
    L += [S(f"s_lshl_b32 s{sT}, s{sJ}, 11"), V(f"v_add_u32 v{T0+4}, s{sT}, v{vL16}"),
          S(f"s_lshl_b32 s{sT}, s{sGrp}, 2"), S(f"s_add_u32 s{sT}, s{sT}, {CBASE}"), V(f"v_mov_b32 v{T0}, s{sT}"), V(f"v_mov_b32 v{T0+5}, 1")]
    return L

def out_cvt(q):
    X, b = divmod(q, 3); a = acc2(X, b); d = H + 24 * X + 8 * b
    return [V(f"v_cvt_pk_bf16_f32 v{d+i}, v{a+2*i}, v{a+2*i+1}") for i in range(8)]
def out_fin(q):
    X, b = divmod(q, 3); d = H + 24 * X + 8 * b
    return [V(f"v_permlane16_swap_b32 v{d+i}, v{d+4+i}") for i in range(4)] + [store(X, 2 * b), store(X, 2 * b + 1)]

def pk_stats():
    ST, QT = G, G + 4
    L = []
    SA, QA = 56, 64
    for q in range(6):
        for u in range(4):
            y = ACC2 + 16 * q + 4 * u
            if q == 0: L += [pk("add", SA + 2 * u, y, y + 2), pk("mul", QA + 2 * u, y, y), pk("fma", QA + 2 * u, y + 2, y + 2, QA + 2 * u)]
            else:
                for e in (0, 2): L += [pk("add", SA + 2 * u, SA + 2 * u, y + e), pk("fma", QA + 2 * u, y + e, y + e, QA + 2 * u)]
    for u in range(4): L += [V(f"v_add_f32 v{ST+u}, v{SA+2*u}, v{SA+2*u+1}"), V(f"v_add_f32 v{QT+u}, v{QA+2*u}, v{QA+2*u+1}")]
    return L

def conv_first():
    ST, QT = G, G + 4
    L = [S(f"s_setprio {cfg.CPRIO}"), V(f"v_add_u32 v92, {2 * TGRP}, v{cTa}"), V(f"v_add_u32 v93, {4 * TGRP}, v{cTa}")]
    L += unit_reads(0, True) + unit_reads(1, True)
    L += [MFMA("32x32x8", ACC2 + 16 * q, T0 + 2, T0 + 2, None) for q in range(6)]
    def areads(u):
        o = unit_reads(u, True)[:2]
        return [DSR("ds_read2_b32", H + 4 * (u - 24) + 2 * k, 2, min(i.rd), i.text.split(None, 3)[3]) for k, i in enumerate(o)]
    for u in range(36):
        buf = cBuf[u % 2]; pre = cfg.PREA
        if u == 18: L += dry_point("Ldry0")
        if cfg.BC1 and u == cfg.BC1:
            l = lab("t"); L.append(opaque([f"s_cmp_eq_u32 s{sGrp}, 0", f"s_cbranch_scc1 {l}"] + bar_lines(None) + [f"{l}:"]))
        L.append(SM32(ACC2 + 16 * (u % 6), H + 4 * (u - 24) if pre and u >= 24 else buf + 8, buf, cIdx))
        if u == cfg.FLAGU:
            L.append(opaque([f"s_cmp_lg_u32 s{sDry}, 0", "s_cbranch_scc1 Lflag_done", f"s_cmp_lt_u32 s{sFrag}, {NPROD}", "s_cbranch_scc0 Lflag_done",
                             f"s_lshl_b32 s{sT+2}, s{sFrag}, 2", "s_waitcnt vmcnt(0)", "s_mov_b64 exec, 1",
                             f"buffer_store_dword v48, v49, s[32:35], s{sT+2} offen sc0 sc1", "s_mov_b64 exec, -1"] + stamp(16, 57) + ["Lflag_done:"]))
        if pre and u == 22:
            for v in range(24, 36): L += areads(v)
            for k in (0, 1, 2, 3, 4, 5, 9, 10, 11): L += res_reads(k)
        if u + 2 in (12, 24):
            l = lab("r"); L.append(opaque([f"s_or_b32 s{sT}, s{sDry}, s{sGrp}", f"s_cbranch_scc1 {l}", "s_barrier", f"{l}:"]))
        if u + 2 < 36: L += unit_reads(u + 2, True)[2 if pre and u + 2 >= 24 else 0:]
        if u == (30 if pre else 34): L += [x for k in ((6, 7, 8) if pre else range(12)) for x in res_reads(k)]
    L += [S(f"s_mov_b32 s{sO+2}, 50331648"), S(f"s_mov_b32 s{sStInc}, {16 * 98304}")]
    L += pk_stats()
    L.append(Ins("s_waitcnt lgkmcnt(0)", "waitall"))
    return L

def cstage():
    NB = cfg.NBUF
    ST, QT = G, G + 4
    L = [COMMENT("previous tile out, convolution")]
    if cfg.CPRIO: L.append(S(f"s_setprio {cfg.CPRIO}"))
    def zero(q): return MFMA("32x32x8", ACC2 + 16 * q, T0 + 2, T0 + 2, None)
    def stat(q):
        o = []
        for e in range(4):
            for u in range(4):
                y = ACC2 + 16 * q + 4 * u + e
                if q == 0 and e == 0: o += [V(f"v_mul_f32 v{QT+u}, v{y}, v{y}")]
                elif q == 0 and e == 1: o += [V(f"v_add_f32 v{ST+u}, v{y-1}, v{y}"), V(f"v_fmac_f32 v{QT+u}, v{y}, v{y}")]
                else: o += [V(f"v_add_f32 v{ST+u}, v{ST+u}, v{y}"), V(f"v_fmac_f32 v{QT+u}, v{y}, v{y}")]
        return o
    L += cs(0) + unit_reads(0) + unit_reads(1)
    c0 = out_cvt(0)
    L += [g2(1, 1, 0)] + c0[:4] + [g2(1, 1, 1)] + c0[4:] + [g2(1, 1, 2), zero(0)]
    nst = 0
    def mid(nst):
        lm = lab("m")
        return opaque([f"s_or_b32 s{sT}, s{sFirst}, s{sDry}", f"s_cbranch_scc1 {lm}"] + bar_lines(f"s_waitcnt vmcnt({nst})") +
                      [f"s_cmp_eq_u32 s{sGrp}, 0", f"s_cbranch_scc0 {lm}"] + [l for gg in wdma_interval() for l in gg] + [f"{lm}:"])
    for u in range(36):
        q, rho = divmod(u, 6); buf = cBuf[u % NB]
        if u == 18: L += dry_point("Ldry1")
        if u == cfg.MIDU: L.append(mid(nst))
        nxt = unit_reads(u + 2) if u + 2 < 36 else res_reads(3 * (u - 34)) + res_reads(3 * (u - 34) + 1) + res_reads(3 * (u - 34) + 2)
        early = 3 if NB == 3 else 0
        if nxt[0].kind == "valu": early += 1
        L += nxt[:early] + [SM32(ACC2 + 16 * q, buf + 8, buf, cIdx)] + nxt[early:]
        st = stat(q - 1) if q and not cfg.PKST else []
        fill = {0: out_fin(q), 1: st[:8], 2: (out_cvt(q + 1) if q < 5 else []), 3: st[8:16] + ([zero(q + 1)] if q < 5 else []), 4: st[16:24], 5: st[24:]}[rho]
        nst += sum(i.kind == "vstore" for i in fill)
        L += fill
    for k in range(6, 12): L += res_reads(k)
    L += [S(f"s_add_u32 s{sStO}, s{sStO}, s{sStInc}"), S(f"s_add_u32 s{sStO2}, s{sStO}, 98304"), S(f"s_mov_b32 s{sO+2}, 50331648"), S(f"s_mov_b32 s{sStInc}, {16 * 98304}")]
    L += cs(1) + (pk_stats() if cfg.PKST else stat(5))
    if MODE[0] == "P": L.append(opaque(dry_exit() + ["Ljoin:"]))
    L += [DSW("ds_write_b64", T0 + 4, ST + 2 * k, 2, f"offset:{PBASE + 1024 * (k >> 1) + 8 * (k & 1)}") for k in range(4)]
    L.append(Ins("", "touch", [r for x in XF for r in R(x, 4)], [], cost=0))
    L += cs(2) + signal() + ([mid(12)] if cfg.MIDU == 36 else []) + poll()
    L += cs(3)
    L += [COMMENT("LayerNorm, exchange of the normalised tile, residual into the accumulators, first GEMM1")]
    dst = {(0, 0): ST, (0, 1): QT, (1, 0): 56, (1, 1): 60, (2, 0): 64, (2, 1): 68, (3, 0): 72, (3, 1): 76}
    for w in range(4):
        for k in range(2): L.append(DSR("ds_read_b128", dst[(w, k)], 4, vL16, f"offset:{PBASE + 2048 * w + 1024 * k}"))
    MN, SQ, SC, SH = 56, 60, 64, 68
    if cfg.PKF:
        def pks(op, d, x, sreg, *rest, mods=""):
            return V(f"v_pk_{op}_f32 v[{d}:{d+1}], v[{x}:{x+1}], s[{sreg}:{sreg+1}]" + "".join(f", v[{r}:{r+1}]" for r in rest) + mods)
        for k in range(2):
            for h in (0, 2): L += [pk("add", dst[(0, k)] + h, dst[(0, k)] + h, dst[(1, k)] + h), pk("add", dst[(2, k)] + h, dst[(2, k)] + h, dst[(3, k)] + h)]
        for k in range(2):
            for h in (0, 2): L += [pk("add", dst[(0, k)] + h, dst[(0, k)] + h, dst[(2, k)] + h)]
        for h in (0, 2): L += [pks("mul", MN + h, ST + h, sInv96, mods=" op_sel_hi:[1,0]")]
        for h in (0, 2): L += [pk("mul", SQ + h, MN + h, MN + h)]
        for h in (0, 2): L += [pks("fma", SQ + h, QT + h, sInv96, SQ + h, mods=" op_sel_hi:[1,0,1] neg_lo:[0,0,1] neg_hi:[0,0,1]")]
        L += [DSR("ds_read_b128", G, 4, vL16, f"offset:{IBASE}"), DSR("ds_read_b128", G + 4, 4, vL16, f"offset:{IBASE + 1024}")]
        for u in range(4): L += [V(f"v_max_f32 v{SQ+u}, 0, v{SQ+u}")]
        for h in (0, 2): L += [pks("add", SQ + h, SQ + h, sInv96, mods=" op_sel:[0,1] op_sel_hi:[1,1]")]
        for u in range(4): L += [V(f"v_rsq_f32 v{SQ+u}, v{SQ+u}")]
        for h in (0, 2): L += [pks("mul", SC + h, SQ + h, sKap, mods=" op_sel_hi:[1,0]")]
        for h in (0, 2): L += [pk("mul", SH + h, MN + h, SC + h, mods=" neg_lo:[1,0] neg_hi:[1,0]")]
    else:
        for k in range(2):
            for u in range(4): L += [V(f"v_add_f32 v{dst[(0,k)]+u}, v{dst[(0,k)]+u}, v{dst[(1,k)]+u}")]
            for u in range(4): L += [V(f"v_add_f32 v{dst[(2,k)]+u}, v{dst[(2,k)]+u}, v{dst[(3,k)]+u}")]
            for u in range(4): L += [V(f"v_add_f32 v{dst[(0,k)]+u}, v{dst[(0,k)]+u}, v{dst[(2,k)]+u}")]
        MN, SQ, SC, SH = 56, 60, 64, 68
        for u in range(4): L += [V(f"v_mul_f32 v{MN+u}, s{sInv96}, v{ST+u}")]
        for u in range(4): L += [V(f"v_mul_f32 v{SQ+u}, v{MN+u}, v{MN+u}")]
        for u in range(4): L += [V(f"v_fma_f32 v{SQ+u}, v{QT+u}, s{sInv96}, -v{SQ+u}")]
        L += [DSR("ds_read_b128", G, 4, vL16, f"offset:{IBASE}"), DSR("ds_read_b128", G + 4, 4, vL16, f"offset:{IBASE + 1024}")]
        for u in range(4): L += [V(f"v_max_f32 v{SQ+u}, 0, v{SQ+u}")]
        for u in range(4): L += [V(f"v_add_f32 v{SQ+u}, s{sEps}, v{SQ+u}")]
        for u in range(4): L += [V(f"v_rsq_f32 v{SQ+u}, v{SQ+u}")]
        for u in range(4): L += [V(f"v_mul_f32 v{SC+u}, s{sKap}, v{SQ+u}")]
        for u in range(4): L += [V(f"v_mul_f32 v{SH+u}, -v{MN+u}, v{SC+u}")]
    L += dry_point("Ldry3")
    if cfg.MIDU == 37: L.append(mid(12))
    if cfg.PKN:
        for q in range(6):
            for u in range(4):
                for e in (0, 2):
                    y = ACC2 + 16 * q + 4 * u + e; o = u & 1
                    L.append(pk("fma", y, y, SC + (u & 2), SH + (u & 2), mods=f" op_sel:[0,{o},{o}] op_sel_hi:[1,{o},{o}]"))
    L += cs(4)
    if cfg.MIDU == 38: L.append(mid(12))
    first_w1 = opaque([f"s_cmp_lg_u32 s{sFirst}, 0", "s_cbranch_scc1 Lw1wait", f"Lw1wait_ret{MODE[0]}:"] + [w_addr()[0].text])
    def ident(q):
        X, b = divmod(q, 3)
        return [MFMA("32x32x16", acc2(X, b), G, XF[6 * X + 2 * b], None), MFMA("32x32x16", acc2(X, b), G + 4, XF[6 * X + 2 * b + 1], acc2(X, b))]
    def cvt(q):
        o = []
        for u in range(4):
            y = ACC2 + 16 * q + 4 * u
            if not cfg.PKN: o += [V(f"v_fma_f32 v{y+e}, v{y+e}, v{SC+u}, v{SH+u}") for e in range(4)]
            o += [V(f"v_cvt_pk_bf16_f32 v{H+12*u+2*q+h}, v{y+2*h}, v{y+2*h+1}") for h in range(2)]
            if not cfg.W2X: o += [DSW("ds_write_b64", cHw, H + 12 * u + 2 * q, 2, f"offset:{192 * u + 8 * q}")]
            elif u & 1:
                r0, r1 = H + 12 * (u - 1) + 2 * q, H + 12 * u + 2 * q
                o += [Ins(f"ds_write2_b64 v{cHw}, v[{r0}:{r0+1}], v[{r1}:{r1+1}] offset0:{24 * (u - 1) + q} offset1:{24 * u + q}", "dsw", [cHw, r0, r0 + 1, r1, r1 + 1], [])]
        return o
    for q in range(6):
        c = cvt(q)
        if q >= 1:
            i0, i1 = ident(q - 1); n = len(c)
            c = c[:1] + [i0] + c[1:n // 2] + [i1] + c[n // 2:]
        L += c
    L += cs(5) + signal()
    L += ident(5)
    L.append(first_w1)
    for j in range(6): L += rd_w1(j, 1)
    L += [V(f"v_mov_b32 v{G+4+i}, 0") for i in range(4)]
    L += poll()
    L += cs(6)
    L += [DSR("ds_read_b128", H + 8 * s + 4 * X, 4, cHr, f"offset:{XS * X + 32 * s}") for X in range(2) for s in range(6)]
    L += [g1(0, j) for j in range(6)]
    L.append(Ins("s_waitcnt lgkmcnt(0)", "waitall"))
    L += cs(7)
    if cfg.CPRIO: L.append(S("s_setprio 0"))
    ab = cfg.ABL.split("+")
    if "hw" in ab: L = [i for i in L if not (i.kind == "dsw" and cHw in i.rd)]
    if "pk" in ab: L = [i for i in L if i.kind != "pk32"]
    if "brd" in ab: L = [i for i in L if not (i.text.startswith("ds_read_b64") and i.rd & set(R(cAddr, 3)))]
    if "sm" in ab: L = [i for i in L if "smfmac" not in i.text]
    if "st" in ab: L = [i for i in L if i.kind != "vstore"]
    if "unpk" in ab:
        out = []
        for i in L:
            if i.kind != "pk32": out.append(i); continue
            m = re.match(r"v_pk_(\w+)_f32 (.*?)( op_sel.*)?$", i.text); regs = [int(x) for x in re.findall(r"v\[(\d+):", m.group(2))]
            o = 1 if m.group(3) and "op_sel:[0,1" in m.group(3) else 0
            for h in range(2):
                r = [regs[0] + h, regs[1] + h] + [(x + o if m.group(3) else x + h) for x in regs[2:]]
                out.append(V(f"v_{m.group(1)}_f32 " + ", ".join(f"v{x}" for x in r)))
        L = out
    return L

def epilogue(with_stores):
    L = [COMMENT("epilogue: last GEMM2 k-step, convert")]
    att = [[g2(1, 1, b)] for b in range(3)]
    def cv(X, t):
        a = acc2(X, t >> 1) + 8 * (t & 1); d = H + 24 * X + 4 * t
        return [V(f"v_cvt_pk_bf16_f32 v{d+i}, v{a+2*i}, v{a+2*i+1}") for i in range(4)]
    def fin(X, u):
        d = H + 24 * X + 8 * u
        o = [V(f"v_permlane16_swap_b32 v{d+i}, v{d+4+i}") for i in range(4)] if cfg.S64 else []
        return o + ([store(X, 2 * u), store(X, 2 * u + 1)] if with_stores else [])
    seq = [(X, u) for X in range(2) for u in range(3)]
    body = []
    for k, (X, u) in enumerate(seq):
        body.append(cv(X, 2 * u) + cv(X, 2 * u + 1) + (fin(*seq[k - 1]) if k else []))
    first = body[0] + body[1] + body[2]
    L += first[:2] + interleave(first[2:], att, 0.0, 0.5)
    L += body[3] + body[4] + body[5] + fin(*seq[5])
    return L

def wparams(mode, first):
    P = []; a = P.append
    if mode == "P":
        a(f"s_mov_b32 s{sW}, s6"); a(f"s_and_b32 s{sW+1}, s7, 0xffff"); a(f"s_mov_b32 s{sW+2}, {12 * WSET}"); a(f"s_mov_b32 s{sW+3}, 0x20000")
        a(f"s_mov_b32 s{sWstep}, {WSET}"); a(f"s_mov_b32 s{sWlim}, {12 * WSET}"); a(f"s_mov_b32 s{sWins}, 1024"); a(f"s_mov_b32 s{sWbase}, s{sJ3k}")
        a(f"s_mov_b32 s{sWsrc}, {first * WSET}"); a(f"v_mov_b32 v{vDMA}, v{vL16}")
        return P
    a(f"s_cmp_lt_u32 s{sJ}, 2"); a(f"s_cselect_b32 s{sW}, s10, s12"); a(f"s_cselect_b32 s{sW+1}, s11, s13")
    a(f"s_cselect_b32 s{sWstep}, 64, 6144"); a(f"s_mov_b32 s{sWins}, 1024")
    a(f"s_cselect_b32 s{sWins}, 12288, s{sWins}"); a(f"s_cselect_b32 s{sWsrc}, {first + 1}, {first}"); a(f"s_mul_i32 s{sWsrc}, s{sWsrc}, s{sWstep}"); a(f"s_mul_i32 s{sWlim}, s{sWstep}, 12")
    a(f"s_and_b32 s{sW+1}, s{sW+1}, 0xffff"); a(f"s_mov_b32 s{sW+2}, 73728"); a(f"s_mov_b32 s{sW+3}, 0x20000")
    a(f"s_and_b32 s{sT+3}, s{sJ}, 1"); a(f"s_mul_i32 s{sT+3}, s{sT+3}, 3"); a(f"s_mul_i32 s{sWbase}, s{sT+3}, s{sWins}")
    a(f"v_lshrrev_b32 v20, 6, v{vL16}"); a("v_mul_u32_u24 v20, 768, v20"); a(f"v_and_b32 v21, 48, v{vL16}"); a("v_add_u32 v20, v20, v21")
    a(f"s_cmp_lt_u32 s{sJ}, 2"); a("s_cselect_b64 vcc, -1, 0"); a(f"v_cndmask_b32 v{vDMA}, v{vL16}, v20, vcc")
    return P

def prologue():
    P = []
    a = P.append
    a(f"s_cmp_ge_u32 s2, 256"); a("s_cbranch_scc1 Lend")
    if cfg.STAMP: a("s_memtime s[92:93]"); a("s_load_dwordx2 s[94:95], s[0:1], 56")
    if cfg.DBG or cfg.ENC or cfg.THR: a("s_memtime s[92:93]"); a("s_memrealtime s[94:95]")
    a("s_load_dwordx8 s[4:11], s[0:1], 0"); a("s_load_dwordx4 s[12:15], s[0:1], 32"); a("s_load_dwordx4 s[56:59], s[0:1], 48")
    a("v_lshrrev_b32 v16, 6, v0"); a("v_and_b32 v17, 63, v0")
    a(f"v_readfirstlane_b32 s{sT}, v16")
    if cfg.WARM:
        a("s_getpc_b64 s[60:61]"); a("v_lshlrev_b32 v38, 6, v0")
        if cfg.CSL:
            a(f"s_lshr_b32 s{sT+1}, s2, 3"); a(f"s_lshl_b32 s{sT+1}, s{sT+1}, 10"); a(f"v_add_u32 v38, s{sT+1}, v38"); a("v_and_b32 v38, 0x7fff, v38")
            a(f"v_cmp_gt_u32 vcc, {16 * cfg.CSL}, v0"); a("s_and_saveexec_b64 s[62:63], vcc"); a("s_cbranch_execz Lcode_done")
        a("v_min_u32 v38, CODE_LAST, v38")
        a("global_load_dword v39, v38, s[60:61]")
        if cfg.CSL: a("Lcode_done:"); a("s_mov_b64 exec, -1")
    a(f"s_and_b32 s{sT+1}, s2, 7"); a(f"s_lshl_b32 s{sT+1}, s{sT+1}, 5"); a(f"s_lshr_b32 s{sT+2}, s2, 3"); a(f"s_add_u32 s{sT+1}, s{sT+1}, s{sT+2}")
    a(f"s_lshr_b32 s{sTy}, s{sT+1}, 4"); a(f"s_and_b32 s{sTx}, s{sT+1}, 15")
    a(f"s_lshr_b32 s{sGrp}, s{sT}, 2"); a(f"s_and_b32 s{sJ}, s{sT}, 3"); a(f"s_mov_b32 s{sXrow}, s{sT}")
    a(f"s_mul_i32 s{sJ3k}, s{sJ}, 3072"); a(f"s_movk_i32 s{s1k}, 1024")
    a(f"s_mov_b32 s{sEx48}, -1"); a(f"s_mov_b32 s{sEx48+1}, 0xffff")
    a(f"v_lshlrev_b32 v{vL16}, 4, v17")
    a(f"s_cmp_eq_u32 s{sTx}, 0"); a(f"s_cselect_b32 s{sAdjL}, 0, 384"); a(f"s_cselect_b32 s{sT+3}, 384, 0"); a(f"s_cselect_b32 s{sT+4}, 24, 0")
    a(f"v_subrev_u32 v{vOffL}, s{sT+3}, v{vL16}"); a(f"v_cmp_le_u32 vcc, s{sT+4}, v17"); a("s_nop 1")
    a(f"v_cndmask_b32 v{vOffL}, 2.0, v{vOffL}, vcc")
    a(f"s_cmp_eq_u32 s{sTx}, 15"); a(f"s_cselect_b32 s{sT+4}, 24, 64"); a(f"v_cmp_gt_u32 vcc, s{sT+4}, v17"); a("s_nop 1")
    a(f"v_cndmask_b32 v{vOffR}, 2.0, v{vL16}, vcc")
    a("v_mul_u32_u24 v18, 683, v0"); a("v_lshrrev_b32 v18, 16, v18")
    a("v_mul_u32_u24 v19, 96, v18"); a("v_sub_u32 v19, v0, v19")
    a("v_mul_u32_u24 v20, 960, v18"); a("v_lshl_add_u32 v20, v19, 1, v20")
    a("v_lshlrev_b32 v21, 1, v19")
    P += row_setup()
    a("s_waitcnt lgkmcnt(0)")
    if cfg.STAMP: a("s_memtime s[96:97]"); a("s_memrealtime s[98:99]"); a("s_waitcnt lgkmcnt(0)")
    for (d, p, n) in ((sX, 4, 50331648), (28, 8, 4800), (32, 6, 192), (sO, 14, 0)):
        a(f"s_mov_b32 s{d}, s{p}"); a(f"s_and_b32 s{d+1}, s{p+1}, 0xffff"); a(f"s_mov_b32 s{d+2}, {n}"); a(f"s_mov_b32 s{d+3}, 0x20000")
    for j in range(5): a(f"buffer_load_ushort v{24+j}, v20, s[28:31], 0 offen offset:{192*j}")
    a("buffer_load_ushort v29, v21, s[32:35], 0 offen")
    a("s_mov_b64 s[4:5], s[56:57]"); a("s_mov_b64 s[6:7], s[58:59]")
    a(f"s_cmp_eq_u32 s{sXrow}, 3"); a(f"s_cselect_b32 s{sFrag}, s2, {NPROD}")
    a("v_mov_b32 v48, 0"); a(f"v_lshlrev_b32 v49, 2, v17")
    a(f"s_cmp_lt_u32 s{sFrag}, {NPROD}"); a("s_cbranch_scc0 Lprep_noload")
    a(f"s_mul_i32 s{sT+2}, s{sFrag}, 21846"); a(f"s_lshr_b32 s{sT+2}, s{sT+2}, 16"); a(f"s_mul_i32 s{sT+3}, s{sT+2}, 3"); a(f"s_sub_u32 s{sT+6}, s{sFrag}, s{sT+3}")
    a("s_mov_b32 s28, s10"); a("s_and_b32 s29, s11, 0xffff"); a("s_mov_b32 s30, 73728"); a("s_mov_b32 s31, 0x20000")
    a("s_mov_b32 s32, s12"); a("s_and_b32 s33, s13, 0xffff"); a("s_mov_b32 s34, 73728"); a("s_mov_b32 s35, 0x20000")
    a(f"s_add_u32 s{sT+3}, s{sT+2}, 1"); a(f"s_cmp_eq_u32 s{sT+3}, 12"); a(f"s_cselect_b32 s{sT+3}, 0, s{sT+3}"); a(f"s_lshl_b32 s{sT+3}, s{sT+3}, 6")
    a(f"s_mul_i32 s{sT+4}, s{sT+2}, 6144")
    a("v_lshrrev_b32 v50, 5, v17"); a("v_and_b32 v51, 31, v17")
    a("v_mul_u32_u24 v52, 6144, v50"); a("v_lshl_add_u32 v52, v51, 1, v52"); a("v_add_u32 v53, 3072, v52")
    a("v_mul_u32_u24 v54, 768, v50"); a("v_and_b32 v50, 19, v51"); a("v_lshl_add_u32 v54, v50, 1, v54")
    a("v_and_b32 v50, 4, v51"); a("v_lshl_add_u32 v54, v50, 2, v54"); a("v_and_b32 v50, 8, v51"); a("v_add_u32 v54, v54, v50")
    def ld(q, r):
        if q < 6:
            a(f"s_add_u32 s{sT+5}, s{sT+3}, {q * 12288}")
            for i in range(8): a(f"buffer_load_ushort v{r+i}, v{52 + i // 4}, s[28:31], s{sT+5} offen offset:{768 * (i & 3)}")
        else:
            sp, bb = divmod(q - 6, 3)
            a(f"s_add_u32 s{sT+5}, s{sT+4}, {sp * 3072 + bb * 64}")
            for i in range(8): a(f"buffer_load_ushort v{r+i}, v54, s[32:35], s{sT+5} offen offset:{192 * (i & 3) + 1536 * (i >> 2)}")
    def cv(q, r, mx):
        for i in range(0, 8, 2): a(f"v_and_b32 v50, 0x7fff, v{r+i}"); a(f"v_and_b32 v51, 0x7fff, v{r+i+1}"); a(f"v_max3_u32 v{mx}, v{mx}, v50, v51")
        if q < 6:
            for i in range(4): a(f"v_lshl_or_b32 v{r+i}, v{r+1+2*i}, 16, v{r+2*i}")
        else:
            for i in range(8): a(f"v_lshlrev_b32 v{r+i}, 16, v{r+i}")
            for i in range(4): a(f"v_cvt_pk_f16_f32 v{r+i}, v{r+2*i}, v{r+1+2*i}")
    a(f"s_mov_b32 s{sThird}, s{sT+6}")
    for third in range(3):
        if third < 2: a(f"s_cmp_eq_u32 s{sT+6}, {third}"); a(f"s_cbranch_scc0 Lprep_t{third + 1}")
        for i in range(4): ld(4 * third + i, 64 + 8 * i)
        if third < 2: a("s_branch Lprep_noload"); a(f"Lprep_t{third + 1}:")
    def prep_convert():
        a(f"s_cmp_lt_u32 s{sFrag}, {NPROD}"); a("s_cbranch_scc0 Lprep_nocv")
        a("v_mov_b32 v56, 0"); a("v_mov_b32 v57, 0"); a("s_waitcnt vmcnt(9)")
        for third in range(3):
            if third < 2: a(f"s_cmp_eq_u32 s{sThird}, {third}"); a(f"s_cbranch_scc0 Lprep_c{third + 1}")
            if third != 1: a(f"v_mov_b32 v{57 if third == 0 else 56}, 0x3a80")
            for i in range(4): cv(4 * third + i, 64 + 8 * i, 56 if 4 * third + i < 6 else 57)
            if third < 2: a("s_branch Lprep_st"); a(f"Lprep_c{third + 1}:")
        a("Lprep_st:")
        a("s_mov_b32 s28, s6"); a("s_and_b32 s29, s7, 0xffff"); a(f"s_mov_b32 s30, {12 * WSET}"); a("s_mov_b32 s31, 0x20000"); a(f"s_lshl_b32 s{sT+2}, s{sFrag}, 12")
        for i in range(4): a(f"buffer_store_dwordx4 v[{64+8*i}:{67+8*i}], v{vL16}, s[28:31], s{sT+2} offen offset:{1024 * i} sc0 sc1")
        a("v_max_u32 v50, v56, v57"); a("v_cmp_lt_u32 vcc, 0x4100, v50"); a("s_cmp_lg_u64 vcc, 0"); a(f"s_cselect_b32 s{sT+4}, 3, 1")
        a("v_cmp_le_u32 vcc, 0x3a80, v56"); a("s_cmp_lg_u64 vcc, 0"); a(f"s_cselect_b32 s{sT+5}, 4, 0"); a(f"s_or_b32 s{sT+4}, s{sT+4}, s{sT+5}")
        a("v_cmp_le_u32 vcc, 0x3a80, v57"); a("s_cmp_lg_u64 vcc, 0"); a(f"s_cselect_b32 s{sT+5}, 8, 0"); a(f"s_or_b32 s{sT+4}, s{sT+4}, s{sT+5}")
        a(f"v_mov_b32 v48, s{sT+4}"); a("s_branch Ldry_skip")
        a("Lprep_nocv:")
    a("Lprep_noload:")
    if cfg.CLS: a(f"s_cmp_ge_u32 s2, {cfg.CLS}"); a("s_cbranch_scc1 Lrow_late")
    a(f"s_mov_b64 exec, s[{sEx48}:{sEx48+1}]")
    for g in row_loads(): P += g
    a("s_mov_b64 exec, -1")
    if cfg.CLS: a("Lrow_late:")
    a("s_mov_b32 s32, s4"); a("s_and_b32 s33, s5, 0xffff"); a("s_mov_b32 s34, 256"); a("s_mov_b32 s35, 0x20000")
    P += wparams("P", 1)
    assert cfg.WLATE
    if cfg.STAMP: a("s_memtime s[100:101]"); a("s_waitcnt lgkmcnt(0)")
    a(f"s_mov_b32 s{sA16}, {A_imm:#x}"); a(f"s_mov_b32 s{sK16}, {K_imm:#x}")
    a(f"s_mov_b32 s{sInv96}, {f32bits(1/96):#x}"); a(f"s_mov_b32 s{sEps}, {f32bits(1e-5):#x}"); a(f"s_mov_b32 s{sKap}, {f32bits(kap_use):#x}")
    D = cfg.D
    a(f"s_lshl_b32 s{sT}, s{sTy}, 5"); a(f"s_lshl_b32 s{sT+1}, s{sGrp}, 3"); a(f"s_add_u32 s{sT}, s{sT}, s{sT+1}"); a(f"s_lshl_b32 s{sT+1}, s{sJ}, 1")
    a(f"s_add_u32 s{sT}, s{sT}, s{sT+1}"); a(f"s_mul_i32 s{sT}, s{sT}, 98304"); a(f"s_mul_i32 s{sT+1}, s{sTx}, 6144"); a(f"s_add_u32 s{sStO}, s{sT}, s{sT+1}")
    a(f"s_mov_b32 s{sDry+1}, s{sStO}")
    def addresses():
        a(f"v_lshrrev_b32 v37, 4, v{vL16}")
        a("v_and_b32 v30, 7, v37"); a("v_lshrrev_b32 v31, 5, v37"); a("v_bfe_u32 v32, v37, 4, 1")
        a(f"s_mul_i32 s{sT}, s{sJ}, 48"); a(f"s_add_u32 s{sT}, s{sT}, {XBASE}")
        a("v_mul_u32_u24 v33, 784, v30"); a("v_mul_u32_u24 v34, 384, v31"); a(f"v_add3_u32 v{vColB}, v33, v34, s{sT}")
        a(f"v_mul_u32_u24 v33, {XS - 384}, v31"); a("v_lshlrev_b32 v34, 3, v32"); a(f"v_sub_u32 v{vHwA}, v33, v34")
        a("v_and_b32 v35, 31, v37"); a("v_lshlrev_b32 v36, 4, v31")
        a(f"v_mul_u32_u24 v33, 192, v35"); a(f"v_add_u32 v{vSt}, v33, v36")
        a("v_lshrrev_b32 v33, 2, v35"); a(f"v_lshl_add_u32 v33, v33, 4, v{vSt}"); a(f"v_add_u32 v{vHr}, {XBASE}, v33")
        a("v_add_u32 v33, 2, v35"); a("v_lshrrev_b32 v33, 2, v33"); a(f"v_lshl_add_u32 v33, v33, 4, v{vSt}"); a(f"v_add_u32 v{vRes}, {XBASE + 384}, v33")
        if cfg.S64:
            a("v_and_b32 v33, 15, v37"); a("v_mul_u32_u24 v33, 192, v33"); a("v_lshl_add_u32 v33, v32, 5, v33"); a(f"v_add_u32 v{vSt}, v33, v36")
        a("v_and_b32 v33, 3, v37"); a("v_bfe_u32 v34, v37, 2, 2")
        a("v_and_b32 v35, 1, v37"); a("v_mul_u32_u24 v35, 400, v35"); a("v_bfe_u32 v36, v37, 1, 1"); a("v_mul_u32_u24 v36, 192, v36"); a("v_add_u32 v35, v35, v36")
        a("v_bfe_u32 v36, v37, 2, 1"); a("v_lshlrev_b32 v36, 5, v36"); a("v_sub_u32 v35, v35, v36")
        a("v_bfe_u32 v36, v37, 3, 2"); a("v_lshlrev_b32 v36, 2, v36"); a("v_sub_u32 v35, v35, v36")
        a(f"s_mul_i32 s{sT}, s{sJ}, {6 * TGRP}"); a(f"s_add_u32 s{sT}, s{sT}, {TBASE}")
        a("v_lshl_add_u32 v35, v31, 4, v35"); a(f"v_add_u32 v{vTa}, s{sT}, v35")
        a("v_lshl_add_u32 v35, v31, 3, v34"); a("v_lshlrev_b32 v35, 6, v35"); a("v_lshl_add_u32 v35, v32, 5, v35"); a(f"v_lshl_add_u32 v{vW1b}, v33, 3, v35")
        a("v_lshl_add_u32 v35, v31, 2, v34"); a("v_mul_u32_u24 v35, 192, v35"); a("v_lshl_add_u32 v35, v32, 5, v35")
        a("v_and_b32 v36, 1, v37"); a("v_lshl_add_u32 v35, v36, 4, v35"); a("v_bfe_u32 v36, v37, 1, 1"); a(f"v_lshl_add_u32 v{vW2b}, v36, 3, v35")
    def enter(targets, ret=0, keep=False):
        a(f"s_mov_b32 s{sDry+3}, {ret}"); a(f"s_mov_b32 s{sSave}, s{sRing}"); a(f"s_mov_b32 s{sSave+1}, s{sSig}")
        a(f"s_mov_b32 s{sDry}, 1"); a(f"s_mov_b32 s{sFirst}, 0"); a(f"s_mov_b32 s{sCnt}, 1"); a(f"s_mov_b32 s{sT+3}, -1"); a(f"s_mov_b32 s{sTgt}, 0")
        a(f"s_mov_b32 s{sDry+2}, s{sWsrc}"); a("s_waitcnt lgkmcnt(0)")
        a("s_setvskip -1, 0")
        for k, t in enumerate(targets[:3]): a(f"s_cmp_eq_u32 s{sJ}, {k}"); a(f"s_cbranch_scc1 {t}")
        a(f"s_branch {targets[3]}")
    def init_state():
        a(f"s_mov_b32 s{sXM}, 0"); a(f"s_mov_b32 s{sRing}, {WBASE}")
        a(f"s_mov_b32 s{sSig}, 1"); a(f"s_mov_b32 s{sP}, 0"); a(f"s_xor_b32 s{sFirst}, s{sGrp}, 1"); a(f"s_lshl_b32 s{sWin}, s{sGrp}, 3")
        a(f"s_mov_b32 s{sStInc}, 0"); a(f"s_mov_b32 s{sStO}, s{sDry+1}"); a(f"s_add_u32 s{sStO2}, s{sStO}, 98304"); a(f"s_mov_b32 s{sTgt}, 0")
        a(f"s_mov_b32 s{sO+2}, 0"); a(f"s_mov_b32 s{sDry}, 0")
    init_state()
    a(f"v_mov_b32 v{vSt}, 0")
    a(f"s_cmp_eq_u32 s{sGrp}, 0"); a("s_cbranch_scc0 Ldry_skip")
    addresses()
    a("v_bfe_u32 v35, v37, 3, 1"); a("v_lshl_add_u32 v35, v35, 2, v33")
    a("v_and_b32 v36, 1, v35"); a("v_lshlrev_b32 v36, 4, v36"); a("v_mov_b32 v38, 0x3f80"); a("v_lshlrev_b32 v36, v36, v38")
    a("v_lshrrev_b32 v35, 1, v35"); a("v_lshl_add_u32 v35, v32, 2, v35")
    a("v_bfe_u32 v38, v37, 2, 1"); a("v_cmp_eq_u32 vcc, v38, v31"); a("s_nop 1"); a("v_cndmask_b32 v35, 8, v35, vcc")
    for d in range(8):
        a(f"v_cmp_eq_u32 vcc, {d}, v35"); a("s_nop 1"); a(f"v_cndmask_b32 v{40+d}, 0, v36, vcc")
    a(f"ds_write_b128 v{vL16}, v[40:43] offset:{IBASE}"); a(f"ds_write_b128 v{vL16}, v[44:47] offset:{IBASE + 1024}")
    prep_convert()
    if cfg.WARM:
        enter(["Lc1", "Ldry0", "Ljoin", "Ldry3"])
        a("Ldry_ret:"); a("s_setvskip 0, 0"); a("s_mov_b64 exec, -1"); a("s_setprio 0"); a(f"s_mov_b32 s{sWsrc}, s{sDry+2}")
        init_state()
        a(f"s_mov_b32 s{sRing}, s{sSave}"); a(f"s_mov_b32 s{sSig}, s{sSave+1}")
        for k, n in ((1, "Ldry_B"), (2, "Ldry_B2"), (3, "Ldry_B3")) + (((4, "Ldry_A4"),) if cfg.LAST else ()): a(f"s_cmp_eq_u32 s{sDry+3}, {k}"); a(f"s_cbranch_scc1 {n}")
    a("Ldry_skip:")
    if cfg.CLS:
        a(f"s_cmp_ge_u32 s2, {cfg.CLS}"); a("s_cbranch_scc0 Lrow_done"); a("s_waitcnt vmcnt(0)")
        a(f"s_mov_b64 exec, s[{sEx48}:{sEx48+1}]")
        for g in row_loads(): P += g
        a("s_mov_b64 exec, -1"); a("Lrow_done:")
    a("s_waitcnt vmcnt(9)")
    a("v_cmp_eq_u32 vcc, 2, v18"); a("v_lshlrev_b32 v29, 16, v29"); a("s_nop 0"); a("v_cndmask_b32 v29, 0, v29, vcc"); a("v_or_b32 v26, v26, v29")
    a("v_mov_b32 v29, 0"); a("v_mov_b32 v30, 0"); a("v_mov_b32 v31, 0")
    a(f"v_lshrrev_b32 v33, 2, v19"); a(f"v_mul_u32_u24 v33, {TGRP}, v33"); a("v_lshl_add_u32 v33, v18, 5, v33")
    a("v_and_b32 v34, 1, v19"); a("v_mul_u32_u24 v34, 400, v34"); a("v_bfe_u32 v35, v19, 1, 1"); a("v_mul_u32_u24 v35, 192, v35"); a("v_add3_u32 v33, v33, v34, v35")
    a("v_cmp_gt_u32 vcc, 480, v0"); a("s_and_saveexec_b64 s[72:73], vcc")
    a(f"ds_write_b128 v33, v[24:27] offset:{TBASE}"); a(f"ds_write_b128 v33, v[28:31] offset:{TBASE + 16}")
    a("s_mov_b64 exec, -1")
    a("v_mov_b32 v28, 0")
    a("v_cmp_eq_u32 vcc, 4, v18"); a("s_and_saveexec_b64 s[72:73], vcc")
    a(f"ds_write_b128 v33, v[28:31] offset:{TBASE + 32}"); a(f"ds_write_b128 v33, v[28:31] offset:{TBASE + 48}")
    a("v_and_b32 v34, 3, v19"); a("v_cmp_eq_u32 vcc, 2, v34"); a("s_and_b64 exec, exec, vcc")
    a(f"ds_write_b128 v33, v[28:31] offset:{TBASE + 64}")
    a("s_mov_b64 exec, -1")
    a("v_mov_b32 v33, 0")
    for o in (0, 16, 32): a(f"ds_write_b128 v33, v[28:31] offset:{TPAD + o}")
    a(f"ds_write_b128 v33, v[28:31] offset:{CBASE}")
    if cfg.STAMP:
        a("v_mov_b32 v16, 0"); a("v_mov_b32 v17, 0"); a("v_writelane_b32 v16, s92, 60"); a("v_writelane_b32 v16, s96, 56")
        a("v_writelane_b32 v16, s98, 54"); a("v_writelane_b32 v16, s100, 57")
        P += stamp(16, 61)
        a(f"s_mov_b32 s96, {cfg.SMASK & 0xffffffff:#x}"); a(f"s_mov_b32 s97, {(cfg.SMASK >> 32) & 0xffffffff:#x}")
    a(f"s_cmp_eq_u32 s{sGrp}, 0"); a("s_cbranch_scc0 Lpro_w4")
    P += [i.text for i in csetup()]
    if cfg.FLAGU >= 0:
        a(f"s_cmp_lt_u32 s{sFrag}, {NPROD}"); a("s_cbranch_scc1 Lpro_w5"); a("s_waitcnt vmcnt(0)"); a("Lpro_w5:")
        a("s_waitcnt vmcnt(4) lgkmcnt(0)"); P += stamp(16, 58)
    else:
        a("s_waitcnt vmcnt(0) lgkmcnt(0)"); P += stamp(16, 58)
        a(f"s_cmp_lt_u32 s{sFrag}, {NPROD}"); a("s_cbranch_scc0 Lflag_done"); a(f"s_lshl_b32 s{sT+2}, s{sFrag}, 2")
        a("s_mov_b64 exec, 1"); a(f"buffer_store_dword v48, v49, s[32:35], s{sT+2} offen sc0 sc1"); a("s_mov_b64 exec, -1")
        P += stamp(16, 57); a("Lflag_done:")
    a(f"s_mov_b32 s{sWsrc}, {8 * WSET}"); a(f"s_lshl_b32 s{sXrow}, s{sJ}, 1"); a(f"s_add_u32 s{sXrow}, s{sXrow}, 20")
    a("s_barrier")
    P += stamp(17, 58); a("s_branch Lc1")
    a("Lpro_w4:")
    a(f"s_mov_b64 exec, s[{sEx48}:{sEx48+1}]")
    a(f"s_and_b32 s{sXrow}, s{sJ}, 1"); a(f"s_add_u32 s{sXrow}, s{sXrow}, 8")
    for r in range(2):
        P += row_setup()
        a(f"s_cmp_lt_u32 s{sJ}, 2"); a(f"s_cbranch_scc0 Lpro_h{r}")
        for g in row_loads()[:5]: P += g
        a(f"s_branch Lpro_g{r}"); a(f"Lpro_h{r}:")
        for g in row_loads()[5:] + row_loads()[8:]: P += g
        a(f"Lpro_g{r}:"); a(f"s_add_u32 s{sXrow}, s{sXrow}, 2")
        if r == 0: a("s_waitcnt vmcnt(5) lgkmcnt(0)"); P += stamp(16, 58); a("s_barrier")
    a("s_mov_b64 exec, -1")
    a("s_waitcnt vmcnt(5)"); a("s_barrier"); a("s_waitcnt vmcnt(0)"); a("s_barrier")
    P += stamp(17, 50)
    addresses()
    if cfg.WARM:
        enter(["Lbody2P", "Lq12", "Lhalf2", "Lq32"], 1); a("Ldry_B:")
    if cfg.WARM and cfg.LPOLL:
        enter(["Lbody1P", "Lq11", "Lhalf1", "Lq31"], 2); a("Ldry_B2:")
    a(f"v_mov_b32 v18, {CBASE + 8}"); a(f"s_cmp_eq_u32 s{sJ}, 0"); a("s_cbranch_scc0 Lmode_wait")
    a(f"v_lshrrev_b32 v20, 2, v{vL16}"); a(f"s_mov_b32 s{sT}, {cfg.POLLS}"); a(f"s_mov_b32 s{sMode}, 2")
    P += stamp(17, 51)
    a("Lpoll_g:"); a("buffer_load_dword v19, v20, s[32:35], 0 offen sc1"); a("s_waitcnt vmcnt(0)")
    a("v_cmp_ne_u32 vcc, 0, v19"); a(f"s_bcnt1_i32_b64 s{sT+2}, vcc"); a(f"s_cmp_eq_u32 s{sT+2}, {NPROD}"); a("s_cbranch_scc1 Lpoll_ok")
    a("s_sleep 12"); a(f"s_sub_u32 s{sT}, s{sT}, 1"); a(f"s_cmp_lg_u32 s{sT}, 0"); a("s_cbranch_scc1 Lpoll_g"); a("s_branch Lmode_set")
    a("Lpoll_ok:")
    P += stamp(17, 52)
    if cfg.STAMP: a(f"v_writelane_b32 v17, s{sT}, 53")
    a("v_cmp_eq_u32 vcc, 13, v19"); a(f"s_bcnt1_i32_b64 s{sT+2}, vcc"); a(f"s_cmp_eq_u32 s{sT+2}, {NPROD}"); a("s_cbranch_scc0 Lmode_set")
    a(f"s_mov_b32 s{sMode}, {cfg.FORCE or 1}")
    a("Lmode_set:"); a(f"v_mov_b32 v19, s{sMode}"); a("ds_write_b32 v18, v19")
    a("Lmode_wait:"); a("ds_read_b32 v19, v18"); a("s_waitcnt lgkmcnt(0)"); a(f"v_readfirstlane_b32 s{sMode}, v19")
    a(f"s_cmp_eq_u32 s{sMode}, 0"); a("s_cbranch_scc1 Lmode_wait")
    P += stamp(16, 59)
    a(f"s_cmp_eq_u32 s{sMode}, 1"); a("s_cbranch_scc1 Lmode_P")
    P += wparams("R", 1)
    a("Lmode_P:")
    for q in range(1, 4):
        for g in wdma_groups(f"{WBASE + q * WSET}"): P += g
    if cfg.WARM and not cfg.LPOLL:
        enter(["Lbody1P", "Lq11", "Lhalf1", "Lq31"], 2); a("Ldry_B2:")
    a("s_waitcnt vmcnt(6)"); a("s_barrier")
    assert D == 3
    P += bar_lines()
    for g in wdma_interval(): P += g
    a(f"s_lshl_b32 s{sXrow}, s{sJ}, 1"); a(f"s_add_u32 s{sXrow}, s{sXrow}, 12"); a(f"s_mov_b64 exec, s[{sEx48}:{sEx48+1}]")
    P += row_dma_lines(); a(f"s_add_u32 s{sXrow}, s{sXrow}, 1")
    P += row_dma_lines(); a(f"s_add_u32 s{sXrow}, s{sXrow}, 7")
    a("s_mov_b64 exec, -1")
    P += bar_lines("s_waitcnt vmcnt(18)")
    for g in wdma_interval(): P += g
    if cfg.WARM:
        enter(["LconvP", "Ldry1", "Lbody0P", "Lhalf0"], 3); a("Ldry_B3:")
    a(f"s_cmp_eq_u32 s{sMode}, 1"); a("s_cbranch_scc0 LouterR")
    return P

HEADER = """
; kernarg: 0 x, 8 dw_large, 16 dw_small, 24 w1, 32 w2, 40 out, 48 debug, 56 workspace
;
;  - depthwise 5x5 (+1x1 in a spare slot of the centre tap): sparse MFMA 32x32x32, A = banded tap matrix read from an LDS
;    table, one wave per 24 channels; f32 sums; LayerNorm statistics and the normalised tile are exchanged through LDS.
;    registers; weights stream through a 4-set LDS ring.  gelu(v) = v / (1 + exp2(a v + b v^3)), the tanh form exactly.
;  - 36 waves re-lay w1 / w2 into MFMA fragment order in the workspace at the start of the launch (w2 as f16) and report in
;    the GELU output and the second GEMM use f16 (labels ..P); otherwise, or if the reports do not arrive, the workgroup
;    reads the weights as given and keeps the GELU output and second GEMM in bf16 / f32 (labels ..R).
;  - waves that wait at the start walk through the later code with s_setvskip on, only to fill the instruction cache.
"""

def build():
    D = cfg.D
    out = []
    hdr = HEADER.strip("\n").split("\n") + [
           f"; @launch grid=(256,1,1) block=(512,1,1) lds={LDS_BYTES}",
           '.amdgcn_target "amdgcn-amd-amdhsa--gfx950"', ".text", f".globl {KNAME}", ".p2align 8", f".type {KNAME},@function", f"{KNAME}:"]
    out += hdr
    def raw(lines):
        for l in lines: out.append(l if l.endswith(":") or l.startswith(".") else "    " + l)
    raw(prologue())
    for m in "PR":
        MODE[0] = m
        epi0, epi1 = csetup(), epilogue(True)
        cs = cstage()
        bodies = [loop_body(0), loop_body(1), loop_body(2)]
        marks = [LABEL(n) for n in ("@c", "@a1", "@a2", "@b2", "@e0", "@x", "@e1", "@end")]
        lin = [marks[0]] + cs + [marks[1]] + bodies[0] + [marks[2]] + bodies[0] + [marks[3]] + bodies[1] + [marks[4]] + epi0 + [marks[5]] + bodies[2] + [marks[6]] + epi1 + [marks[7]]
        lin, pend = insert_lgkm(lin, cfg.OLD); assert not pend
        lin, _ = fix_hazards(lin)
        idx = [next(k for k, i in enumerate(lin) if i is m) for m in marks]
        cst, a1, a2, b2, e0, n2, e1 = (lin[idx[k] + 1: idx[k + 1]] for k in range(7))
        n1 = sum(states(i) for i in a1 if i.kind == "nop") - sum(states(i) for i in a2 if i.kind == "nop")
        assert [i.text for i in a1 if i.kind != "nop"] == [i.text for i in a2 if i.kind != "nop"]
        if n1 > 0: cst = cst + [Ins(f"s_nop {n1 - 1}", "nop")]
        for path in ([cst, n2, a2, a2, b2, a2, e0, cst, b2, a2, e1], [cst, n2, n2, e0, cst, n2, n2, e1]):
            seq = [i for blk in path for i in blk]
            _, bad = fix_hazards(seq, check_only=True); assert not bad, bad
            assert not check_lgkm(seq)
        def emit(blk):
            for i in blk:
                if i.kind == "touch": continue
                for l in i.text.split("\n"): out.append(l if i.kind in ("label", "opaque", "dsw_op") or l.startswith("    ") or l.endswith(":") else "    " + l)
        if m == "P":
            c1, pend = insert_lgkm(e0 + [LABEL("@")] + conv_first(), cfg.OLD); c1, _ = fix_hazards(c1)
            c1 = c1[[i.text for i in c1].index("@:") + 1:]
            kj = [k for k, i in enumerate(cst) if "Ljoin:" in i.text][0]
            _, bad = fix_hazards(c1 + cst[kj:], check_only=True); assert not bad, bad
            check_lgkm(c1 + cst[kj:])
            raw(["s_branch LouterP", "Lc1:"]); emit(c1); raw(dry_exit() + ["s_branch Ljoin"])
            raw(["Lw1wait:", "s_barrier", f"ds_read_b32 v{T0+1}, v{T0} offset:8", "s_waitcnt lgkmcnt(0)", f"v_readfirstlane_b32 s{sMode}, v{T0+1}",
                 f"s_cmp_eq_u32 s{sMode}, 1", "s_cbranch_scc1 Lw1wait_retP"] + wparams("R", 8) + ["s_branch Lw1wait_retR"])

        out.append(f"Louter{m}:")
        emit(e0)
        raw(bar_lines())
        raw([f"s_cmp_eq_u32 s{sGrp}, 0", f"s_cbranch_scc0 Lno_w{m}"] + [l for g in wdma_interval() for l in g] + [f"Lno_w{m}:"])
        if cfg.BC1 and m == "P": raw([f"s_cmp_eq_u32 s{sP}, 0", "s_cbranch_scc1 Lc1"])
        out.append(f"Lconv{m}:")
        emit(cst)
        raw(dry_exit())
        raw([f"s_sub_u32 s{sLastC}, s{sGrp}, s{sP}", f"s_max_i32 s{sLastC}, s{sLastC}, 0", f"s_mov_b32 s{sCnt}, 9",
             f"s_or_b32 s{sT}, s{sGrp}, s{sFirst}", f"s_cbranch_scc0 LloopX{m}",
             f"s_sub_u32 s{sCnt}, 6, s{sP}" if cfg.LAST else f"s_mov_b32 s{sCnt}, 6", f"s_cmp_lg_u32 s{sFirst}, 0", f"s_cselect_b32 s{sCnt}, 2, s{sCnt}", f"s_branch LloopN{m}"])
        tail = [f"s_add_u32 s{sWin}, s{sWin}, 4", f"s_cmp_ge_u32 s{sWin}, {NR}", f"s_cselect_b32 s{sWin}, 0, s{sWin}",
                f"s_add_u32 s{sP}, s{sP}, 1", f"s_cmp_eq_u32 s{sP}, 1", f"s_cbranch_scc1 Louter{m}"]
        raw([".p2align 6", f"LloopX{m}:"]); emit(b2)
        raw(dry_exit() + [f"s_mov_b32 s{sXM}, 1", f"s_mov_b32 s{sLastC}, 1", f"s_cmp_eq_u32 s{sP}, 0", f"s_cselect_b32 s{sCnt}, 1, 5", "s_waitcnt vmcnt(18)", f"s_branch Lnowait0{m}"])
        raw([".p2align 6", f"LloopA{m}:"]); emit(a2)
        raw([f"s_sub_u32 s{sCnt}, s{sCnt}, 1", f"s_cmp_lg_u32 s{sCnt}, 0", f"s_cbranch_scc1 LloopA{m}"] + dry_exit() +
            [f"s_mov_b32 s{sCnt}, 9", f"s_cmp_eq_u32 s{sXM}, 0", f"s_cbranch_scc1 LloopX{m}"] + tail)
        k6 = [k for k, i in enumerate(e1) if i.kind == "vstore"][5] + 1
        raw(bar_lines()); raw([l for g in wdma_interval() for l in g])
        if cfg.LAST and cfg.WARM and m == "P":
            raw(["s_getpc_b64 s[60:61]", "Lpc3:", "s_add_u32 s60, s60, Lbody3P-Lpc3", "s_addc_u32 s61, s61, 0", f"s_lshl_b32 s{sT}, s{sJ}, 11",
                 f"v_lshl_add_u32 v{T0}, v{vL16}, 1, s{sT}", f"global_load_dword v{T0+1}, v{T0}, s[60:61]"])
        emit(e1[:k6])
        raw(bar_lines("s_waitcnt vmcnt(6)")); raw([l for g in wdma_interval() for l in g]); emit(e1[k6:])
        raw(stamp(16, 62))
        raw(bar_lines("s_waitcnt vmcnt(6)")); raw([l for g in wdma_interval() for l in g])
        if cfg.LAST and cfg.WARM and m == "P":
            raw([f"s_mov_b32 s{sDry+3}, 4", f"s_mov_b32 s{sDry}, 1", "s_setvskip -1, 0", f"s_cmp_eq_u32 s{sJ}, 0", "s_cbranch_scc1 Lbody3P", f"s_cmp_eq_u32 s{sJ}, 1", "s_cbranch_scc1 Lq13",
                 f"s_cmp_eq_u32 s{sJ}, 2", "s_cbranch_scc1 Lhalf3", "s_branch Lq33", "Ldry_A4:"])
        raw(bar_lines())
        raw(["s_branch Lfin"])
        raw([".p2align 6", f"LloopN{m}:"]); emit(n2)
        raw([f"s_sub_u32 s{sCnt}, s{sCnt}, 1", f"s_cmp_lg_u32 s{sCnt}, 0", f"s_cbranch_scc1 LloopN{m}"] + dry_exit() + [
             f"s_cmp_lg_u32 s{sFirst}, 0", f"s_mov_b32 s{sFirst}, 0", f"s_mov_b32 s{sCnt}, 2", f"s_cbranch_scc1 LloopA{m}"] + tail)
        if cfg.LAST:
            lb, _ = insert_lgkm(n2 + [LABEL("@")] + last_body(), cfg.OLD); lb, _ = fix_hazards(lb)
            lb = lb[[i.text for i in lb].index("@:") + 1:]
            check_lgkm(n2 + lb)
            emit(lb)
        else:
            out.append(f"Lepi1{m}:")
            emit(e1)
        raw(dry_exit())
        raw(stamp(16, 62))
        raw(["s_branch Lfin"] if m == "P" else [])
        if m == "P": out.append("Lraw:")
    out.append("Lfin:")
    if cfg.STAMP:
        raw(["s_waitcnt vmcnt(0)"] + stamp(16, 63) + ["s_memrealtime s[98:99]", "s_waitcnt lgkmcnt(0)", "v_writelane_b32 v16, s98, 55",
             "s_load_dwordx2 s[94:95], s[0:1], 56", "s_waitcnt lgkmcnt(0)", "s_mov_b32 s28, s94", "s_and_b32 s29, s95, 0xffff", "s_mov_b32 s30, 0x1000000", "s_mov_b32 s31, 0x20000",
             f"s_lshl_b32 s89, s{sGrp}, 2", f"s_add_u32 s89, s89, s{sJ}", "s_lshl_b32 s90, s2, 3", "s_add_u32 s89, s89, s90", "s_lshl_b32 s89, s89, 9", "s_add_u32 s89, s89, 0x100000",
             f"v_lshrrev_b32 v18, 2, v{vL16}", "buffer_store_dword v16, v18, s[28:31], s89 offen", "buffer_store_dword v17, v18, s[28:31], s89 offen offset:256"])
    if cfg.DBG:
        raw(["s_waitcnt vmcnt(0)", "s_memtime s[90:91]", "s_memrealtime s[96:97]", "s_load_dwordx2 s[98:99], s[0:1], 48", "s_waitcnt lgkmcnt(0)",
             "s_sub_u32 s90, s90, s92", "s_sub_u32 s96, s96, s94", "s_mov_b32 s28, s98", "s_and_b32 s29, s99, 0xffff", "s_mov_b32 s30, 64", "s_mov_b32 s31, 0x20000",
             f"s_cmp_eq_u32 s{sGrp}, 1", "s_cbranch_scc0 Lend", f"s_cmp_eq_u32 s{sJ}, 0", "s_cbranch_scc0 Lend",
             "s_lshr_b32 s89, s2, 5", "s_lshl_b32 s89, s89, 3", "s_and_b32 s91, s2, 31", "s_cmp_eq_u32 s91, 0", "s_cbranch_scc0 Lend",
             "v_mov_b32 v16, s90", "v_mov_b32 v17, s96", "v_mov_b32 v18, 0", "s_mov_b64 exec, 1", "buffer_store_dwordx2 v[16:17], v18, s[28:31], s89 offen"])
    if cfg.ENC:
        raw(["s_waitcnt vmcnt(0)", "s_memtime s[90:91]", "s_memrealtime s[96:97]", "s_waitcnt lgkmcnt(0)", "s_sub_u32 s90, s90, s92", "s_sub_u32 s96, s96, s94",
             f"s_cmp_eq_u32 s{sGrp}, 1", "s_cbranch_scc0 Lend", f"s_cmp_eq_u32 s{sJ}, 0", "s_cbranch_scc0 Lend",
             f"v_lshrrev_b32 v18, 3, v{vL16}", f"buffer_load_ushort v19, v18, s[{sO}:{sO+3}], s{sStO} offen sc0 sc1",
             f"v_lshrrev_b32 v20, 4, v{vL16}", "v_and_b32 v21, 7, v20", "v_mul_u32_u24 v21, 3, v21", "v_cmp_gt_u32 vcc, 8, v20", "v_mov_b32 v22, s90", "v_mov_b32 v23, s96",
             "v_cndmask_b32 v22, v23, v22, vcc", "v_lshrrev_b32 v22, v21, v22", "v_and_b32 v22, 7, v22", "s_waitcnt vmcnt(0)", "v_and_b32 v19, 0xfff8, v19", "v_or_b32 v19, v19, v22",
             "s_mov_b64 exec, 0xffff", f"buffer_store_short v19, v18, s[{sO}:{sO+3}], s{sStO} offen sc0 sc1"])
    if cfg.THR:
        raw(["s_waitcnt vmcnt(0)", "s_memrealtime s[96:97]", "s_waitcnt lgkmcnt(0)", "s_sub_u32 s96, s96, s94", f"s_cmp_gt_u32 s96, {cfg.THR}", "s_cbranch_scc0 Lend",
             "v_mov_b32 v18, 0", "v_mov_b32 v19, 0x4000", "s_mov_b64 exec, 1", f"buffer_store_short v19, v18, s[{sO}:{sO+3}], s{sStO} offen sc0 sc1"])
    raw(["Lend:", "s_endpgm"])
    if cfg.ALIGN:
        tmp, npad, nwid = align8([l.replace("CODE_LAST", "0x1000") for l in out], "Lc1", "Lend")
        out = [l.replace("v38, 0x1000", "v38, CODE_LAST") for l in tmp]
        sys.stderr.write(f"align8: {npad} pads, {nwid} widened\n")
    nbytes = sum(insn_sizes([l.replace("CODE_LAST", "0x1000") for l in out])[:out.index("Lraw:")])
    out = [l.replace("CODE_LAST", str(nbytes // 64 * 64 - 128)) for l in out]
    sys.stderr.write(f"hot code bytes {nbytes}\n"); assert nbytes <= 32768 or cfg.STAMP
    out += ['.section .rodata,"a"', ".p2align 6", f".amdhsa_kernel {KNAME}", "  .amdhsa_next_free_vgpr 256", f"  .amdhsa_next_free_sgpr {102 if cfg.STAMP or cfg.DBG or cfg.ENC or cfg.THR else 96}",
            "  .amdhsa_accum_offset 256", "  .amdhsa_group_segment_fixed_size 0", "  .amdhsa_kernarg_size 64", "  .amdhsa_user_sgpr_count 2",
            "  .amdhsa_user_sgpr_kernarg_segment_ptr 1", "  .amdhsa_system_sgpr_workgroup_id_x 1", ".end_amdhsa_kernel"]
    return "\n".join(out) + "\n"

open(sys.argv[1], "w").write(build())
```
